```python
import torch

def _softmax(x, axis=-1):
    return torch.softmax(x, dim=axis)
def _gelu(x):
    return torch.nn.functional.gelu(x, approximate="tanh")
def _silu(x):
    return torch.nn.functional.silu(x)
def _sigmoid(x):
    return torch.sigmoid(x)
def _layernorm(x, axis=-1, eps=1e-5):
    m = x.mean(dim=axis, keepdim=True)
    v = x.var(dim=axis, keepdim=True, unbiased=False)
    return (x - m) / torch.sqrt(v + eps)
def _scatter_add(tgt, idx, src, axis=0):
    return tgt.clone().index_add_(axis, idx, src)
def _segment_sum(src, seg, n):
    out = torch.zeros((n,) + src.shape[1:], dtype=src.dtype)
    return out.index_add_(0, seg, src)
def _pad(x, pw):
    flat = tuple(v for pair in reversed(pw) for v in pair)
    return torch.nn.functional.pad(x, flat)

kernel_name = 'interleave_layers__gqa_block_cached__glu_gated_reglu__decode'

def setup_inputs():

    _w = (lambda a: (lambda t: t.to(torch.bfloat16) if t.is_floating_point() else t)(torch.as_tensor(a)))
    def _A_setup():
        B, Sq, D = 2, 1, 512
        Hq, Hkv, Sk, Dh = 32, 8, 8192, 128
        assert Hq % Hkv == 0, (Hq, Hkv)
        return {
            "x": _w((lambda *s: torch.randn(*s, dtype=torch.bfloat16) * 0.05)(B, Sq, D)),
            "k_cache": _w((lambda *s: torch.randn(*s, dtype=torch.bfloat16) * 1.6)(B, Hkv, Sk, Dh)),
            "v_cache": _w((lambda *s: torch.randn(*s, dtype=torch.bfloat16) * 0.8)(B, Hkv, Sk, Dh)),
            "wq": _w((lambda *s: torch.randn(*s, dtype=torch.bfloat16) * 1.6)(D, Hq * Dh) * (D ** -0.5)),
            "wo": _w((lambda *s: torch.randn(*s, dtype=torch.bfloat16) * 0.8)(Hq * Dh, D) * ((Hq * Dh) ** -0.5)),
        }
    _A_in = _A_setup()

    def _B_setup():
        B, S, D, F = 2, 1, 512, 1792
        return {
            "x": _w((lambda *s: torch.randn(*s, dtype=torch.bfloat16) * 0.05)(B, S, D)),
            "W_gate": _w((lambda *s: torch.randn(*s, dtype=torch.bfloat16) * 0.4)(D, F) * (2.0 / D) ** 0.5),
            "W_up": _w((lambda *s: torch.randn(*s, dtype=torch.bfloat16) * 0.4)(D, F) * (2.0 / D) ** 0.5),
            "W_down": _w((lambda *s: torch.randn(*s, dtype=torch.bfloat16) * 0.4)(F, D) * (1.0 / F) ** 0.5),
        }
    _B_in = _B_setup()

    return {
        "A_x": _A_in["x"],
        "A_k_cache": _A_in["k_cache"],
        "A_v_cache": _A_in["v_cache"],
        "A_wq": _A_in["wq"],
        "A_wo": _A_in["wo"],
        "B_x": _B_in["x"],
        "B_W_gate": _B_in["W_gate"],
        "B_W_up": _B_in["W_up"],
        "B_W_down": _B_in["W_down"],
    }

def reference(A_x, A_k_cache, A_v_cache, A_wq, A_wo, B_x, B_W_gate, B_W_up, B_W_down):
    def _A_ref(x, k_cache, v_cache, wq, wo):
        B, Sq, D = x.shape
        Hq, Dh = 32, 128
        Hkv = k_cache.shape[1]
        rep = Hq // Hkv
        q = (lambda x, *d: x.permute(*d))((x @ wq).reshape(B, Sq, Hq, Dh), 0, 2, 1, 3)
        k = (lambda x, n, axis: torch.repeat_interleave(x, n, dim=axis))(k_cache, rep, axis=1)
        v = (lambda x, n, axis: torch.repeat_interleave(x, n, dim=axis))(v_cache, rep, axis=1)
        scores = torch.einsum("bhqd,bhkd->bhqk", q, k) * (Dh ** -0.5)
        p = _softmax(scores, axis=-1)
        o = torch.einsum("bhqk,bhkd->bhqd", p, v)
        return (lambda x, *d: x.permute(*d))(o, 0, 2, 1, 3).reshape(B, Sq, Hq * Dh) @ wo

    def _B_ref(x, W_gate, W_up, W_down):
        gate = torch.einsum("bsd,df->bsf", x, W_gate)
        up = torch.einsum("bsd,df->bsf", x, W_up)
        gate = gate * (lambda x, dt: x.to(dt))(gate > 0, gate.dtype)
        h = gate * up
        return torch.einsum("bsf,fd->bsd", h, W_down)

    x = A_x
    x = x + _A_ref(_layernorm(x, axis=-1), A_k_cache, A_v_cache, A_wq, A_wo)
    x = x + _B_ref(_layernorm(x, axis=-1), B_W_gate, B_W_up, B_W_down)
    x = x + _A_ref(_layernorm(x, axis=-1), A_k_cache, A_v_cache, A_wq, A_wo)
    x = x + _B_ref(_layernorm(x, axis=-1), B_W_gate, B_W_up, B_W_down)
    return x
```

```python
import re

def _regs(tok):
    tok = tok.strip()
    neg = tok.lstrip('-')
    if neg.startswith('abs(') and neg.endswith(')'): neg = neg[4:-1]
    if neg.startswith('|') and neg.endswith('|'): neg = neg[1:-1]
    m = re.fullmatch(r'([vas])(\d+)', neg)
    if m: return [(m.group(1), int(m.group(2)))]
    m = re.fullmatch(r'([vas])\[(\d+):(\d+)\]', neg)
    if m: return [(m.group(1), i) for i in range(int(m.group(2)), int(m.group(3))+1)]
    if neg == 'vcc': return [('s','vcc_lo'),('s','vcc_hi')]
    if neg in ('vcc_lo','vcc_hi'): return [('s',neg)]
    if neg == 'exec': return [('s','exec_lo'),('s','exec_hi')]
    if neg in ('exec_lo','exec_hi'): return [('s',neg)]
    if neg == 'm0': return [('s','m0')]
    return []

TRANS = ('v_exp_f32','v_log_f32','v_rcp_f32','v_rsq_f32','v_sqrt_f32','v_sin_f32','v_cos_f32')

class Ins:
    def __init__(self, text):
        self.text = text
        t = text.split(';')[0].strip()
        self.label = None; self.op = None; self.w=set(); self.r=set(); self.srcc=set(); self.ab=set()
        self.data=set(); self.target=None; self.dpp=False
        if t.endswith(':'):
            self.label = t[:-1]; return
        if not t or t.startswith('.'):
            return
        parts = t.split(None,1)
        op = parts[0]; self.op = op
        rest = parts[1] if len(parts)>1 else ''
        ops=[]; depth=0; cur=''
        for ch in rest:
            if ch in '[(' : depth+=1
            if ch in '])' : depth-=1
            if ch==',' and depth==0: ops.append(cur.strip()); cur=''
            else: cur+=ch
        if cur.strip(): ops.append(cur.strip())
        mods=''
        if ops:
            sp = ops[-1].split(None,1)
            ops[-1]=sp[0]
            if len(sp)>1: mods=sp[1]
        self.ops=ops; self.mods=mods
        R = [_regs(o) for o in ops]
        self.valu = op.startswith('v_') and not op.startswith('v_mfma') and not op.startswith('v_smfmac')
        self.mfma = op.startswith('v_mfma') or op.startswith('v_smfmac')
        self.vmem = op.startswith('buffer_') or op.startswith('global_')
        self.ds = op.startswith('ds_')
        self.salu = op.startswith('s_')
        self.trans = any(op.startswith(x) for x in TRANS)
        self.dpp = '_dpp' in op
        self.perml = op.startswith('v_permlane')
        if op.startswith('s_cbranch') or op=='s_branch':
            self.target = ops[0]
            if 'vcc' in op: self.r |= set(_regs('vcc'))
            if 'exec' in op: self.r |= set(_regs('exec'))
            return
        if self.mfma:
            self.w=set(R[0]); self.ab=set(R[1])|set(R[2])
            if op.startswith('v_smfmac'):
                self.srcc=set(R[0]); self.ab|=set(R[3])
            else: self.srcc=set(R[3])
            self.r=self.ab|self.srcc
            self.passes = 8 if ('32x32' in op) else (2 if '4x4' in op else 4)
            if op.startswith('v_smfmac_f32_16x16x64'): self.passes = 8
        elif self.valu:
            if op.startswith('v_cmp'):
                self.w=set(R[0]);
                for x in R[1:]: self.r|=set(x)
                if op.startswith('v_cmpx'): self.w|=set(_regs('exec'))
            elif self.perml or op.startswith('v_swap'):
                self.w=set(R[0])|set(R[1]); self.r=set(self.w)
            elif op.startswith('v_readlane') or op.startswith('v_readfirstlane'):
                self.w=set(R[0]);
                for x in R[1:]: self.r|=set(x)
            elif '_co_' in op:
                self.w=set(R[0])|set(R[1])
                for x in R[2:]: self.r|=set(x)
            else:
                self.w=set(R[0])
                for x in R[1:]: self.r|=set(x)
                if op.startswith('v_fmac') or op.startswith('v_writelane') or self.dpp or op.startswith('v_pk_fmac') or op.startswith('v_dot2c'): self.r|=set(R[0])
        elif self.vmem:
            isload = '_load' in op
            lds = bool(re.search(r'\blds\b', mods))
            self.ldsdma = lds
            if isload and not lds:
                self.w=set(R[0])
                for x in R[1:]: self.r|=set(x)
            else:
                for x in R: self.r|=set(x)
                if not isload: self.data=set(R[0]) if op.startswith('buffer_') else set(R[1])
                if lds: self.r|=set(_regs('m0'))
                if 'atomic' in op and 'sc0' in mods: self.w=set(R[0])
        elif self.ds:
            if op.startswith('ds_read') or op.startswith('ds_bpermute') or op.startswith('ds_permute') or op.startswith('ds_swizzle'):
                self.w=set(R[0])
                for x in R[1:]: self.r|=set(x)
            else:
                for x in R: self.r|=set(x)
        elif self.salu:
            if op in ('s_waitcnt','s_nop','s_barrier','s_endpgm','s_sleep','s_setprio'): pass
            elif op.startswith('s_cmp') or op.startswith('s_bitcmp'):
                for x in R: self.r|=set(x)
            else:
                self.w=set(R[0]) if R else set()
                for x in R[1:]: self.r|=set(x)
                if 'saveexec' in op: self.w|=set(_regs('exec')); self.r|=set(_regs('exec'))
    def states(self):
        if self.op is None: return 0
        if self.op=='s_nop': return int(self.ops[0],0)+1
        return 1

BRANCH_MARGIN = 1
def isv(s): return {x for x in s if x[0] in 'va'}
def iss(s): return {x for x in s if x[0]=='s'}

def need(p, c):
    n=0
    if p.op is None or c.op is None: return 0
    if p.valu:
        vw=isv(p.w); sw=iss(p.w)
        if vw:
            if c.mfma and (vw & c.r): n=max(n,2)
            if c.valu and c.dpp and (vw & c.r): n=max(n,2)
            if c.valu and c.perml and (vw & c.r): n=max(n,2)
            if (c.op.startswith('v_readlane') or c.op.startswith('v_readfirstlane')) and (vw & c.r): n=max(n,1)
            if p.trans and c.valu and (vw & c.r): n=max(n,1)
            if p.trans and (c.vmem or c.ds) and (vw & c.r): n=max(n,1)
        if sw:
            if c.vmem and (sw & c.r): n=max(n,5)
            if c.valu and (sw & c.r): n=max(n, 4 if (c.op.startswith('v_readlane') or c.op.startswith('v_writelane')) else 2)
            ex = {('s','exec_lo'),('s','exec_hi')} & sw
            if ex:
                if c.valu and c.dpp: n=max(n,5)
                if c.mfma or c.perml or c.op.startswith('v_read') or c.op.startswith('v_writelane'): n=max(n,4)
            if c.salu and (sw & c.r): n=max(n, BRANCH_MARGIN if c.target else 1)
    if p.mfma:
        tab={2:(2,4,5,5,1),4:(0,6,8,8,3),8:(0,10,12,12,7)}[p.passes]
        if c.mfma:
            if p.w & c.ab: n=max(n,tab[2])
            if p.w & c.srcc:
                n=max(n, tab[0] if (p.w==c.srcc and p.passes==c.passes) else tab[1])
            elif p.w & c.w: n=max(n,tab[1])
        else:
            if p.w & (c.r|c.w): n=max(n,tab[3])
            if c.valu and (p.srcc & c.w): n=max(n,tab[4])
    if p.vmem and len(p.data)>=3 and (p.data & c.w): n=max(n,2)
    if p.salu and ('s','m0') in p.w and c.vmem and getattr(c,'ldsdma',False): n=max(n,1)
    if p.op.startswith('v_dot2') and (p.w & (c.r|c.w)) and not (c.op==p.op and not (p.w & set(sum([_regs(o) for o in c.ops[1:3]],[])))): n=max(n,3)
    return n

class Asm:
    def __init__(self):
        self.lines=[]
    def __call__(self, text):
        for l in text.split('\n'):
            l=l.strip()
            if l: self.lines.append(l)
    def finalize(self):
        ins=[Ins(l) for l in self.lines]
        changed=True; total=0
        while changed:
            changed=False
            labels={x.label:i for i,x in enumerate(ins) if x.label}
            jumps={}
            for i,x in enumerate(ins):
                if x.target: jumps.setdefault(labels[x.target],[]).append(i)
            def preds(i):
                res=[]
                if i>0 and ins[i-1].op not in ('s_branch','s_endpgm','s_setpc_b64'): res.append(i-1)
                res+=jumps.get(i,[])
                return res
            for i,c in enumerate(ins):
                if c.op is None or c.op=='s_nop': continue
                worst=0
                stack=[(p,0) for p in preds(i)]; seen={}
                while stack:
                    j,d=stack.pop()
                    if d>=13: continue
                    if seen.get(j,99)<=d: continue
                    seen[j]=d
                    p=ins[j]
                    k=need(p,c)-d
                    if k>worst: worst=k
                    for q in preds(j): stack.append((q,d+p.states()))
                if worst>0:
                    ins.insert(i,Ins(f's_nop {worst-1}')); total+=1
                    changed=True
                    break
        self.nops=total
        out=[]
        for x in ins:
            out.append(x.text if (x.label or x.text.startswith('.')) else '  '+x.text)
        return '\n'.join(out)
```

```python
import sys, math, struct
from asmlib import Asm

NAME = "interleave_layers__gqa_block_cached__glu_gated_reglu__decode"
opt = dict(kvnt="nt", wnt="none", ts=0, fast=1, tobits=20, name=NAME+"_kernel")
out_path = sys.argv[1]
for x in sys.argv[2:]:
    k, v = x.split("=")
    opt[k] = v if k in ("kvnt", "wnt", "name") else int(v)
fl = lambda s: "" if s == "none" else " " + s.replace("+", " ")
KVNT = fl(opt["kvnt"]); WNT = fl(opt["wnt"])
TS = opt["ts"]

def f2u(x): return struct.unpack("<I", struct.pack("<f", x))[0]

LSTR = 0x100000
Q_OFF, O_OFF, LSE_OFF = 0x0, 0x10000, 0x50000
X1_OFF, X2_OFF, ST1_OFF, ST2_OFF = 0x51000, 0x55000, 0x59000, 0x5A000
WO_OFF, DN_OFF, GU_OFF = 0x60000, 0x80000, 0xA0000
RESET_OFF = 0x10000
TS_OFF = 0x400000
WS_SIZE = 0x800000
WQ_L, WO_L, WG_L, WU_L, WD_L = 0, 16384, 32768, 40960, 49152
OC_L = 57344; OC_W = 2368; OC_G = 592; OC_H = 144
ML_L = OC_L + 4*OC_W
H_L = ML_L + 128
LDS_BYTES = H_L + 256
sWV, sGRP, sIDX, sLAYER, sFAST, sTO = 3, 4, 5, 6, 7, 76
K_, V_, WS_, WQ_, WO_, WG_, WU_, WD_, X_, OUT_, DBG_ = 8, 12, 16, 20, 24, 28, 32, 36, 40, 44, 48
def srd(n): return f"s[{n}:{n+3}]"
sKV, sQld, sQst, sOst, sLst, sOld, sLld, sWOst = 77, 78, 79, 80, 81, 82, 83, 84
sMld, sXst, sSTst, sXC, sXE, sSTld, sGUst, sGUld, sDNst, sFB = 85, 86, 87, 88, 89, 90, 91, 92, 93, 94
sT0, sT1, sT2, sSEL0, sSEL1 = 95, 96, 97, 98, 99
sE = 100
TSB = 52
vL16, vL4, vQl, vOl, vXl, vC16, vG16, vQs, vDNs, vGUl, vXs = 0, 1, 2, 3, 4, 5, 6, 7, 8, 9, 10
vOCw, vOCr, vMLw, vMLr, vHw, vHr, vTR, vSTl = 11, 12, 13, 14, 15, 16, 17, 18
vX0, vX1 = 19, 20
vCSG, vCSU = 21, 22
vTSV = 23
vCSQ = 24
T = 28
QF = 28
DT = 44
ACL = 76
XT, YT = 80, 84
ZA, ZB = 88, 92
VR = 96
def v4(n): return f"v[{n}:{n+3}]"
def v2(n): return f"v[{n}:{n+1}]"
def a4(n): return f"a[{n}:{n+3}]"
aK, aWQ, aWO, aWG, aWU, aWD, aONE = 0, 128, 144, 176, 184, 192, 200

a = Asm()
slow_blocks = []
uid = [0]
def lab(p):
    uid[0] += 1
    return f"L_{p}_{uid[0]}"

def exec_set(lo, hi):
    if lo == 0xffffffff and hi == 0xffffffff: a("s_mov_b64 exec, -1")
    elif hi == 0 and lo <= 64: a(f"s_mov_b64 exec, {lo}")
    else: a(f"s_mov_b32 exec_lo, {lo:#x}\ns_mov_b32 exec_hi, {hi:#x}")
def exec_all(): a("s_mov_b64 exec, -1")

def pub(*stores):
    if not opt["fast"]:
        for s in stores: a(s + (" sc1" if s.startswith("buffer") else ""))
        return
    ls, lb = lab("slow"), lab("back")
    a(f"s_cmp_eq_u32 s{sFAST}, 1\ns_cbranch_scc0 {ls}")
    for s in stores: a(s)
    a(f"{lb}:")
    slow_blocks.append((ls, lb, [s + (" sc1" if s.startswith("buffer") else "") for s in stores]))

def poll(loads, regs, tmp):
    lp, ld = lab("poll"), lab("got")
    a(f"{lp}:")
    for l in loads: a(l + " sc1")
    a("s_waitcnt vmcnt(0)")
    r = list(regs)
    a(f"v_max3_u32 v{tmp}, v{r[0]}, v{r[1]}, v{r[2]}"); r = r[3:]
    while len(r) >= 2:
        a(f"v_max3_u32 v{tmp}, v{r[0]}, v{r[1]}, v{tmp}"); r = r[2:]
    if r: a(f"v_max_u32 v{tmp}, v{r[0]}, v{tmp}")
    a(f"""v_cmp_eq_u32 vcc, -1, v{tmp}
    s_cbranch_vccz {ld}
    s_mov_b64 exec, vcc
    s_sub_u32 s{sTO}, s{sTO}, 1
    s_cbranch_scc0 {lp}
    s_mov_b32 s{sTO}, 0
    {ld}:
    s_mov_b64 exec, -1""")

tsn = [0]
def ts(k):
    if TS: a(f"s_memrealtime s[{TSB+2*k}:{TSB+2*k+1}]")
def ts_flush(base, n):
    if TS:
        a("s_waitcnt lgkmcnt(0)")
        for k in range(n): a(f"v_writelane_b32 v{vTSV}, s{TSB+2*k}, {base+k}")

def mk_srd(d, lo, size):
    a(f"s_mov_b32 s{d}, s{lo}\ns_and_b32 s{d+1}, s{lo+1}, 0xffff\ns_mov_b32 s{d+2}, {size:#x}\ns_mov_b32 s{d+3}, 0x20000")

def mfma(d, A, B, c):
    a(f"v_mfma_f32_16x16x32_bf16 {d}, {A}, {B}, {c}")
def dpp(op, d, s0, s1, ctrl, bank=0xf):
    if s1 is None: a(f"{op}_dpp v{d}, v{s0} {ctrl} row_mask:0xf bank_mask:{bank:#x}")
    else: a(f"{op}_dpp v{d}, v{s0}, v{s1} {ctrl} row_mask:0xf bank_mask:{bank:#x}")
def allred_rows(op, r, t):
    a(f"v_mov_b32 v{t}, v{r}\nv_permlane16_swap_b32 v{r}, v{t}\n{op} v{r}, v{r}, v{t}")
    a(f"v_mov_b32 v{t}, v{r}\nv_permlane32_swap_b32 v{r}, v{t}\n{op} v{r}, v{r}, v{t}")

def dma(srdn, voff, sbase, step, n, ldsbase):
    for i in range(n):
        a(f"s_lshl_b32 s{sT2}, s{sWV}, 10\ns_add_u32 m0, s{sT2}, {ldsbase + i*4096}")
        if i: a(f"s_add_u32 s{sbase}, s{sbase}, {step}")
        a(f"buffer_load_dwordx4 v{voff}, {srd(srdn)}, s{sbase} offen{WNT} lds")

def trread(areg, vaddr, ldsoff, ksteps):
    for j in range(ksteps):
        for u in range(2):
            a(f"ds_read_b64_tr_b16 a[{areg+4*j+2*u}:{areg+4*j+2*u+1}], v{vaddr} offset:{ldsoff + (32*j+4*u)*128}")

def stats_finalize(S, Q, t):
    a(f"""v_mul_f32 v{S}, {f2u(-1/512):#x}, v{S}
    v_mul_f32 v{Q}, {f2u(1/512):#x}, v{Q}
    v_fma_f32 v{Q}, -v{S}, v{S}, v{Q}
    v_max_f32 v{Q}, 0, v{Q}
    v_add_f32 v{Q}, {f2u(1e-5):#x}, v{Q}
    v_rsq_f32 v{Q}, v{Q}
    v_mul_f32 v{S}, v{S}, v{Q}""")

QSCALE = math.log2(math.e) / math.sqrt(128.0)

def stage_E_tail(XF, S, Q, D, soff):
    for j in range(4): mfma(v4(D), a4(aWQ+4*j), v4(XF+4*j), 0 if j == 0 else v4(D))
    a(f"v_mul_f32 v{S}, {f2u(QSCALE):#x}, v{S}\nv_mul_f32 v{Q}, {f2u(QSCALE):#x}, v{Q}")
    for r in range(4): a(f"v_mul_f32 v{D+4+r}, v{S}, v{vCSQ+r}")
    exec_set(0x00030003, 0x00030003)
    for r in range(4): a(f"v_fmac_f32 v{D+4+r}, v{Q}, v{D+r}")
    a(f"v_cvt_pk_bf16_f32 v{D}, v{D+4}, v{D+5}\nv_cvt_pk_bf16_f32 v{D+1}, v{D+6}, v{D+7}")

ts(0)
a(f"""s_cmp_ge_u32 s2, 256
s_cbranch_scc1 L_end
s_load_dwordx16 s[52:67], s[0:1], 0
s_load_dwordx8 s[68:75], s[0:1], 64""" if not TS else f"""s_cmp_ge_u32 s2, 256
s_cbranch_scc1 L_end
s_waitcnt lgkmcnt(0)
s_mov_b32 s{sTO}, s{TSB}
s_load_dwordx16 s[52:67], s[0:1], 0
s_load_dwordx8 s[68:75], s[0:1], 64
v_mov_b32 v{vTSV}, 0
v_writelane_b32 v{vTSV}, s{sTO}, 0""")
vLane, vC, vG, vK, vW, vT0, vT1 = 30, 31, 32, 33, 34, 35, 36
a(f"""v_lshrrev_b32 v{vT0}, 6, v0
v_and_b32 v{vLane}, 63, v0
v_readfirstlane_b32 s{sWV}, v{vT0}
s_and_b32 s{sGRP}, s2, 7
s_lshr_b32 s{sIDX}, s2, 3
s_mov_b32 s{sLAYER}, 0
s_mov_b32 s{sTO}, {1 << opt['tobits']:#x}
v_and_b32 v{vC}, 15, v{vLane}
v_lshrrev_b32 v{vG}, 4, v{vLane}
v_lshlrev_b32 v{vL16}, 4, v{vLane}
v_lshlrev_b32 v{vG16}, 4, v{vG}
v_and_b32 v{vT0}, 1, v{vC}
v_lshl_add_u32 v{vXl}, v{vT0}, 10, v{vG16}
v_lshrrev_b32 v{vT0}, 3, v{vLane}
v_and_b32 v{vT1}, 7, v{vLane}
v_lshlrev_b32 v{vT1}, 4, v{vT1}
v_lshl_add_u32 v{vW}, v{vT0}, 13, v{vT1}
v_and_b32 v{vT0}, 3, v{vC}
v_lshrrev_b32 v{vT1}, 2, v{vC}
v_lshl_add_u32 v{vT0}, v{vT0}, 2, v{vT1}
v_lshl_add_u32 v{vK}, v{vT0}, 8, v{vG16}
""")
a(f"""s_lshr_b32 s{sT0}, s{sIDX}, 4
s_lshl_b32 s{sT0}, s{sT0}, 3
s_add_u32 s{sT0}, s{sT0}, s{sGRP}
s_lshl_b32 s{sKV}, s{sT0}, 21
s_and_b32 s{sT0}, s{sIDX}, 15
s_lshl_b32 s{sT0}, s{sT0}, 17
s_add_u32 s{sKV}, s{sKV}, s{sT0}
s_lshl_b32 s{sT0}, s{sWV}, 13
s_add_u32 s{sKV}, s{sKV}, s{sT0}
s_lshr_b32 s{sT0}, s{sIDX}, 3
s_lshl_b32 s{sXE}, s{sT0}, 8
s_lshl_b32 s{sT0}, s{sT0}, 4
s_add_u32 s{sT0}, s{sT0}, s{sWV}
s_lshl_b32 s{sT0}, s{sT0}, 16
s_lshl_b32 s{sT1}, s{sGRP}, 10
s_add_u32 s{sT0}, s{sT0}, s{sT1}
s_and_b32 s{sT1}, s{sIDX}, 7
s_lshl_b32 s{sT1}, s{sT1}, 7
s_add_u32 s{sT0}, s{sT0}, s{sT1}
s_lshl_b32 s{sT1}, s2, 13
s_lshl_b32 s{sT2}, s{sWV}, 11
s_add_u32 s{sT1}, s{sT1}, s{sT2}
s_add_u32 s{sT1}, s{sT1}, {RESET_OFF}
""")
vSX = 37; XS = 80; XF = QF + 16
RST = 88
a(f"""v_lshrrev_b32 v{vT0}, 1, v{vC}
v_lshl_add_u32 v{vT0}, v{vT0}, 2, v{vG}
v_lshlrev_b32 v{vT0}, 5, v{vT0}
v_and_b32 v{vT1}, 1, v{vC}
v_lshl_add_u32 v{vSX}, v{vT1}, 10, v{vT0}
v_mov_b32 v{RST}, -1
v_mov_b32 v{RST+1}, -1
v_mov_b32 v{RST+2}, -1
v_mov_b32 v{RST+3}, -1
v_and_b32 v{vT0}, 7, v{vLane}
v_lshlrev_b32 v{vT0}, 3, v{vT0}
v_lshrrev_b32 v{vT1}, 5, v{vLane}
v_lshl_add_u32 v{vXs}, v{vT1}, 2, v{vT0}
s_waitcnt lgkmcnt(0)""")
mk_srd(WQ_, 58, 512*8192)
dma(WQ_, vW, sT0, 32*8192, 4, WQ_L)
mk_srd(X_, 52, 2048)
for j in range(4): a(f"buffer_load_dwordx4 {v4(XF+4*j)}, v{vXl}, {srd(X_)}, s{sXE} offen offset:{64*j}")
a(f"buffer_load_dwordx4 {v4(XS)}, v{vSX}, {srd(X_)}, 0 offen\nbuffer_load_dwordx4 {v4(XS+4)}, v{vSX}, {srd(X_)}, 0 offen offset:16")
a(f"s_lshl_b32 s{sT0}, s{sIDX}, 6\nbuffer_load_dword v{vX1}, v{vXs}, {srd(X_)}, s{sT0} offen")
mk_srd(WS_, 74, WS_SIZE)
a(f"buffer_store_dwordx4 {v4(RST)}, v{vL16}, {srd(WS_)}, s{sT1} offen sc1\nbuffer_store_dwordx4 {v4(RST)}, v{vL16}, {srd(WS_)}, s{sT1} offen offset:1024 sc1")
mk_srd(K_, 54, 0x2000000)
def kload(tau):
    t, hi = tau & 3, tau >> 2
    a(f"s_add_u32 s{sT0}, s{sKV}, {t*32768 + hi*4096}")
    for j in range(4): a(f"buffer_load_dwordx4 {a4(aK+16*tau+4*j)}, v{vK}, {srd(K_)}, s{sT0} offen offset:{64*j}{KVNT}")
def vload(t):
    for i in range(8):
        if i % 4 == 0: a(f"s_add_u32 s{sT0}, s{sKV}, {t*32768 + (i>>2)*4096}")
        a(f"buffer_load_dwordx4 {v4(VR+32*(t+1)+4*i)}, v{vL16}, {srd(V_)}, s{sT0} offen offset:{1024*(i&3)}{KVNT}")
kload(0); kload(4)
mk_srd(V_, 56, 0x2000000); mk_srd(WO_, 60, 4096*1024); mk_srd(WG_, 64, 512*3584); mk_srd(WU_, 66, 512*3584)
mk_srd(WD_, 68, 1792*1024); mk_srd(OUT_, 70, 2048); mk_srd(DBG_, 72, 256)
a(f"""v_lshlrev_b32 v{vL4}, 2, v{vLane}
v_lshlrev_b32 v{vC16}, 4, v{vC}
v_lshl_add_u32 v{vOl}, v{vC}, 10, v{vG16}
v_lshrrev_b32 v{vT0}, 2, v{vC}
v_lshl_add_u32 v{vQl}, v{vT0}, 10, v{vG16}
v_lshl_add_u32 v{vT0}, v{vG}, 3, v{vT0}
v_lshlrev_b32 v{vTR}, 7, v{vT0}
v_and_b32 v{vT0}, 3, v{vC}
v_lshl_add_u32 v{vQl}, v{vT0}, 8, v{vQl}
v_lshl_add_u32 v{vTR}, v{vT0}, 3, v{vTR}
s_lshl_b32 s{sT0}, s{sWV}, 5
v_add_u32 v{vTR}, s{sT0}, v{vTR}
v_and_b32 v{vT0}, 1, v{vC}
v_lshlrev_b32 v{vT1}, 3, v{vG}
v_lshl_add_u32 v{vQs}, v{vT0}, 12, v{vT1}
v_lshl_add_u32 v{vDNs}, v{vT0}, 16, v{vG16}
v_lshl_add_u32 v{vHr}, v{vT0}, 7, v{vG16}
v_add_u32 v{vHr}, {H_L}, v{vHr}
v_lshrrev_b32 v{vT1}, 1, v{vC}
v_lshlrev_b32 v{vT1}, 4, v{vT1}
v_lshl_add_u32 v{vSTl}, v{vT0}, 3, v{vT1}
v_lshl_add_u32 v{vGUl}, v{vG}, 11, v{vC16}
v_mul_u32_u24 v{vT0}, {OC_G}, v{vG}
v_mul_u32_u24 v{vT1}, {OC_H}, v{vC}
s_mul_i32 s{sT0}, s{sWV}, {OC_W}
s_add_u32 s{sT0}, s{sT0}, {OC_L}
v_add3_u32 v{vOCw}, v{vT0}, v{vT1}, s{sT0}
v_and_b32 v{vT1}, 3, v{vC}
v_lshl_add_u32 v{vT0}, v{vT1}, 5, v{vT0}
v_and_b32 v{vT1}, 12, v{vC}
s_mul_i32 s{sT0}, s{sWV}, {OC_H}
s_add_u32 s{sT0}, s{sT0}, {OC_L}
v_add3_u32 v{vOCr}, v{vT0}, v{vT1}, s{sT0}
s_lshl_b32 s{sT0}, s{sWV}, 3
s_add_u32 s{sT0}, s{sT0}, {ML_L}
v_and_b32 v{vT1}, 3, v{vC}
v_lshl_add_u32 v{vMLw}, v{vT1}, 5, s{sT0}
s_lshl_b32 s{sT0}, s{sWV}, 5
s_add_u32 s{sT1}, s{sT0}, {ML_L}
v_mov_b32 v{vMLr}, s{sT1}
s_add_u32 s{sT1}, s{sT0}, {H_L}
v_lshrrev_b32 v{vT0}, 5, v{vLane}
v_lshlrev_b32 v{vT0}, 7, v{vT0}
v_lshl_add_u32 v{vT0}, v{vC}, 1, v{vT0}
v_add_u32 v{vHw}, s{sT1}, v{vT0}
v_mov_b32 v{vT0}, 0x3f803f80
v_accvgpr_write_b32 a{aONE}, v{vT0}
v_accvgpr_write_b32 a{aONE+1}, v{vT0}
v_accvgpr_write_b32 a{aONE+2}, v{vT0}
v_accvgpr_write_b32 a{aONE+3}, v{vT0}
s_mov_b32 s{sSEL0}, 0x05040100
s_mov_b32 s{sSEL1}, 0x07060302
""")
a(f"""s_lshr_b32 s{sT0}, s{sIDX}, 4
s_lshl_b32 s{sT1}, s{sGRP}, 1
s_add_u32 s{sT0}, s{sT0}, s{sT1}
s_lshl_b32 s{sQld}, s{sT0}, 12
s_lshl_b32 s{sOst}, s{sT0}, 14
s_and_b32 s{sT1}, s{sIDX}, 15
s_lshl_b32 s{sT2}, s{sT1}, 10
s_add_u32 s{sOst}, s{sOst}, s{sT2}
s_lshl_b32 s{sT2}, s{sWV}, 8
s_add_u32 s{sOst}, s{sOst}, s{sT2}
s_add_u32 s{sOst}, s{sOst}, {O_OFF}
s_lshl_b32 s{sLst}, s{sT0}, 8
s_lshl_b32 s{sT2}, s{sWV}, 6
s_add_u32 s{sLst}, s{sLst}, s{sT2}
s_lshl_b32 s{sT2}, s{sT1}, 2
s_add_u32 s{sLst}, s{sLst}, s{sT2}
s_add_u32 s{sLst}, s{sLst}, {LSE_OFF}
""")
a(f"""s_lshl_b32 s{sQst}, s{sGRP}, 13
s_lshr_b32 s{sT0}, s{sIDX}, 3
s_lshl_b32 s{sT1}, s{sT0}, 10
s_add_u32 s{sQst}, s{sQst}, s{sT1}
s_and_b32 s{sT1}, s{sIDX}, 7
s_lshl_b32 s{sT2}, s{sT1}, 7
s_add_u32 s{sQst}, s{sQst}, s{sT2}
s_lshl_b32 s{sT2}, s{sWV}, 5
s_add_u32 s{sQst}, s{sQst}, s{sT2}
""")
a(f"""s_and_b32 s{sT2}, s{sWV}, 1
s_lshl_b32 s{sE}, s{sGRP}, 1
s_add_u32 s{sE}, s{sE}, s{sT2}
s_lshl_b32 s{sOld}, s{sE}, 14
s_lshl_b32 s{sE+1}, s{sT0}, 8
s_add_u32 s{sOld}, s{sOld}, s{sE+1}
s_add_u32 s{sOld}, s{sOld}, {O_OFF}
s_lshl_b32 s{sLld}, s{sE}, 8
s_lshl_b32 s{sE+1}, s{sT0}, 6
s_add_u32 s{sLld}, s{sLld}, s{sE+1}
s_add_u32 s{sLld}, s{sLld}, {LSE_OFF}
s_lshl_b32 s{sWOst}, s{sT2}, 16
s_lshl_b32 s{sE}, s{sT1}, 1
s_lshr_b32 s{sE+1}, s{sWV}, 1
s_add_u32 s{sE}, s{sE}, s{sE+1}
s_lshl_b32 s{sE}, s{sE}, 12
s_add_u32 s{sWOst}, s{sWOst}, s{sE}
s_lshl_b32 s{sDNst}, s{sE}, 0
s_lshl_b32 s{sE}, s{sGRP}, 2
s_add_u32 s{sE}, s{sE}, s{sT0}
s_lshl_b32 s{sE}, s{sE}, 7
s_add_u32 s{sWOst}, s{sWOst}, s{sE}
s_add_u32 s{sWOst}, s{sWOst}, {WO_OFF}
s_lshl_b32 s{sFB}, s{sT0}, 3
s_add_u32 s{sFB}, s{sFB}, s{sGRP}
s_lshl_b32 s{sE}, s{sFB}, 7
s_add_u32 s{sDNst}, s{sDNst}, s{sE}
s_lshl_b32 s{sE}, s{sT2}, 6
s_add_u32 s{sDNst}, s{sDNst}, s{sE}
s_add_u32 s{sDNst}, s{sDNst}, {DN_OFF}
s_lshl_b32 s{sGUld}, s{sFB}, 13
s_lshl_b32 s{sE}, s{sWV}, 8
s_add_u32 s{sGUld}, s{sGUld}, s{sE}
s_add_u32 s{sGUld}, s{sGUld}, {GU_OFF}
s_lshl_b32 s{sE}, s{sT1}, 10
s_add_u32 s{sGUst}, s{sGUld}, s{sE}
s_lshl_b32 s{sMld}, s{sIDX}, 12
s_lshl_b32 s{sE}, s{sGRP}, 11
s_lshl_b32 s{sXst}, s{sIDX}, 6
s_add_u32 s{sXst}, s{sXst}, s{sE}
s_lshl_b32 s{sXC}, s{sT1}, 7
s_add_u32 s{sXC}, s{sXC}, s{sE}
s_add_u32 s{sXC}, s{sXC}, {X1_OFF}
s_add_u32 s{sXE}, s{sXE}, s{sE}
s_add_u32 s{sXE}, s{sXE}, {X2_OFF}
s_lshl_b32 s{sSTld}, s{sGRP}, 8
s_and_b32 s{sE}, s{sIDX}, 15
s_lshl_b32 s{sE}, s{sE}, 4
s_lshr_b32 s{sE+1}, s{sIDX}, 4
s_lshl_b32 s{sE+1}, s{sE+1}, 3
s_add_u32 s{sE}, s{sE}, s{sE+1}
s_add_u32 s{sSTst}, s{sSTld}, s{sE}
""")
a("s_waitcnt vmcnt(8)")
ts(1)
S, Qr = 90, 91
a(f"v_mov_b32 v{S}, 0\nv_mov_b32 v{Qr}, 0")
for i in range(8):
    a(f"""v_lshlrev_b32 v{vT0}, 16, v{XS+i}
    v_and_b32 v{vT1}, 0xffff0000, v{XS+i}
    v_add_f32 v{S}, v{S}, v{vT0}
    v_fmac_f32 v{Qr}, v{vT0}, v{vT0}
    v_add_f32 v{S}, v{S}, v{vT1}
    v_fmac_f32 v{Qr}, v{vT1}, v{vT1}""")
a(f"v_lshlrev_b32 v{vX0}, 16, v{vX1}\nv_and_b32 v{vX1}, 0xffff0000, v{vX1}")
a("s_barrier")
trread(aWQ, vTR, WQ_L, 4)
for n in (2, 4, 8):
    dpp("v_add_f32", S, S, S, f"row_ror:{n}"); dpp("v_add_f32", Qr, Qr, Qr, f"row_ror:{n}")
allred_rows("v_add_f32", S, vT0); allred_rows("v_add_f32", Qr, vT0)
stats_finalize(S, Qr, vT0)
a("s_waitcnt lgkmcnt(0)")
for j in range(4): mfma(v4(vCSQ), a4(aWQ+4*j), a4(aONE), 0 if j == 0 else v4(vCSQ))
DE = 60
stage_E_tail(XF, S, Qr, DE, sQst)
a(f"buffer_store_dwordx2 {v2(DE)}, v{vQs}, {srd(WS_)}, s{sQst} offen sc1")
exec_all()
ts(2)
kload(1); kload(5)
a("s_waitcnt vmcnt(8)\ns_barrier")
lna = lab("noarr")
a(f"""s_getreg_b32 s{sT0}, hwreg(HW_REG_XCC_ID)
s_and_b32 s{sT0}, s{sT0}, 7
s_mul_i32 s{sFAST}, s{sT0}, 6
s_cmp_eq_u32 s{sWV}, 0
s_cbranch_scc0 {lna}
s_lshl_b64 s[{sE}:{sE+1}], 1, s{sFAST}
s_add_u32 s{sE+1}, s{sE+1}, 0x10000
v_mov_b32 v{vT0+1}, s{sE}
v_mov_b32 v{vT0+2}, s{sE+1}
s_lshl_b32 s{sT0}, s{sGRP}, 5
s_mov_b64 exec, 1
buffer_atomic_add_x2 {v2(vT0+1)}, off, {srd(DBG_)}, s{sT0} sc1
s_mov_b64 exec, -1
{lna}:""")
kload(2); kload(6); kload(3); kload(7)
vload(0)
CT = 80
a(f"v_and_b32 v{vT0}, 7, v{vLane}\nv_lshlrev_b32 v{vT0}, 5, v{vT0}")
a(f"buffer_load_dwordx2 {v2(CT)}, v{vT0}, {srd(DBG_)}, 0 offen sc1")
vload(1)
lp, ld = lab("bar"), lab("barok")
a(f"""s_waitcnt vmcnt(8)
{lp}:
v_lshrrev_b32 v{vT1}, 16, v{CT+1}
v_cmp_ne_u32 vcc, 32, v{vT1}
s_cbranch_vccz {ld}
buffer_load_dwordx2 {v2(CT)}, v{vT0}, {srd(DBG_)}, 0 offen sc1
s_waitcnt vmcnt(0)
s_sub_u32 s{sTO}, s{sTO}, 1
s_cbranch_scc0 {lp}
s_mov_b32 s{sTO}, 0
{ld}:""")
ts(3)
for j in range(4): a(f"buffer_load_dwordx4 {v4(QF+4*j)}, v{vQl}, {srd(WS_)}, s{sQld} offen offset:{64*j} sc1")
a(f"""v_readlane_b32 s{sT0}, v{CT}, s{sGRP}
v_readlane_b32 s{sT1}, v{CT+1}, s{sGRP}
s_lshl_b64 s[{sE}:{sE+1}], 32, s{sFAST}
s_add_u32 s{sE+1}, s{sE+1}, 0x200000
s_xor_b32 s{sT0}, s{sT0}, s{sE}
s_xor_b32 s{sT1}, s{sT1}, s{sE+1}
s_or_b32 s{sT0}, s{sT0}, s{sT1}
s_cmp_eq_u32 s{sT0}, 0
s_cselect_b32 s{sFAST}, 1, 0""")
vload(2)
a("s_waitcnt vmcnt(8)")
ts(4)
ts_flush(1, 0)
if TS:
    for k in range(1, 5): a(f"v_writelane_b32 v{vTSV}, s{TSB+2*k}, {k}")
a("s_branch L_qk")

a("L_layer:")
poll([f"buffer_load_dwordx4 {v4(QF+4*j)}, v{vQl}, {srd(WS_)}, s{sQld} offen offset:{64*j}" for j in range(4)], range(QF, QF+16), ACL)
a("L_qk:")
ts(0)
D = lambda t: DT + 4*t
def xlo(t, X): return [lambda r=r: dpp("v_add_f32", X+r, D(t)+r, D(t)+r, "row_ror:8", 0x3) for r in range(4)]
def xhi(t, X): return [lambda r=r: dpp("v_add_f32", X+r, D(t)+r, D(t)+r, "row_ror:8", 0xc) for r in range(4)]
def zev(Z): return [lambda r=r: dpp("v_add_f32", Z+r, XT+r, XT+r, "row_ror:12", 0x5) for r in range(4)]
def zod(Z): return [lambda r=r: dpp("v_add_f32", Z+r, YT+r, YT+r, "row_ror:4", 0xa) for r in range(4)]
vM, vM2 = ACL, ACL+1
fill = xlo(0, XT) + xhi(2, XT) + zev(ZA) + xlo(1, YT) + xhi(3, YT) + zod(ZA) + \
    [lambda: a(f"v_max3_f32 v{vM}, v{ZA}, v{ZA+1}, v{ZA+2}"), lambda: a(f"v_max_f32 v{vM}, v{ZA+3}, v{vM}")] + \
    xlo(4, XT) + xhi(6, XT) + zev(ZB) + xlo(5, YT) + xhi(7, YT) + zod(ZB)
n = 0
for tau in (0, 2, 1, 3, 4, 6, 5, 7):
    for j in range(4):
        mfma(v4(D(tau)), a4(aK+16*tau+4*j), v4(QF+4*j), 0 if j == 0 else v4(D(tau)))
        n += 1
        if n >= 12:
            fill.pop(0)(); fill.pop(0)()
while fill: fill.pop(0)()
a(f"v_max3_f32 v{vM}, v{ZB}, v{ZB+1}, v{vM}\nv_max3_f32 v{vM}, v{ZB+2}, v{ZB+3}, v{vM}")
dpp("v_max_f32", vM, vM, vM, "row_ror:4"); dpp("v_max_f32", vM, vM, vM, "row_ror:8")
allred_rows("v_max_f32", vM, vM2)
vMX = QF + 12
a(f"v_mov_b32 v{vMX}, v{vM}")
for r in range(8): a(f"v_sub_f32 v{ZA+r}, v{ZA+r}, v{vM}")
for r in range(8): a(f"v_exp_f32 v{ZA+r}, v{ZA+r}")
P = [XT, YT, QF, QF+4]
for r in range(4): a(f"v_cvt_pk_bf16_f32 v{P[0]+r}, v{ZA+2*r}, v{ZA+2*r+1}")
ts(1)
def transpose(t, waits):
    src, dst = VR + 32*(t+1), VR + 32*t
    for p in range(4):
        if waits[p] is not None: a(f"s_waitcnt vmcnt({waits[p]})")
        for q in range(4):
            a(f"v_perm_b32 v{dst+8*q+p}, v{src+8*p+4+q}, v{src+8*p+q}, s{sSEL0}")
            a(f"v_perm_b32 v{dst+8*q+4+p}, v{src+8*p+4+q}, v{src+8*p+q}, s{sSEL1}")
vWr = ZA
for t in range(4):
    ls = lab("skip")
    a(f"s_cmp_eq_u32 s{sLAYER}, 0\ns_cbranch_scc0 {ls}")
    if t == 0:
        vload(3)
        transpose(0, [None]*4)
    elif t == 1:
        transpose(1, [None]*4)
    elif t == 2:
        a(f"""v_lshrrev_b32 v{vWr}, 7, v{vL16}
        v_and_b32 v{vWr+1}, 0x70, v{vL16}
        v_lshl_add_u32 v{vWr}, v{vWr}, 10, v{vWr+1}
        s_lshl_b32 s{sT0}, s{sGRP}, 6
        s_lshr_b32 s{sT1}, s{sIDX}, 3
        s_lshl_b32 s{sT1}, s{sT1}, 4
        s_add_u32 s{sT0}, s{sT0}, s{sT1}
        s_add_u32 s{sT0}, s{sT0}, s{sWV}
        s_lshl_b32 s{sT0}, s{sT0}, 13
        s_and_b32 s{sT1}, s{sIDX}, 7
        s_lshl_b32 s{sT1}, s{sT1}, 7
        s_add_u32 s{sT0}, s{sT0}, s{sT1}""")
        dma(WO_, vWr, sT0, 32*1024, 4, WO_L)
        transpose(2, [12, None, None, None])
    else:
        transpose(3, [10, 8, 6, 4])
    a(f"{ls}:")
    rot = [lambda tt=tt, r=r: dpp("v_mov_b32", P[tt]+r, P[0]+r, None, f"row_ror:{16-4*tt}") for tt in (1, 2, 3) for r in range(4)] if t == 0 else []
    for e in range(8):
        mfma(v4(DT+4*e), v4(VR+32*t+4*e), v4(P[t]), 0 if t == 0 else v4(DT+4*e))
        for _ in range(2):
            if rot: rot.pop(0)()
    mfma(v4(ACL), a4(aONE), v4(P[t]), 0 if t == 0 else v4(ACL))
ts(2)
exec_set(0x000f000f, 0x000f000f)
for e in range(8): a(f"ds_write_b128 v{vOCw}, {v4(DT+4*e)} offset:{16*e}")
a(f"ds_write2_b32 v{vMLw}, v{vMX}, v{ACL} offset0:0 offset1:1")
exec_all()
a("s_waitcnt lgkmcnt(0)\ns_barrier")
ML = T; OV = T + 8; FW = T + 16
a(f"ds_read_b128 {v4(ML)}, v{vMLr}\nds_read_b128 {v4(ML+4)}, v{vMLr} offset:16")
for w in range(4):
    a(f"ds_read_b32 v{OV+2*w}, v{vOCr} offset:{w*OC_W}\nds_read_b32 v{OV+2*w+1}, v{vOCr} offset:{w*OC_W+16}")
a(f"""s_waitcnt lgkmcnt(8)
v_max3_f32 v{FW+4}, v{ML}, v{ML+2}, v{ML+4}
v_max_f32 v{FW+4}, v{ML+6}, v{FW+4}""")
for w in range(4): a(f"v_sub_f32 v{FW+w}, v{ML+2*w}, v{FW+4}")
for w in range(4): a(f"v_exp_f32 v{FW+w}, v{FW+w}")
a(f"v_mul_f32 v{FW+5}, v{FW}, v{ML+1}")
for w in range(1, 4): a(f"v_fmac_f32 v{FW+5}, v{FW+w}, v{ML+2*w+1}")
a(f"v_rcp_f32 v{FW+6}, v{FW+5}\nv_log_f32 v{FW+7}, v{FW+5}\ns_waitcnt lgkmcnt(0)")
a(f"v_mul_f32 v{OV}, v{FW}, v{OV}\nv_mul_f32 v{OV+1}, v{FW}, v{OV+1}")
for w in range(1, 4): a(f"v_fmac_f32 v{OV}, v{FW+w}, v{OV+2*w}\nv_fmac_f32 v{OV+1}, v{FW+w}, v{OV+2*w+1}")
a(f"""v_mul_f32 v{OV}, v{FW+6}, v{OV}
v_mul_f32 v{OV+1}, v{FW+6}, v{OV+1}
v_add_f32 v{FW+7}, v{FW+7}, v{FW+4}
v_cvt_pk_bf16_f32 v{OV}, v{OV}, v{OV+1}""")
pub(f"buffer_store_dword v{OV}, v{vL4}, {srd(WS_)}, s{sOst} offen", "s_mov_b64 exec, 1",
    f"buffer_store_dword v{FW+7}, off, {srd(WS_)}, s{sLst}", "s_mov_b64 exec, -1")
ts(3)
ls = lab("skip")
a(f"s_cmp_eq_u32 s{sLAYER}, 0\ns_cbranch_scc0 {ls}")
a(f"""s_and_b32 s{sT0}, s{sWV}, 1
s_lshl_b32 s{sT0}, s{sT0}, 5
v_subrev_u32 v{T}, s{sT0}, v{vTR}
s_waitcnt vmcnt(0)
s_barrier""")
trread(aWO, T, WO_L, 4); trread(aWO+16, T, WO_L+32, 4)
a(f"s_waitcnt lgkmcnt(0)\n{ls}:")
OF = T; LS = T + 16; DB = T + 20; EB = T + 28
poll([f"buffer_load_dwordx4 {v4(OF+4*j)}, v{vOl}, {srd(WS_)}, s{sOld} offen offset:{64*j}" for j in range(4)] +
     [f"buffer_load_dwordx4 {v4(LS)}, v{vG16}, {srd(WS_)}, s{sLld} offen"], range(OF, OF+20), EB)
ts(4)
for j in range(4):
    for t in range(2): mfma(v4(DB+4*t), v4(OF+4*j), a4(aWO+16*t+4*j), 0 if j == 0 else v4(DB+4*t))
ls = lab("skip")
a(f"s_cmp_eq_u32 s{sLAYER}, 0\ns_cbranch_scc0 {ls}\ns_cmp_lt_u32 s{sFB}, 28\ns_cbranch_scc0 {ls}")
vWg = EB + 8
a(f"""v_lshrrev_b32 v{vWg+2}, 7, v{vL16}
v_and_b32 v{vWg+1}, 0x70, v{vL16}
v_mul_u32_u24 v{vWg}, 3584, v{vWg+2}
v_add_u32 v{vWg}, v{vWg}, v{vWg+1}
v_lshl_add_u32 v{vWg+1}, v{vWg+2}, 10, v{vWg+1}
s_and_b32 s{sT1}, s{sIDX}, 7
s_lshl_b32 s{sT0}, s{sT1}, 3
s_add_u32 s{sT0}, s{sT0}, s{sWV}
s_mul_i32 s{sT0}, s{sT0}, {8*3584}
s_lshl_b32 s{sE}, s{sFB}, 7
s_add_u32 s{sT0}, s{sT0}, s{sE}
s_mov_b32 s{sE+1}, s{sT0}""")
dma(WG_, vWg, sT0, 32*3584, 2, WG_L); dma(WU_, vWg, sE+1, 32*3584, 2, WU_L)
a(f"""s_lshl_b32 s{sT0}, s{sFB}, 3
s_add_u32 s{sT0}, s{sT0}, s{sWV}
s_lshl_b32 s{sT0}, s{sT0}, 13
s_lshl_b32 s{sT1}, s{sT1}, 7
s_add_u32 s{sT0}, s{sT0}, s{sT1}""")
dma(WD_, vWg+1, sT0, 32*1024, 2, WD_L)
a(f"{ls}:")
a(f"v_max3_f32 v{EB+4}, v{LS}, v{LS+1}, v{LS+2}\nv_max_f32 v{EB+4}, v{LS+3}, v{EB+4}")
allred_rows("v_max_f32", EB+4, EB+5)
for r in range(4): a(f"v_sub_f32 v{EB+r}, v{LS+r}, v{EB+4}")
for r in range(4): a(f"v_exp_f32 v{EB+r}, v{EB+r}")
a(f"v_add_f32 v{EB+4}, v{EB}, v{EB+1}\nv_add_f32 v{EB+5}, v{EB+2}, v{EB+3}")
a(f"v_mul_f32 v{DB}, v{EB}, v{DB}\nv_mul_f32 v{DB+4}, v{EB}, v{DB+4}\nv_add_f32 v{EB+4}, v{EB+4}, v{EB+5}")
for r in range(1, 4): a(f"v_fmac_f32 v{DB}, v{EB+r}, v{DB+r}\nv_fmac_f32 v{DB+4}, v{EB+r}, v{DB+4+r}")
allred_rows("v_add_f32", EB+4, EB+5)
a(f"""v_permlane16_swap_b32 v{DB}, v{DB+4}
v_rcp_f32 v{EB+4}, v{EB+4}
v_add_f32 v{DB}, v{DB}, v{DB+4}
v_mov_b32 v{DB+4}, v{DB}
v_permlane32_swap_b32 v{DB}, v{DB+4}
v_add_f32 v{DB}, v{DB}, v{DB+4}
v_mul_f32 v{DB}, v{DB}, v{EB+4}
s_mov_b32 exec_hi, 0
buffer_store_dword v{DB}, v{vL4}, {srd(WS_)}, s{sWOst} offen sc1
s_mov_b64 exec, -1""")
ts(5)

def middle(off, xoff, stoff, final):
    M = T
    lsk = lab("nomid")
    a(f"s_cmp_eq_u32 s{sWV}, 0\ns_cbranch_scc0 {lsk}")
    a(f"s_add_u32 s{sT0}, s{sMld}, {off}")
    poll([f"buffer_load_dwordx4 {v4(M+4*u)}, v{vL16}, {srd(WS_)}, s{sT0} offen offset:{1024*u}" for u in range(4)], range(M, M+16), M+16)
    for r in range(4): a(f"v_add_f32 v{M+r}, v{M+r}, v{M+4+r}")
    for r in range(4): a(f"v_add_f32 v{M+8+r}, v{M+8+r}, v{M+12+r}")
    for r in range(4): a(f"v_add_f32 v{M+r}, v{M+r}, v{M+8+r}")
    a(f"""v_permlane32_swap_b32 v{M}, v{M+2}
    v_permlane32_swap_b32 v{M+1}, v{M+3}
    v_add_f32 v{M}, v{M}, v{M+2}
    v_add_f32 v{M+1}, v{M+1}, v{M+3}""")
    dpp("v_add_f32", M, M, M, "row_ror:8"); dpp("v_add_f32", M+1, M+1, M+1, "row_ror:8")
    a(f"""v_mov_b32 v{M+2}, v{M}
    v_mov_b32 v{M+3}, v{M+1}
    v_permlane16_swap_b32 v{M}, v{M+2}
    v_permlane16_swap_b32 v{M+1}, v{M+3}
    v_add_f32 v{vX0}, v{vX0}, v{M}
    v_add_f32 v{vX1}, v{vX1}, v{M+1}
    v_add_f32 v{vX0}, v{vX0}, v{M+2}
    v_add_f32 v{vX1}, v{vX1}, v{M+3}
    s_add_u32 s{sT0}, s{sXst}, {xoff}
    s_add_u32 s{sT1}, s{sSTst}, {stoff}
    v_cvt_pk_bf16_f32 v{M}, v{vX0}, v{vX1}""")
    exec_set(0xff, 0xff)
    if final:
        lnf = lab("notfinal")
        a(f"""s_cmp_eq_u32 s{sLAYER}, 0
        s_cbranch_scc1 {lnf}
        s_lshl_b32 s{sT0}, s{sIDX}, 6
        buffer_store_dword v{M}, v{vXs}, {srd(OUT_)}, s{sT0} offen
        s_mov_b64 exec, -1
        s_branch L_fin
        {lnf}:""")
    pub(f"buffer_store_dword v{M}, v{vXs}, {srd(WS_)}, s{sT0} offen")
    exec_all()
    a(f"""v_lshlrev_b32 v{vX0}, 16, v{M}
    v_and_b32 v{vX1}, 0xffff0000, v{M}
    v_add_f32 v{M+1}, v{vX0}, v{vX1}
    v_mul_f32 v{M+2}, v{vX0}, v{vX0}
    v_fmac_f32 v{M+2}, v{vX1}, v{vX1}
    v_permlane32_swap_b32 v{M+1}, v{M+2}
    v_add_f32 v{M+1}, v{M+1}, v{M+2}""")
    dpp("v_add_f32", M+1, M+1, M+1, "quad_perm:[1,0,3,2]")
    dpp("v_add_f32", M+1, M+1, M+1, "quad_perm:[2,3,0,1]")
    dpp("v_add_f32", M+1, M+1, M+1, "row_ror:4")
    a("s_mov_b32 exec_lo, 1\ns_mov_b32 exec_hi, 1")
    pub(f"buffer_store_dword v{M+1}, v{vXs}, {srd(WS_)}, s{sT1} offen")
    exec_all()
    a(f"{lsk}:")

middle(WO_OFF, X1_OFF, ST1_OFF, False)
ts(6)
ls = lab("skip")
a(f"s_cmp_eq_u32 s{sLAYER}, 0\ns_cbranch_scc0 {ls}\ns_waitcnt vmcnt(0)\n{ls}:\ns_barrier")
DD = T + 24
a(f"s_cmp_lt_u32 s{sFB}, 28\ns_cbranch_scc0 L_noffn")
ls = lab("skip")
a(f"s_cmp_eq_u32 s{sLAYER}, 0\ns_cbranch_scc0 {ls}")
trread(aWG, vTR, WG_L, 2); trread(aWU, vTR, WU_L, 2); trread(aWD, vTR, WD_L, 2)
a("s_waitcnt lgkmcnt(0)")
for j in range(2): mfma(v4(T), a4(aONE), a4(aWG+4*j), 0 if j == 0 else v4(T))
for j in range(2): mfma(v4(T+4), a4(aONE), a4(aWU+4*j), 0 if j == 0 else v4(T+4))
a(f"v_mov_b32 v{vCSG}, v{T}\nv_mov_b32 v{vCSU}, v{T+4}\n{ls}:")
def stats_loads(reg, off):
    return [f"buffer_load_dwordx2 {v2(reg)}, v{vSTl}, {srd(WS_)}, s{sT1} offen", f"buffer_load_dwordx2 {v2(reg+2)}, v{vSTl}, {srd(WS_)}, s{sT1} offen offset:128"]
def stats_reduce(reg):
    a(f"v_add_f32 v{reg}, v{reg}, v{reg+2}\nv_add_f32 v{reg+1}, v{reg+1}, v{reg+3}")
    for n in (2, 4, 8):
        dpp("v_add_f32", reg, reg, reg, f"row_ror:{n}"); dpp("v_add_f32", reg+1, reg+1, reg+1, f"row_ror:{n}")
    stats_finalize(reg, reg+1, reg+2)
XC = T; SC = T + 8; DG = T + 12; DU = T + 16; GO = T + 20
a(f"s_add_u32 s{sT1}, s{sSTld}, {ST1_OFF}")
poll([f"buffer_load_dwordx4 {v4(XC+4*j)}, v{vXl}, {srd(WS_)}, s{sXC} offen offset:{64*j}" for j in range(2)] + stats_loads(SC, ST1_OFF), range(XC, XC+12), DG)
ts(7)
for j in range(2):
    mfma(v4(DG), v4(XC+4*j), a4(aWG+4*j), 0 if j == 0 else v4(DG))
    mfma(v4(DU), v4(XC+4*j), a4(aWU+4*j), 0 if j == 0 else v4(DU))
stats_reduce(SC)
qp = ["quad_perm:[0,0,2,2]", "quad_perm:[1,1,3,3]"]
for i, (cs, b) in enumerate(((vCSG, 0), (vCSG, 1), (vCSU, 0), (vCSU, 1))): dpp("v_mul_f32", GO+i, SC, cs, qp[b])
for i, (d, b) in enumerate(((DG, 0), (DG+1, 1), (DU, 0), (DU+1, 1))): dpp("v_fmac_f32", GO+i, SC+1, d, qp[b])
a("s_mov_b64 exec, 0xffff")
pub(f"buffer_store_dwordx4 {v4(GO)}, v{vC16}, {srd(WS_)}, s{sGUst} offen")
exec_all()
G = T
poll([f"buffer_load_dwordx4 {v4(G+4*u)}, v{vGUl}, {srd(WS_)}, s{sGUld} offen offset:{1024*u}" for u in range(2)], range(G, G+8), G+8)
ts(8)
for r in range(4): a(f"v_add_f32 v{G+r}, v{G+r}, v{G+4+r}")
a(f"""v_permlane32_swap_b32 v{G}, v{G+1}
v_permlane32_swap_b32 v{G+2}, v{G+3}
v_add_f32 v{G}, v{G}, v{G+1}
v_add_f32 v{G+2}, v{G+2}, v{G+3}
v_permlane16_swap_b32 v{G}, v{G+2}
v_add_f32 v{G}, v{G}, v{G+2}
v_mov_b32 v{G+1}, v{G}
v_permlane16_swap_b32 v{G}, v{G+1}
v_max_f32 v{G}, 0, v{G}
v_mul_f32 v{G}, v{G}, v{G+1}
v_cvt_pk_bf16_f32 v{G}, v{G}, v{G}
ds_write_b16 v{vHw}, v{G}
s_waitcnt lgkmcnt(0)
s_barrier
ds_read_b128 {v4(G+4)}, v{vHr}
ds_read_b128 {v4(G+8)}, v{vHr} offset:64
s_waitcnt lgkmcnt(1)""")
mfma(v4(DD), a4(aWD), v4(G+4), 0)
a("s_waitcnt lgkmcnt(0)")
mfma(v4(DD), a4(aWD+4), v4(G+8), v4(DD))
a("L_dpub:")
exec_set(0x00030003, 0x00030003)
a(f"buffer_store_dwordx4 {v4(DD)}, v{vDNs}, {srd(WS_)}, s{sDNst} offen sc1")
exec_all()
ts(9)
lgo = lab("go")
a(f"""s_cmp_eq_u32 s{sLAYER}, 0
s_cbranch_scc1 {lgo}
s_or_b32 s{sT0}, s{sGRP}, s{sWV}
s_cmp_eq_u32 s{sT0}, 0
s_cbranch_scc0 L_fin
{lgo}:""")
middle(DN_OFF, X2_OFF, ST2_OFF, True)
ts(10)
a("s_barrier")
XE = T; SE = T + 16; DE = T + 20
a(f"s_add_u32 s{sT1}, s{sSTld}, {ST2_OFF}")
poll([f"buffer_load_dwordx4 {v4(XE+4*j)}, v{vXl}, {srd(WS_)}, s{sXE} offen offset:{64*j}" for j in range(4)] + stats_loads(SE, ST2_OFF), range(XE, XE+20), DE)
ts(11)
for j in range(4): mfma(v4(DE), a4(aWQ+4*j), v4(XE+4*j), 0 if j == 0 else v4(DE))
stats_reduce(SE)
a(f"v_mul_f32 v{SE}, {f2u(QSCALE):#x}, v{SE}\nv_mul_f32 v{SE+1}, {f2u(QSCALE):#x}, v{SE+1}")
for r in range(4): a(f"v_mul_f32 v{DE+4+r}, v{SE}, v{vCSQ+r}")
for r in range(4): a(f"v_fmac_f32 v{DE+4+r}, v{SE+1}, v{DE+r}")
a(f"""v_cvt_pk_bf16_f32 v{DE}, v{DE+4}, v{DE+5}
v_cvt_pk_bf16_f32 v{DE+1}, v{DE+6}, v{DE+7}
s_add_u32 s{WS_}, s{WS_}, {LSTR}
s_addc_u32 s{WS_+1}, s{WS_+1}, 0
s_mov_b32 s{sLAYER}, 1""")
exec_set(0x00030003, 0x00030003)
pub(f"buffer_store_dwordx2 {v2(DE)}, v{vQs}, {srd(WS_)}, s{sQst} offen")
exec_all()
ts_flush(8, 12)
a("s_branch L_layer")
a("L_noffn:")
for r in range(4): a(f"v_mov_b32 v{DD+r}, 0")
a("s_branch L_dpub")
for ls, lb, st in slow_blocks:
    a(f"{ls}:")
    for s in st: a(s)
    a(f"s_branch {lb}")
a("L_fin:")
if TS:
    ts(11)
    ts_flush(24, 12)
    a(f"""v_writelane_b32 v{vTSV}, s{sFAST}, 40
    v_writelane_b32 v{vTSV}, s{sTO}, 41
    s_lshl_b32 s{sT0}, s2, 2
    s_add_u32 s{sT0}, s{sT0}, s{sWV}
    s_lshl_b32 s{sT0}, s{sT0}, 8
    s_add_u32 s{sT0}, s{sT0}, {TS_OFF - LSTR}
    buffer_store_dword v{vTSV}, v{vL4}, {srd(WS_)}, s{sT0} offen""")
a("L_end:\ns_endpgm")

body = a.finalize()
kn = opt["name"]
ref = open("cdna_kernels/" + NAME + ".s.ref").read().split("\n")
head = [l for l in ref if l.startswith(";") and "@launch" not in l and "Override launch" not in l and "grid=ceil" not in l]
head = head[:13]
src = "\n".join(head) + f"""
; One persistent launch, one workgroup per CU: K/V stay in registers for both layers, weight tiles in AGPRs.
; @launch grid=(256,1,1) block=(256,1,1) lds={LDS_BYTES}
.amdgcn_target "amdgcn-amd-amdhsa--gfx950"
.text
.globl {kn}
.p2align 8
.type {kn},@function
{kn}:
{body}
.section .rodata,"a"
.p2align 6
.amdhsa_kernel {kn}
  .amdhsa_next_free_vgpr 512
  .amdhsa_next_free_sgpr 102
  .amdhsa_accum_offset 256
  .amdhsa_group_segment_fixed_size 0
  .amdhsa_kernarg_size 96
  .amdhsa_user_sgpr_count 2
  .amdhsa_user_sgpr_kernarg_segment_ptr 1
  .amdhsa_system_sgpr_workgroup_id_x 1
.end_amdhsa_kernel
"""
open(out_path, "w").write(src)
print("nops inserted:", a.nops, "lines:", len(body.split("\n")), file=sys.stderr)
```

```python
import sys, math, struct
from asmlib import Asm

NAME = "interleave_layers__gqa_block_cached__glu_gated_reglu__decode"
opt = dict(kvnt="nt", wnt="none", ts=0, fast=1, tobits=20, name=NAME+"_kernel", dly=0)
out_path = sys.argv[1]
for x in sys.argv[2:]:
    k, v = x.split("=")
    opt[k] = v if k in ("kvnt", "wnt", "name") else int(v)
fl = lambda s: "" if s == "none" else " " + s.replace("+", " ")
KVNT = fl(opt["kvnt"]); WNT = fl(opt["wnt"])
TS = opt["ts"]

def f2u(x): return struct.unpack("<I", struct.pack("<f", x))[0]

LSTR = 0x100000
Q_OFF, O_OFF, LSE_OFF = 0x0, 0x10000, 0x50000
X1_OFF, X2_OFF, ST1_OFF, ST2_OFF = 0x51000, 0x55000, 0x59000, 0x5A000
WO_OFF, DN_OFF, GU_OFF = 0x60000, 0x80000, 0xA0000
RESET_OFF = 0x10000
TS_OFF = 0x400000
WS_SIZE = 0x800000
WQ_L, WO_L, WG_L, WU_L, WD_L = 0, 16384, 32768, 40960, 49152
OC_L = 57344; OC_W = 2368; OC_G = 592; OC_H = 144
ML_L = OC_L + 4*OC_W
H_L = ML_L + 128
LDS_BYTES = H_L + 256
sWV, sGRP, sIDX, sLAYER, sFAST, sTO = 3, 4, 5, 6, 7, 76
K_, V_, WS_, WQ_, WO_, WG_, WU_, WD_, X_, OUT_, DBG_ = 8, 12, 16, 20, 24, 28, 32, 36, 40, 44, 48
def srd(n): return f"s[{n}:{n+3}]"
sKV, sQld, sQst, sOst, sLst, sOld, sLld, sWOst = 77, 78, 79, 80, 81, 82, 83, 84
sMld, sXst, sSTst, sXC, sXE, sSTld, sGUst, sGUld, sDNst, sFB = 85, 86, 87, 88, 89, 90, 91, 92, 93, 94
sT0, sT1, sT2, sSEL0, sSEL1 = 95, 96, 97, 98, 99
sE = 100
TSB = 52
vL16, vL4, vQl, vOl, vXl, vC16, vG16, vQs, vDNs, vGUl, vXs = 0, 1, 2, 3, 4, 5, 6, 7, 8, 9, 10
vOCw, vOCr, vMLw, vMLr, vHw, vHr, vTR, vSTl = 11, 12, 13, 14, 15, 16, 17, 18
vX0, vX1 = 19, 20
vCSG, vCSU = 21, 22
vTSV = 23
vCSQ = 24
T = 28
QF = 28
DT = 44
ACL = 76
XT, YT = 80, 84
ZA, ZB = 88, 92
VR = 96
def v4(n): return f"v[{n}:{n+3}]"
def v2(n): return f"v[{n}:{n+1}]"
def a4(n): return f"a[{n}:{n+3}]"
aK, aWQ, aWO, aWG, aWU, aWD, aONE = 0, 128, 144, 176, 184, 192, 200

a = Asm()
slow_blocks = []
uid = [0]
def lab(p):
    uid[0] += 1
    return f"L_{p}_{uid[0]}"

def exec_set(lo, hi):
    if lo == 0xffffffff and hi == 0xffffffff: a("s_mov_b64 exec, -1")
    elif hi == 0 and lo <= 64: a(f"s_mov_b64 exec, {lo}")
    else: a(f"s_mov_b32 exec_lo, {lo:#x}\ns_mov_b32 exec_hi, {hi:#x}")
def exec_all(): a("s_mov_b64 exec, -1")

def pub(*stores):
    if not opt["fast"]:
        for s in stores: a(s + (" sc1" if s.startswith("buffer") else ""))
        return
    ls, lb = lab("slow"), lab("back")
    a(f"s_cmp_eq_u32 s{sFAST}, 1\ns_cbranch_scc0 {ls}")
    for s in stores: a(s)
    a(f"{lb}:")
    slow_blocks.append((ls, lb, [s + (" sc1" if s.startswith("buffer") else "") for s in stores]))

def poll(loads, regs, tmp):
    lp, ld = lab("poll"), lab("got")
    a(f"{lp}:")
    for l in loads: a(l + " sc1")
    a("s_waitcnt vmcnt(0)")
    r = list(regs)
    a(f"v_max3_u32 v{tmp}, v{r[0]}, v{r[1]}, v{r[2]}"); r = r[3:]
    while len(r) >= 2:
        a(f"v_max3_u32 v{tmp}, v{r[0]}, v{r[1]}, v{tmp}"); r = r[2:]
    if r: a(f"v_max_u32 v{tmp}, v{r[0]}, v{tmp}")
    a(f"""v_cmp_eq_u32 vcc, -1, v{tmp}
    s_cbranch_vccz {ld}
    s_mov_b64 exec, vcc
    s_sub_u32 s{sTO}, s{sTO}, 1
    s_cbranch_scc0 {lp}
    s_mov_b32 s{sTO}, 0
    {ld}:
    s_mov_b64 exec, -1""")

tsn = [0]
def ts(k):
    if TS: a(f"s_memrealtime s[{TSB+2*k}:{TSB+2*k+1}]")
def ts_flush(base, n):
    if TS:
        a("s_waitcnt lgkmcnt(0)")
        for k in range(n): a(f"v_writelane_b32 v{vTSV}, s{TSB+2*k}, {base+k}")

def mk_srd(d, lo, size):
    a(f"s_mov_b32 s{d}, s{lo}\ns_and_b32 s{d+1}, s{lo+1}, 0xffff\ns_mov_b32 s{d+2}, {size:#x}\ns_mov_b32 s{d+3}, 0x20000")

def mfma(d, A, B, c):
    a(f"v_mfma_f32_16x16x32_bf16 {d}, {A}, {B}, {c}")
def dpp(op, d, s0, s1, ctrl, bank=0xf):
    if s1 is None: a(f"{op}_dpp v{d}, v{s0} {ctrl} row_mask:0xf bank_mask:{bank:#x}")
    else: a(f"{op}_dpp v{d}, v{s0}, v{s1} {ctrl} row_mask:0xf bank_mask:{bank:#x}")
def allred_rows(op, r, t):
    a(f"v_mov_b32 v{t}, v{r}\nv_permlane16_swap_b32 v{r}, v{t}\n{op} v{r}, v{r}, v{t}")
    a(f"v_mov_b32 v{t}, v{r}\nv_permlane32_swap_b32 v{r}, v{t}\n{op} v{r}, v{r}, v{t}")

def dma(srdn, voff, sbase, step, n, ldsbase):
    for i in range(n):
        a(f"s_lshl_b32 s{sT2}, s{sWV}, 10\ns_add_u32 m0, s{sT2}, {ldsbase + i*4096}")
        if i: a(f"s_add_u32 s{sbase}, s{sbase}, {step}")
        a(f"buffer_load_dwordx4 v{voff}, {srd(srdn)}, s{sbase} offen{WNT} lds")

def trread(areg, vaddr, ldsoff, ksteps):
    for j in range(ksteps):
        for u in range(2):
            a(f"ds_read_b64_tr_b16 a[{areg+4*j+2*u}:{areg+4*j+2*u+1}], v{vaddr} offset:{ldsoff + (32*j+4*u)*128}")

def stats_finalize(S, Q, t):
    a(f"""v_mul_f32 v{S}, {f2u(-1/512):#x}, v{S}
    v_mul_f32 v{Q}, {f2u(1/512):#x}, v{Q}
    v_fma_f32 v{Q}, -v{S}, v{S}, v{Q}
    v_max_f32 v{Q}, 0, v{Q}
    v_add_f32 v{Q}, {f2u(1e-5):#x}, v{Q}
    v_rsq_f32 v{Q}, v{Q}
    v_mul_f32 v{S}, v{S}, v{Q}""")

QSCALE = math.log2(math.e) / math.sqrt(128.0)

def stage_E_tail(XF, S, Q, D, soff):
    for j in range(4): mfma(v4(D), a4(aWQ+4*j), v4(XF+4*j), 0 if j == 0 else v4(D))
    a(f"v_mul_f32 v{S}, {f2u(QSCALE):#x}, v{S}\nv_mul_f32 v{Q}, {f2u(QSCALE):#x}, v{Q}")
    for r in range(4): a(f"v_mul_f32 v{D+4+r}, v{S}, v{vCSQ+r}")
    exec_set(0x00030003, 0x00030003)
    for r in range(4): a(f"v_fmac_f32 v{D+4+r}, v{Q}, v{D+r}")
    a(f"v_cvt_pk_bf16_f32 v{D}, v{D+4}, v{D+5}\nv_cvt_pk_bf16_f32 v{D+1}, v{D+6}, v{D+7}")

ts(0)
a(f"""s_cmp_ge_u32 s2, 256
s_cbranch_scc1 L_end
s_load_dwordx16 s[52:67], s[0:1], 0
s_load_dwordx8 s[68:75], s[0:1], 64""" if not TS else f"""s_cmp_ge_u32 s2, 256
s_cbranch_scc1 L_end
s_waitcnt lgkmcnt(0)
s_mov_b32 s{sTO}, s{TSB}
s_load_dwordx16 s[52:67], s[0:1], 0
s_load_dwordx8 s[68:75], s[0:1], 64
v_mov_b32 v{vTSV}, 0
v_writelane_b32 v{vTSV}, s{sTO}, 0""")
vLane, vC, vG, vK, vW, vT0, vT1 = 30, 31, 32, 33, 34, 35, 36
a(f"""v_lshrrev_b32 v{vT0}, 6, v0
v_and_b32 v{vLane}, 63, v0
v_readfirstlane_b32 s{sWV}, v{vT0}
s_and_b32 s{sGRP}, s2, 7
s_lshr_b32 s{sIDX}, s2, 3
s_mov_b32 s{sLAYER}, 0
s_mov_b32 s{sTO}, {1 << opt['tobits']:#x}
v_and_b32 v{vC}, 15, v{vLane}
v_lshrrev_b32 v{vG}, 4, v{vLane}
v_lshlrev_b32 v{vL16}, 4, v{vLane}
v_lshlrev_b32 v{vG16}, 4, v{vG}
v_and_b32 v{vT0}, 1, v{vC}
v_lshl_add_u32 v{vXl}, v{vT0}, 10, v{vG16}
v_lshrrev_b32 v{vT0}, 3, v{vLane}
v_and_b32 v{vT1}, 7, v{vLane}
v_lshlrev_b32 v{vT1}, 4, v{vT1}
v_lshl_add_u32 v{vW}, v{vT0}, 13, v{vT1}
v_and_b32 v{vT0}, 3, v{vC}
v_lshrrev_b32 v{vT1}, 2, v{vC}
v_lshl_add_u32 v{vT0}, v{vT0}, 2, v{vT1}
v_lshl_add_u32 v{vK}, v{vT0}, 8, v{vG16}
""")
a(f"""s_lshr_b32 s{sT0}, s{sIDX}, 4
s_lshl_b32 s{sT0}, s{sT0}, 3
s_add_u32 s{sT0}, s{sT0}, s{sGRP}
s_lshl_b32 s{sKV}, s{sT0}, 21
s_and_b32 s{sT0}, s{sIDX}, 15
s_lshl_b32 s{sT0}, s{sT0}, 17
s_add_u32 s{sKV}, s{sKV}, s{sT0}
s_lshl_b32 s{sT0}, s{sWV}, 13
s_add_u32 s{sKV}, s{sKV}, s{sT0}
s_lshr_b32 s{sT0}, s{sIDX}, 3
s_lshl_b32 s{sXE}, s{sT0}, 8
s_lshl_b32 s{sT0}, s{sT0}, 4
s_add_u32 s{sT0}, s{sT0}, s{sWV}
s_lshl_b32 s{sT0}, s{sT0}, 16
s_lshl_b32 s{sT1}, s{sGRP}, 10
s_add_u32 s{sT0}, s{sT0}, s{sT1}
s_and_b32 s{sT1}, s{sIDX}, 7
s_lshl_b32 s{sT1}, s{sT1}, 7
s_add_u32 s{sT0}, s{sT0}, s{sT1}
s_lshl_b32 s{sT1}, s2, 13
s_lshl_b32 s{sT2}, s{sWV}, 11
s_add_u32 s{sT1}, s{sT1}, s{sT2}
s_add_u32 s{sT1}, s{sT1}, {RESET_OFF}
""")
vSX = 37; XS = 80; XF = QF + 16
RST = 88
a(f"""v_lshrrev_b32 v{vT0}, 1, v{vC}
v_lshl_add_u32 v{vT0}, v{vT0}, 2, v{vG}
v_lshlrev_b32 v{vT0}, 5, v{vT0}
v_and_b32 v{vT1}, 1, v{vC}
v_lshl_add_u32 v{vSX}, v{vT1}, 10, v{vT0}
v_mov_b32 v{RST}, -1
v_mov_b32 v{RST+1}, -1
v_mov_b32 v{RST+2}, -1
v_mov_b32 v{RST+3}, -1
v_and_b32 v{vT0}, 7, v{vLane}
v_lshlrev_b32 v{vT0}, 3, v{vT0}
v_lshrrev_b32 v{vT1}, 5, v{vLane}
v_lshl_add_u32 v{vXs}, v{vT1}, 2, v{vT0}
s_waitcnt lgkmcnt(0)""")
mk_srd(WQ_, 58, 512*8192)
dma(WQ_, vW, sT0, 32*8192, 4, WQ_L)
mk_srd(X_, 52, 2048)
for j in range(4): a(f"buffer_load_dwordx4 {v4(XF+4*j)}, v{vXl}, {srd(X_)}, s{sXE} offen offset:{64*j}")
a(f"buffer_load_dwordx4 {v4(XS)}, v{vSX}, {srd(X_)}, 0 offen\nbuffer_load_dwordx4 {v4(XS+4)}, v{vSX}, {srd(X_)}, 0 offen offset:16")
a(f"s_lshl_b32 s{sT0}, s{sIDX}, 6\nbuffer_load_dword v{vX1}, v{vXs}, {srd(X_)}, s{sT0} offen")
mk_srd(WS_, 74, WS_SIZE)
a(f"buffer_store_dwordx4 {v4(RST)}, v{vL16}, {srd(WS_)}, s{sT1} offen sc1\nbuffer_store_dwordx4 {v4(RST)}, v{vL16}, {srd(WS_)}, s{sT1} offen offset:1024 sc1")
mk_srd(K_, 54, 0x2000000)
def kload(tau):
    t, hi = tau & 3, tau >> 2
    a(f"s_add_u32 s{sT0}, s{sKV}, {t*32768 + hi*4096}")
    for j in range(4): a(f"buffer_load_dwordx4 {a4(aK+16*tau+4*j)}, v{vK}, {srd(K_)}, s{sT0} offen offset:{64*j}{KVNT}")
def vload(t):
    for i in range(8):
        if i % 4 == 0: a(f"s_add_u32 s{sT0}, s{sKV}, {t*32768 + (i>>2)*4096}")
        a(f"buffer_load_dwordx4 {v4(VR+32*(t+1)+4*i)}, v{vL16}, {srd(V_)}, s{sT0} offen offset:{1024*(i&3)}{KVNT}")
kload(0); kload(4)
mk_srd(V_, 56, 0x2000000); mk_srd(WO_, 60, 4096*1024); mk_srd(WG_, 64, 512*3584); mk_srd(WU_, 66, 512*3584)
mk_srd(WD_, 68, 1792*1024); mk_srd(OUT_, 70, 2048); mk_srd(DBG_, 72, 256)
a(f"""v_lshlrev_b32 v{vL4}, 2, v{vLane}
v_lshlrev_b32 v{vC16}, 4, v{vC}
v_lshl_add_u32 v{vOl}, v{vC}, 10, v{vG16}
v_lshrrev_b32 v{vT0}, 2, v{vC}
v_lshl_add_u32 v{vQl}, v{vT0}, 10, v{vG16}
v_lshl_add_u32 v{vT0}, v{vG}, 3, v{vT0}
v_lshlrev_b32 v{vTR}, 7, v{vT0}
v_and_b32 v{vT0}, 3, v{vC}
v_lshl_add_u32 v{vQl}, v{vT0}, 8, v{vQl}
v_lshl_add_u32 v{vTR}, v{vT0}, 3, v{vTR}
s_lshl_b32 s{sT0}, s{sWV}, 5
v_add_u32 v{vTR}, s{sT0}, v{vTR}
v_and_b32 v{vT0}, 1, v{vC}
v_lshlrev_b32 v{vT1}, 3, v{vG}
v_lshl_add_u32 v{vQs}, v{vT0}, 12, v{vT1}
v_lshl_add_u32 v{vDNs}, v{vT0}, 16, v{vG16}
v_lshl_add_u32 v{vHr}, v{vT0}, 7, v{vG16}
v_add_u32 v{vHr}, {H_L}, v{vHr}
v_lshrrev_b32 v{vT1}, 1, v{vC}
v_lshlrev_b32 v{vT1}, 4, v{vT1}
v_lshl_add_u32 v{vSTl}, v{vT0}, 3, v{vT1}
v_lshl_add_u32 v{vGUl}, v{vG}, 11, v{vC16}
v_mul_u32_u24 v{vT0}, {OC_G}, v{vG}
v_mul_u32_u24 v{vT1}, {OC_H}, v{vC}
s_mul_i32 s{sT0}, s{sWV}, {OC_W}
s_add_u32 s{sT0}, s{sT0}, {OC_L}
v_add3_u32 v{vOCw}, v{vT0}, v{vT1}, s{sT0}
v_and_b32 v{vT1}, 3, v{vC}
v_lshl_add_u32 v{vT0}, v{vT1}, 5, v{vT0}
v_and_b32 v{vT1}, 12, v{vC}
s_mul_i32 s{sT0}, s{sWV}, {OC_H}
s_add_u32 s{sT0}, s{sT0}, {OC_L}
v_add3_u32 v{vOCr}, v{vT0}, v{vT1}, s{sT0}
s_lshl_b32 s{sT0}, s{sWV}, 3
s_add_u32 s{sT0}, s{sT0}, {ML_L}
v_and_b32 v{vT1}, 3, v{vC}
v_lshl_add_u32 v{vMLw}, v{vT1}, 5, s{sT0}
s_lshl_b32 s{sT0}, s{sWV}, 5
s_add_u32 s{sT1}, s{sT0}, {ML_L}
v_mov_b32 v{vMLr}, s{sT1}
s_add_u32 s{sT1}, s{sT0}, {H_L}
v_lshrrev_b32 v{vT0}, 5, v{vLane}
v_lshlrev_b32 v{vT0}, 7, v{vT0}
v_lshl_add_u32 v{vT0}, v{vC}, 1, v{vT0}
v_add_u32 v{vHw}, s{sT1}, v{vT0}
v_mov_b32 v{vT0}, 0x3f803f80
v_accvgpr_write_b32 a{aONE}, v{vT0}
v_accvgpr_write_b32 a{aONE+1}, v{vT0}
v_accvgpr_write_b32 a{aONE+2}, v{vT0}
v_accvgpr_write_b32 a{aONE+3}, v{vT0}
s_mov_b32 s{sSEL0}, 0x05040100
s_mov_b32 s{sSEL1}, 0x07060302
""")
a(f"""s_lshr_b32 s{sT0}, s{sIDX}, 4
s_lshl_b32 s{sT1}, s{sGRP}, 1
s_add_u32 s{sT0}, s{sT0}, s{sT1}
s_lshl_b32 s{sQld}, s{sT0}, 12
s_lshl_b32 s{sOst}, s{sT0}, 14
s_and_b32 s{sT1}, s{sIDX}, 15
s_lshl_b32 s{sT2}, s{sT1}, 10
s_add_u32 s{sOst}, s{sOst}, s{sT2}
s_lshl_b32 s{sT2}, s{sWV}, 8
s_add_u32 s{sOst}, s{sOst}, s{sT2}
s_add_u32 s{sOst}, s{sOst}, {O_OFF}
s_lshl_b32 s{sLst}, s{sT0}, 8
s_lshl_b32 s{sT2}, s{sWV}, 6
s_add_u32 s{sLst}, s{sLst}, s{sT2}
s_lshl_b32 s{sT2}, s{sT1}, 2
s_add_u32 s{sLst}, s{sLst}, s{sT2}
s_add_u32 s{sLst}, s{sLst}, {LSE_OFF}
""")
a(f"""s_lshl_b32 s{sQst}, s{sGRP}, 13
s_lshr_b32 s{sT0}, s{sIDX}, 3
s_lshl_b32 s{sT1}, s{sT0}, 10
s_add_u32 s{sQst}, s{sQst}, s{sT1}
s_and_b32 s{sT1}, s{sIDX}, 7
s_lshl_b32 s{sT2}, s{sT1}, 7
s_add_u32 s{sQst}, s{sQst}, s{sT2}
s_lshl_b32 s{sT2}, s{sWV}, 5
s_add_u32 s{sQst}, s{sQst}, s{sT2}
""")
a(f"""s_and_b32 s{sT2}, s{sWV}, 1
s_lshl_b32 s{sE}, s{sGRP}, 1
s_add_u32 s{sE}, s{sE}, s{sT2}
s_lshl_b32 s{sOld}, s{sE}, 14
s_lshl_b32 s{sE+1}, s{sT0}, 8
s_add_u32 s{sOld}, s{sOld}, s{sE+1}
s_add_u32 s{sOld}, s{sOld}, {O_OFF}
s_lshl_b32 s{sLld}, s{sE}, 8
s_lshl_b32 s{sE+1}, s{sT0}, 6
s_add_u32 s{sLld}, s{sLld}, s{sE+1}
s_add_u32 s{sLld}, s{sLld}, {LSE_OFF}
s_lshl_b32 s{sWOst}, s{sT2}, 16
s_lshl_b32 s{sE}, s{sT1}, 1
s_lshr_b32 s{sE+1}, s{sWV}, 1
s_add_u32 s{sE}, s{sE}, s{sE+1}
s_lshl_b32 s{sE}, s{sE}, 12
s_add_u32 s{sWOst}, s{sWOst}, s{sE}
s_lshl_b32 s{sDNst}, s{sE}, 0
s_lshl_b32 s{sE}, s{sGRP}, 2
s_add_u32 s{sE}, s{sE}, s{sT0}
s_lshl_b32 s{sE}, s{sE}, 7
s_add_u32 s{sWOst}, s{sWOst}, s{sE}
s_add_u32 s{sWOst}, s{sWOst}, {WO_OFF}
s_lshl_b32 s{sFB}, s{sT0}, 3
s_add_u32 s{sFB}, s{sFB}, s{sGRP}
s_lshl_b32 s{sE}, s{sFB}, 7
s_add_u32 s{sDNst}, s{sDNst}, s{sE}
s_lshl_b32 s{sE}, s{sT2}, 6
s_add_u32 s{sDNst}, s{sDNst}, s{sE}
s_add_u32 s{sDNst}, s{sDNst}, {DN_OFF}
s_lshl_b32 s{sGUld}, s{sFB}, 13
s_lshl_b32 s{sE}, s{sWV}, 8
s_add_u32 s{sGUld}, s{sGUld}, s{sE}
s_add_u32 s{sGUld}, s{sGUld}, {GU_OFF}
s_lshl_b32 s{sE}, s{sT1}, 10
s_add_u32 s{sGUst}, s{sGUld}, s{sE}
s_lshl_b32 s{sMld}, s{sIDX}, 12
s_lshl_b32 s{sE}, s{sGRP}, 11
s_lshl_b32 s{sXst}, s{sIDX}, 6
s_add_u32 s{sXst}, s{sXst}, s{sE}
s_lshl_b32 s{sXC}, s{sT1}, 7
s_add_u32 s{sXC}, s{sXC}, s{sE}
s_add_u32 s{sXC}, s{sXC}, {X1_OFF}
s_add_u32 s{sXE}, s{sXE}, s{sE}
s_add_u32 s{sXE}, s{sXE}, {X2_OFF}
s_lshl_b32 s{sSTld}, s{sGRP}, 8
s_and_b32 s{sE}, s{sIDX}, 15
s_lshl_b32 s{sE}, s{sE}, 4
s_lshr_b32 s{sE+1}, s{sIDX}, 4
s_lshl_b32 s{sE+1}, s{sE+1}, 3
s_add_u32 s{sE}, s{sE}, s{sE+1}
s_add_u32 s{sSTst}, s{sSTld}, s{sE}
""")
a("s_waitcnt vmcnt(8)")
ts(1)
S, Qr = 90, 91
a(f"v_mov_b32 v{S}, 0\nv_mov_b32 v{Qr}, 0")
for i in range(8):
    a(f"""v_lshlrev_b32 v{vT0}, 16, v{XS+i}
    v_and_b32 v{vT1}, 0xffff0000, v{XS+i}
    v_add_f32 v{S}, v{S}, v{vT0}
    v_fmac_f32 v{Qr}, v{vT0}, v{vT0}
    v_add_f32 v{S}, v{S}, v{vT1}
    v_fmac_f32 v{Qr}, v{vT1}, v{vT1}""")
a(f"v_lshlrev_b32 v{vX0}, 16, v{vX1}\nv_and_b32 v{vX1}, 0xffff0000, v{vX1}")
a("s_barrier")
trread(aWQ, vTR, WQ_L, 4)
for n in (2, 4, 8):
    dpp("v_add_f32", S, S, S, f"row_ror:{n}"); dpp("v_add_f32", Qr, Qr, Qr, f"row_ror:{n}")
allred_rows("v_add_f32", S, vT0); allred_rows("v_add_f32", Qr, vT0)
stats_finalize(S, Qr, vT0)
a("s_waitcnt lgkmcnt(0)")
for j in range(4): mfma(v4(vCSQ), a4(aWQ+4*j), a4(aONE), 0 if j == 0 else v4(vCSQ))
DE = 60
stage_E_tail(XF, S, Qr, DE, sQst)
a(f"buffer_store_dwordx2 {v2(DE)}, v{vQs}, {srd(WS_)}, s{sQst} offen sc1")
exec_all()
ts(2)
kload(1); kload(5)
a("s_waitcnt vmcnt(8)\ns_barrier")
lna = lab("noarr")
a(f"""s_getreg_b32 s{sT0}, hwreg(HW_REG_XCC_ID)
s_and_b32 s{sT0}, s{sT0}, 7
s_mul_i32 s{sFAST}, s{sT0}, 6
s_cmp_eq_u32 s{sWV}, 0
s_cbranch_scc0 {lna}
s_lshl_b64 s[{sE}:{sE+1}], 1, s{sFAST}
s_add_u32 s{sE+1}, s{sE+1}, 0x10000
v_mov_b32 v{vT0+1}, s{sE}
v_mov_b32 v{vT0+2}, s{sE+1}
s_lshl_b32 s{sT0}, s{sGRP}, 5
s_mov_b64 exec, 1
buffer_atomic_add_x2 {v2(vT0+1)}, off, {srd(DBG_)}, s{sT0} sc1
s_mov_b64 exec, -1
{lna}:""")
kload(2); kload(6); kload(3); kload(7)
vload(0)
CT = 80
a(f"v_and_b32 v{vT0}, 7, v{vLane}\nv_lshlrev_b32 v{vT0}, 5, v{vT0}")
a(f"buffer_load_dwordx2 {v2(CT)}, v{vT0}, {srd(DBG_)}, 0 offen sc1")
vload(1)
lp, ld = lab("bar"), lab("barok")
a(f"""s_waitcnt vmcnt(8)
{lp}:
v_lshrrev_b32 v{vT1}, 16, v{CT+1}
v_cmp_gt_u32 vcc, 32, v{vT1}
s_cbranch_vccz {ld}
buffer_load_dwordx2 {v2(CT)}, v{vT0}, {srd(DBG_)}, 0 offen sc1
s_waitcnt vmcnt(0)
s_sub_u32 s{sTO}, s{sTO}, 1
s_cbranch_scc0 {lp}
s_mov_b32 s{sTO}, 0
{ld}:""")
ts(3)
for j in range(4): a(f"buffer_load_dwordx4 {v4(QF+4*j)}, v{vQl}, {srd(WS_)}, s{sQld} offen offset:{64*j} sc1")
a(f"""v_readlane_b32 s{sT0}, v{CT}, s{sGRP}
v_readlane_b32 s{sT1}, v{CT+1}, s{sGRP}
s_lshl_b64 s[{sE}:{sE+1}], 32, s{sFAST}
s_add_u32 s{sE+1}, s{sE+1}, 0x200000
s_xor_b32 s{sT0}, s{sT0}, s{sE}
s_xor_b32 s{sT1}, s{sT1}, s{sE+1}
s_or_b32 s{sT0}, s{sT0}, s{sT1}
s_cmp_eq_u32 s{sT0}, 0
s_cselect_b32 s{sFAST}, 1, 0""")
vload(2)
a("s_waitcnt vmcnt(8)")
ts(4)
ts_flush(1, 0)
if TS:
    for k in range(1, 5): a(f"v_writelane_b32 v{vTSV}, s{TSB+2*k}, {k}")
a("s_branch L_qk")

a("L_layer:")
poll([f"buffer_load_dwordx4 {v4(QF+4*j)}, v{vQl}, {srd(WS_)}, s{sQld} offen offset:{64*j}" for j in range(4)], range(QF, QF+16), ACL)
a("L_qk:")
ts(0)
D = lambda t: DT + 4*t
def xlo(t, X): return [lambda r=r: dpp("v_add_f32", X+r, D(t)+r, D(t)+r, "row_ror:8", 0x3) for r in range(4)]
def xhi(t, X): return [lambda r=r: dpp("v_add_f32", X+r, D(t)+r, D(t)+r, "row_ror:8", 0xc) for r in range(4)]
def zev(Z): return [lambda r=r: dpp("v_add_f32", Z+r, XT+r, XT+r, "row_ror:12", 0x5) for r in range(4)]
def zod(Z): return [lambda r=r: dpp("v_add_f32", Z+r, YT+r, YT+r, "row_ror:4", 0xa) for r in range(4)]
vM, vM2 = ACL, ACL+1
fill = xlo(0, XT) + xhi(2, XT) + zev(ZA) + xlo(1, YT) + xhi(3, YT) + zod(ZA) + \
    [lambda: a(f"v_max3_f32 v{vM}, v{ZA}, v{ZA+1}, v{ZA+2}"), lambda: a(f"v_max_f32 v{vM}, v{ZA+3}, v{vM}")] + \
    xlo(4, XT) + xhi(6, XT) + zev(ZB) + xlo(5, YT) + xhi(7, YT) + zod(ZB)
n = 0
for tau in (0, 2, 1, 3, 4, 6, 5, 7):
    for j in range(4):
        mfma(v4(D(tau)), a4(aK+16*tau+4*j), v4(QF+4*j), 0 if j == 0 else v4(D(tau)))
        n += 1
        if n >= 12:
            fill.pop(0)(); fill.pop(0)()
while fill: fill.pop(0)()
a(f"v_max3_f32 v{vM}, v{ZB}, v{ZB+1}, v{vM}\nv_max3_f32 v{vM}, v{ZB+2}, v{ZB+3}, v{vM}")
dpp("v_max_f32", vM, vM, vM, "row_ror:4"); dpp("v_max_f32", vM, vM, vM, "row_ror:8")
allred_rows("v_max_f32", vM, vM2)
vMX = QF + 12
a(f"v_mov_b32 v{vMX}, v{vM}")
for r in range(8): a(f"v_sub_f32 v{ZA+r}, v{ZA+r}, v{vM}")
for r in range(8): a(f"v_exp_f32 v{ZA+r}, v{ZA+r}")
P = [XT, YT, QF, QF+4]
for r in range(4): a(f"v_cvt_pk_bf16_f32 v{P[0]+r}, v{ZA+2*r}, v{ZA+2*r+1}")
ts(1)
def transpose(t, waits):
    src, dst = VR + 32*(t+1), VR + 32*t
    for p in range(4):
        if waits[p] is not None: a(f"s_waitcnt vmcnt({waits[p]})")
        for q in range(4):
            a(f"v_perm_b32 v{dst+8*q+p}, v{src+8*p+4+q}, v{src+8*p+q}, s{sSEL0}")
            a(f"v_perm_b32 v{dst+8*q+4+p}, v{src+8*p+4+q}, v{src+8*p+q}, s{sSEL1}")
vWr = ZA
for t in range(4):
    ls = lab("skip")
    a(f"s_cmp_eq_u32 s{sLAYER}, 0\ns_cbranch_scc0 {ls}")
    if t == 0:
        vload(3)
        transpose(0, [None]*4)
    elif t == 1:
        transpose(1, [None]*4)
    elif t == 2:
        a(f"""v_lshrrev_b32 v{vWr}, 7, v{vL16}
        v_and_b32 v{vWr+1}, 0x70, v{vL16}
        v_lshl_add_u32 v{vWr}, v{vWr}, 10, v{vWr+1}
        s_lshl_b32 s{sT0}, s{sGRP}, 6
        s_lshr_b32 s{sT1}, s{sIDX}, 3
        s_lshl_b32 s{sT1}, s{sT1}, 4
        s_add_u32 s{sT0}, s{sT0}, s{sT1}
        s_add_u32 s{sT0}, s{sT0}, s{sWV}
        s_lshl_b32 s{sT0}, s{sT0}, 13
        s_and_b32 s{sT1}, s{sIDX}, 7
        s_lshl_b32 s{sT1}, s{sT1}, 7
        s_add_u32 s{sT0}, s{sT0}, s{sT1}""")
        dma(WO_, vWr, sT0, 32*1024, 4, WO_L)
        transpose(2, [12, None, None, None])
    else:
        transpose(3, [10, 8, 6, 4])
    a(f"{ls}:")
    rot = [lambda tt=tt, r=r: dpp("v_mov_b32", P[tt]+r, P[0]+r, None, f"row_ror:{16-4*tt}") for tt in (1, 2, 3) for r in range(4)] if t == 0 else []
    for e in range(8):
        mfma(v4(DT+4*e), v4(VR+32*t+4*e), v4(P[t]), 0 if t == 0 else v4(DT+4*e))
        for _ in range(2):
            if rot: rot.pop(0)()
    mfma(v4(ACL), a4(aONE), v4(P[t]), 0 if t == 0 else v4(ACL))
ts(2)
exec_set(0x000f000f, 0x000f000f)
for e in range(8): a(f"ds_write_b128 v{vOCw}, {v4(DT+4*e)} offset:{16*e}")
a(f"ds_write2_b32 v{vMLw}, v{vMX}, v{ACL} offset0:0 offset1:1")
exec_all()
a("s_waitcnt lgkmcnt(0)\ns_barrier")
ML = T; OV = T + 8; FW = T + 16
a(f"ds_read_b128 {v4(ML)}, v{vMLr}\nds_read_b128 {v4(ML+4)}, v{vMLr} offset:16")
for w in range(4):
    a(f"ds_read_b32 v{OV+2*w}, v{vOCr} offset:{w*OC_W}\nds_read_b32 v{OV+2*w+1}, v{vOCr} offset:{w*OC_W+16}")
a(f"""s_waitcnt lgkmcnt(8)
v_max3_f32 v{FW+4}, v{ML}, v{ML+2}, v{ML+4}
v_max_f32 v{FW+4}, v{ML+6}, v{FW+4}""")
for w in range(4): a(f"v_sub_f32 v{FW+w}, v{ML+2*w}, v{FW+4}")
for w in range(4): a(f"v_exp_f32 v{FW+w}, v{FW+w}")
a(f"v_mul_f32 v{FW+5}, v{FW}, v{ML+1}")
for w in range(1, 4): a(f"v_fmac_f32 v{FW+5}, v{FW+w}, v{ML+2*w+1}")
a(f"v_rcp_f32 v{FW+6}, v{FW+5}\nv_log_f32 v{FW+7}, v{FW+5}\ns_waitcnt lgkmcnt(0)")
a(f"v_mul_f32 v{OV}, v{FW}, v{OV}\nv_mul_f32 v{OV+1}, v{FW}, v{OV+1}")
for w in range(1, 4): a(f"v_fmac_f32 v{OV}, v{FW+w}, v{OV+2*w}\nv_fmac_f32 v{OV+1}, v{FW+w}, v{OV+2*w+1}")
a(f"""v_mul_f32 v{OV}, v{FW+6}, v{OV}
v_mul_f32 v{OV+1}, v{FW+6}, v{OV+1}
v_add_f32 v{FW+7}, v{FW+7}, v{FW+4}
v_cvt_pk_bf16_f32 v{OV}, v{OV}, v{OV+1}""")
pub(f"buffer_store_dword v{OV}, v{vL4}, {srd(WS_)}, s{sOst} offen", "s_mov_b64 exec, 1",
    f"buffer_store_dword v{FW+7}, off, {srd(WS_)}, s{sLst}", "s_mov_b64 exec, -1")
ts(3)
ls = lab("skip")
a(f"s_cmp_eq_u32 s{sLAYER}, 0\ns_cbranch_scc0 {ls}")
a(f"""s_and_b32 s{sT0}, s{sWV}, 1
s_lshl_b32 s{sT0}, s{sT0}, 5
v_subrev_u32 v{T}, s{sT0}, v{vTR}
s_waitcnt vmcnt(0)
s_barrier""")
trread(aWO, T, WO_L, 4); trread(aWO+16, T, WO_L+32, 4)
a(f"s_waitcnt lgkmcnt(0)\n{ls}:")
OF = T; LS = T + 16; DB = T + 20; EB = T + 28
poll([f"buffer_load_dwordx4 {v4(OF+4*j)}, v{vOl}, {srd(WS_)}, s{sOld} offen offset:{64*j}" for j in range(4)] +
     [f"buffer_load_dwordx4 {v4(LS)}, v{vG16}, {srd(WS_)}, s{sLld} offen"], range(OF, OF+20), EB)
ts(4)
for j in range(4):
    for t in range(2): mfma(v4(DB+4*t), v4(OF+4*j), a4(aWO+16*t+4*j), 0 if j == 0 else v4(DB+4*t))
ls = lab("skip")
a(f"s_cmp_eq_u32 s{sLAYER}, 0\ns_cbranch_scc0 {ls}\ns_cmp_lt_u32 s{sFB}, 28\ns_cbranch_scc0 {ls}")
vWg = EB + 8
a(f"""v_lshrrev_b32 v{vWg+2}, 7, v{vL16}
v_and_b32 v{vWg+1}, 0x70, v{vL16}
v_mul_u32_u24 v{vWg}, 3584, v{vWg+2}
v_add_u32 v{vWg}, v{vWg}, v{vWg+1}
v_lshl_add_u32 v{vWg+1}, v{vWg+2}, 10, v{vWg+1}
s_and_b32 s{sT1}, s{sIDX}, 7
s_lshl_b32 s{sT0}, s{sT1}, 3
s_add_u32 s{sT0}, s{sT0}, s{sWV}
s_mul_i32 s{sT0}, s{sT0}, {8*3584}
s_lshl_b32 s{sE}, s{sFB}, 7
s_add_u32 s{sT0}, s{sT0}, s{sE}
s_mov_b32 s{sE+1}, s{sT0}""")
dma(WG_, vWg, sT0, 32*3584, 2, WG_L); dma(WU_, vWg, sE+1, 32*3584, 2, WU_L)
a(f"""s_lshl_b32 s{sT0}, s{sFB}, 3
s_add_u32 s{sT0}, s{sT0}, s{sWV}
s_lshl_b32 s{sT0}, s{sT0}, 13
s_lshl_b32 s{sT1}, s{sT1}, 7
s_add_u32 s{sT0}, s{sT0}, s{sT1}""")
dma(WD_, vWg+1, sT0, 32*1024, 2, WD_L)
a(f"{ls}:")
a(f"v_max3_f32 v{EB+4}, v{LS}, v{LS+1}, v{LS+2}\nv_max_f32 v{EB+4}, v{LS+3}, v{EB+4}")
allred_rows("v_max_f32", EB+4, EB+5)
for r in range(4): a(f"v_sub_f32 v{EB+r}, v{LS+r}, v{EB+4}")
for r in range(4): a(f"v_exp_f32 v{EB+r}, v{EB+r}")
a(f"v_add_f32 v{EB+4}, v{EB}, v{EB+1}\nv_add_f32 v{EB+5}, v{EB+2}, v{EB+3}")
a(f"v_mul_f32 v{DB}, v{EB}, v{DB}\nv_mul_f32 v{DB+4}, v{EB}, v{DB+4}\nv_add_f32 v{EB+4}, v{EB+4}, v{EB+5}")
for r in range(1, 4): a(f"v_fmac_f32 v{DB}, v{EB+r}, v{DB+r}\nv_fmac_f32 v{DB+4}, v{EB+r}, v{DB+4+r}")
allred_rows("v_add_f32", EB+4, EB+5)
a(f"""v_permlane16_swap_b32 v{DB}, v{DB+4}
v_rcp_f32 v{EB+4}, v{EB+4}
v_add_f32 v{DB}, v{DB}, v{DB+4}
v_mov_b32 v{DB+4}, v{DB}
v_permlane32_swap_b32 v{DB}, v{DB+4}
v_add_f32 v{DB}, v{DB}, v{DB+4}
v_mul_f32 v{DB}, v{DB}, v{EB+4}
s_mov_b32 exec_hi, 0
buffer_store_dword v{DB}, v{vL4}, {srd(WS_)}, s{sWOst} offen sc1
s_mov_b64 exec, -1""")
ts(5)

def middle(off, xoff, stoff, final):
    M = T
    lsk = lab("nomid")
    a(f"s_cmp_eq_u32 s{sWV}, 0\ns_cbranch_scc0 {lsk}")
    a(f"s_add_u32 s{sT0}, s{sMld}, {off}")
    poll([f"buffer_load_dwordx4 {v4(M+4*u)}, v{vL16}, {srd(WS_)}, s{sT0} offen offset:{1024*u}" for u in range(4)], range(M, M+16), M+16)
    for r in range(4): a(f"v_add_f32 v{M+r}, v{M+r}, v{M+4+r}")
    for r in range(4): a(f"v_add_f32 v{M+8+r}, v{M+8+r}, v{M+12+r}")
    for r in range(4): a(f"v_add_f32 v{M+r}, v{M+r}, v{M+8+r}")
    a(f"""v_permlane32_swap_b32 v{M}, v{M+2}
    v_permlane32_swap_b32 v{M+1}, v{M+3}
    v_add_f32 v{M}, v{M}, v{M+2}
    v_add_f32 v{M+1}, v{M+1}, v{M+3}""")
    dpp("v_add_f32", M, M, M, "row_ror:8"); dpp("v_add_f32", M+1, M+1, M+1, "row_ror:8")
    a(f"""v_mov_b32 v{M+2}, v{M}
    v_mov_b32 v{M+3}, v{M+1}
    v_permlane16_swap_b32 v{M}, v{M+2}
    v_permlane16_swap_b32 v{M+1}, v{M+3}
    v_add_f32 v{vX0}, v{vX0}, v{M}
    v_add_f32 v{vX1}, v{vX1}, v{M+1}
    v_add_f32 v{vX0}, v{vX0}, v{M+2}
    v_add_f32 v{vX1}, v{vX1}, v{M+3}
    s_add_u32 s{sT0}, s{sXst}, {xoff}
    s_add_u32 s{sT1}, s{sSTst}, {stoff}
    v_cvt_pk_bf16_f32 v{M}, v{vX0}, v{vX1}""")
    exec_set(0xff, 0xff)
    if final:
        lnf = lab("notfinal")
        a(f"""s_cmp_eq_u32 s{sLAYER}, 0
        s_cbranch_scc1 {lnf}
        s_lshl_b32 s{sT0}, s{sIDX}, 6
        buffer_store_dword v{M}, v{vXs}, {srd(OUT_)}, s{sT0} offen
        s_mov_b64 exec, -1
        s_branch L_fin
        {lnf}:""")
    pub(f"buffer_store_dword v{M}, v{vXs}, {srd(WS_)}, s{sT0} offen")
    exec_all()
    a(f"""v_lshlrev_b32 v{vX0}, 16, v{M}
    v_and_b32 v{vX1}, 0xffff0000, v{M}
    v_add_f32 v{M+1}, v{vX0}, v{vX1}
    v_mul_f32 v{M+2}, v{vX0}, v{vX0}
    v_fmac_f32 v{M+2}, v{vX1}, v{vX1}
    v_permlane32_swap_b32 v{M+1}, v{M+2}
    v_add_f32 v{M+1}, v{M+1}, v{M+2}""")
    dpp("v_add_f32", M+1, M+1, M+1, "quad_perm:[1,0,3,2]")
    dpp("v_add_f32", M+1, M+1, M+1, "quad_perm:[2,3,0,1]")
    dpp("v_add_f32", M+1, M+1, M+1, "row_ror:4")
    a("s_mov_b32 exec_lo, 1\ns_mov_b32 exec_hi, 1")
    pub(f"buffer_store_dword v{M+1}, v{vXs}, {srd(WS_)}, s{sT1} offen")
    exec_all()
    a(f"{lsk}:")

middle(WO_OFF, X1_OFF, ST1_OFF, False)
ts(6)
ls = lab("skip")
a(f"s_cmp_eq_u32 s{sLAYER}, 0\ns_cbranch_scc0 {ls}\ns_waitcnt vmcnt(0)\n{ls}:\ns_barrier")
DD = T + 24
a(f"s_cmp_lt_u32 s{sFB}, 28\ns_cbranch_scc0 L_noffn")
ls = lab("skip")
a(f"s_cmp_eq_u32 s{sLAYER}, 0\ns_cbranch_scc0 {ls}")
trread(aWG, vTR, WG_L, 2); trread(aWU, vTR, WU_L, 2); trread(aWD, vTR, WD_L, 2)
a("s_waitcnt lgkmcnt(0)")
for j in range(2): mfma(v4(T), a4(aONE), a4(aWG+4*j), 0 if j == 0 else v4(T))
for j in range(2): mfma(v4(T+4), a4(aONE), a4(aWU+4*j), 0 if j == 0 else v4(T+4))
a(f"v_mov_b32 v{vCSG}, v{T}\nv_mov_b32 v{vCSU}, v{T+4}\n{ls}:")
def stats_loads(reg, off):
    return [f"buffer_load_dwordx2 {v2(reg)}, v{vSTl}, {srd(WS_)}, s{sT1} offen", f"buffer_load_dwordx2 {v2(reg+2)}, v{vSTl}, {srd(WS_)}, s{sT1} offen offset:128"]
def stats_reduce(reg):
    a(f"v_add_f32 v{reg}, v{reg}, v{reg+2}\nv_add_f32 v{reg+1}, v{reg+1}, v{reg+3}")
    for n in (2, 4, 8):
        dpp("v_add_f32", reg, reg, reg, f"row_ror:{n}"); dpp("v_add_f32", reg+1, reg+1, reg+1, f"row_ror:{n}")
    stats_finalize(reg, reg+1, reg+2)
XC = T; SC = T + 8; DG = T + 12; DU = T + 16; GO = T + 20
a(f"s_add_u32 s{sT1}, s{sSTld}, {ST1_OFF}")
poll([f"buffer_load_dwordx4 {v4(XC+4*j)}, v{vXl}, {srd(WS_)}, s{sXC} offen offset:{64*j}" for j in range(2)] + stats_loads(SC, ST1_OFF), range(XC, XC+12), DG)
ts(7)
for j in range(2):
    mfma(v4(DG), v4(XC+4*j), a4(aWG+4*j), 0 if j == 0 else v4(DG))
    mfma(v4(DU), v4(XC+4*j), a4(aWU+4*j), 0 if j == 0 else v4(DU))
stats_reduce(SC)
qp = ["quad_perm:[0,0,2,2]", "quad_perm:[1,1,3,3]"]
for i, (cs, b) in enumerate(((vCSG, 0), (vCSG, 1), (vCSU, 0), (vCSU, 1))): dpp("v_mul_f32", GO+i, SC, cs, qp[b])
for i, (d, b) in enumerate(((DG, 0), (DG+1, 1), (DU, 0), (DU+1, 1))): dpp("v_fmac_f32", GO+i, SC+1, d, qp[b])
a("s_mov_b64 exec, 0xffff")
pub(f"buffer_store_dwordx4 {v4(GO)}, v{vC16}, {srd(WS_)}, s{sGUst} offen")
exec_all()
G = T
poll([f"buffer_load_dwordx4 {v4(G+4*u)}, v{vGUl}, {srd(WS_)}, s{sGUld} offen offset:{1024*u}" for u in range(2)], range(G, G+8), G+8)
ts(8)
for r in range(4): a(f"v_add_f32 v{G+r}, v{G+r}, v{G+4+r}")
a(f"""v_permlane32_swap_b32 v{G}, v{G+1}
v_permlane32_swap_b32 v{G+2}, v{G+3}
v_add_f32 v{G}, v{G}, v{G+1}
v_add_f32 v{G+2}, v{G+2}, v{G+3}
v_permlane16_swap_b32 v{G}, v{G+2}
v_add_f32 v{G}, v{G}, v{G+2}
v_mov_b32 v{G+1}, v{G}
v_permlane16_swap_b32 v{G}, v{G+1}
v_max_f32 v{G}, 0, v{G}
v_mul_f32 v{G}, v{G}, v{G+1}
v_cvt_pk_bf16_f32 v{G}, v{G}, v{G}
ds_write_b16 v{vHw}, v{G}
s_waitcnt lgkmcnt(0)
s_barrier
ds_read_b128 {v4(G+4)}, v{vHr}
ds_read_b128 {v4(G+8)}, v{vHr} offset:64
s_waitcnt lgkmcnt(1)""")
mfma(v4(DD), a4(aWD), v4(G+4), 0)
a("s_waitcnt lgkmcnt(0)")
mfma(v4(DD), a4(aWD+4), v4(G+8), v4(DD))
a("L_dpub:")
exec_set(0x00030003, 0x00030003)
a(f"buffer_store_dwordx4 {v4(DD)}, v{vDNs}, {srd(WS_)}, s{sDNst} offen sc1")
exec_all()
ts(9)
lgo = lab("go")
a(f"""s_cmp_eq_u32 s{sLAYER}, 0
s_cbranch_scc1 {lgo}
s_or_b32 s{sT0}, s{sGRP}, s{sWV}
s_cmp_eq_u32 s{sT0}, 0
s_cbranch_scc0 L_fin
{lgo}:""")
middle(DN_OFF, X2_OFF, ST2_OFF, True)
ts(10)
a("s_barrier")
XE = T; SE = T + 16; DE = T + 20
a(f"s_add_u32 s{sT1}, s{sSTld}, {ST2_OFF}")
poll([f"buffer_load_dwordx4 {v4(XE+4*j)}, v{vXl}, {srd(WS_)}, s{sXE} offen offset:{64*j}" for j in range(4)] + stats_loads(SE, ST2_OFF), range(XE, XE+20), DE)
ts(11)
for j in range(4): mfma(v4(DE), a4(aWQ+4*j), v4(XE+4*j), 0 if j == 0 else v4(DE))
stats_reduce(SE)
a(f"v_mul_f32 v{SE}, {f2u(QSCALE):#x}, v{SE}\nv_mul_f32 v{SE+1}, {f2u(QSCALE):#x}, v{SE+1}")
for r in range(4): a(f"v_mul_f32 v{DE+4+r}, v{SE}, v{vCSQ+r}")
for r in range(4): a(f"v_fmac_f32 v{DE+4+r}, v{SE+1}, v{DE+r}")
a(f"""v_cvt_pk_bf16_f32 v{DE}, v{DE+4}, v{DE+5}
v_cvt_pk_bf16_f32 v{DE+1}, v{DE+6}, v{DE+7}
s_add_u32 s{WS_}, s{WS_}, {LSTR}
s_addc_u32 s{WS_+1}, s{WS_+1}, 0
s_mov_b32 s{sLAYER}, 1""")
exec_set(0x00030003, 0x00030003)
pub(f"buffer_store_dwordx2 {v2(DE)}, v{vQs}, {srd(WS_)}, s{sQst} offen")
exec_all()
ts_flush(8, 12)
a("s_branch L_layer")
a("L_noffn:")
for r in range(4): a(f"v_mov_b32 v{DD+r}, 0")
a("s_branch L_dpub")
for ls, lb, st in slow_blocks:
    a(f"{ls}:")
    for s in st: a(s)
    a(f"s_branch {lb}")
a("L_fin:")
if opt["dly"]:
    a(f"s_mov_b32 s{sT0}, {opt['dly']}\nL_dly:\ns_nop 15\ns_nop 15\ns_nop 15\ns_nop 15\ns_sub_u32 s{sT0}, s{sT0}, 1\ns_cbranch_scc0 L_dly")
if TS:
    ts(11)
    ts_flush(24, 12)
    a(f"""v_writelane_b32 v{vTSV}, s{sFAST}, 40
    v_writelane_b32 v{vTSV}, s{sTO}, 41
    s_lshl_b32 s{sT0}, s2, 2
    s_add_u32 s{sT0}, s{sT0}, s{sWV}
    s_lshl_b32 s{sT0}, s{sT0}, 8
    s_add_u32 s{sT0}, s{sT0}, {TS_OFF - LSTR}
    buffer_store_dword v{vTSV}, v{vL4}, {srd(WS_)}, s{sT0} offen""")
a("L_end:\ns_endpgm")

body = a.finalize()
kn = opt["name"]
ref = open("cdna_kernels/" + NAME + ".s.ref").read().split("\n")
head = [l for l in ref if l.startswith(";") and "@launch" not in l and "Override launch" not in l and "grid=ceil" not in l]
head = head[:13]
src = "\n".join(head) + f"""
; One persistent launch, one workgroup per CU: K/V stay in registers for both layers, weight tiles in AGPRs.
; @launch grid=(256,1,1) block=(256,1,1) lds={LDS_BYTES}
.amdgcn_target "amdgcn-amd-amdhsa--gfx950"
.text
.globl {kn}
.p2align 8
.type {kn},@function
{kn}:
{body}
.section .rodata,"a"
.p2align 6
.amdhsa_kernel {kn}
  .amdhsa_next_free_vgpr 512
  .amdhsa_next_free_sgpr 102
  .amdhsa_accum_offset 256
  .amdhsa_group_segment_fixed_size 0
  .amdhsa_kernarg_size 96
  .amdhsa_user_sgpr_count 2
  .amdhsa_user_sgpr_kernarg_segment_ptr 1
  .amdhsa_system_sgpr_workgroup_id_x 1
.end_amdhsa_kernel
"""
open(out_path, "w").write(src)
print("nops inserted:", a.nops, "lines:", len(body.split("\n")), file=sys.stderr)
```

```python
import sys, math, struct
from asmlib import Asm

NAME = "interleave_layers__gqa_block_cached__glu_gated_reglu__decode"
opt = dict(kvnt="nt", wnt="none", ts=0, fast=1, tobits=20, name=NAME+"_kernel", dly=0, until=0)
out_path = sys.argv[1]
for x in sys.argv[2:]:
    k, v = x.split("=")
    opt[k] = v if k in ("kvnt", "wnt", "name") else int(v)
fl = lambda s: "" if s == "none" else " " + s.replace("+", " ")
KVNT = fl(opt["kvnt"]); WNT = fl(opt["wnt"])
TS = opt["ts"]

def f2u(x): return struct.unpack("<I", struct.pack("<f", x))[0]

LSTR = 0x100000
Q_OFF, O_OFF, LSE_OFF = 0x0, 0x10000, 0x50000
X1_OFF, X2_OFF, ST1_OFF, ST2_OFF = 0x51000, 0x55000, 0x59000, 0x5A000
WO_OFF, DN_OFF, GU_OFF = 0x60000, 0x80000, 0xA0000
RESET_OFF = 0x10000
TS_OFF = 0x400000
WS_SIZE = 0x800000
WQ_L, WO_L, WG_L, WU_L, WD_L = 0, 16384, 32768, 40960, 49152
OC_L = 57344; OC_W = 2368; OC_G = 592; OC_H = 144
ML_L = OC_L + 4*OC_W
H_L = ML_L + 128
LDS_BYTES = H_L + 256
sWV, sGRP, sIDX, sLAYER, sFAST, sTO = 3, 4, 5, 6, 7, 76
K_, V_, WS_, WQ_, WO_, WG_, WU_, WD_, X_, OUT_, DBG_ = 8, 12, 16, 20, 24, 28, 32, 36, 40, 44, 48
def srd(n): return f"s[{n}:{n+3}]"
sKV, sQld, sQst, sOst, sLst, sOld, sLld, sWOst = 77, 78, 79, 80, 81, 82, 83, 84
sMld, sXst, sSTst, sXC, sXE, sSTld, sGUst, sGUld, sDNst, sFB = 85, 86, 87, 88, 89, 90, 91, 92, 93, 94
sT0, sT1, sT2, sSEL0, sSEL1 = 95, 96, 97, 98, 99
sE = 100
TSB = 52
vL16, vL4, vQl, vOl, vXl, vC16, vG16, vQs, vDNs, vGUl, vXs = 0, 1, 2, 3, 4, 5, 6, 7, 8, 9, 10
vOCw, vOCr, vMLw, vMLr, vHw, vHr, vTR, vSTl = 11, 12, 13, 14, 15, 16, 17, 18
vX0, vX1 = 19, 20
vCSG, vCSU = 21, 22
vTSV = 23
vCSQ = 24
T = 28
QF = 28
DT = 44
ACL = 76
XT, YT = 80, 84
ZA, ZB = 88, 92
VR = 96
def v4(n): return f"v[{n}:{n+3}]"
def v2(n): return f"v[{n}:{n+1}]"
def a4(n): return f"a[{n}:{n+3}]"
aK, aWQ, aWO, aWG, aWU, aWD, aONE = 0, 128, 144, 176, 184, 192, 200

a = Asm()
slow_blocks = []
uid = [0]
def lab(p):
    uid[0] += 1
    return f"L_{p}_{uid[0]}"

def exec_set(lo, hi):
    if lo == 0xffffffff and hi == 0xffffffff: a("s_mov_b64 exec, -1")
    elif hi == 0 and lo <= 64: a(f"s_mov_b64 exec, {lo}")
    else: a(f"s_mov_b32 exec_lo, {lo:#x}\ns_mov_b32 exec_hi, {hi:#x}")
def exec_all(): a("s_mov_b64 exec, -1")

def pub(*stores):
    if not opt["fast"]:
        for s in stores: a(s + (" sc1" if s.startswith("buffer") else ""))
        return
    ls, lb = lab("slow"), lab("back")
    a(f"s_cmp_eq_u32 s{sFAST}, 1\ns_cbranch_scc0 {ls}")
    for s in stores: a(s)
    a(f"{lb}:")
    slow_blocks.append((ls, lb, [s + (" sc1" if s.startswith("buffer") else "") for s in stores]))

def poll(loads, regs, tmp):
    lp, ld = lab("poll"), lab("got")
    a(f"{lp}:")
    for l in loads: a(l + " sc1")
    a("s_waitcnt vmcnt(0)")
    r = list(regs)
    a(f"v_max3_u32 v{tmp}, v{r[0]}, v{r[1]}, v{r[2]}"); r = r[3:]
    while len(r) >= 2:
        a(f"v_max3_u32 v{tmp}, v{r[0]}, v{r[1]}, v{tmp}"); r = r[2:]
    if r: a(f"v_max_u32 v{tmp}, v{r[0]}, v{tmp}")
    a(f"""v_cmp_eq_u32 vcc, -1, v{tmp}
    s_cbranch_vccz {ld}
    s_mov_b64 exec, vcc
    s_sub_u32 s{sTO}, s{sTO}, 1
    s_cbranch_scc0 {lp}
    s_mov_b32 s{sTO}, 0
    {ld}:
    s_mov_b64 exec, -1""")

tsn = [0]
def ts(k):
    if TS: a(f"s_memrealtime s[{TSB+2*k}:{TSB+2*k+1}]")
def ts_flush(base, n):
    if TS:
        a("s_waitcnt lgkmcnt(0)")
        for k in range(n): a(f"v_writelane_b32 v{vTSV}, s{TSB+2*k}, {base+k}")

def mk_srd(d, lo, size):
    a(f"s_mov_b32 s{d}, s{lo}\ns_and_b32 s{d+1}, s{lo+1}, 0xffff\ns_mov_b32 s{d+2}, {size:#x}\ns_mov_b32 s{d+3}, 0x20000")

def mfma(d, A, B, c):
    a(f"v_mfma_f32_16x16x32_bf16 {d}, {A}, {B}, {c}")
def dpp(op, d, s0, s1, ctrl, bank=0xf):
    if s1 is None: a(f"{op}_dpp v{d}, v{s0} {ctrl} row_mask:0xf bank_mask:{bank:#x}")
    else: a(f"{op}_dpp v{d}, v{s0}, v{s1} {ctrl} row_mask:0xf bank_mask:{bank:#x}")
def allred_rows(op, r, t):
    a(f"v_mov_b32 v{t}, v{r}\nv_permlane16_swap_b32 v{r}, v{t}\n{op} v{r}, v{r}, v{t}")
    a(f"v_mov_b32 v{t}, v{r}\nv_permlane32_swap_b32 v{r}, v{t}\n{op} v{r}, v{r}, v{t}")

def dma(srdn, voff, sbase, step, n, ldsbase):
    for i in range(n):
        a(f"s_lshl_b32 s{sT2}, s{sWV}, 10\ns_add_u32 m0, s{sT2}, {ldsbase + i*4096}")
        if i: a(f"s_add_u32 s{sbase}, s{sbase}, {step}")
        a(f"buffer_load_dwordx4 v{voff}, {srd(srdn)}, s{sbase} offen{WNT} lds")

def trread(areg, vaddr, ldsoff, ksteps):
    for j in range(ksteps):
        for u in range(2):
            a(f"ds_read_b64_tr_b16 a[{areg+4*j+2*u}:{areg+4*j+2*u+1}], v{vaddr} offset:{ldsoff + (32*j+4*u)*128}")

def stats_finalize(S, Q, t):
    a(f"""v_mul_f32 v{S}, {f2u(-1/512):#x}, v{S}
    v_mul_f32 v{Q}, {f2u(1/512):#x}, v{Q}
    v_fma_f32 v{Q}, -v{S}, v{S}, v{Q}
    v_max_f32 v{Q}, 0, v{Q}
    v_add_f32 v{Q}, {f2u(1e-5):#x}, v{Q}
    v_rsq_f32 v{Q}, v{Q}
    v_mul_f32 v{S}, v{S}, v{Q}""")

QSCALE = math.log2(math.e) / math.sqrt(128.0)

def stage_E_tail(XF, S, Q, D, soff):
    for j in range(4): mfma(v4(D), a4(aWQ+4*j), v4(XF+4*j), 0 if j == 0 else v4(D))
    a(f"v_mul_f32 v{S}, {f2u(QSCALE):#x}, v{S}\nv_mul_f32 v{Q}, {f2u(QSCALE):#x}, v{Q}")
    for r in range(4): a(f"v_mul_f32 v{D+4+r}, v{S}, v{vCSQ+r}")
    exec_set(0x00030003, 0x00030003)
    for r in range(4): a(f"v_fmac_f32 v{D+4+r}, v{Q}, v{D+r}")
    a(f"v_cvt_pk_bf16_f32 v{D}, v{D+4}, v{D+5}\nv_cvt_pk_bf16_f32 v{D+1}, v{D+6}, v{D+7}")

ts(0)
if opt["until"]: a("s_memrealtime s[52:53]\ns_waitcnt lgkmcnt(0)\nv_mov_b32 v23, s52")
a(f"""s_cmp_ge_u32 s2, 256
s_cbranch_scc1 L_end
s_load_dwordx16 s[52:67], s[0:1], 0
s_load_dwordx8 s[68:75], s[0:1], 64""" if not TS else f"""s_cmp_ge_u32 s2, 256
s_cbranch_scc1 L_end
s_waitcnt lgkmcnt(0)
s_mov_b32 s{sTO}, s{TSB}
s_load_dwordx16 s[52:67], s[0:1], 0
s_load_dwordx8 s[68:75], s[0:1], 64
v_mov_b32 v{vTSV}, 0
v_writelane_b32 v{vTSV}, s{sTO}, 0""")
vLane, vC, vG, vK, vW, vT0, vT1 = 30, 31, 32, 33, 34, 35, 36
a(f"""v_lshrrev_b32 v{vT0}, 6, v0
v_and_b32 v{vLane}, 63, v0
v_readfirstlane_b32 s{sWV}, v{vT0}
s_and_b32 s{sGRP}, s2, 7
s_lshr_b32 s{sIDX}, s2, 3
s_mov_b32 s{sLAYER}, 0
s_mov_b32 s{sTO}, {1 << opt['tobits']:#x}
v_and_b32 v{vC}, 15, v{vLane}
v_lshrrev_b32 v{vG}, 4, v{vLane}
v_lshlrev_b32 v{vL16}, 4, v{vLane}
v_lshlrev_b32 v{vG16}, 4, v{vG}
v_and_b32 v{vT0}, 1, v{vC}
v_lshl_add_u32 v{vXl}, v{vT0}, 10, v{vG16}
v_lshrrev_b32 v{vT0}, 3, v{vLane}
v_and_b32 v{vT1}, 7, v{vLane}
v_lshlrev_b32 v{vT1}, 4, v{vT1}
v_lshl_add_u32 v{vW}, v{vT0}, 13, v{vT1}
v_and_b32 v{vT0}, 3, v{vC}
v_lshrrev_b32 v{vT1}, 2, v{vC}
v_lshl_add_u32 v{vT0}, v{vT0}, 2, v{vT1}
v_lshl_add_u32 v{vK}, v{vT0}, 8, v{vG16}
""")
a(f"""s_lshr_b32 s{sT0}, s{sIDX}, 4
s_lshl_b32 s{sT0}, s{sT0}, 3
s_add_u32 s{sT0}, s{sT0}, s{sGRP}
s_lshl_b32 s{sKV}, s{sT0}, 21
s_and_b32 s{sT0}, s{sIDX}, 15
s_lshl_b32 s{sT0}, s{sT0}, 17
s_add_u32 s{sKV}, s{sKV}, s{sT0}
s_lshl_b32 s{sT0}, s{sWV}, 13
s_add_u32 s{sKV}, s{sKV}, s{sT0}
s_lshr_b32 s{sT0}, s{sIDX}, 3
s_lshl_b32 s{sXE}, s{sT0}, 8
s_lshl_b32 s{sT0}, s{sT0}, 4
s_add_u32 s{sT0}, s{sT0}, s{sWV}
s_lshl_b32 s{sT0}, s{sT0}, 16
s_lshl_b32 s{sT1}, s{sGRP}, 10
s_add_u32 s{sT0}, s{sT0}, s{sT1}
s_and_b32 s{sT1}, s{sIDX}, 7
s_lshl_b32 s{sT1}, s{sT1}, 7
s_add_u32 s{sT0}, s{sT0}, s{sT1}
s_lshl_b32 s{sT1}, s2, 13
s_lshl_b32 s{sT2}, s{sWV}, 11
s_add_u32 s{sT1}, s{sT1}, s{sT2}
s_add_u32 s{sT1}, s{sT1}, {RESET_OFF}
""")
vSX = 37; XS = 80; XF = QF + 16
RST = 88
a(f"""v_lshrrev_b32 v{vT0}, 1, v{vC}
v_lshl_add_u32 v{vT0}, v{vT0}, 2, v{vG}
v_lshlrev_b32 v{vT0}, 5, v{vT0}
v_and_b32 v{vT1}, 1, v{vC}
v_lshl_add_u32 v{vSX}, v{vT1}, 10, v{vT0}
v_mov_b32 v{RST}, -1
v_mov_b32 v{RST+1}, -1
v_mov_b32 v{RST+2}, -1
v_mov_b32 v{RST+3}, -1
v_and_b32 v{vT0}, 7, v{vLane}
v_lshlrev_b32 v{vT0}, 3, v{vT0}
v_lshrrev_b32 v{vT1}, 5, v{vLane}
v_lshl_add_u32 v{vXs}, v{vT1}, 2, v{vT0}
s_waitcnt lgkmcnt(0)""")
mk_srd(WQ_, 58, 512*8192)
dma(WQ_, vW, sT0, 32*8192, 4, WQ_L)
mk_srd(X_, 52, 2048)
for j in range(4): a(f"buffer_load_dwordx4 {v4(XF+4*j)}, v{vXl}, {srd(X_)}, s{sXE} offen offset:{64*j}")
a(f"buffer_load_dwordx4 {v4(XS)}, v{vSX}, {srd(X_)}, 0 offen\nbuffer_load_dwordx4 {v4(XS+4)}, v{vSX}, {srd(X_)}, 0 offen offset:16")
a(f"s_lshl_b32 s{sT0}, s{sIDX}, 6\nbuffer_load_dword v{vX1}, v{vXs}, {srd(X_)}, s{sT0} offen")
mk_srd(WS_, 74, WS_SIZE)
a(f"buffer_store_dwordx4 {v4(RST)}, v{vL16}, {srd(WS_)}, s{sT1} offen sc1\nbuffer_store_dwordx4 {v4(RST)}, v{vL16}, {srd(WS_)}, s{sT1} offen offset:1024 sc1")
mk_srd(K_, 54, 0x2000000)
def kload(tau):
    t, hi = tau & 3, tau >> 2
    a(f"s_add_u32 s{sT0}, s{sKV}, {t*32768 + hi*4096}")
    for j in range(4): a(f"buffer_load_dwordx4 {a4(aK+16*tau+4*j)}, v{vK}, {srd(K_)}, s{sT0} offen offset:{64*j}{KVNT}")
def vload(t):
    for i in range(8):
        if i % 4 == 0: a(f"s_add_u32 s{sT0}, s{sKV}, {t*32768 + (i>>2)*4096}")
        a(f"buffer_load_dwordx4 {v4(VR+32*(t+1)+4*i)}, v{vL16}, {srd(V_)}, s{sT0} offen offset:{1024*(i&3)}{KVNT}")
kload(0); kload(4)
mk_srd(V_, 56, 0x2000000); mk_srd(WO_, 60, 4096*1024); mk_srd(WG_, 64, 512*3584); mk_srd(WU_, 66, 512*3584)
mk_srd(WD_, 68, 1792*1024); mk_srd(OUT_, 70, 2048); mk_srd(DBG_, 72, 256)
a(f"""v_lshlrev_b32 v{vL4}, 2, v{vLane}
v_lshlrev_b32 v{vC16}, 4, v{vC}
v_lshl_add_u32 v{vOl}, v{vC}, 10, v{vG16}
v_lshrrev_b32 v{vT0}, 2, v{vC}
v_lshl_add_u32 v{vQl}, v{vT0}, 10, v{vG16}
v_lshl_add_u32 v{vT0}, v{vG}, 3, v{vT0}
v_lshlrev_b32 v{vTR}, 7, v{vT0}
v_and_b32 v{vT0}, 3, v{vC}
v_lshl_add_u32 v{vQl}, v{vT0}, 8, v{vQl}
v_lshl_add_u32 v{vTR}, v{vT0}, 3, v{vTR}
s_lshl_b32 s{sT0}, s{sWV}, 5
v_add_u32 v{vTR}, s{sT0}, v{vTR}
v_and_b32 v{vT0}, 1, v{vC}
v_lshlrev_b32 v{vT1}, 3, v{vG}
v_lshl_add_u32 v{vQs}, v{vT0}, 12, v{vT1}
v_lshl_add_u32 v{vDNs}, v{vT0}, 16, v{vG16}
v_lshl_add_u32 v{vHr}, v{vT0}, 7, v{vG16}
v_add_u32 v{vHr}, {H_L}, v{vHr}
v_lshrrev_b32 v{vT1}, 1, v{vC}
v_lshlrev_b32 v{vT1}, 4, v{vT1}
v_lshl_add_u32 v{vSTl}, v{vT0}, 3, v{vT1}
v_lshl_add_u32 v{vGUl}, v{vG}, 11, v{vC16}
v_mul_u32_u24 v{vT0}, {OC_G}, v{vG}
v_mul_u32_u24 v{vT1}, {OC_H}, v{vC}
s_mul_i32 s{sT0}, s{sWV}, {OC_W}
s_add_u32 s{sT0}, s{sT0}, {OC_L}
v_add3_u32 v{vOCw}, v{vT0}, v{vT1}, s{sT0}
v_and_b32 v{vT1}, 3, v{vC}
v_lshl_add_u32 v{vT0}, v{vT1}, 5, v{vT0}
v_and_b32 v{vT1}, 12, v{vC}
s_mul_i32 s{sT0}, s{sWV}, {OC_H}
s_add_u32 s{sT0}, s{sT0}, {OC_L}
v_add3_u32 v{vOCr}, v{vT0}, v{vT1}, s{sT0}
s_lshl_b32 s{sT0}, s{sWV}, 3
s_add_u32 s{sT0}, s{sT0}, {ML_L}
v_and_b32 v{vT1}, 3, v{vC}
v_lshl_add_u32 v{vMLw}, v{vT1}, 5, s{sT0}
s_lshl_b32 s{sT0}, s{sWV}, 5
s_add_u32 s{sT1}, s{sT0}, {ML_L}
v_mov_b32 v{vMLr}, s{sT1}
s_add_u32 s{sT1}, s{sT0}, {H_L}
v_lshrrev_b32 v{vT0}, 5, v{vLane}
v_lshlrev_b32 v{vT0}, 7, v{vT0}
v_lshl_add_u32 v{vT0}, v{vC}, 1, v{vT0}
v_add_u32 v{vHw}, s{sT1}, v{vT0}
v_mov_b32 v{vT0}, 0x3f803f80
v_accvgpr_write_b32 a{aONE}, v{vT0}
v_accvgpr_write_b32 a{aONE+1}, v{vT0}
v_accvgpr_write_b32 a{aONE+2}, v{vT0}
v_accvgpr_write_b32 a{aONE+3}, v{vT0}
s_mov_b32 s{sSEL0}, 0x05040100
s_mov_b32 s{sSEL1}, 0x07060302
""")
a(f"""s_lshr_b32 s{sT0}, s{sIDX}, 4
s_lshl_b32 s{sT1}, s{sGRP}, 1
s_add_u32 s{sT0}, s{sT0}, s{sT1}
s_lshl_b32 s{sQld}, s{sT0}, 12
s_lshl_b32 s{sOst}, s{sT0}, 14
s_and_b32 s{sT1}, s{sIDX}, 15
s_lshl_b32 s{sT2}, s{sT1}, 10
s_add_u32 s{sOst}, s{sOst}, s{sT2}
s_lshl_b32 s{sT2}, s{sWV}, 8
s_add_u32 s{sOst}, s{sOst}, s{sT2}
s_add_u32 s{sOst}, s{sOst}, {O_OFF}
s_lshl_b32 s{sLst}, s{sT0}, 8
s_lshl_b32 s{sT2}, s{sWV}, 6
s_add_u32 s{sLst}, s{sLst}, s{sT2}
s_lshl_b32 s{sT2}, s{sT1}, 2
s_add_u32 s{sLst}, s{sLst}, s{sT2}
s_add_u32 s{sLst}, s{sLst}, {LSE_OFF}
""")
a(f"""s_lshl_b32 s{sQst}, s{sGRP}, 13
s_lshr_b32 s{sT0}, s{sIDX}, 3
s_lshl_b32 s{sT1}, s{sT0}, 10
s_add_u32 s{sQst}, s{sQst}, s{sT1}
s_and_b32 s{sT1}, s{sIDX}, 7
s_lshl_b32 s{sT2}, s{sT1}, 7
s_add_u32 s{sQst}, s{sQst}, s{sT2}
s_lshl_b32 s{sT2}, s{sWV}, 5
s_add_u32 s{sQst}, s{sQst}, s{sT2}
""")
a(f"""s_and_b32 s{sT2}, s{sWV}, 1
s_lshl_b32 s{sE}, s{sGRP}, 1
s_add_u32 s{sE}, s{sE}, s{sT2}
s_lshl_b32 s{sOld}, s{sE}, 14
s_lshl_b32 s{sE+1}, s{sT0}, 8
s_add_u32 s{sOld}, s{sOld}, s{sE+1}
s_add_u32 s{sOld}, s{sOld}, {O_OFF}
s_lshl_b32 s{sLld}, s{sE}, 8
s_lshl_b32 s{sE+1}, s{sT0}, 6
s_add_u32 s{sLld}, s{sLld}, s{sE+1}
s_add_u32 s{sLld}, s{sLld}, {LSE_OFF}
s_lshl_b32 s{sWOst}, s{sT2}, 16
s_lshl_b32 s{sE}, s{sT1}, 1
s_lshr_b32 s{sE+1}, s{sWV}, 1
s_add_u32 s{sE}, s{sE}, s{sE+1}
s_lshl_b32 s{sE}, s{sE}, 12
s_add_u32 s{sWOst}, s{sWOst}, s{sE}
s_lshl_b32 s{sDNst}, s{sE}, 0
s_lshl_b32 s{sE}, s{sGRP}, 2
s_add_u32 s{sE}, s{sE}, s{sT0}
s_lshl_b32 s{sE}, s{sE}, 7
s_add_u32 s{sWOst}, s{sWOst}, s{sE}
s_add_u32 s{sWOst}, s{sWOst}, {WO_OFF}
s_lshl_b32 s{sFB}, s{sT0}, 3
s_add_u32 s{sFB}, s{sFB}, s{sGRP}
s_lshl_b32 s{sE}, s{sFB}, 7
s_add_u32 s{sDNst}, s{sDNst}, s{sE}
s_lshl_b32 s{sE}, s{sT2}, 6
s_add_u32 s{sDNst}, s{sDNst}, s{sE}
s_add_u32 s{sDNst}, s{sDNst}, {DN_OFF}
s_lshl_b32 s{sGUld}, s{sFB}, 13
s_lshl_b32 s{sE}, s{sWV}, 8
s_add_u32 s{sGUld}, s{sGUld}, s{sE}
s_add_u32 s{sGUld}, s{sGUld}, {GU_OFF}
s_lshl_b32 s{sE}, s{sT1}, 10
s_add_u32 s{sGUst}, s{sGUld}, s{sE}
s_lshl_b32 s{sMld}, s{sIDX}, 12
s_lshl_b32 s{sE}, s{sGRP}, 11
s_lshl_b32 s{sXst}, s{sIDX}, 6
s_add_u32 s{sXst}, s{sXst}, s{sE}
s_lshl_b32 s{sXC}, s{sT1}, 7
s_add_u32 s{sXC}, s{sXC}, s{sE}
s_add_u32 s{sXC}, s{sXC}, {X1_OFF}
s_add_u32 s{sXE}, s{sXE}, s{sE}
s_add_u32 s{sXE}, s{sXE}, {X2_OFF}
s_lshl_b32 s{sSTld}, s{sGRP}, 8
s_and_b32 s{sE}, s{sIDX}, 15
s_lshl_b32 s{sE}, s{sE}, 4
s_lshr_b32 s{sE+1}, s{sIDX}, 4
s_lshl_b32 s{sE+1}, s{sE+1}, 3
s_add_u32 s{sE}, s{sE}, s{sE+1}
s_add_u32 s{sSTst}, s{sSTld}, s{sE}
""")
a("s_waitcnt vmcnt(8)")
ts(1)
S, Qr = 90, 91
a(f"v_mov_b32 v{S}, 0\nv_mov_b32 v{Qr}, 0")
for i in range(8):
    a(f"""v_lshlrev_b32 v{vT0}, 16, v{XS+i}
    v_and_b32 v{vT1}, 0xffff0000, v{XS+i}
    v_add_f32 v{S}, v{S}, v{vT0}
    v_fmac_f32 v{Qr}, v{vT0}, v{vT0}
    v_add_f32 v{S}, v{S}, v{vT1}
    v_fmac_f32 v{Qr}, v{vT1}, v{vT1}""")
a(f"v_lshlrev_b32 v{vX0}, 16, v{vX1}\nv_and_b32 v{vX1}, 0xffff0000, v{vX1}")
a("s_barrier")
trread(aWQ, vTR, WQ_L, 4)
for n in (2, 4, 8):
    dpp("v_add_f32", S, S, S, f"row_ror:{n}"); dpp("v_add_f32", Qr, Qr, Qr, f"row_ror:{n}")
allred_rows("v_add_f32", S, vT0); allred_rows("v_add_f32", Qr, vT0)
stats_finalize(S, Qr, vT0)
a("s_waitcnt lgkmcnt(0)")
for j in range(4): mfma(v4(vCSQ), a4(aWQ+4*j), a4(aONE), 0 if j == 0 else v4(vCSQ))
DE = 60
stage_E_tail(XF, S, Qr, DE, sQst)
a(f"buffer_store_dwordx2 {v2(DE)}, v{vQs}, {srd(WS_)}, s{sQst} offen sc1")
exec_all()
ts(2)
kload(1); kload(5)
a("s_waitcnt vmcnt(8)\ns_barrier")
lna = lab("noarr")
a(f"""s_getreg_b32 s{sT0}, hwreg(HW_REG_XCC_ID)
s_and_b32 s{sT0}, s{sT0}, 7
s_mul_i32 s{sFAST}, s{sT0}, 6
s_cmp_eq_u32 s{sWV}, 0
s_cbranch_scc0 {lna}
s_lshl_b64 s[{sE}:{sE+1}], 1, s{sFAST}
s_add_u32 s{sE+1}, s{sE+1}, 0x10000
v_mov_b32 v{vT0+1}, s{sE}
v_mov_b32 v{vT0+2}, s{sE+1}
s_lshl_b32 s{sT0}, s{sGRP}, 5
s_mov_b64 exec, 1
buffer_atomic_add_x2 {v2(vT0+1)}, off, {srd(DBG_)}, s{sT0} sc1
s_mov_b64 exec, -1
{lna}:""")
kload(2); kload(6); kload(3); kload(7)
vload(0)
CT = 80
a(f"v_and_b32 v{vT0}, 7, v{vLane}\nv_lshlrev_b32 v{vT0}, 5, v{vT0}")
a(f"buffer_load_dwordx2 {v2(CT)}, v{vT0}, {srd(DBG_)}, 0 offen sc1")
vload(1)
lp, ld = lab("bar"), lab("barok")
a(f"""s_waitcnt vmcnt(8)
{lp}:
v_lshrrev_b32 v{vT1}, 16, v{CT+1}
v_cmp_gt_u32 vcc, 32, v{vT1}
s_cbranch_vccz {ld}
buffer_load_dwordx2 {v2(CT)}, v{vT0}, {srd(DBG_)}, 0 offen sc1
s_waitcnt vmcnt(0)
s_sub_u32 s{sTO}, s{sTO}, 1
s_cbranch_scc0 {lp}
s_mov_b32 s{sTO}, 0
{ld}:""")
ts(3)
for j in range(4): a(f"buffer_load_dwordx4 {v4(QF+4*j)}, v{vQl}, {srd(WS_)}, s{sQld} offen offset:{64*j} sc1")
a(f"""v_readlane_b32 s{sT0}, v{CT}, s{sGRP}
v_readlane_b32 s{sT1}, v{CT+1}, s{sGRP}
s_lshl_b64 s[{sE}:{sE+1}], 32, s{sFAST}
s_add_u32 s{sE+1}, s{sE+1}, 0x200000
s_xor_b32 s{sT0}, s{sT0}, s{sE}
s_xor_b32 s{sT1}, s{sT1}, s{sE+1}
s_or_b32 s{sT0}, s{sT0}, s{sT1}
s_cmp_eq_u32 s{sT0}, 0
s_cselect_b32 s{sFAST}, 1, 0""")
vload(2)
a("s_waitcnt vmcnt(8)")
ts(4)
ts_flush(1, 0)
if TS:
    for k in range(1, 5): a(f"v_writelane_b32 v{vTSV}, s{TSB+2*k}, {k}")
a("s_branch L_qk")

a("L_layer:")
poll([f"buffer_load_dwordx4 {v4(QF+4*j)}, v{vQl}, {srd(WS_)}, s{sQld} offen offset:{64*j}" for j in range(4)], range(QF, QF+16), ACL)
a("L_qk:")
ts(0)
D = lambda t: DT + 4*t
def xlo(t, X): return [lambda r=r: dpp("v_add_f32", X+r, D(t)+r, D(t)+r, "row_ror:8", 0x3) for r in range(4)]
def xhi(t, X): return [lambda r=r: dpp("v_add_f32", X+r, D(t)+r, D(t)+r, "row_ror:8", 0xc) for r in range(4)]
def zev(Z): return [lambda r=r: dpp("v_add_f32", Z+r, XT+r, XT+r, "row_ror:12", 0x5) for r in range(4)]
def zod(Z): return [lambda r=r: dpp("v_add_f32", Z+r, YT+r, YT+r, "row_ror:4", 0xa) for r in range(4)]
vM, vM2 = ACL, ACL+1
fill = xlo(0, XT) + xhi(2, XT) + zev(ZA) + xlo(1, YT) + xhi(3, YT) + zod(ZA) + \
    [lambda: a(f"v_max3_f32 v{vM}, v{ZA}, v{ZA+1}, v{ZA+2}"), lambda: a(f"v_max_f32 v{vM}, v{ZA+3}, v{vM}")] + \
    xlo(4, XT) + xhi(6, XT) + zev(ZB) + xlo(5, YT) + xhi(7, YT) + zod(ZB)
n = 0
for tau in (0, 2, 1, 3, 4, 6, 5, 7):
    for j in range(4):
        mfma(v4(D(tau)), a4(aK+16*tau+4*j), v4(QF+4*j), 0 if j == 0 else v4(D(tau)))
        n += 1
        if n >= 12:
            fill.pop(0)(); fill.pop(0)()
while fill: fill.pop(0)()
a(f"v_max3_f32 v{vM}, v{ZB}, v{ZB+1}, v{vM}\nv_max3_f32 v{vM}, v{ZB+2}, v{ZB+3}, v{vM}")
dpp("v_max_f32", vM, vM, vM, "row_ror:4"); dpp("v_max_f32", vM, vM, vM, "row_ror:8")
allred_rows("v_max_f32", vM, vM2)
vMX = QF + 12
a(f"v_mov_b32 v{vMX}, v{vM}")
for r in range(8): a(f"v_sub_f32 v{ZA+r}, v{ZA+r}, v{vM}")
for r in range(8): a(f"v_exp_f32 v{ZA+r}, v{ZA+r}")
P = [XT, YT, QF, QF+4]
for r in range(4): a(f"v_cvt_pk_bf16_f32 v{P[0]+r}, v{ZA+2*r}, v{ZA+2*r+1}")
ts(1)
def transpose(t, waits):
    src, dst = VR + 32*(t+1), VR + 32*t
    for p in range(4):
        if waits[p] is not None: a(f"s_waitcnt vmcnt({waits[p]})")
        for q in range(4):
            a(f"v_perm_b32 v{dst+8*q+p}, v{src+8*p+4+q}, v{src+8*p+q}, s{sSEL0}")
            a(f"v_perm_b32 v{dst+8*q+4+p}, v{src+8*p+4+q}, v{src+8*p+q}, s{sSEL1}")
vWr = ZA
for t in range(4):
    ls = lab("skip")
    a(f"s_cmp_eq_u32 s{sLAYER}, 0\ns_cbranch_scc0 {ls}")
    if t == 0:
        vload(3)
        transpose(0, [None]*4)
    elif t == 1:
        transpose(1, [None]*4)
    elif t == 2:
        a(f"""v_lshrrev_b32 v{vWr}, 7, v{vL16}
        v_and_b32 v{vWr+1}, 0x70, v{vL16}
        v_lshl_add_u32 v{vWr}, v{vWr}, 10, v{vWr+1}
        s_lshl_b32 s{sT0}, s{sGRP}, 6
        s_lshr_b32 s{sT1}, s{sIDX}, 3
        s_lshl_b32 s{sT1}, s{sT1}, 4
        s_add_u32 s{sT0}, s{sT0}, s{sT1}
        s_add_u32 s{sT0}, s{sT0}, s{sWV}
        s_lshl_b32 s{sT0}, s{sT0}, 13
        s_and_b32 s{sT1}, s{sIDX}, 7
        s_lshl_b32 s{sT1}, s{sT1}, 7
        s_add_u32 s{sT0}, s{sT0}, s{sT1}""")
        dma(WO_, vWr, sT0, 32*1024, 4, WO_L)
        transpose(2, [12, None, None, None])
    else:
        transpose(3, [10, 8, 6, 4])
    a(f"{ls}:")
    rot = [lambda tt=tt, r=r: dpp("v_mov_b32", P[tt]+r, P[0]+r, None, f"row_ror:{16-4*tt}") for tt in (1, 2, 3) for r in range(4)] if t == 0 else []
    for e in range(8):
        mfma(v4(DT+4*e), v4(VR+32*t+4*e), v4(P[t]), 0 if t == 0 else v4(DT+4*e))
        for _ in range(2):
            if rot: rot.pop(0)()
    mfma(v4(ACL), a4(aONE), v4(P[t]), 0 if t == 0 else v4(ACL))
ts(2)
if opt["until"]:
    a(f"v_readfirstlane_b32 s54, v23\nL_until:\ns_memrealtime s[52:53]\ns_waitcnt lgkmcnt(0)\ns_sub_u32 s52, s52, s54\ns_cmp_lt_u32 s52, {opt['until']}\ns_cbranch_scc1 L_until")
exec_set(0x000f000f, 0x000f000f)
for e in range(8): a(f"ds_write_b128 v{vOCw}, {v4(DT+4*e)} offset:{16*e}")
a(f"ds_write2_b32 v{vMLw}, v{vMX}, v{ACL} offset0:0 offset1:1")
exec_all()
a("s_waitcnt lgkmcnt(0)\ns_barrier")
ML = T; OV = T + 8; FW = T + 16
a(f"ds_read_b128 {v4(ML)}, v{vMLr}\nds_read_b128 {v4(ML+4)}, v{vMLr} offset:16")
for w in range(4):
    a(f"ds_read_b32 v{OV+2*w}, v{vOCr} offset:{w*OC_W}\nds_read_b32 v{OV+2*w+1}, v{vOCr} offset:{w*OC_W+16}")
a(f"""s_waitcnt lgkmcnt(8)
v_max3_f32 v{FW+4}, v{ML}, v{ML+2}, v{ML+4}
v_max_f32 v{FW+4}, v{ML+6}, v{FW+4}""")
for w in range(4): a(f"v_sub_f32 v{FW+w}, v{ML+2*w}, v{FW+4}")
for w in range(4): a(f"v_exp_f32 v{FW+w}, v{FW+w}")
a(f"v_mul_f32 v{FW+5}, v{FW}, v{ML+1}")
for w in range(1, 4): a(f"v_fmac_f32 v{FW+5}, v{FW+w}, v{ML+2*w+1}")
a(f"v_rcp_f32 v{FW+6}, v{FW+5}\nv_log_f32 v{FW+7}, v{FW+5}\ns_waitcnt lgkmcnt(0)")
a(f"v_mul_f32 v{OV}, v{FW}, v{OV}\nv_mul_f32 v{OV+1}, v{FW}, v{OV+1}")
for w in range(1, 4): a(f"v_fmac_f32 v{OV}, v{FW+w}, v{OV+2*w}\nv_fmac_f32 v{OV+1}, v{FW+w}, v{OV+2*w+1}")
a(f"""v_mul_f32 v{OV}, v{FW+6}, v{OV}
v_mul_f32 v{OV+1}, v{FW+6}, v{OV+1}
v_add_f32 v{FW+7}, v{FW+7}, v{FW+4}
v_cvt_pk_bf16_f32 v{OV}, v{OV}, v{OV+1}""")
pub(f"buffer_store_dword v{OV}, v{vL4}, {srd(WS_)}, s{sOst} offen", "s_mov_b64 exec, 1",
    f"buffer_store_dword v{FW+7}, off, {srd(WS_)}, s{sLst}", "s_mov_b64 exec, -1")
ts(3)
ls = lab("skip")
a(f"s_cmp_eq_u32 s{sLAYER}, 0\ns_cbranch_scc0 {ls}")
a(f"""s_and_b32 s{sT0}, s{sWV}, 1
s_lshl_b32 s{sT0}, s{sT0}, 5
v_subrev_u32 v{T}, s{sT0}, v{vTR}
s_waitcnt vmcnt(0)
s_barrier""")
trread(aWO, T, WO_L, 4); trread(aWO+16, T, WO_L+32, 4)
a(f"s_waitcnt lgkmcnt(0)\n{ls}:")
OF = T; LS = T + 16; DB = T + 20; EB = T + 28
poll([f"buffer_load_dwordx4 {v4(OF+4*j)}, v{vOl}, {srd(WS_)}, s{sOld} offen offset:{64*j}" for j in range(4)] +
     [f"buffer_load_dwordx4 {v4(LS)}, v{vG16}, {srd(WS_)}, s{sLld} offen"], range(OF, OF+20), EB)
ts(4)
for j in range(4):
    for t in range(2): mfma(v4(DB+4*t), v4(OF+4*j), a4(aWO+16*t+4*j), 0 if j == 0 else v4(DB+4*t))
ls = lab("skip")
a(f"s_cmp_eq_u32 s{sLAYER}, 0\ns_cbranch_scc0 {ls}\ns_cmp_lt_u32 s{sFB}, 28\ns_cbranch_scc0 {ls}")
vWg = EB + 8
a(f"""v_lshrrev_b32 v{vWg+2}, 7, v{vL16}
v_and_b32 v{vWg+1}, 0x70, v{vL16}
v_mul_u32_u24 v{vWg}, 3584, v{vWg+2}
v_add_u32 v{vWg}, v{vWg}, v{vWg+1}
v_lshl_add_u32 v{vWg+1}, v{vWg+2}, 10, v{vWg+1}
s_and_b32 s{sT1}, s{sIDX}, 7
s_lshl_b32 s{sT0}, s{sT1}, 3
s_add_u32 s{sT0}, s{sT0}, s{sWV}
s_mul_i32 s{sT0}, s{sT0}, {8*3584}
s_lshl_b32 s{sE}, s{sFB}, 7
s_add_u32 s{sT0}, s{sT0}, s{sE}
s_mov_b32 s{sE+1}, s{sT0}""")
dma(WG_, vWg, sT0, 32*3584, 2, WG_L); dma(WU_, vWg, sE+1, 32*3584, 2, WU_L)
a(f"""s_lshl_b32 s{sT0}, s{sFB}, 3
s_add_u32 s{sT0}, s{sT0}, s{sWV}
s_lshl_b32 s{sT0}, s{sT0}, 13
s_lshl_b32 s{sT1}, s{sT1}, 7
s_add_u32 s{sT0}, s{sT0}, s{sT1}""")
dma(WD_, vWg+1, sT0, 32*1024, 2, WD_L)
a(f"{ls}:")
a(f"v_max3_f32 v{EB+4}, v{LS}, v{LS+1}, v{LS+2}\nv_max_f32 v{EB+4}, v{LS+3}, v{EB+4}")
allred_rows("v_max_f32", EB+4, EB+5)
for r in range(4): a(f"v_sub_f32 v{EB+r}, v{LS+r}, v{EB+4}")
for r in range(4): a(f"v_exp_f32 v{EB+r}, v{EB+r}")
a(f"v_add_f32 v{EB+4}, v{EB}, v{EB+1}\nv_add_f32 v{EB+5}, v{EB+2}, v{EB+3}")
a(f"v_mul_f32 v{DB}, v{EB}, v{DB}\nv_mul_f32 v{DB+4}, v{EB}, v{DB+4}\nv_add_f32 v{EB+4}, v{EB+4}, v{EB+5}")
for r in range(1, 4): a(f"v_fmac_f32 v{DB}, v{EB+r}, v{DB+r}\nv_fmac_f32 v{DB+4}, v{EB+r}, v{DB+4+r}")
allred_rows("v_add_f32", EB+4, EB+5)
a(f"""v_permlane16_swap_b32 v{DB}, v{DB+4}
v_rcp_f32 v{EB+4}, v{EB+4}
v_add_f32 v{DB}, v{DB}, v{DB+4}
v_mov_b32 v{DB+4}, v{DB}
v_permlane32_swap_b32 v{DB}, v{DB+4}
v_add_f32 v{DB}, v{DB}, v{DB+4}
v_mul_f32 v{DB}, v{DB}, v{EB+4}
s_mov_b32 exec_hi, 0
buffer_store_dword v{DB}, v{vL4}, {srd(WS_)}, s{sWOst} offen sc1
s_mov_b64 exec, -1""")
ts(5)

def middle(off, xoff, stoff, final):
    M = T
    lsk = lab("nomid")
    a(f"s_cmp_eq_u32 s{sWV}, 0\ns_cbranch_scc0 {lsk}")
    a(f"s_add_u32 s{sT0}, s{sMld}, {off}")
    poll([f"buffer_load_dwordx4 {v4(M+4*u)}, v{vL16}, {srd(WS_)}, s{sT0} offen offset:{1024*u}" for u in range(4)], range(M, M+16), M+16)
    for r in range(4): a(f"v_add_f32 v{M+r}, v{M+r}, v{M+4+r}")
    for r in range(4): a(f"v_add_f32 v{M+8+r}, v{M+8+r}, v{M+12+r}")
    for r in range(4): a(f"v_add_f32 v{M+r}, v{M+r}, v{M+8+r}")
    a(f"""v_permlane32_swap_b32 v{M}, v{M+2}
    v_permlane32_swap_b32 v{M+1}, v{M+3}
    v_add_f32 v{M}, v{M}, v{M+2}
    v_add_f32 v{M+1}, v{M+1}, v{M+3}""")
    dpp("v_add_f32", M, M, M, "row_ror:8"); dpp("v_add_f32", M+1, M+1, M+1, "row_ror:8")
    a(f"""v_mov_b32 v{M+2}, v{M}
    v_mov_b32 v{M+3}, v{M+1}
    v_permlane16_swap_b32 v{M}, v{M+2}
    v_permlane16_swap_b32 v{M+1}, v{M+3}
    v_add_f32 v{vX0}, v{vX0}, v{M}
    v_add_f32 v{vX1}, v{vX1}, v{M+1}
    v_add_f32 v{vX0}, v{vX0}, v{M+2}
    v_add_f32 v{vX1}, v{vX1}, v{M+3}
    s_add_u32 s{sT0}, s{sXst}, {xoff}
    s_add_u32 s{sT1}, s{sSTst}, {stoff}
    v_cvt_pk_bf16_f32 v{M}, v{vX0}, v{vX1}""")
    exec_set(0xff, 0xff)
    if final:
        lnf = lab("notfinal")
        a(f"""s_cmp_eq_u32 s{sLAYER}, 0
        s_cbranch_scc1 {lnf}
        s_lshl_b32 s{sT0}, s{sIDX}, 6
        buffer_store_dword v{M}, v{vXs}, {srd(OUT_)}, s{sT0} offen
        s_mov_b64 exec, -1
        s_branch L_fin
        {lnf}:""")
    pub(f"buffer_store_dword v{M}, v{vXs}, {srd(WS_)}, s{sT0} offen")
    exec_all()
    a(f"""v_lshlrev_b32 v{vX0}, 16, v{M}
    v_and_b32 v{vX1}, 0xffff0000, v{M}
    v_add_f32 v{M+1}, v{vX0}, v{vX1}
    v_mul_f32 v{M+2}, v{vX0}, v{vX0}
    v_fmac_f32 v{M+2}, v{vX1}, v{vX1}
    v_permlane32_swap_b32 v{M+1}, v{M+2}
    v_add_f32 v{M+1}, v{M+1}, v{M+2}""")
    dpp("v_add_f32", M+1, M+1, M+1, "quad_perm:[1,0,3,2]")
    dpp("v_add_f32", M+1, M+1, M+1, "quad_perm:[2,3,0,1]")
    dpp("v_add_f32", M+1, M+1, M+1, "row_ror:4")
    a("s_mov_b32 exec_lo, 1\ns_mov_b32 exec_hi, 1")
    pub(f"buffer_store_dword v{M+1}, v{vXs}, {srd(WS_)}, s{sT1} offen")
    exec_all()
    a(f"{lsk}:")

middle(WO_OFF, X1_OFF, ST1_OFF, False)
ts(6)
ls = lab("skip")
a(f"s_cmp_eq_u32 s{sLAYER}, 0\ns_cbranch_scc0 {ls}\ns_waitcnt vmcnt(0)\n{ls}:\ns_barrier")
DD = T + 24
a(f"s_cmp_lt_u32 s{sFB}, 28\ns_cbranch_scc0 L_noffn")
ls = lab("skip")
a(f"s_cmp_eq_u32 s{sLAYER}, 0\ns_cbranch_scc0 {ls}")
trread(aWG, vTR, WG_L, 2); trread(aWU, vTR, WU_L, 2); trread(aWD, vTR, WD_L, 2)
a("s_waitcnt lgkmcnt(0)")
for j in range(2): mfma(v4(T), a4(aONE), a4(aWG+4*j), 0 if j == 0 else v4(T))
for j in range(2): mfma(v4(T+4), a4(aONE), a4(aWU+4*j), 0 if j == 0 else v4(T+4))
a(f"v_mov_b32 v{vCSG}, v{T}\nv_mov_b32 v{vCSU}, v{T+4}\n{ls}:")
def stats_loads(reg, off):
    return [f"buffer_load_dwordx2 {v2(reg)}, v{vSTl}, {srd(WS_)}, s{sT1} offen", f"buffer_load_dwordx2 {v2(reg+2)}, v{vSTl}, {srd(WS_)}, s{sT1} offen offset:128"]
def stats_reduce(reg):
    a(f"v_add_f32 v{reg}, v{reg}, v{reg+2}\nv_add_f32 v{reg+1}, v{reg+1}, v{reg+3}")
    for n in (2, 4, 8):
        dpp("v_add_f32", reg, reg, reg, f"row_ror:{n}"); dpp("v_add_f32", reg+1, reg+1, reg+1, f"row_ror:{n}")
    stats_finalize(reg, reg+1, reg+2)
XC = T; SC = T + 8; DG = T + 12; DU = T + 16; GO = T + 20
a(f"s_add_u32 s{sT1}, s{sSTld}, {ST1_OFF}")
poll([f"buffer_load_dwordx4 {v4(XC+4*j)}, v{vXl}, {srd(WS_)}, s{sXC} offen offset:{64*j}" for j in range(2)] + stats_loads(SC, ST1_OFF), range(XC, XC+12), DG)
ts(7)
for j in range(2):
    mfma(v4(DG), v4(XC+4*j), a4(aWG+4*j), 0 if j == 0 else v4(DG))
    mfma(v4(DU), v4(XC+4*j), a4(aWU+4*j), 0 if j == 0 else v4(DU))
stats_reduce(SC)
qp = ["quad_perm:[0,0,2,2]", "quad_perm:[1,1,3,3]"]
for i, (cs, b) in enumerate(((vCSG, 0), (vCSG, 1), (vCSU, 0), (vCSU, 1))): dpp("v_mul_f32", GO+i, SC, cs, qp[b])
for i, (d, b) in enumerate(((DG, 0), (DG+1, 1), (DU, 0), (DU+1, 1))): dpp("v_fmac_f32", GO+i, SC+1, d, qp[b])
a("s_mov_b64 exec, 0xffff")
pub(f"buffer_store_dwordx4 {v4(GO)}, v{vC16}, {srd(WS_)}, s{sGUst} offen")
exec_all()
G = T
poll([f"buffer_load_dwordx4 {v4(G+4*u)}, v{vGUl}, {srd(WS_)}, s{sGUld} offen offset:{1024*u}" for u in range(2)], range(G, G+8), G+8)
ts(8)
for r in range(4): a(f"v_add_f32 v{G+r}, v{G+r}, v{G+4+r}")
a(f"""v_permlane32_swap_b32 v{G}, v{G+1}
v_permlane32_swap_b32 v{G+2}, v{G+3}
v_add_f32 v{G}, v{G}, v{G+1}
v_add_f32 v{G+2}, v{G+2}, v{G+3}
v_permlane16_swap_b32 v{G}, v{G+2}
v_add_f32 v{G}, v{G}, v{G+2}
v_mov_b32 v{G+1}, v{G}
v_permlane16_swap_b32 v{G}, v{G+1}
v_max_f32 v{G}, 0, v{G}
v_mul_f32 v{G}, v{G}, v{G+1}
v_cvt_pk_bf16_f32 v{G}, v{G}, v{G}
ds_write_b16 v{vHw}, v{G}
s_waitcnt lgkmcnt(0)
s_barrier
ds_read_b128 {v4(G+4)}, v{vHr}
ds_read_b128 {v4(G+8)}, v{vHr} offset:64
s_waitcnt lgkmcnt(1)""")
mfma(v4(DD), a4(aWD), v4(G+4), 0)
a("s_waitcnt lgkmcnt(0)")
mfma(v4(DD), a4(aWD+4), v4(G+8), v4(DD))
a("L_dpub:")
exec_set(0x00030003, 0x00030003)
a(f"buffer_store_dwordx4 {v4(DD)}, v{vDNs}, {srd(WS_)}, s{sDNst} offen sc1")
exec_all()
ts(9)
lgo = lab("go")
a(f"""s_cmp_eq_u32 s{sLAYER}, 0
s_cbranch_scc1 {lgo}
s_or_b32 s{sT0}, s{sGRP}, s{sWV}
s_cmp_eq_u32 s{sT0}, 0
s_cbranch_scc0 L_fin
{lgo}:""")
middle(DN_OFF, X2_OFF, ST2_OFF, True)
ts(10)
a("s_barrier")
XE = T; SE = T + 16; DE = T + 20
a(f"s_add_u32 s{sT1}, s{sSTld}, {ST2_OFF}")
poll([f"buffer_load_dwordx4 {v4(XE+4*j)}, v{vXl}, {srd(WS_)}, s{sXE} offen offset:{64*j}" for j in range(4)] + stats_loads(SE, ST2_OFF), range(XE, XE+20), DE)
ts(11)
for j in range(4): mfma(v4(DE), a4(aWQ+4*j), v4(XE+4*j), 0 if j == 0 else v4(DE))
stats_reduce(SE)
a(f"v_mul_f32 v{SE}, {f2u(QSCALE):#x}, v{SE}\nv_mul_f32 v{SE+1}, {f2u(QSCALE):#x}, v{SE+1}")
for r in range(4): a(f"v_mul_f32 v{DE+4+r}, v{SE}, v{vCSQ+r}")
for r in range(4): a(f"v_fmac_f32 v{DE+4+r}, v{SE+1}, v{DE+r}")
a(f"""v_cvt_pk_bf16_f32 v{DE}, v{DE+4}, v{DE+5}
v_cvt_pk_bf16_f32 v{DE+1}, v{DE+6}, v{DE+7}
s_add_u32 s{WS_}, s{WS_}, {LSTR}
s_addc_u32 s{WS_+1}, s{WS_+1}, 0
s_mov_b32 s{sLAYER}, 1""")
exec_set(0x00030003, 0x00030003)
pub(f"buffer_store_dwordx2 {v2(DE)}, v{vQs}, {srd(WS_)}, s{sQst} offen")
exec_all()
ts_flush(8, 12)
a("s_branch L_layer")
a("L_noffn:")
for r in range(4): a(f"v_mov_b32 v{DD+r}, 0")
a("s_branch L_dpub")
for ls, lb, st in slow_blocks:
    a(f"{ls}:")
    for s in st: a(s)
    a(f"s_branch {lb}")
a("L_fin:")
if opt["dly"]:
    a(f"s_mov_b32 s{sT0}, {opt['dly']}\nL_dly:\ns_nop 15\ns_nop 15\ns_nop 15\ns_nop 15\ns_sub_u32 s{sT0}, s{sT0}, 1\ns_cbranch_scc0 L_dly")
if TS:
    ts(11)
    ts_flush(24, 12)
    a(f"""v_writelane_b32 v{vTSV}, s{sFAST}, 40
    v_writelane_b32 v{vTSV}, s{sTO}, 41
    s_lshl_b32 s{sT0}, s2, 2
    s_add_u32 s{sT0}, s{sT0}, s{sWV}
    s_lshl_b32 s{sT0}, s{sT0}, 8
    s_add_u32 s{sT0}, s{sT0}, {TS_OFF - LSTR}
    buffer_store_dword v{vTSV}, v{vL4}, {srd(WS_)}, s{sT0} offen""")
a("L_end:\ns_endpgm")

body = a.finalize()
kn = opt["name"]
ref = open("cdna_kernels/" + NAME + ".s.ref").read().split("\n")
head = [l for l in ref if l.startswith(";") and "@launch" not in l and "Override launch" not in l and "grid=ceil" not in l]
head = head[:13]
src = "\n".join(head) + f"""
; One persistent launch, one workgroup per CU: K/V stay in registers for both layers, weight tiles in AGPRs.
; @launch grid=(256,1,1) block=(256,1,1) lds={LDS_BYTES}
.amdgcn_target "amdgcn-amd-amdhsa--gfx950"
.text
.globl {kn}
.p2align 8
.type {kn},@function
{kn}:
{body}
.section .rodata,"a"
.p2align 6
.amdhsa_kernel {kn}
  .amdhsa_next_free_vgpr 512
  .amdhsa_next_free_sgpr 102
  .amdhsa_accum_offset 256
  .amdhsa_group_segment_fixed_size 0
  .amdhsa_kernarg_size 96
  .amdhsa_user_sgpr_count 2
  .amdhsa_user_sgpr_kernarg_segment_ptr 1
  .amdhsa_system_sgpr_workgroup_id_x 1
.end_amdhsa_kernel
"""
open(out_path, "w").write(src)
print("nops inserted:", a.nops, "lines:", len(body.split("\n")), file=sys.stderr)
```

```python
import sys, math, struct
from asmlib import Asm

NAME = "interleave_layers__gqa_block_cached__glu_gated_reglu__decode"
opt = dict(kvnt="nt", wnt="none", ts=0, fast=1, tobits=20, name=NAME+"_kernel", dly=0, until=0, upos=0)
out_path = sys.argv[1]
for x in sys.argv[2:]:
    k, v = x.split("=")
    opt[k] = v if k in ("kvnt", "wnt", "name") else int(v)
fl = lambda s: "" if s == "none" else " " + s.replace("+", " ")
KVNT = fl(opt["kvnt"]); WNT = fl(opt["wnt"])
TS = opt["ts"]

def f2u(x): return struct.unpack("<I", struct.pack("<f", x))[0]

LSTR = 0x100000
Q_OFF, O_OFF, LSE_OFF = 0x0, 0x10000, 0x50000
X1_OFF, X2_OFF, ST1_OFF, ST2_OFF = 0x51000, 0x55000, 0x59000, 0x5A000
WO_OFF, DN_OFF, GU_OFF = 0x60000, 0x80000, 0xA0000
RESET_OFF = 0x10000
TS_OFF = 0x400000
WS_SIZE = 0x800000
WQ_L, WO_L, WG_L, WU_L, WD_L = 0, 16384, 32768, 40960, 49152
OC_L = 57344; OC_W = 2368; OC_G = 592; OC_H = 144
ML_L = OC_L + 4*OC_W
H_L = ML_L + 128
LDS_BYTES = H_L + 256
sWV, sGRP, sIDX, sLAYER, sFAST, sTO = 3, 4, 5, 6, 7, 76
K_, V_, WS_, WQ_, WO_, WG_, WU_, WD_, X_, OUT_, DBG_ = 8, 12, 16, 20, 24, 28, 32, 36, 40, 44, 48
def srd(n): return f"s[{n}:{n+3}]"
sKV, sQld, sQst, sOst, sLst, sOld, sLld, sWOst = 77, 78, 79, 80, 81, 82, 83, 84
sMld, sXst, sSTst, sXC, sXE, sSTld, sGUst, sGUld, sDNst, sFB = 85, 86, 87, 88, 89, 90, 91, 92, 93, 94
sT0, sT1, sT2, sSEL0, sSEL1 = 95, 96, 97, 98, 99
sE = 100
TSB = 52
vL16, vL4, vQl, vOl, vXl, vC16, vG16, vQs, vDNs, vGUl, vXs = 0, 1, 2, 3, 4, 5, 6, 7, 8, 9, 10
vOCw, vOCr, vMLw, vMLr, vHw, vHr, vTR, vSTl = 11, 12, 13, 14, 15, 16, 17, 18
vX0, vX1 = 19, 20
vCSG, vCSU = 21, 22
vTSV = 23
vCSQ = 24
T = 28
QF = 28
DT = 44
ACL = 76
XT, YT = 80, 84
ZA, ZB = 88, 92
VR = 96
def v4(n): return f"v[{n}:{n+3}]"
def v2(n): return f"v[{n}:{n+1}]"
def a4(n): return f"a[{n}:{n+3}]"
aK, aWQ, aWO, aWG, aWU, aWD, aONE = 0, 128, 144, 176, 184, 192, 200

a = Asm()
slow_blocks = []
uid = [0]
def lab(p):
    uid[0] += 1
    return f"L_{p}_{uid[0]}"

def exec_set(lo, hi):
    if lo == 0xffffffff and hi == 0xffffffff: a("s_mov_b64 exec, -1")
    elif hi == 0 and lo <= 64: a(f"s_mov_b64 exec, {lo}")
    else: a(f"s_mov_b32 exec_lo, {lo:#x}\ns_mov_b32 exec_hi, {hi:#x}")
def exec_all(): a("s_mov_b64 exec, -1")

def pub(*stores):
    if not opt["fast"]:
        for s in stores: a(s + (" sc1" if s.startswith("buffer") else ""))
        return
    ls, lb = lab("slow"), lab("back")
    a(f"s_cmp_eq_u32 s{sFAST}, 1\ns_cbranch_scc0 {ls}")
    for s in stores: a(s)
    a(f"{lb}:")
    slow_blocks.append((ls, lb, [s + (" sc1" if s.startswith("buffer") else "") for s in stores]))

def poll(loads, regs, tmp):
    lp, ld = lab("poll"), lab("got")
    a(f"{lp}:")
    for l in loads: a(l + " sc1")
    a("s_waitcnt vmcnt(0)")
    r = list(regs)
    a(f"v_max3_u32 v{tmp}, v{r[0]}, v{r[1]}, v{r[2]}"); r = r[3:]
    while len(r) >= 2:
        a(f"v_max3_u32 v{tmp}, v{r[0]}, v{r[1]}, v{tmp}"); r = r[2:]
    if r: a(f"v_max_u32 v{tmp}, v{r[0]}, v{tmp}")
    a(f"""v_cmp_eq_u32 vcc, -1, v{tmp}
    s_cbranch_vccz {ld}
    s_mov_b64 exec, vcc
    s_sub_u32 s{sTO}, s{sTO}, 1
    s_cbranch_scc0 {lp}
    s_mov_b32 s{sTO}, 0
    {ld}:
    s_mov_b64 exec, -1""")

def until(pos):
    if opt["until"] and opt["upos"] == pos:
        a(f"v_readfirstlane_b32 s54, v23\nL_until:\ns_memrealtime s[52:53]\ns_waitcnt lgkmcnt(0)\ns_sub_u32 s52, s52, s54\ns_cmp_lt_u32 s52, {opt['until']}\ns_cbranch_scc1 L_until")
tsn = [0]
def ts(k):
    if TS: a(f"s_memrealtime s[{TSB+2*k}:{TSB+2*k+1}]")
def ts_flush(base, n):
    if TS:
        a("s_waitcnt lgkmcnt(0)")
        for k in range(n): a(f"v_writelane_b32 v{vTSV}, s{TSB+2*k}, {base+k}")

def mk_srd(d, lo, size):
    a(f"s_mov_b32 s{d}, s{lo}\ns_and_b32 s{d+1}, s{lo+1}, 0xffff\ns_mov_b32 s{d+2}, {size:#x}\ns_mov_b32 s{d+3}, 0x20000")

def mfma(d, A, B, c):
    a(f"v_mfma_f32_16x16x32_bf16 {d}, {A}, {B}, {c}")
def dpp(op, d, s0, s1, ctrl, bank=0xf):
    if s1 is None: a(f"{op}_dpp v{d}, v{s0} {ctrl} row_mask:0xf bank_mask:{bank:#x}")
    else: a(f"{op}_dpp v{d}, v{s0}, v{s1} {ctrl} row_mask:0xf bank_mask:{bank:#x}")
def allred_rows(op, r, t):
    a(f"v_mov_b32 v{t}, v{r}\nv_permlane16_swap_b32 v{r}, v{t}\n{op} v{r}, v{r}, v{t}")
    a(f"v_mov_b32 v{t}, v{r}\nv_permlane32_swap_b32 v{r}, v{t}\n{op} v{r}, v{r}, v{t}")

def dma(srdn, voff, sbase, step, n, ldsbase):
    for i in range(n):
        a(f"s_lshl_b32 s{sT2}, s{sWV}, 10\ns_add_u32 m0, s{sT2}, {ldsbase + i*4096}")
        if i: a(f"s_add_u32 s{sbase}, s{sbase}, {step}")
        a(f"buffer_load_dwordx4 v{voff}, {srd(srdn)}, s{sbase} offen{WNT} lds")

def trread(areg, vaddr, ldsoff, ksteps):
    for j in range(ksteps):
        for u in range(2):
            a(f"ds_read_b64_tr_b16 a[{areg+4*j+2*u}:{areg+4*j+2*u+1}], v{vaddr} offset:{ldsoff + (32*j+4*u)*128}")

def stats_finalize(S, Q, t):
    a(f"""v_mul_f32 v{S}, {f2u(-1/512):#x}, v{S}
    v_mul_f32 v{Q}, {f2u(1/512):#x}, v{Q}
    v_fma_f32 v{Q}, -v{S}, v{S}, v{Q}
    v_max_f32 v{Q}, 0, v{Q}
    v_add_f32 v{Q}, {f2u(1e-5):#x}, v{Q}
    v_rsq_f32 v{Q}, v{Q}
    v_mul_f32 v{S}, v{S}, v{Q}""")

QSCALE = math.log2(math.e) / math.sqrt(128.0)

def stage_E_tail(XF, S, Q, D, soff):
    for j in range(4): mfma(v4(D), a4(aWQ+4*j), v4(XF+4*j), 0 if j == 0 else v4(D))
    a(f"v_mul_f32 v{S}, {f2u(QSCALE):#x}, v{S}\nv_mul_f32 v{Q}, {f2u(QSCALE):#x}, v{Q}")
    for r in range(4): a(f"v_mul_f32 v{D+4+r}, v{S}, v{vCSQ+r}")
    exec_set(0x00030003, 0x00030003)
    for r in range(4): a(f"v_fmac_f32 v{D+4+r}, v{Q}, v{D+r}")
    a(f"v_cvt_pk_bf16_f32 v{D}, v{D+4}, v{D+5}\nv_cvt_pk_bf16_f32 v{D+1}, v{D+6}, v{D+7}")

ts(0)
if opt["until"]: a("s_memrealtime s[52:53]\ns_waitcnt lgkmcnt(0)\nv_mov_b32 v23, s52")
a(f"""s_cmp_ge_u32 s2, 256
s_cbranch_scc1 L_end
s_load_dwordx16 s[52:67], s[0:1], 0
s_load_dwordx8 s[68:75], s[0:1], 64""" if not TS else f"""s_cmp_ge_u32 s2, 256
s_cbranch_scc1 L_end
s_waitcnt lgkmcnt(0)
s_mov_b32 s{sTO}, s{TSB}
s_load_dwordx16 s[52:67], s[0:1], 0
s_load_dwordx8 s[68:75], s[0:1], 64
v_mov_b32 v{vTSV}, 0
v_writelane_b32 v{vTSV}, s{sTO}, 0""")
vLane, vC, vG, vK, vW, vT0, vT1 = 30, 31, 32, 33, 34, 35, 36
a(f"""v_lshrrev_b32 v{vT0}, 6, v0
v_and_b32 v{vLane}, 63, v0
v_readfirstlane_b32 s{sWV}, v{vT0}
s_and_b32 s{sGRP}, s2, 7
s_lshr_b32 s{sIDX}, s2, 3
s_mov_b32 s{sLAYER}, 0
s_mov_b32 s{sTO}, {1 << opt['tobits']:#x}
v_and_b32 v{vC}, 15, v{vLane}
v_lshrrev_b32 v{vG}, 4, v{vLane}
v_lshlrev_b32 v{vL16}, 4, v{vLane}
v_lshlrev_b32 v{vG16}, 4, v{vG}
v_and_b32 v{vT0}, 1, v{vC}
v_lshl_add_u32 v{vXl}, v{vT0}, 10, v{vG16}
v_lshrrev_b32 v{vT0}, 3, v{vLane}
v_and_b32 v{vT1}, 7, v{vLane}
v_lshlrev_b32 v{vT1}, 4, v{vT1}
v_lshl_add_u32 v{vW}, v{vT0}, 13, v{vT1}
v_and_b32 v{vT0}, 3, v{vC}
v_lshrrev_b32 v{vT1}, 2, v{vC}
v_lshl_add_u32 v{vT0}, v{vT0}, 2, v{vT1}
v_lshl_add_u32 v{vK}, v{vT0}, 8, v{vG16}
""")
a(f"""s_lshr_b32 s{sT0}, s{sIDX}, 4
s_lshl_b32 s{sT0}, s{sT0}, 3
s_add_u32 s{sT0}, s{sT0}, s{sGRP}
s_lshl_b32 s{sKV}, s{sT0}, 21
s_and_b32 s{sT0}, s{sIDX}, 15
s_lshl_b32 s{sT0}, s{sT0}, 17
s_add_u32 s{sKV}, s{sKV}, s{sT0}
s_lshl_b32 s{sT0}, s{sWV}, 13
s_add_u32 s{sKV}, s{sKV}, s{sT0}
s_lshr_b32 s{sT0}, s{sIDX}, 3
s_lshl_b32 s{sXE}, s{sT0}, 8
s_lshl_b32 s{sT0}, s{sT0}, 4
s_add_u32 s{sT0}, s{sT0}, s{sWV}
s_lshl_b32 s{sT0}, s{sT0}, 16
s_lshl_b32 s{sT1}, s{sGRP}, 10
s_add_u32 s{sT0}, s{sT0}, s{sT1}
s_and_b32 s{sT1}, s{sIDX}, 7
s_lshl_b32 s{sT1}, s{sT1}, 7
s_add_u32 s{sT0}, s{sT0}, s{sT1}
s_lshl_b32 s{sT1}, s2, 13
s_lshl_b32 s{sT2}, s{sWV}, 11
s_add_u32 s{sT1}, s{sT1}, s{sT2}
s_add_u32 s{sT1}, s{sT1}, {RESET_OFF}
""")
vSX = 37; XS = 80; XF = QF + 16
RST = 88
a(f"""v_lshrrev_b32 v{vT0}, 1, v{vC}
v_lshl_add_u32 v{vT0}, v{vT0}, 2, v{vG}
v_lshlrev_b32 v{vT0}, 5, v{vT0}
v_and_b32 v{vT1}, 1, v{vC}
v_lshl_add_u32 v{vSX}, v{vT1}, 10, v{vT0}
v_mov_b32 v{RST}, -1
v_mov_b32 v{RST+1}, -1
v_mov_b32 v{RST+2}, -1
v_mov_b32 v{RST+3}, -1
v_and_b32 v{vT0}, 7, v{vLane}
v_lshlrev_b32 v{vT0}, 3, v{vT0}
v_lshrrev_b32 v{vT1}, 5, v{vLane}
v_lshl_add_u32 v{vXs}, v{vT1}, 2, v{vT0}
s_waitcnt lgkmcnt(0)""")
mk_srd(WQ_, 58, 512*8192)
dma(WQ_, vW, sT0, 32*8192, 4, WQ_L)
mk_srd(X_, 52, 2048)
for j in range(4): a(f"buffer_load_dwordx4 {v4(XF+4*j)}, v{vXl}, {srd(X_)}, s{sXE} offen offset:{64*j}")
a(f"buffer_load_dwordx4 {v4(XS)}, v{vSX}, {srd(X_)}, 0 offen\nbuffer_load_dwordx4 {v4(XS+4)}, v{vSX}, {srd(X_)}, 0 offen offset:16")
a(f"s_lshl_b32 s{sT0}, s{sIDX}, 6\nbuffer_load_dword v{vX1}, v{vXs}, {srd(X_)}, s{sT0} offen")
mk_srd(WS_, 74, WS_SIZE)
a(f"buffer_store_dwordx4 {v4(RST)}, v{vL16}, {srd(WS_)}, s{sT1} offen sc1\nbuffer_store_dwordx4 {v4(RST)}, v{vL16}, {srd(WS_)}, s{sT1} offen offset:1024 sc1")
mk_srd(K_, 54, 0x2000000)
def kload(tau):
    t, hi = tau & 3, tau >> 2
    a(f"s_add_u32 s{sT0}, s{sKV}, {t*32768 + hi*4096}")
    for j in range(4): a(f"buffer_load_dwordx4 {a4(aK+16*tau+4*j)}, v{vK}, {srd(K_)}, s{sT0} offen offset:{64*j}{KVNT}")
def vload(t):
    for i in range(8):
        if i % 4 == 0: a(f"s_add_u32 s{sT0}, s{sKV}, {t*32768 + (i>>2)*4096}")
        a(f"buffer_load_dwordx4 {v4(VR+32*(t+1)+4*i)}, v{vL16}, {srd(V_)}, s{sT0} offen offset:{1024*(i&3)}{KVNT}")
kload(0); kload(4)
mk_srd(V_, 56, 0x2000000); mk_srd(WO_, 60, 4096*1024); mk_srd(WG_, 64, 512*3584); mk_srd(WU_, 66, 512*3584)
mk_srd(WD_, 68, 1792*1024); mk_srd(OUT_, 70, 2048); mk_srd(DBG_, 72, 256)
a(f"""v_lshlrev_b32 v{vL4}, 2, v{vLane}
v_lshlrev_b32 v{vC16}, 4, v{vC}
v_lshl_add_u32 v{vOl}, v{vC}, 10, v{vG16}
v_lshrrev_b32 v{vT0}, 2, v{vC}
v_lshl_add_u32 v{vQl}, v{vT0}, 10, v{vG16}
v_lshl_add_u32 v{vT0}, v{vG}, 3, v{vT0}
v_lshlrev_b32 v{vTR}, 7, v{vT0}
v_and_b32 v{vT0}, 3, v{vC}
v_lshl_add_u32 v{vQl}, v{vT0}, 8, v{vQl}
v_lshl_add_u32 v{vTR}, v{vT0}, 3, v{vTR}
s_lshl_b32 s{sT0}, s{sWV}, 5
v_add_u32 v{vTR}, s{sT0}, v{vTR}
v_and_b32 v{vT0}, 1, v{vC}
v_lshlrev_b32 v{vT1}, 3, v{vG}
v_lshl_add_u32 v{vQs}, v{vT0}, 12, v{vT1}
v_lshl_add_u32 v{vDNs}, v{vT0}, 16, v{vG16}
v_lshl_add_u32 v{vHr}, v{vT0}, 7, v{vG16}
v_add_u32 v{vHr}, {H_L}, v{vHr}
v_lshrrev_b32 v{vT1}, 1, v{vC}
v_lshlrev_b32 v{vT1}, 4, v{vT1}
v_lshl_add_u32 v{vSTl}, v{vT0}, 3, v{vT1}
v_lshl_add_u32 v{vGUl}, v{vG}, 11, v{vC16}
v_mul_u32_u24 v{vT0}, {OC_G}, v{vG}
v_mul_u32_u24 v{vT1}, {OC_H}, v{vC}
s_mul_i32 s{sT0}, s{sWV}, {OC_W}
s_add_u32 s{sT0}, s{sT0}, {OC_L}
v_add3_u32 v{vOCw}, v{vT0}, v{vT1}, s{sT0}
v_and_b32 v{vT1}, 3, v{vC}
v_lshl_add_u32 v{vT0}, v{vT1}, 5, v{vT0}
v_and_b32 v{vT1}, 12, v{vC}
s_mul_i32 s{sT0}, s{sWV}, {OC_H}
s_add_u32 s{sT0}, s{sT0}, {OC_L}
v_add3_u32 v{vOCr}, v{vT0}, v{vT1}, s{sT0}
s_lshl_b32 s{sT0}, s{sWV}, 3
s_add_u32 s{sT0}, s{sT0}, {ML_L}
v_and_b32 v{vT1}, 3, v{vC}
v_lshl_add_u32 v{vMLw}, v{vT1}, 5, s{sT0}
s_lshl_b32 s{sT0}, s{sWV}, 5
s_add_u32 s{sT1}, s{sT0}, {ML_L}
v_mov_b32 v{vMLr}, s{sT1}
s_add_u32 s{sT1}, s{sT0}, {H_L}
v_lshrrev_b32 v{vT0}, 5, v{vLane}
v_lshlrev_b32 v{vT0}, 7, v{vT0}
v_lshl_add_u32 v{vT0}, v{vC}, 1, v{vT0}
v_add_u32 v{vHw}, s{sT1}, v{vT0}
v_mov_b32 v{vT0}, 0x3f803f80
v_accvgpr_write_b32 a{aONE}, v{vT0}
v_accvgpr_write_b32 a{aONE+1}, v{vT0}
v_accvgpr_write_b32 a{aONE+2}, v{vT0}
v_accvgpr_write_b32 a{aONE+3}, v{vT0}
s_mov_b32 s{sSEL0}, 0x05040100
s_mov_b32 s{sSEL1}, 0x07060302
""")
a(f"""s_lshr_b32 s{sT0}, s{sIDX}, 4
s_lshl_b32 s{sT1}, s{sGRP}, 1
s_add_u32 s{sT0}, s{sT0}, s{sT1}
s_lshl_b32 s{sQld}, s{sT0}, 12
s_lshl_b32 s{sOst}, s{sT0}, 14
s_and_b32 s{sT1}, s{sIDX}, 15
s_lshl_b32 s{sT2}, s{sT1}, 10
s_add_u32 s{sOst}, s{sOst}, s{sT2}
s_lshl_b32 s{sT2}, s{sWV}, 8
s_add_u32 s{sOst}, s{sOst}, s{sT2}
s_add_u32 s{sOst}, s{sOst}, {O_OFF}
s_lshl_b32 s{sLst}, s{sT0}, 8
s_lshl_b32 s{sT2}, s{sWV}, 6
s_add_u32 s{sLst}, s{sLst}, s{sT2}
s_lshl_b32 s{sT2}, s{sT1}, 2
s_add_u32 s{sLst}, s{sLst}, s{sT2}
s_add_u32 s{sLst}, s{sLst}, {LSE_OFF}
""")
a(f"""s_lshl_b32 s{sQst}, s{sGRP}, 13
s_lshr_b32 s{sT0}, s{sIDX}, 3
s_lshl_b32 s{sT1}, s{sT0}, 10
s_add_u32 s{sQst}, s{sQst}, s{sT1}
s_and_b32 s{sT1}, s{sIDX}, 7
s_lshl_b32 s{sT2}, s{sT1}, 7
s_add_u32 s{sQst}, s{sQst}, s{sT2}
s_lshl_b32 s{sT2}, s{sWV}, 5
s_add_u32 s{sQst}, s{sQst}, s{sT2}
""")
a(f"""s_and_b32 s{sT2}, s{sWV}, 1
s_lshl_b32 s{sE}, s{sGRP}, 1
s_add_u32 s{sE}, s{sE}, s{sT2}
s_lshl_b32 s{sOld}, s{sE}, 14
s_lshl_b32 s{sE+1}, s{sT0}, 8
s_add_u32 s{sOld}, s{sOld}, s{sE+1}
s_add_u32 s{sOld}, s{sOld}, {O_OFF}
s_lshl_b32 s{sLld}, s{sE}, 8
s_lshl_b32 s{sE+1}, s{sT0}, 6
s_add_u32 s{sLld}, s{sLld}, s{sE+1}
s_add_u32 s{sLld}, s{sLld}, {LSE_OFF}
s_lshl_b32 s{sWOst}, s{sT2}, 16
s_lshl_b32 s{sE}, s{sT1}, 1
s_lshr_b32 s{sE+1}, s{sWV}, 1
s_add_u32 s{sE}, s{sE}, s{sE+1}
s_lshl_b32 s{sE}, s{sE}, 12
s_add_u32 s{sWOst}, s{sWOst}, s{sE}
s_lshl_b32 s{sDNst}, s{sE}, 0
s_lshl_b32 s{sE}, s{sGRP}, 2
s_add_u32 s{sE}, s{sE}, s{sT0}
s_lshl_b32 s{sE}, s{sE}, 7
s_add_u32 s{sWOst}, s{sWOst}, s{sE}
s_add_u32 s{sWOst}, s{sWOst}, {WO_OFF}
s_lshl_b32 s{sFB}, s{sT0}, 3
s_add_u32 s{sFB}, s{sFB}, s{sGRP}
s_lshl_b32 s{sE}, s{sFB}, 7
s_add_u32 s{sDNst}, s{sDNst}, s{sE}
s_lshl_b32 s{sE}, s{sT2}, 6
s_add_u32 s{sDNst}, s{sDNst}, s{sE}
s_add_u32 s{sDNst}, s{sDNst}, {DN_OFF}
s_lshl_b32 s{sGUld}, s{sFB}, 13
s_lshl_b32 s{sE}, s{sWV}, 8
s_add_u32 s{sGUld}, s{sGUld}, s{sE}
s_add_u32 s{sGUld}, s{sGUld}, {GU_OFF}
s_lshl_b32 s{sE}, s{sT1}, 10
s_add_u32 s{sGUst}, s{sGUld}, s{sE}
s_lshl_b32 s{sMld}, s{sIDX}, 12
s_lshl_b32 s{sE}, s{sGRP}, 11
s_lshl_b32 s{sXst}, s{sIDX}, 6
s_add_u32 s{sXst}, s{sXst}, s{sE}
s_lshl_b32 s{sXC}, s{sT1}, 7
s_add_u32 s{sXC}, s{sXC}, s{sE}
s_add_u32 s{sXC}, s{sXC}, {X1_OFF}
s_add_u32 s{sXE}, s{sXE}, s{sE}
s_add_u32 s{sXE}, s{sXE}, {X2_OFF}
s_lshl_b32 s{sSTld}, s{sGRP}, 8
s_and_b32 s{sE}, s{sIDX}, 15
s_lshl_b32 s{sE}, s{sE}, 4
s_lshr_b32 s{sE+1}, s{sIDX}, 4
s_lshl_b32 s{sE+1}, s{sE+1}, 3
s_add_u32 s{sE}, s{sE}, s{sE+1}
s_add_u32 s{sSTst}, s{sSTld}, s{sE}
""")
a("s_waitcnt vmcnt(8)")
ts(1)
S, Qr = 90, 91
a(f"v_mov_b32 v{S}, 0\nv_mov_b32 v{Qr}, 0")
for i in range(8):
    a(f"""v_lshlrev_b32 v{vT0}, 16, v{XS+i}
    v_and_b32 v{vT1}, 0xffff0000, v{XS+i}
    v_add_f32 v{S}, v{S}, v{vT0}
    v_fmac_f32 v{Qr}, v{vT0}, v{vT0}
    v_add_f32 v{S}, v{S}, v{vT1}
    v_fmac_f32 v{Qr}, v{vT1}, v{vT1}""")
a(f"v_lshlrev_b32 v{vX0}, 16, v{vX1}\nv_and_b32 v{vX1}, 0xffff0000, v{vX1}")
a("s_barrier")
trread(aWQ, vTR, WQ_L, 4)
for n in (2, 4, 8):
    dpp("v_add_f32", S, S, S, f"row_ror:{n}"); dpp("v_add_f32", Qr, Qr, Qr, f"row_ror:{n}")
allred_rows("v_add_f32", S, vT0); allred_rows("v_add_f32", Qr, vT0)
stats_finalize(S, Qr, vT0)
a("s_waitcnt lgkmcnt(0)")
for j in range(4): mfma(v4(vCSQ), a4(aWQ+4*j), a4(aONE), 0 if j == 0 else v4(vCSQ))
DE = 60
stage_E_tail(XF, S, Qr, DE, sQst)
a(f"buffer_store_dwordx2 {v2(DE)}, v{vQs}, {srd(WS_)}, s{sQst} offen sc1")
exec_all()
ts(2)
kload(1); kload(5)
a("s_waitcnt vmcnt(8)\ns_barrier")
lna = lab("noarr")
a(f"""s_getreg_b32 s{sT0}, hwreg(HW_REG_XCC_ID)
s_and_b32 s{sT0}, s{sT0}, 7
s_mul_i32 s{sFAST}, s{sT0}, 6
s_cmp_eq_u32 s{sWV}, 0
s_cbranch_scc0 {lna}
s_lshl_b64 s[{sE}:{sE+1}], 1, s{sFAST}
s_add_u32 s{sE+1}, s{sE+1}, 0x10000
v_mov_b32 v{vT0+1}, s{sE}
v_mov_b32 v{vT0+2}, s{sE+1}
s_lshl_b32 s{sT0}, s{sGRP}, 5
s_mov_b64 exec, 1
buffer_atomic_add_x2 {v2(vT0+1)}, off, {srd(DBG_)}, s{sT0} sc1
s_mov_b64 exec, -1
{lna}:""")
kload(2); kload(6); kload(3); kload(7)
vload(0)
CT = 80
a(f"v_and_b32 v{vT0}, 7, v{vLane}\nv_lshlrev_b32 v{vT0}, 5, v{vT0}")
a(f"buffer_load_dwordx2 {v2(CT)}, v{vT0}, {srd(DBG_)}, 0 offen sc1")
vload(1)
lp, ld = lab("bar"), lab("barok")
a(f"""s_waitcnt vmcnt(8)
{lp}:
v_lshrrev_b32 v{vT1}, 16, v{CT+1}
v_cmp_gt_u32 vcc, 32, v{vT1}
s_cbranch_vccz {ld}
buffer_load_dwordx2 {v2(CT)}, v{vT0}, {srd(DBG_)}, 0 offen sc1
s_waitcnt vmcnt(0)
s_sub_u32 s{sTO}, s{sTO}, 1
s_cbranch_scc0 {lp}
s_mov_b32 s{sTO}, 0
{ld}:""")
ts(3)
for j in range(4): a(f"buffer_load_dwordx4 {v4(QF+4*j)}, v{vQl}, {srd(WS_)}, s{sQld} offen offset:{64*j} sc1")
a(f"""v_readlane_b32 s{sT0}, v{CT}, s{sGRP}
v_readlane_b32 s{sT1}, v{CT+1}, s{sGRP}
s_lshl_b64 s[{sE}:{sE+1}], 32, s{sFAST}
s_add_u32 s{sE+1}, s{sE+1}, 0x200000
s_xor_b32 s{sT0}, s{sT0}, s{sE}
s_xor_b32 s{sT1}, s{sT1}, s{sE+1}
s_or_b32 s{sT0}, s{sT0}, s{sT1}
s_cmp_eq_u32 s{sT0}, 0
s_cselect_b32 s{sFAST}, 1, 0""")
vload(2)
a("s_waitcnt vmcnt(8)")
ts(4)
ts_flush(1, 0)
if TS:
    for k in range(1, 5): a(f"v_writelane_b32 v{vTSV}, s{TSB+2*k}, {k}")
a("s_branch L_qk")

a("L_layer:")
until(1)
poll([f"buffer_load_dwordx4 {v4(QF+4*j)}, v{vQl}, {srd(WS_)}, s{sQld} offen offset:{64*j}" for j in range(4)], range(QF, QF+16), ACL)
a("L_qk:")
ts(0)
D = lambda t: DT + 4*t
def xlo(t, X): return [lambda r=r: dpp("v_add_f32", X+r, D(t)+r, D(t)+r, "row_ror:8", 0x3) for r in range(4)]
def xhi(t, X): return [lambda r=r: dpp("v_add_f32", X+r, D(t)+r, D(t)+r, "row_ror:8", 0xc) for r in range(4)]
def zev(Z): return [lambda r=r: dpp("v_add_f32", Z+r, XT+r, XT+r, "row_ror:12", 0x5) for r in range(4)]
def zod(Z): return [lambda r=r: dpp("v_add_f32", Z+r, YT+r, YT+r, "row_ror:4", 0xa) for r in range(4)]
vM, vM2 = ACL, ACL+1
fill = xlo(0, XT) + xhi(2, XT) + zev(ZA) + xlo(1, YT) + xhi(3, YT) + zod(ZA) + \
    [lambda: a(f"v_max3_f32 v{vM}, v{ZA}, v{ZA+1}, v{ZA+2}"), lambda: a(f"v_max_f32 v{vM}, v{ZA+3}, v{vM}")] + \
    xlo(4, XT) + xhi(6, XT) + zev(ZB) + xlo(5, YT) + xhi(7, YT) + zod(ZB)
n = 0
for tau in (0, 2, 1, 3, 4, 6, 5, 7):
    for j in range(4):
        mfma(v4(D(tau)), a4(aK+16*tau+4*j), v4(QF+4*j), 0 if j == 0 else v4(D(tau)))
        n += 1
        if n >= 12:
            fill.pop(0)(); fill.pop(0)()
while fill: fill.pop(0)()
a(f"v_max3_f32 v{vM}, v{ZB}, v{ZB+1}, v{vM}\nv_max3_f32 v{vM}, v{ZB+2}, v{ZB+3}, v{vM}")
dpp("v_max_f32", vM, vM, vM, "row_ror:4"); dpp("v_max_f32", vM, vM, vM, "row_ror:8")
allred_rows("v_max_f32", vM, vM2)
vMX = QF + 12
a(f"v_mov_b32 v{vMX}, v{vM}")
for r in range(8): a(f"v_sub_f32 v{ZA+r}, v{ZA+r}, v{vM}")
for r in range(8): a(f"v_exp_f32 v{ZA+r}, v{ZA+r}")
P = [XT, YT, QF, QF+4]
for r in range(4): a(f"v_cvt_pk_bf16_f32 v{P[0]+r}, v{ZA+2*r}, v{ZA+2*r+1}")
ts(1)
def transpose(t, waits):
    src, dst = VR + 32*(t+1), VR + 32*t
    for p in range(4):
        if waits[p] is not None: a(f"s_waitcnt vmcnt({waits[p]})")
        for q in range(4):
            a(f"v_perm_b32 v{dst+8*q+p}, v{src+8*p+4+q}, v{src+8*p+q}, s{sSEL0}")
            a(f"v_perm_b32 v{dst+8*q+4+p}, v{src+8*p+4+q}, v{src+8*p+q}, s{sSEL1}")
vWr = ZA
for t in range(4):
    ls = lab("skip")
    a(f"s_cmp_eq_u32 s{sLAYER}, 0\ns_cbranch_scc0 {ls}")
    if t == 0:
        vload(3)
        transpose(0, [None]*4)
    elif t == 1:
        transpose(1, [None]*4)
    elif t == 2:
        a(f"""v_lshrrev_b32 v{vWr}, 7, v{vL16}
        v_and_b32 v{vWr+1}, 0x70, v{vL16}
        v_lshl_add_u32 v{vWr}, v{vWr}, 10, v{vWr+1}
        s_lshl_b32 s{sT0}, s{sGRP}, 6
        s_lshr_b32 s{sT1}, s{sIDX}, 3
        s_lshl_b32 s{sT1}, s{sT1}, 4
        s_add_u32 s{sT0}, s{sT0}, s{sT1}
        s_add_u32 s{sT0}, s{sT0}, s{sWV}
        s_lshl_b32 s{sT0}, s{sT0}, 13
        s_and_b32 s{sT1}, s{sIDX}, 7
        s_lshl_b32 s{sT1}, s{sT1}, 7
        s_add_u32 s{sT0}, s{sT0}, s{sT1}""")
        dma(WO_, vWr, sT0, 32*1024, 4, WO_L)
        transpose(2, [12, None, None, None])
    else:
        transpose(3, [10, 8, 6, 4])
    a(f"{ls}:")
    rot = [lambda tt=tt, r=r: dpp("v_mov_b32", P[tt]+r, P[0]+r, None, f"row_ror:{16-4*tt}") for tt in (1, 2, 3) for r in range(4)] if t == 0 else []
    for e in range(8):
        mfma(v4(DT+4*e), v4(VR+32*t+4*e), v4(P[t]), 0 if t == 0 else v4(DT+4*e))
        for _ in range(2):
            if rot: rot.pop(0)()
    mfma(v4(ACL), a4(aONE), v4(P[t]), 0 if t == 0 else v4(ACL))
ts(2)
until(0)
exec_set(0x000f000f, 0x000f000f)
for e in range(8): a(f"ds_write_b128 v{vOCw}, {v4(DT+4*e)} offset:{16*e}")
a(f"ds_write2_b32 v{vMLw}, v{vMX}, v{ACL} offset0:0 offset1:1")
exec_all()
a("s_waitcnt lgkmcnt(0)\ns_barrier")
ML = T; OV = T + 8; FW = T + 16
a(f"ds_read_b128 {v4(ML)}, v{vMLr}\nds_read_b128 {v4(ML+4)}, v{vMLr} offset:16")
for w in range(4):
    a(f"ds_read_b32 v{OV+2*w}, v{vOCr} offset:{w*OC_W}\nds_read_b32 v{OV+2*w+1}, v{vOCr} offset:{w*OC_W+16}")
a(f"""s_waitcnt lgkmcnt(8)
v_max3_f32 v{FW+4}, v{ML}, v{ML+2}, v{ML+4}
v_max_f32 v{FW+4}, v{ML+6}, v{FW+4}""")
for w in range(4): a(f"v_sub_f32 v{FW+w}, v{ML+2*w}, v{FW+4}")
for w in range(4): a(f"v_exp_f32 v{FW+w}, v{FW+w}")
a(f"v_mul_f32 v{FW+5}, v{FW}, v{ML+1}")
for w in range(1, 4): a(f"v_fmac_f32 v{FW+5}, v{FW+w}, v{ML+2*w+1}")
a(f"v_rcp_f32 v{FW+6}, v{FW+5}\nv_log_f32 v{FW+7}, v{FW+5}\ns_waitcnt lgkmcnt(0)")
a(f"v_mul_f32 v{OV}, v{FW}, v{OV}\nv_mul_f32 v{OV+1}, v{FW}, v{OV+1}")
for w in range(1, 4): a(f"v_fmac_f32 v{OV}, v{FW+w}, v{OV+2*w}\nv_fmac_f32 v{OV+1}, v{FW+w}, v{OV+2*w+1}")
a(f"""v_mul_f32 v{OV}, v{FW+6}, v{OV}
v_mul_f32 v{OV+1}, v{FW+6}, v{OV+1}
v_add_f32 v{FW+7}, v{FW+7}, v{FW+4}
v_cvt_pk_bf16_f32 v{OV}, v{OV}, v{OV+1}""")
pub(f"buffer_store_dword v{OV}, v{vL4}, {srd(WS_)}, s{sOst} offen", "s_mov_b64 exec, 1",
    f"buffer_store_dword v{FW+7}, off, {srd(WS_)}, s{sLst}", "s_mov_b64 exec, -1")
ts(3)
ls = lab("skip")
a(f"s_cmp_eq_u32 s{sLAYER}, 0\ns_cbranch_scc0 {ls}")
a(f"""s_and_b32 s{sT0}, s{sWV}, 1
s_lshl_b32 s{sT0}, s{sT0}, 5
v_subrev_u32 v{T}, s{sT0}, v{vTR}
s_waitcnt vmcnt(0)
s_barrier""")
trread(aWO, T, WO_L, 4); trread(aWO+16, T, WO_L+32, 4)
a(f"s_waitcnt lgkmcnt(0)\n{ls}:")
OF = T; LS = T + 16; DB = T + 20; EB = T + 28
poll([f"buffer_load_dwordx4 {v4(OF+4*j)}, v{vOl}, {srd(WS_)}, s{sOld} offen offset:{64*j}" for j in range(4)] +
     [f"buffer_load_dwordx4 {v4(LS)}, v{vG16}, {srd(WS_)}, s{sLld} offen"], range(OF, OF+20), EB)
ts(4)
for j in range(4):
    for t in range(2): mfma(v4(DB+4*t), v4(OF+4*j), a4(aWO+16*t+4*j), 0 if j == 0 else v4(DB+4*t))
ls = lab("skip")
a(f"s_cmp_eq_u32 s{sLAYER}, 0\ns_cbranch_scc0 {ls}\ns_cmp_lt_u32 s{sFB}, 28\ns_cbranch_scc0 {ls}")
vWg = EB + 8
a(f"""v_lshrrev_b32 v{vWg+2}, 7, v{vL16}
v_and_b32 v{vWg+1}, 0x70, v{vL16}
v_mul_u32_u24 v{vWg}, 3584, v{vWg+2}
v_add_u32 v{vWg}, v{vWg}, v{vWg+1}
v_lshl_add_u32 v{vWg+1}, v{vWg+2}, 10, v{vWg+1}
s_and_b32 s{sT1}, s{sIDX}, 7
s_lshl_b32 s{sT0}, s{sT1}, 3
s_add_u32 s{sT0}, s{sT0}, s{sWV}
s_mul_i32 s{sT0}, s{sT0}, {8*3584}
s_lshl_b32 s{sE}, s{sFB}, 7
s_add_u32 s{sT0}, s{sT0}, s{sE}
s_mov_b32 s{sE+1}, s{sT0}""")
dma(WG_, vWg, sT0, 32*3584, 2, WG_L); dma(WU_, vWg, sE+1, 32*3584, 2, WU_L)
a(f"""s_lshl_b32 s{sT0}, s{sFB}, 3
s_add_u32 s{sT0}, s{sT0}, s{sWV}
s_lshl_b32 s{sT0}, s{sT0}, 13
s_lshl_b32 s{sT1}, s{sT1}, 7
s_add_u32 s{sT0}, s{sT0}, s{sT1}""")
dma(WD_, vWg+1, sT0, 32*1024, 2, WD_L)
a(f"{ls}:")
a(f"v_max3_f32 v{EB+4}, v{LS}, v{LS+1}, v{LS+2}\nv_max_f32 v{EB+4}, v{LS+3}, v{EB+4}")
allred_rows("v_max_f32", EB+4, EB+5)
for r in range(4): a(f"v_sub_f32 v{EB+r}, v{LS+r}, v{EB+4}")
for r in range(4): a(f"v_exp_f32 v{EB+r}, v{EB+r}")
a(f"v_add_f32 v{EB+4}, v{EB}, v{EB+1}\nv_add_f32 v{EB+5}, v{EB+2}, v{EB+3}")
a(f"v_mul_f32 v{DB}, v{EB}, v{DB}\nv_mul_f32 v{DB+4}, v{EB}, v{DB+4}\nv_add_f32 v{EB+4}, v{EB+4}, v{EB+5}")
for r in range(1, 4): a(f"v_fmac_f32 v{DB}, v{EB+r}, v{DB+r}\nv_fmac_f32 v{DB+4}, v{EB+r}, v{DB+4+r}")
allred_rows("v_add_f32", EB+4, EB+5)
a(f"""v_permlane16_swap_b32 v{DB}, v{DB+4}
v_rcp_f32 v{EB+4}, v{EB+4}
v_add_f32 v{DB}, v{DB}, v{DB+4}
v_mov_b32 v{DB+4}, v{DB}
v_permlane32_swap_b32 v{DB}, v{DB+4}
v_add_f32 v{DB}, v{DB}, v{DB+4}
v_mul_f32 v{DB}, v{DB}, v{EB+4}
s_mov_b32 exec_hi, 0
buffer_store_dword v{DB}, v{vL4}, {srd(WS_)}, s{sWOst} offen sc1
s_mov_b64 exec, -1""")
ts(5)

def middle(off, xoff, stoff, final):
    M = T
    lsk = lab("nomid")
    a(f"s_cmp_eq_u32 s{sWV}, 0\ns_cbranch_scc0 {lsk}")
    a(f"s_add_u32 s{sT0}, s{sMld}, {off}")
    poll([f"buffer_load_dwordx4 {v4(M+4*u)}, v{vL16}, {srd(WS_)}, s{sT0} offen offset:{1024*u}" for u in range(4)], range(M, M+16), M+16)
    for r in range(4): a(f"v_add_f32 v{M+r}, v{M+r}, v{M+4+r}")
    for r in range(4): a(f"v_add_f32 v{M+8+r}, v{M+8+r}, v{M+12+r}")
    for r in range(4): a(f"v_add_f32 v{M+r}, v{M+r}, v{M+8+r}")
    a(f"""v_permlane32_swap_b32 v{M}, v{M+2}
    v_permlane32_swap_b32 v{M+1}, v{M+3}
    v_add_f32 v{M}, v{M}, v{M+2}
    v_add_f32 v{M+1}, v{M+1}, v{M+3}""")
    dpp("v_add_f32", M, M, M, "row_ror:8"); dpp("v_add_f32", M+1, M+1, M+1, "row_ror:8")
    a(f"""v_mov_b32 v{M+2}, v{M}
    v_mov_b32 v{M+3}, v{M+1}
    v_permlane16_swap_b32 v{M}, v{M+2}
    v_permlane16_swap_b32 v{M+1}, v{M+3}
    v_add_f32 v{vX0}, v{vX0}, v{M}
    v_add_f32 v{vX1}, v{vX1}, v{M+1}
    v_add_f32 v{vX0}, v{vX0}, v{M+2}
    v_add_f32 v{vX1}, v{vX1}, v{M+3}
    s_add_u32 s{sT0}, s{sXst}, {xoff}
    s_add_u32 s{sT1}, s{sSTst}, {stoff}
    v_cvt_pk_bf16_f32 v{M}, v{vX0}, v{vX1}""")
    exec_set(0xff, 0xff)
    if final:
        lnf = lab("notfinal")
        a(f"""s_cmp_eq_u32 s{sLAYER}, 0
        s_cbranch_scc1 {lnf}
        s_lshl_b32 s{sT0}, s{sIDX}, 6
        buffer_store_dword v{M}, v{vXs}, {srd(OUT_)}, s{sT0} offen
        s_mov_b64 exec, -1
        s_branch L_fin
        {lnf}:""")
    pub(f"buffer_store_dword v{M}, v{vXs}, {srd(WS_)}, s{sT0} offen")
    exec_all()
    a(f"""v_lshlrev_b32 v{vX0}, 16, v{M}
    v_and_b32 v{vX1}, 0xffff0000, v{M}
    v_add_f32 v{M+1}, v{vX0}, v{vX1}
    v_mul_f32 v{M+2}, v{vX0}, v{vX0}
    v_fmac_f32 v{M+2}, v{vX1}, v{vX1}
    v_permlane32_swap_b32 v{M+1}, v{M+2}
    v_add_f32 v{M+1}, v{M+1}, v{M+2}""")
    dpp("v_add_f32", M+1, M+1, M+1, "quad_perm:[1,0,3,2]")
    dpp("v_add_f32", M+1, M+1, M+1, "quad_perm:[2,3,0,1]")
    dpp("v_add_f32", M+1, M+1, M+1, "row_ror:4")
    a("s_mov_b32 exec_lo, 1\ns_mov_b32 exec_hi, 1")
    pub(f"buffer_store_dword v{M+1}, v{vXs}, {srd(WS_)}, s{sT1} offen")
    exec_all()
    a(f"{lsk}:")

middle(WO_OFF, X1_OFF, ST1_OFF, False)
ts(6)
ls = lab("skip")
a(f"s_cmp_eq_u32 s{sLAYER}, 0\ns_cbranch_scc0 {ls}\ns_waitcnt vmcnt(0)\n{ls}:\ns_barrier")
DD = T + 24
a(f"s_cmp_lt_u32 s{sFB}, 28\ns_cbranch_scc0 L_noffn")
ls = lab("skip")
a(f"s_cmp_eq_u32 s{sLAYER}, 0\ns_cbranch_scc0 {ls}")
trread(aWG, vTR, WG_L, 2); trread(aWU, vTR, WU_L, 2); trread(aWD, vTR, WD_L, 2)
a("s_waitcnt lgkmcnt(0)")
for j in range(2): mfma(v4(T), a4(aONE), a4(aWG+4*j), 0 if j == 0 else v4(T))
for j in range(2): mfma(v4(T+4), a4(aONE), a4(aWU+4*j), 0 if j == 0 else v4(T+4))
a(f"v_mov_b32 v{vCSG}, v{T}\nv_mov_b32 v{vCSU}, v{T+4}\n{ls}:")
def stats_loads(reg, off):
    return [f"buffer_load_dwordx2 {v2(reg)}, v{vSTl}, {srd(WS_)}, s{sT1} offen", f"buffer_load_dwordx2 {v2(reg+2)}, v{vSTl}, {srd(WS_)}, s{sT1} offen offset:128"]
def stats_reduce(reg):
    a(f"v_add_f32 v{reg}, v{reg}, v{reg+2}\nv_add_f32 v{reg+1}, v{reg+1}, v{reg+3}")
    for n in (2, 4, 8):
        dpp("v_add_f32", reg, reg, reg, f"row_ror:{n}"); dpp("v_add_f32", reg+1, reg+1, reg+1, f"row_ror:{n}")
    stats_finalize(reg, reg+1, reg+2)
XC = T; SC = T + 8; DG = T + 12; DU = T + 16; GO = T + 20
a(f"s_add_u32 s{sT1}, s{sSTld}, {ST1_OFF}")
poll([f"buffer_load_dwordx4 {v4(XC+4*j)}, v{vXl}, {srd(WS_)}, s{sXC} offen offset:{64*j}" for j in range(2)] + stats_loads(SC, ST1_OFF), range(XC, XC+12), DG)
ts(7)
for j in range(2):
    mfma(v4(DG), v4(XC+4*j), a4(aWG+4*j), 0 if j == 0 else v4(DG))
    mfma(v4(DU), v4(XC+4*j), a4(aWU+4*j), 0 if j == 0 else v4(DU))
stats_reduce(SC)
qp = ["quad_perm:[0,0,2,2]", "quad_perm:[1,1,3,3]"]
for i, (cs, b) in enumerate(((vCSG, 0), (vCSG, 1), (vCSU, 0), (vCSU, 1))): dpp("v_mul_f32", GO+i, SC, cs, qp[b])
for i, (d, b) in enumerate(((DG, 0), (DG+1, 1), (DU, 0), (DU+1, 1))): dpp("v_fmac_f32", GO+i, SC+1, d, qp[b])
a("s_mov_b64 exec, 0xffff")
pub(f"buffer_store_dwordx4 {v4(GO)}, v{vC16}, {srd(WS_)}, s{sGUst} offen")
exec_all()
G = T
poll([f"buffer_load_dwordx4 {v4(G+4*u)}, v{vGUl}, {srd(WS_)}, s{sGUld} offen offset:{1024*u}" for u in range(2)], range(G, G+8), G+8)
ts(8)
for r in range(4): a(f"v_add_f32 v{G+r}, v{G+r}, v{G+4+r}")
a(f"""v_permlane32_swap_b32 v{G}, v{G+1}
v_permlane32_swap_b32 v{G+2}, v{G+3}
v_add_f32 v{G}, v{G}, v{G+1}
v_add_f32 v{G+2}, v{G+2}, v{G+3}
v_permlane16_swap_b32 v{G}, v{G+2}
v_add_f32 v{G}, v{G}, v{G+2}
v_mov_b32 v{G+1}, v{G}
v_permlane16_swap_b32 v{G}, v{G+1}
v_max_f32 v{G}, 0, v{G}
v_mul_f32 v{G}, v{G}, v{G+1}
v_cvt_pk_bf16_f32 v{G}, v{G}, v{G}
ds_write_b16 v{vHw}, v{G}
s_waitcnt lgkmcnt(0)
s_barrier
ds_read_b128 {v4(G+4)}, v{vHr}
ds_read_b128 {v4(G+8)}, v{vHr} offset:64
s_waitcnt lgkmcnt(1)""")
mfma(v4(DD), a4(aWD), v4(G+4), 0)
a("s_waitcnt lgkmcnt(0)")
mfma(v4(DD), a4(aWD+4), v4(G+8), v4(DD))
a("L_dpub:")
exec_set(0x00030003, 0x00030003)
a(f"buffer_store_dwordx4 {v4(DD)}, v{vDNs}, {srd(WS_)}, s{sDNst} offen sc1")
exec_all()
ts(9)
lgo = lab("go")
a(f"""s_cmp_eq_u32 s{sLAYER}, 0
s_cbranch_scc1 {lgo}
s_or_b32 s{sT0}, s{sGRP}, s{sWV}
s_cmp_eq_u32 s{sT0}, 0
s_cbranch_scc0 L_fin
{lgo}:""")
middle(DN_OFF, X2_OFF, ST2_OFF, True)
ts(10)
a("s_barrier")
XE = T; SE = T + 16; DE = T + 20
a(f"s_add_u32 s{sT1}, s{sSTld}, {ST2_OFF}")
poll([f"buffer_load_dwordx4 {v4(XE+4*j)}, v{vXl}, {srd(WS_)}, s{sXE} offen offset:{64*j}" for j in range(4)] + stats_loads(SE, ST2_OFF), range(XE, XE+20), DE)
ts(11)
for j in range(4): mfma(v4(DE), a4(aWQ+4*j), v4(XE+4*j), 0 if j == 0 else v4(DE))
stats_reduce(SE)
a(f"v_mul_f32 v{SE}, {f2u(QSCALE):#x}, v{SE}\nv_mul_f32 v{SE+1}, {f2u(QSCALE):#x}, v{SE+1}")
for r in range(4): a(f"v_mul_f32 v{DE+4+r}, v{SE}, v{vCSQ+r}")
for r in range(4): a(f"v_fmac_f32 v{DE+4+r}, v{SE+1}, v{DE+r}")
a(f"""v_cvt_pk_bf16_f32 v{DE}, v{DE+4}, v{DE+5}
v_cvt_pk_bf16_f32 v{DE+1}, v{DE+6}, v{DE+7}
s_add_u32 s{WS_}, s{WS_}, {LSTR}
s_addc_u32 s{WS_+1}, s{WS_+1}, 0
s_mov_b32 s{sLAYER}, 1""")
exec_set(0x00030003, 0x00030003)
pub(f"buffer_store_dwordx2 {v2(DE)}, v{vQs}, {srd(WS_)}, s{sQst} offen")
exec_all()
ts_flush(8, 12)
a("s_branch L_layer")
a("L_noffn:")
for r in range(4): a(f"v_mov_b32 v{DD+r}, 0")
a("s_branch L_dpub")
for ls, lb, st in slow_blocks:
    a(f"{ls}:")
    for s in st: a(s)
    a(f"s_branch {lb}")
a("L_fin:")
until(2)
if opt["dly"]:
    a(f"s_mov_b32 s{sT0}, {opt['dly']}\nL_dly:\ns_nop 15\ns_nop 15\ns_nop 15\ns_nop 15\ns_sub_u32 s{sT0}, s{sT0}, 1\ns_cbranch_scc0 L_dly")
if TS:
    ts(11)
    ts_flush(24, 12)
    a(f"""v_writelane_b32 v{vTSV}, s{sFAST}, 40
    v_writelane_b32 v{vTSV}, s{sTO}, 41
    s_lshl_b32 s{sT0}, s2, 2
    s_add_u32 s{sT0}, s{sT0}, s{sWV}
    s_lshl_b32 s{sT0}, s{sT0}, 8
    s_add_u32 s{sT0}, s{sT0}, {TS_OFF - LSTR}
    buffer_store_dword v{vTSV}, v{vL4}, {srd(WS_)}, s{sT0} offen""")
a("L_end:\ns_endpgm")

body = a.finalize()
kn = opt["name"]
ref = open("cdna_kernels/" + NAME + ".s.ref").read().split("\n")
head = [l for l in ref if l.startswith(";") and "@launch" not in l and "Override launch" not in l and "grid=ceil" not in l]
head = head[:13]
src = "\n".join(head) + f"""
; One persistent launch, one workgroup per CU: K/V stay in registers for both layers, weight tiles in AGPRs.
; @launch grid=(256,1,1) block=(256,1,1) lds={LDS_BYTES}
.amdgcn_target "amdgcn-amd-amdhsa--gfx950"
.text
.globl {kn}
.p2align 8
.type {kn},@function
{kn}:
{body}
.section .rodata,"a"
.p2align 6
.amdhsa_kernel {kn}
  .amdhsa_next_free_vgpr 512
  .amdhsa_next_free_sgpr 102
  .amdhsa_accum_offset 256
  .amdhsa_group_segment_fixed_size 0
  .amdhsa_kernarg_size 96
  .amdhsa_user_sgpr_count 2
  .amdhsa_user_sgpr_kernarg_segment_ptr 1
  .amdhsa_system_sgpr_workgroup_id_x 1
.end_amdhsa_kernel
"""
open(out_path, "w").write(src)
print("nops inserted:", a.nops, "lines:", len(body.split("\n")), file=sys.stderr)
```

```python
import sys, math, struct
from asmlib import Asm

NAME = "interleave_layers__gqa_block_cached__glu_gated_reglu__decode"
opt = dict(kvnt="nt", wnt="none", ts=0, fast=1, tobits=20, name=NAME+"_kernel", dly=0, until=0, upos=0, dbgts="")
out_path = sys.argv[1]
for x in sys.argv[2:]:
    k, v = x.split("=")
    opt[k] = v if k in ("kvnt", "wnt", "name", "dbgts") else int(v)
fl = lambda s: "" if s == "none" else " " + s.replace("+", " ")
KVNT = fl(opt["kvnt"]); WNT = fl(opt["wnt"])
TS = opt["ts"]

def f2u(x): return struct.unpack("<I", struct.pack("<f", x))[0]

LSTR = 0x100000
Q_OFF, O_OFF, LSE_OFF = 0x0, 0x10000, 0x50000
X1_OFF, X2_OFF, ST1_OFF, ST2_OFF = 0x51000, 0x55000, 0x59000, 0x5A000
WO_OFF, DN_OFF, GU_OFF = 0x60000, 0x80000, 0xA0000
RESET_OFF = 0x10000
TS_OFF = 0x400000
WS_SIZE = 0x800000
WQ_L, WO_L, WG_L, WU_L, WD_L = 0, 16384, 32768, 40960, 49152
OC_L = 57344; OC_W = 2368; OC_G = 592; OC_H = 144
ML_L = OC_L + 4*OC_W
H_L = ML_L + 128
LDS_BYTES = H_L + 256
sWV, sGRP, sIDX, sLAYER, sFAST, sTO = 3, 4, 5, 6, 7, 76
K_, V_, WS_, WQ_, WO_, WG_, WU_, WD_, X_, OUT_, DBG_ = 8, 12, 16, 20, 24, 28, 32, 36, 40, 44, 48
def srd(n): return f"s[{n}:{n+3}]"
sKV, sQld, sQst, sOst, sLst, sOld, sLld, sWOst = 77, 78, 79, 80, 81, 82, 83, 84
sMld, sXst, sSTst, sXC, sXE, sSTld, sGUst, sGUld, sDNst, sFB = 85, 86, 87, 88, 89, 90, 91, 92, 93, 94
sT0, sT1, sT2, sSEL0, sSEL1 = 95, 96, 97, 98, 99
sE = 100
TSB = 52
vL16, vL4, vQl, vOl, vXl, vC16, vG16, vQs, vDNs, vGUl, vXs = 0, 1, 2, 3, 4, 5, 6, 7, 8, 9, 10
vOCw, vOCr, vMLw, vMLr, vHw, vHr, vTR, vSTl = 11, 12, 13, 14, 15, 16, 17, 18
vX0, vX1 = 19, 20
vCSG, vCSU = 21, 22
vTSV = 23
vCSQ = 24
T = 28
QF = 28
DT = 44
ACL = 76
XT, YT = 80, 84
ZA, ZB = 88, 92
VR = 96
def v4(n): return f"v[{n}:{n+3}]"
def v2(n): return f"v[{n}:{n+1}]"
def a4(n): return f"a[{n}:{n+3}]"
aK, aWQ, aWO, aWG, aWU, aWD, aONE = 0, 128, 144, 176, 184, 192, 200

a = Asm()
slow_blocks = []
uid = [0]
def lab(p):
    uid[0] += 1
    return f"L_{p}_{uid[0]}"

def exec_set(lo, hi):
    if lo == 0xffffffff and hi == 0xffffffff: a("s_mov_b64 exec, -1")
    elif hi == 0 and lo <= 64: a(f"s_mov_b64 exec, {lo}")
    else: a(f"s_mov_b32 exec_lo, {lo:#x}\ns_mov_b32 exec_hi, {hi:#x}")
def exec_all(): a("s_mov_b64 exec, -1")

def pub(*stores):
    if not opt["fast"]:
        for s in stores: a(s + (" sc1" if s.startswith("buffer") else ""))
        return
    ls, lb = lab("slow"), lab("back")
    a(f"s_cmp_eq_u32 s{sFAST}, 1\ns_cbranch_scc0 {ls}")
    for s in stores: a(s)
    a(f"{lb}:")
    slow_blocks.append((ls, lb, [s + (" sc1" if s.startswith("buffer") else "") for s in stores]))

def poll(loads, regs, tmp):
    lp, ld = lab("poll"), lab("got")
    a(f"{lp}:")
    for l in loads: a(l + " sc1")
    a("s_waitcnt vmcnt(0)")
    r = list(regs)
    a(f"v_max3_u32 v{tmp}, v{r[0]}, v{r[1]}, v{r[2]}"); r = r[3:]
    while len(r) >= 2:
        a(f"v_max3_u32 v{tmp}, v{r[0]}, v{r[1]}, v{tmp}"); r = r[2:]
    if r: a(f"v_max_u32 v{tmp}, v{r[0]}, v{tmp}")
    a(f"""v_cmp_eq_u32 vcc, -1, v{tmp}
    s_cbranch_vccz {ld}
    s_mov_b64 exec, vcc
    s_sub_u32 s{sTO}, s{sTO}, 1
    s_cbranch_scc0 {lp}
    s_mov_b32 s{sTO}, 0
    {ld}:
    s_mov_b64 exec, -1""")

def until(pos):
    if opt["until"] and opt["upos"] == pos:
        a(f"v_readfirstlane_b32 s54, v23\nL_until:\ns_memrealtime s[52:53]\ns_waitcnt lgkmcnt(0)\ns_sub_u32 s52, s52, s54\ns_cmp_lt_u32 s52, {opt['until']}\ns_cbranch_scc1 L_until")
tsn = [0]
def ts(k):
    if TS: a(f"s_memrealtime s[{TSB+2*k}:{TSB+2*k+1}]")
def ts_flush(base, n):
    if TS:
        a("s_waitcnt lgkmcnt(0)")
        for k in range(n): a(f"v_writelane_b32 v{vTSV}, s{TSB+2*k}, {base+k}")

def mk_srd(d, lo, size):
    a(f"s_mov_b32 s{d}, s{lo}\ns_and_b32 s{d+1}, s{lo+1}, 0xffff\ns_mov_b32 s{d+2}, {size:#x}\ns_mov_b32 s{d+3}, 0x20000")

def mfma(d, A, B, c):
    a(f"v_mfma_f32_16x16x32_bf16 {d}, {A}, {B}, {c}")
def dpp(op, d, s0, s1, ctrl, bank=0xf):
    if s1 is None: a(f"{op}_dpp v{d}, v{s0} {ctrl} row_mask:0xf bank_mask:{bank:#x}")
    else: a(f"{op}_dpp v{d}, v{s0}, v{s1} {ctrl} row_mask:0xf bank_mask:{bank:#x}")
def allred_rows(op, r, t):
    a(f"v_mov_b32 v{t}, v{r}\nv_permlane16_swap_b32 v{r}, v{t}\n{op} v{r}, v{r}, v{t}")
    a(f"v_mov_b32 v{t}, v{r}\nv_permlane32_swap_b32 v{r}, v{t}\n{op} v{r}, v{r}, v{t}")

def dma(srdn, voff, sbase, step, n, ldsbase):
    for i in range(n):
        a(f"s_lshl_b32 s{sT2}, s{sWV}, 10\ns_add_u32 m0, s{sT2}, {ldsbase + i*4096}")
        if i: a(f"s_add_u32 s{sbase}, s{sbase}, {step}")
        a(f"buffer_load_dwordx4 v{voff}, {srd(srdn)}, s{sbase} offen{WNT} lds")

def trread(areg, vaddr, ldsoff, ksteps):
    for j in range(ksteps):
        for u in range(2):
            a(f"ds_read_b64_tr_b16 a[{areg+4*j+2*u}:{areg+4*j+2*u+1}], v{vaddr} offset:{ldsoff + (32*j+4*u)*128}")

def stats_finalize(S, Q, t):
    a(f"""v_mul_f32 v{S}, {f2u(-1/512):#x}, v{S}
    v_mul_f32 v{Q}, {f2u(1/512):#x}, v{Q}
    v_fma_f32 v{Q}, -v{S}, v{S}, v{Q}
    v_max_f32 v{Q}, 0, v{Q}
    v_add_f32 v{Q}, {f2u(1e-5):#x}, v{Q}
    v_rsq_f32 v{Q}, v{Q}
    v_mul_f32 v{S}, v{S}, v{Q}""")

QSCALE = math.log2(math.e) / math.sqrt(128.0)

def stage_E_tail(XF, S, Q, D, soff):
    for j in range(4): mfma(v4(D), a4(aWQ+4*j), v4(XF+4*j), 0 if j == 0 else v4(D))
    a(f"v_mul_f32 v{S}, {f2u(QSCALE):#x}, v{S}\nv_mul_f32 v{Q}, {f2u(QSCALE):#x}, v{Q}")
    for r in range(4): a(f"v_mul_f32 v{D+4+r}, v{S}, v{vCSQ+r}")
    exec_set(0x00030003, 0x00030003)
    for r in range(4): a(f"v_fmac_f32 v{D+4+r}, v{Q}, v{D+r}")
    a(f"v_cvt_pk_bf16_f32 v{D}, v{D+4}, v{D+5}\nv_cvt_pk_bf16_f32 v{D+1}, v{D+6}, v{D+7}")

ts(0)
if opt["until"]: a("s_memrealtime s[52:53]\ns_waitcnt lgkmcnt(0)\nv_mov_b32 v23, s52")
a(f"""s_cmp_ge_u32 s2, 256
s_cbranch_scc1 L_end
s_load_dwordx16 s[52:67], s[0:1], 0
s_load_dwordx8 s[68:75], s[0:1], 64""" if not TS else f"""s_cmp_ge_u32 s2, 256
s_cbranch_scc1 L_end
s_waitcnt lgkmcnt(0)
s_mov_b32 s{sTO}, s{TSB}
s_load_dwordx16 s[52:67], s[0:1], 0
s_load_dwordx8 s[68:75], s[0:1], 64
v_mov_b32 v{vTSV}, 0
v_writelane_b32 v{vTSV}, s{sTO}, 0""")
vLane, vC, vG, vK, vW, vT0, vT1 = 30, 31, 32, 33, 34, 35, 36
a(f"""v_lshrrev_b32 v{vT0}, 6, v0
v_and_b32 v{vLane}, 63, v0
v_readfirstlane_b32 s{sWV}, v{vT0}
s_and_b32 s{sGRP}, s2, 7
s_lshr_b32 s{sIDX}, s2, 3
s_mov_b32 s{sLAYER}, 0
s_mov_b32 s{sTO}, {1 << opt['tobits']:#x}
v_and_b32 v{vC}, 15, v{vLane}
v_lshrrev_b32 v{vG}, 4, v{vLane}
v_lshlrev_b32 v{vL16}, 4, v{vLane}
v_lshlrev_b32 v{vG16}, 4, v{vG}
v_and_b32 v{vT0}, 1, v{vC}
v_lshl_add_u32 v{vXl}, v{vT0}, 10, v{vG16}
v_lshrrev_b32 v{vT0}, 3, v{vLane}
v_and_b32 v{vT1}, 7, v{vLane}
v_lshlrev_b32 v{vT1}, 4, v{vT1}
v_lshl_add_u32 v{vW}, v{vT0}, 13, v{vT1}
v_and_b32 v{vT0}, 3, v{vC}
v_lshrrev_b32 v{vT1}, 2, v{vC}
v_lshl_add_u32 v{vT0}, v{vT0}, 2, v{vT1}
v_lshl_add_u32 v{vK}, v{vT0}, 8, v{vG16}
""")
a(f"""s_lshr_b32 s{sT0}, s{sIDX}, 4
s_lshl_b32 s{sT0}, s{sT0}, 3
s_add_u32 s{sT0}, s{sT0}, s{sGRP}
s_lshl_b32 s{sKV}, s{sT0}, 21
s_and_b32 s{sT0}, s{sIDX}, 15
s_lshl_b32 s{sT0}, s{sT0}, 17
s_add_u32 s{sKV}, s{sKV}, s{sT0}
s_lshl_b32 s{sT0}, s{sWV}, 13
s_add_u32 s{sKV}, s{sKV}, s{sT0}
s_lshr_b32 s{sT0}, s{sIDX}, 3
s_lshl_b32 s{sXE}, s{sT0}, 8
s_lshl_b32 s{sT0}, s{sT0}, 4
s_add_u32 s{sT0}, s{sT0}, s{sWV}
s_lshl_b32 s{sT0}, s{sT0}, 16
s_lshl_b32 s{sT1}, s{sGRP}, 10
s_add_u32 s{sT0}, s{sT0}, s{sT1}
s_and_b32 s{sT1}, s{sIDX}, 7
s_lshl_b32 s{sT1}, s{sT1}, 7
s_add_u32 s{sT0}, s{sT0}, s{sT1}
s_lshl_b32 s{sT1}, s2, 13
s_lshl_b32 s{sT2}, s{sWV}, 11
s_add_u32 s{sT1}, s{sT1}, s{sT2}
s_add_u32 s{sT1}, s{sT1}, {RESET_OFF}
""")
vSX = 37; XS = 80; XF = QF + 16
RST = 88
a(f"""v_lshrrev_b32 v{vT0}, 1, v{vC}
v_lshl_add_u32 v{vT0}, v{vT0}, 2, v{vG}
v_lshlrev_b32 v{vT0}, 5, v{vT0}
v_and_b32 v{vT1}, 1, v{vC}
v_lshl_add_u32 v{vSX}, v{vT1}, 10, v{vT0}
v_mov_b32 v{RST}, -1
v_mov_b32 v{RST+1}, -1
v_mov_b32 v{RST+2}, -1
v_mov_b32 v{RST+3}, -1
v_and_b32 v{vT0}, 7, v{vLane}
v_lshlrev_b32 v{vT0}, 3, v{vT0}
v_lshrrev_b32 v{vT1}, 5, v{vLane}
v_lshl_add_u32 v{vXs}, v{vT1}, 2, v{vT0}
s_waitcnt lgkmcnt(0)""")
mk_srd(WQ_, 58, 512*8192)
dma(WQ_, vW, sT0, 32*8192, 4, WQ_L)
mk_srd(X_, 52, 2048)
for j in range(4): a(f"buffer_load_dwordx4 {v4(XF+4*j)}, v{vXl}, {srd(X_)}, s{sXE} offen offset:{64*j}")
a(f"buffer_load_dwordx4 {v4(XS)}, v{vSX}, {srd(X_)}, 0 offen\nbuffer_load_dwordx4 {v4(XS+4)}, v{vSX}, {srd(X_)}, 0 offen offset:16")
a(f"s_lshl_b32 s{sT0}, s{sIDX}, 6\nbuffer_load_dword v{vX1}, v{vXs}, {srd(X_)}, s{sT0} offen")
mk_srd(WS_, 74, WS_SIZE)
a(f"buffer_store_dwordx4 {v4(RST)}, v{vL16}, {srd(WS_)}, s{sT1} offen sc1\nbuffer_store_dwordx4 {v4(RST)}, v{vL16}, {srd(WS_)}, s{sT1} offen offset:1024 sc1")
mk_srd(K_, 54, 0x2000000)
def kload(tau):
    t, hi = tau & 3, tau >> 2
    a(f"s_add_u32 s{sT0}, s{sKV}, {t*32768 + hi*4096}")
    for j in range(4): a(f"buffer_load_dwordx4 {a4(aK+16*tau+4*j)}, v{vK}, {srd(K_)}, s{sT0} offen offset:{64*j}{KVNT}")
def vload(t):
    for i in range(8):
        if i % 4 == 0: a(f"s_add_u32 s{sT0}, s{sKV}, {t*32768 + (i>>2)*4096}")
        a(f"buffer_load_dwordx4 {v4(VR+32*(t+1)+4*i)}, v{vL16}, {srd(V_)}, s{sT0} offen offset:{1024*(i&3)}{KVNT}")
kload(0); kload(4)
mk_srd(V_, 56, 0x2000000); mk_srd(WO_, 60, 4096*1024); mk_srd(WG_, 64, 512*3584); mk_srd(WU_, 66, 512*3584)
mk_srd(WD_, 68, 1792*1024); mk_srd(OUT_, 70, 2048); mk_srd(DBG_, 72, 256)
a(f"""v_lshlrev_b32 v{vL4}, 2, v{vLane}
v_lshlrev_b32 v{vC16}, 4, v{vC}
v_lshl_add_u32 v{vOl}, v{vC}, 10, v{vG16}
v_lshrrev_b32 v{vT0}, 2, v{vC}
v_lshl_add_u32 v{vQl}, v{vT0}, 10, v{vG16}
v_lshl_add_u32 v{vT0}, v{vG}, 3, v{vT0}
v_lshlrev_b32 v{vTR}, 7, v{vT0}
v_and_b32 v{vT0}, 3, v{vC}
v_lshl_add_u32 v{vQl}, v{vT0}, 8, v{vQl}
v_lshl_add_u32 v{vTR}, v{vT0}, 3, v{vTR}
s_lshl_b32 s{sT0}, s{sWV}, 5
v_add_u32 v{vTR}, s{sT0}, v{vTR}
v_and_b32 v{vT0}, 1, v{vC}
v_lshlrev_b32 v{vT1}, 3, v{vG}
v_lshl_add_u32 v{vQs}, v{vT0}, 12, v{vT1}
v_lshl_add_u32 v{vDNs}, v{vT0}, 16, v{vG16}
v_lshl_add_u32 v{vHr}, v{vT0}, 7, v{vG16}
v_add_u32 v{vHr}, {H_L}, v{vHr}
v_lshrrev_b32 v{vT1}, 1, v{vC}
v_lshlrev_b32 v{vT1}, 4, v{vT1}
v_lshl_add_u32 v{vSTl}, v{vT0}, 3, v{vT1}
v_lshl_add_u32 v{vGUl}, v{vG}, 11, v{vC16}
v_mul_u32_u24 v{vT0}, {OC_G}, v{vG}
v_mul_u32_u24 v{vT1}, {OC_H}, v{vC}
s_mul_i32 s{sT0}, s{sWV}, {OC_W}
s_add_u32 s{sT0}, s{sT0}, {OC_L}
v_add3_u32 v{vOCw}, v{vT0}, v{vT1}, s{sT0}
v_and_b32 v{vT1}, 3, v{vC}
v_lshl_add_u32 v{vT0}, v{vT1}, 5, v{vT0}
v_and_b32 v{vT1}, 12, v{vC}
s_mul_i32 s{sT0}, s{sWV}, {OC_H}
s_add_u32 s{sT0}, s{sT0}, {OC_L}
v_add3_u32 v{vOCr}, v{vT0}, v{vT1}, s{sT0}
s_lshl_b32 s{sT0}, s{sWV}, 3
s_add_u32 s{sT0}, s{sT0}, {ML_L}
v_and_b32 v{vT1}, 3, v{vC}
v_lshl_add_u32 v{vMLw}, v{vT1}, 5, s{sT0}
s_lshl_b32 s{sT0}, s{sWV}, 5
s_add_u32 s{sT1}, s{sT0}, {ML_L}
v_mov_b32 v{vMLr}, s{sT1}
s_add_u32 s{sT1}, s{sT0}, {H_L}
v_lshrrev_b32 v{vT0}, 5, v{vLane}
v_lshlrev_b32 v{vT0}, 7, v{vT0}
v_lshl_add_u32 v{vT0}, v{vC}, 1, v{vT0}
v_add_u32 v{vHw}, s{sT1}, v{vT0}
v_mov_b32 v{vT0}, 0x3f803f80
v_accvgpr_write_b32 a{aONE}, v{vT0}
v_accvgpr_write_b32 a{aONE+1}, v{vT0}
v_accvgpr_write_b32 a{aONE+2}, v{vT0}
v_accvgpr_write_b32 a{aONE+3}, v{vT0}
s_mov_b32 s{sSEL0}, 0x05040100
s_mov_b32 s{sSEL1}, 0x07060302
""")
a(f"""s_lshr_b32 s{sT0}, s{sIDX}, 4
s_lshl_b32 s{sT1}, s{sGRP}, 1
s_add_u32 s{sT0}, s{sT0}, s{sT1}
s_lshl_b32 s{sQld}, s{sT0}, 12
s_lshl_b32 s{sOst}, s{sT0}, 14
s_and_b32 s{sT1}, s{sIDX}, 15
s_lshl_b32 s{sT2}, s{sT1}, 10
s_add_u32 s{sOst}, s{sOst}, s{sT2}
s_lshl_b32 s{sT2}, s{sWV}, 8
s_add_u32 s{sOst}, s{sOst}, s{sT2}
s_add_u32 s{sOst}, s{sOst}, {O_OFF}
s_lshl_b32 s{sLst}, s{sT0}, 8
s_lshl_b32 s{sT2}, s{sWV}, 6
s_add_u32 s{sLst}, s{sLst}, s{sT2}
s_lshl_b32 s{sT2}, s{sT1}, 2
s_add_u32 s{sLst}, s{sLst}, s{sT2}
s_add_u32 s{sLst}, s{sLst}, {LSE_OFF}
""")
a(f"""s_lshl_b32 s{sQst}, s{sGRP}, 13
s_lshr_b32 s{sT0}, s{sIDX}, 3
s_lshl_b32 s{sT1}, s{sT0}, 10
s_add_u32 s{sQst}, s{sQst}, s{sT1}
s_and_b32 s{sT1}, s{sIDX}, 7
s_lshl_b32 s{sT2}, s{sT1}, 7
s_add_u32 s{sQst}, s{sQst}, s{sT2}
s_lshl_b32 s{sT2}, s{sWV}, 5
s_add_u32 s{sQst}, s{sQst}, s{sT2}
""")
a(f"""s_and_b32 s{sT2}, s{sWV}, 1
s_lshl_b32 s{sE}, s{sGRP}, 1
s_add_u32 s{sE}, s{sE}, s{sT2}
s_lshl_b32 s{sOld}, s{sE}, 14
s_lshl_b32 s{sE+1}, s{sT0}, 8
s_add_u32 s{sOld}, s{sOld}, s{sE+1}
s_add_u32 s{sOld}, s{sOld}, {O_OFF}
s_lshl_b32 s{sLld}, s{sE}, 8
s_lshl_b32 s{sE+1}, s{sT0}, 6
s_add_u32 s{sLld}, s{sLld}, s{sE+1}
s_add_u32 s{sLld}, s{sLld}, {LSE_OFF}
s_lshl_b32 s{sWOst}, s{sT2}, 16
s_lshl_b32 s{sE}, s{sT1}, 1
s_lshr_b32 s{sE+1}, s{sWV}, 1
s_add_u32 s{sE}, s{sE}, s{sE+1}
s_lshl_b32 s{sE}, s{sE}, 12
s_add_u32 s{sWOst}, s{sWOst}, s{sE}
s_lshl_b32 s{sDNst}, s{sE}, 0
s_lshl_b32 s{sE}, s{sGRP}, 2
s_add_u32 s{sE}, s{sE}, s{sT0}
s_lshl_b32 s{sE}, s{sE}, 7
s_add_u32 s{sWOst}, s{sWOst}, s{sE}
s_add_u32 s{sWOst}, s{sWOst}, {WO_OFF}
s_lshl_b32 s{sFB}, s{sT0}, 3
s_add_u32 s{sFB}, s{sFB}, s{sGRP}
s_lshl_b32 s{sE}, s{sFB}, 7
s_add_u32 s{sDNst}, s{sDNst}, s{sE}
s_lshl_b32 s{sE}, s{sT2}, 6
s_add_u32 s{sDNst}, s{sDNst}, s{sE}
s_add_u32 s{sDNst}, s{sDNst}, {DN_OFF}
s_lshl_b32 s{sGUld}, s{sFB}, 13
s_lshl_b32 s{sE}, s{sWV}, 8
s_add_u32 s{sGUld}, s{sGUld}, s{sE}
s_add_u32 s{sGUld}, s{sGUld}, {GU_OFF}
s_lshl_b32 s{sE}, s{sT1}, 10
s_add_u32 s{sGUst}, s{sGUld}, s{sE}
s_lshl_b32 s{sMld}, s{sIDX}, 12
s_lshl_b32 s{sE}, s{sGRP}, 11
s_lshl_b32 s{sXst}, s{sIDX}, 6
s_add_u32 s{sXst}, s{sXst}, s{sE}
s_lshl_b32 s{sXC}, s{sT1}, 7
s_add_u32 s{sXC}, s{sXC}, s{sE}
s_add_u32 s{sXC}, s{sXC}, {X1_OFF}
s_add_u32 s{sXE}, s{sXE}, s{sE}
s_add_u32 s{sXE}, s{sXE}, {X2_OFF}
s_lshl_b32 s{sSTld}, s{sGRP}, 8
s_and_b32 s{sE}, s{sIDX}, 15
s_lshl_b32 s{sE}, s{sE}, 4
s_lshr_b32 s{sE+1}, s{sIDX}, 4
s_lshl_b32 s{sE+1}, s{sE+1}, 3
s_add_u32 s{sE}, s{sE}, s{sE+1}
s_add_u32 s{sSTst}, s{sSTld}, s{sE}
""")
a("s_waitcnt vmcnt(8)")
ts(1)
S, Qr = 90, 91
a(f"v_mov_b32 v{S}, 0\nv_mov_b32 v{Qr}, 0")
for i in range(8):
    a(f"""v_lshlrev_b32 v{vT0}, 16, v{XS+i}
    v_and_b32 v{vT1}, 0xffff0000, v{XS+i}
    v_add_f32 v{S}, v{S}, v{vT0}
    v_fmac_f32 v{Qr}, v{vT0}, v{vT0}
    v_add_f32 v{S}, v{S}, v{vT1}
    v_fmac_f32 v{Qr}, v{vT1}, v{vT1}""")
a(f"v_lshlrev_b32 v{vX0}, 16, v{vX1}\nv_and_b32 v{vX1}, 0xffff0000, v{vX1}")
a("s_barrier")
trread(aWQ, vTR, WQ_L, 4)
for n in (2, 4, 8):
    dpp("v_add_f32", S, S, S, f"row_ror:{n}"); dpp("v_add_f32", Qr, Qr, Qr, f"row_ror:{n}")
allred_rows("v_add_f32", S, vT0); allred_rows("v_add_f32", Qr, vT0)
stats_finalize(S, Qr, vT0)
a("s_waitcnt lgkmcnt(0)")
for j in range(4): mfma(v4(vCSQ), a4(aWQ+4*j), a4(aONE), 0 if j == 0 else v4(vCSQ))
DE = 60
stage_E_tail(XF, S, Qr, DE, sQst)
a(f"buffer_store_dwordx2 {v2(DE)}, v{vQs}, {srd(WS_)}, s{sQst} offen sc1")
exec_all()
ts(2)
kload(1); kload(5)
a("s_waitcnt vmcnt(8)\ns_barrier")
lna = lab("noarr")
a(f"""s_getreg_b32 s{sT0}, hwreg(HW_REG_XCC_ID)
s_and_b32 s{sT0}, s{sT0}, 7
s_mul_i32 s{sFAST}, s{sT0}, 6
s_cmp_eq_u32 s{sWV}, 0
s_cbranch_scc0 {lna}
s_lshl_b64 s[{sE}:{sE+1}], 1, s{sFAST}
s_add_u32 s{sE+1}, s{sE+1}, 0x10000
v_mov_b32 v{vT0+1}, s{sE}
v_mov_b32 v{vT0+2}, s{sE+1}
s_lshl_b32 s{sT0}, s{sGRP}, 5
s_mov_b64 exec, 1
buffer_atomic_add_x2 {v2(vT0+1)}, off, {srd(DBG_)}, s{sT0} sc1
s_mov_b64 exec, -1
{lna}:""")
kload(2); kload(6); kload(3); kload(7)
vload(0)
CT = 80
a(f"v_and_b32 v{vT0}, 7, v{vLane}\nv_lshlrev_b32 v{vT0}, 5, v{vT0}")
a(f"buffer_load_dwordx2 {v2(CT)}, v{vT0}, {srd(DBG_)}, 0 offen sc1")
vload(1)
lp, ld = lab("bar"), lab("barok")
a(f"""s_waitcnt vmcnt(8)
{lp}:
v_lshrrev_b32 v{vT1}, 16, v{CT+1}
v_cmp_gt_u32 vcc, 32, v{vT1}
s_cbranch_vccz {ld}
buffer_load_dwordx2 {v2(CT)}, v{vT0}, {srd(DBG_)}, 0 offen sc1
s_waitcnt vmcnt(0)
s_sub_u32 s{sTO}, s{sTO}, 1
s_cbranch_scc0 {lp}
s_mov_b32 s{sTO}, 0
{ld}:""")
ts(3)
for j in range(4): a(f"buffer_load_dwordx4 {v4(QF+4*j)}, v{vQl}, {srd(WS_)}, s{sQld} offen offset:{64*j} sc1")
a(f"""v_readlane_b32 s{sT0}, v{CT}, s{sGRP}
v_readlane_b32 s{sT1}, v{CT+1}, s{sGRP}
s_lshl_b64 s[{sE}:{sE+1}], 32, s{sFAST}
s_add_u32 s{sE+1}, s{sE+1}, 0x200000
s_xor_b32 s{sT0}, s{sT0}, s{sE}
s_xor_b32 s{sT1}, s{sT1}, s{sE+1}
s_or_b32 s{sT0}, s{sT0}, s{sT1}
s_cmp_eq_u32 s{sT0}, 0
s_cselect_b32 s{sFAST}, 1, 0""")
vload(2)
a("s_waitcnt vmcnt(8)")
ts(4)
ts_flush(1, 0)
if TS:
    for k in range(1, 5): a(f"v_writelane_b32 v{vTSV}, s{TSB+2*k}, {k}")
a("s_branch L_qk")

a("L_layer:")
until(1)
poll([f"buffer_load_dwordx4 {v4(QF+4*j)}, v{vQl}, {srd(WS_)}, s{sQld} offen offset:{64*j}" for j in range(4)], range(QF, QF+16), ACL)
a("L_qk:")
ts(0)
D = lambda t: DT + 4*t
def xlo(t, X): return [lambda r=r: dpp("v_add_f32", X+r, D(t)+r, D(t)+r, "row_ror:8", 0x3) for r in range(4)]
def xhi(t, X): return [lambda r=r: dpp("v_add_f32", X+r, D(t)+r, D(t)+r, "row_ror:8", 0xc) for r in range(4)]
def zev(Z): return [lambda r=r: dpp("v_add_f32", Z+r, XT+r, XT+r, "row_ror:12", 0x5) for r in range(4)]
def zod(Z): return [lambda r=r: dpp("v_add_f32", Z+r, YT+r, YT+r, "row_ror:4", 0xa) for r in range(4)]
vM, vM2 = ACL, ACL+1
fill = xlo(0, XT) + xhi(2, XT) + zev(ZA) + xlo(1, YT) + xhi(3, YT) + zod(ZA) + \
    [lambda: a(f"v_max3_f32 v{vM}, v{ZA}, v{ZA+1}, v{ZA+2}"), lambda: a(f"v_max_f32 v{vM}, v{ZA+3}, v{vM}")] + \
    xlo(4, XT) + xhi(6, XT) + zev(ZB) + xlo(5, YT) + xhi(7, YT) + zod(ZB)
n = 0
for tau in (0, 2, 1, 3, 4, 6, 5, 7):
    for j in range(4):
        mfma(v4(D(tau)), a4(aK+16*tau+4*j), v4(QF+4*j), 0 if j == 0 else v4(D(tau)))
        n += 1
        if n >= 12:
            fill.pop(0)(); fill.pop(0)()
while fill: fill.pop(0)()
a(f"v_max3_f32 v{vM}, v{ZB}, v{ZB+1}, v{vM}\nv_max3_f32 v{vM}, v{ZB+2}, v{ZB+3}, v{vM}")
dpp("v_max_f32", vM, vM, vM, "row_ror:4"); dpp("v_max_f32", vM, vM, vM, "row_ror:8")
allred_rows("v_max_f32", vM, vM2)
vMX = QF + 12
a(f"v_mov_b32 v{vMX}, v{vM}")
for r in range(8): a(f"v_sub_f32 v{ZA+r}, v{ZA+r}, v{vM}")
for r in range(8): a(f"v_exp_f32 v{ZA+r}, v{ZA+r}")
P = [XT, YT, QF, QF+4]
for r in range(4): a(f"v_cvt_pk_bf16_f32 v{P[0]+r}, v{ZA+2*r}, v{ZA+2*r+1}")
ts(1)
def transpose(t, waits):
    src, dst = VR + 32*(t+1), VR + 32*t
    for p in range(4):
        if waits[p] is not None: a(f"s_waitcnt vmcnt({waits[p]})")
        for q in range(4):
            a(f"v_perm_b32 v{dst+8*q+p}, v{src+8*p+4+q}, v{src+8*p+q}, s{sSEL0}")
            a(f"v_perm_b32 v{dst+8*q+4+p}, v{src+8*p+4+q}, v{src+8*p+q}, s{sSEL1}")
vWr = ZA
for t in range(4):
    ls = lab("skip")
    a(f"s_cmp_eq_u32 s{sLAYER}, 0\ns_cbranch_scc0 {ls}")
    if t == 0:
        vload(3)
        transpose(0, [None]*4)
    elif t == 1:
        transpose(1, [None]*4)
    elif t == 2:
        a(f"""v_lshrrev_b32 v{vWr}, 7, v{vL16}
        v_and_b32 v{vWr+1}, 0x70, v{vL16}
        v_lshl_add_u32 v{vWr}, v{vWr}, 10, v{vWr+1}
        s_lshl_b32 s{sT0}, s{sGRP}, 6
        s_lshr_b32 s{sT1}, s{sIDX}, 3
        s_lshl_b32 s{sT1}, s{sT1}, 4
        s_add_u32 s{sT0}, s{sT0}, s{sT1}
        s_add_u32 s{sT0}, s{sT0}, s{sWV}
        s_lshl_b32 s{sT0}, s{sT0}, 13
        s_and_b32 s{sT1}, s{sIDX}, 7
        s_lshl_b32 s{sT1}, s{sT1}, 7
        s_add_u32 s{sT0}, s{sT0}, s{sT1}""")
        dma(WO_, vWr, sT0, 32*1024, 4, WO_L)
        transpose(2, [12, None, None, None])
    else:
        transpose(3, [10, 8, 6, 4])
    a(f"{ls}:")
    rot = [lambda tt=tt, r=r: dpp("v_mov_b32", P[tt]+r, P[0]+r, None, f"row_ror:{16-4*tt}") for tt in (1, 2, 3) for r in range(4)] if t == 0 else []
    for e in range(8):
        mfma(v4(DT+4*e), v4(VR+32*t+4*e), v4(P[t]), 0 if t == 0 else v4(DT+4*e))
        for _ in range(2):
            if rot: rot.pop(0)()
    mfma(v4(ACL), a4(aONE), v4(P[t]), 0 if t == 0 else v4(ACL))
ts(2)
until(0)
exec_set(0x000f000f, 0x000f000f)
for e in range(8): a(f"ds_write_b128 v{vOCw}, {v4(DT+4*e)} offset:{16*e}")
a(f"ds_write2_b32 v{vMLw}, v{vMX}, v{ACL} offset0:0 offset1:1")
exec_all()
a("s_waitcnt lgkmcnt(0)\ns_barrier")
ML = T; OV = T + 8; FW = T + 16
a(f"ds_read_b128 {v4(ML)}, v{vMLr}\nds_read_b128 {v4(ML+4)}, v{vMLr} offset:16")
for w in range(4):
    a(f"ds_read_b32 v{OV+2*w}, v{vOCr} offset:{w*OC_W}\nds_read_b32 v{OV+2*w+1}, v{vOCr} offset:{w*OC_W+16}")
a(f"""s_waitcnt lgkmcnt(8)
v_max3_f32 v{FW+4}, v{ML}, v{ML+2}, v{ML+4}
v_max_f32 v{FW+4}, v{ML+6}, v{FW+4}""")
for w in range(4): a(f"v_sub_f32 v{FW+w}, v{ML+2*w}, v{FW+4}")
for w in range(4): a(f"v_exp_f32 v{FW+w}, v{FW+w}")
a(f"v_mul_f32 v{FW+5}, v{FW}, v{ML+1}")
for w in range(1, 4): a(f"v_fmac_f32 v{FW+5}, v{FW+w}, v{ML+2*w+1}")
a(f"v_rcp_f32 v{FW+6}, v{FW+5}\nv_log_f32 v{FW+7}, v{FW+5}\ns_waitcnt lgkmcnt(0)")
a(f"v_mul_f32 v{OV}, v{FW}, v{OV}\nv_mul_f32 v{OV+1}, v{FW}, v{OV+1}")
for w in range(1, 4): a(f"v_fmac_f32 v{OV}, v{FW+w}, v{OV+2*w}\nv_fmac_f32 v{OV+1}, v{FW+w}, v{OV+2*w+1}")
a(f"""v_mul_f32 v{OV}, v{FW+6}, v{OV}
v_mul_f32 v{OV+1}, v{FW+6}, v{OV+1}
v_add_f32 v{FW+7}, v{FW+7}, v{FW+4}
v_cvt_pk_bf16_f32 v{OV}, v{OV}, v{OV+1}""")
pub(f"buffer_store_dword v{OV}, v{vL4}, {srd(WS_)}, s{sOst} offen", "s_mov_b64 exec, 1",
    f"buffer_store_dword v{FW+7}, off, {srd(WS_)}, s{sLst}", "s_mov_b64 exec, -1")
ts(3)
ls = lab("skip")
a(f"s_cmp_eq_u32 s{sLAYER}, 0\ns_cbranch_scc0 {ls}")
a(f"""s_and_b32 s{sT0}, s{sWV}, 1
s_lshl_b32 s{sT0}, s{sT0}, 5
v_subrev_u32 v{T}, s{sT0}, v{vTR}
s_waitcnt vmcnt(0)
s_barrier""")
trread(aWO, T, WO_L, 4); trread(aWO+16, T, WO_L+32, 4)
a(f"s_waitcnt lgkmcnt(0)\n{ls}:")
OF = T; LS = T + 16; DB = T + 20; EB = T + 28
poll([f"buffer_load_dwordx4 {v4(OF+4*j)}, v{vOl}, {srd(WS_)}, s{sOld} offen offset:{64*j}" for j in range(4)] +
     [f"buffer_load_dwordx4 {v4(LS)}, v{vG16}, {srd(WS_)}, s{sLld} offen"], range(OF, OF+20), EB)
ts(4)
for j in range(4):
    for t in range(2): mfma(v4(DB+4*t), v4(OF+4*j), a4(aWO+16*t+4*j), 0 if j == 0 else v4(DB+4*t))
ls = lab("skip")
a(f"s_cmp_eq_u32 s{sLAYER}, 0\ns_cbranch_scc0 {ls}\ns_cmp_lt_u32 s{sFB}, 28\ns_cbranch_scc0 {ls}")
vWg = EB + 8
a(f"""v_lshrrev_b32 v{vWg+2}, 7, v{vL16}
v_and_b32 v{vWg+1}, 0x70, v{vL16}
v_mul_u32_u24 v{vWg}, 3584, v{vWg+2}
v_add_u32 v{vWg}, v{vWg}, v{vWg+1}
v_lshl_add_u32 v{vWg+1}, v{vWg+2}, 10, v{vWg+1}
s_and_b32 s{sT1}, s{sIDX}, 7
s_lshl_b32 s{sT0}, s{sT1}, 3
s_add_u32 s{sT0}, s{sT0}, s{sWV}
s_mul_i32 s{sT0}, s{sT0}, {8*3584}
s_lshl_b32 s{sE}, s{sFB}, 7
s_add_u32 s{sT0}, s{sT0}, s{sE}
s_mov_b32 s{sE+1}, s{sT0}""")
dma(WG_, vWg, sT0, 32*3584, 2, WG_L); dma(WU_, vWg, sE+1, 32*3584, 2, WU_L)
a(f"""s_lshl_b32 s{sT0}, s{sFB}, 3
s_add_u32 s{sT0}, s{sT0}, s{sWV}
s_lshl_b32 s{sT0}, s{sT0}, 13
s_lshl_b32 s{sT1}, s{sT1}, 7
s_add_u32 s{sT0}, s{sT0}, s{sT1}""")
dma(WD_, vWg+1, sT0, 32*1024, 2, WD_L)
a(f"{ls}:")
a(f"v_max3_f32 v{EB+4}, v{LS}, v{LS+1}, v{LS+2}\nv_max_f32 v{EB+4}, v{LS+3}, v{EB+4}")
allred_rows("v_max_f32", EB+4, EB+5)
for r in range(4): a(f"v_sub_f32 v{EB+r}, v{LS+r}, v{EB+4}")
for r in range(4): a(f"v_exp_f32 v{EB+r}, v{EB+r}")
a(f"v_add_f32 v{EB+4}, v{EB}, v{EB+1}\nv_add_f32 v{EB+5}, v{EB+2}, v{EB+3}")
a(f"v_mul_f32 v{DB}, v{EB}, v{DB}\nv_mul_f32 v{DB+4}, v{EB}, v{DB+4}\nv_add_f32 v{EB+4}, v{EB+4}, v{EB+5}")
for r in range(1, 4): a(f"v_fmac_f32 v{DB}, v{EB+r}, v{DB+r}\nv_fmac_f32 v{DB+4}, v{EB+r}, v{DB+4+r}")
allred_rows("v_add_f32", EB+4, EB+5)
a(f"""v_permlane16_swap_b32 v{DB}, v{DB+4}
v_rcp_f32 v{EB+4}, v{EB+4}
v_add_f32 v{DB}, v{DB}, v{DB+4}
v_mov_b32 v{DB+4}, v{DB}
v_permlane32_swap_b32 v{DB}, v{DB+4}
v_add_f32 v{DB}, v{DB}, v{DB+4}
v_mul_f32 v{DB}, v{DB}, v{EB+4}
s_mov_b32 exec_hi, 0
buffer_store_dword v{DB}, v{vL4}, {srd(WS_)}, s{sWOst} offen sc1
s_mov_b64 exec, -1""")
ts(5)

def middle(off, xoff, stoff, final):
    M = T
    lsk = lab("nomid")
    a(f"s_cmp_eq_u32 s{sWV}, 0\ns_cbranch_scc0 {lsk}")
    a(f"s_add_u32 s{sT0}, s{sMld}, {off}")
    poll([f"buffer_load_dwordx4 {v4(M+4*u)}, v{vL16}, {srd(WS_)}, s{sT0} offen offset:{1024*u}" for u in range(4)], range(M, M+16), M+16)
    for r in range(4): a(f"v_add_f32 v{M+r}, v{M+r}, v{M+4+r}")
    for r in range(4): a(f"v_add_f32 v{M+8+r}, v{M+8+r}, v{M+12+r}")
    for r in range(4): a(f"v_add_f32 v{M+r}, v{M+r}, v{M+8+r}")
    a(f"""v_permlane32_swap_b32 v{M}, v{M+2}
    v_permlane32_swap_b32 v{M+1}, v{M+3}
    v_add_f32 v{M}, v{M}, v{M+2}
    v_add_f32 v{M+1}, v{M+1}, v{M+3}""")
    dpp("v_add_f32", M, M, M, "row_ror:8"); dpp("v_add_f32", M+1, M+1, M+1, "row_ror:8")
    a(f"""v_mov_b32 v{M+2}, v{M}
    v_mov_b32 v{M+3}, v{M+1}
    v_permlane16_swap_b32 v{M}, v{M+2}
    v_permlane16_swap_b32 v{M+1}, v{M+3}
    v_add_f32 v{vX0}, v{vX0}, v{M}
    v_add_f32 v{vX1}, v{vX1}, v{M+1}
    v_add_f32 v{vX0}, v{vX0}, v{M+2}
    v_add_f32 v{vX1}, v{vX1}, v{M+3}
    s_add_u32 s{sT0}, s{sXst}, {xoff}
    s_add_u32 s{sT1}, s{sSTst}, {stoff}
    v_cvt_pk_bf16_f32 v{M}, v{vX0}, v{vX1}""")
    exec_set(0xff, 0xff)
    if final:
        lnf = lab("notfinal")
        a(f"""s_cmp_eq_u32 s{sLAYER}, 0
        s_cbranch_scc1 {lnf}
        s_lshl_b32 s{sT0}, s{sIDX}, 6
        buffer_store_dword v{M}, v{vXs}, {srd(OUT_)}, s{sT0} offen
        s_mov_b64 exec, -1
        s_branch L_fin
        {lnf}:""")
    pub(f"buffer_store_dword v{M}, v{vXs}, {srd(WS_)}, s{sT0} offen")
    exec_all()
    a(f"""v_lshlrev_b32 v{vX0}, 16, v{M}
    v_and_b32 v{vX1}, 0xffff0000, v{M}
    v_add_f32 v{M+1}, v{vX0}, v{vX1}
    v_mul_f32 v{M+2}, v{vX0}, v{vX0}
    v_fmac_f32 v{M+2}, v{vX1}, v{vX1}
    v_permlane32_swap_b32 v{M+1}, v{M+2}
    v_add_f32 v{M+1}, v{M+1}, v{M+2}""")
    dpp("v_add_f32", M+1, M+1, M+1, "quad_perm:[1,0,3,2]")
    dpp("v_add_f32", M+1, M+1, M+1, "quad_perm:[2,3,0,1]")
    dpp("v_add_f32", M+1, M+1, M+1, "row_ror:4")
    a("s_mov_b32 exec_lo, 1\ns_mov_b32 exec_hi, 1")
    pub(f"buffer_store_dword v{M+1}, v{vXs}, {srd(WS_)}, s{sT1} offen")
    exec_all()
    a(f"{lsk}:")

middle(WO_OFF, X1_OFF, ST1_OFF, False)
ts(6)
ls = lab("skip")
a(f"s_cmp_eq_u32 s{sLAYER}, 0\ns_cbranch_scc0 {ls}\ns_waitcnt vmcnt(0)\n{ls}:\ns_barrier")
DD = T + 24
a(f"s_cmp_lt_u32 s{sFB}, 28\ns_cbranch_scc0 L_noffn")
ls = lab("skip")
a(f"s_cmp_eq_u32 s{sLAYER}, 0\ns_cbranch_scc0 {ls}")
trread(aWG, vTR, WG_L, 2); trread(aWU, vTR, WU_L, 2); trread(aWD, vTR, WD_L, 2)
a("s_waitcnt lgkmcnt(0)")
for j in range(2): mfma(v4(T), a4(aONE), a4(aWG+4*j), 0 if j == 0 else v4(T))
for j in range(2): mfma(v4(T+4), a4(aONE), a4(aWU+4*j), 0 if j == 0 else v4(T+4))
a(f"v_mov_b32 v{vCSG}, v{T}\nv_mov_b32 v{vCSU}, v{T+4}\n{ls}:")
def stats_loads(reg, off):
    return [f"buffer_load_dwordx2 {v2(reg)}, v{vSTl}, {srd(WS_)}, s{sT1} offen", f"buffer_load_dwordx2 {v2(reg+2)}, v{vSTl}, {srd(WS_)}, s{sT1} offen offset:128"]
def stats_reduce(reg):
    a(f"v_add_f32 v{reg}, v{reg}, v{reg+2}\nv_add_f32 v{reg+1}, v{reg+1}, v{reg+3}")
    for n in (2, 4, 8):
        dpp("v_add_f32", reg, reg, reg, f"row_ror:{n}"); dpp("v_add_f32", reg+1, reg+1, reg+1, f"row_ror:{n}")
    stats_finalize(reg, reg+1, reg+2)
XC = T; SC = T + 8; DG = T + 12; DU = T + 16; GO = T + 20
a(f"s_add_u32 s{sT1}, s{sSTld}, {ST1_OFF}")
poll([f"buffer_load_dwordx4 {v4(XC+4*j)}, v{vXl}, {srd(WS_)}, s{sXC} offen offset:{64*j}" for j in range(2)] + stats_loads(SC, ST1_OFF), range(XC, XC+12), DG)
ts(7)
for j in range(2):
    mfma(v4(DG), v4(XC+4*j), a4(aWG+4*j), 0 if j == 0 else v4(DG))
    mfma(v4(DU), v4(XC+4*j), a4(aWU+4*j), 0 if j == 0 else v4(DU))
stats_reduce(SC)
qp = ["quad_perm:[0,0,2,2]", "quad_perm:[1,1,3,3]"]
for i, (cs, b) in enumerate(((vCSG, 0), (vCSG, 1), (vCSU, 0), (vCSU, 1))): dpp("v_mul_f32", GO+i, SC, cs, qp[b])
for i, (d, b) in enumerate(((DG, 0), (DG+1, 1), (DU, 0), (DU+1, 1))): dpp("v_fmac_f32", GO+i, SC+1, d, qp[b])
a("s_mov_b64 exec, 0xffff")
pub(f"buffer_store_dwordx4 {v4(GO)}, v{vC16}, {srd(WS_)}, s{sGUst} offen")
exec_all()
G = T
poll([f"buffer_load_dwordx4 {v4(G+4*u)}, v{vGUl}, {srd(WS_)}, s{sGUld} offen offset:{1024*u}" for u in range(2)], range(G, G+8), G+8)
ts(8)
for r in range(4): a(f"v_add_f32 v{G+r}, v{G+r}, v{G+4+r}")
a(f"""v_permlane32_swap_b32 v{G}, v{G+1}
v_permlane32_swap_b32 v{G+2}, v{G+3}
v_add_f32 v{G}, v{G}, v{G+1}
v_add_f32 v{G+2}, v{G+2}, v{G+3}
v_permlane16_swap_b32 v{G}, v{G+2}
v_add_f32 v{G}, v{G}, v{G+2}
v_mov_b32 v{G+1}, v{G}
v_permlane16_swap_b32 v{G}, v{G+1}
v_max_f32 v{G}, 0, v{G}
v_mul_f32 v{G}, v{G}, v{G+1}
v_cvt_pk_bf16_f32 v{G}, v{G}, v{G}
ds_write_b16 v{vHw}, v{G}
s_waitcnt lgkmcnt(0)
s_barrier
ds_read_b128 {v4(G+4)}, v{vHr}
ds_read_b128 {v4(G+8)}, v{vHr} offset:64
s_waitcnt lgkmcnt(1)""")
mfma(v4(DD), a4(aWD), v4(G+4), 0)
a("s_waitcnt lgkmcnt(0)")
mfma(v4(DD), a4(aWD+4), v4(G+8), v4(DD))
a("L_dpub:")
exec_set(0x00030003, 0x00030003)
a(f"buffer_store_dwordx4 {v4(DD)}, v{vDNs}, {srd(WS_)}, s{sDNst} offen sc1")
exec_all()
ts(9)
lgo = lab("go")
a(f"""s_cmp_eq_u32 s{sLAYER}, 0
s_cbranch_scc1 {lgo}
s_or_b32 s{sT0}, s{sGRP}, s{sWV}
s_cmp_eq_u32 s{sT0}, 0
s_cbranch_scc0 L_fin
{lgo}:""")
middle(DN_OFF, X2_OFF, ST2_OFF, True)
ts(10)
a("s_barrier")
XE = T; SE = T + 16; DE = T + 20
a(f"s_add_u32 s{sT1}, s{sSTld}, {ST2_OFF}")
poll([f"buffer_load_dwordx4 {v4(XE+4*j)}, v{vXl}, {srd(WS_)}, s{sXE} offen offset:{64*j}" for j in range(4)] + stats_loads(SE, ST2_OFF), range(XE, XE+20), DE)
ts(11)
for j in range(4): mfma(v4(DE), a4(aWQ+4*j), v4(XE+4*j), 0 if j == 0 else v4(DE))
stats_reduce(SE)
a(f"v_mul_f32 v{SE}, {f2u(QSCALE):#x}, v{SE}\nv_mul_f32 v{SE+1}, {f2u(QSCALE):#x}, v{SE+1}")
for r in range(4): a(f"v_mul_f32 v{DE+4+r}, v{SE}, v{vCSQ+r}")
for r in range(4): a(f"v_fmac_f32 v{DE+4+r}, v{SE+1}, v{DE+r}")
a(f"""v_cvt_pk_bf16_f32 v{DE}, v{DE+4}, v{DE+5}
v_cvt_pk_bf16_f32 v{DE+1}, v{DE+6}, v{DE+7}
s_add_u32 s{WS_}, s{WS_}, {LSTR}
s_addc_u32 s{WS_+1}, s{WS_+1}, 0
s_mov_b32 s{sLAYER}, 1""")
exec_set(0x00030003, 0x00030003)
pub(f"buffer_store_dwordx2 {v2(DE)}, v{vQs}, {srd(WS_)}, s{sQst} offen")
exec_all()
ts_flush(8, 12)
a("s_branch L_layer")
a("L_noffn:")
for r in range(4): a(f"v_mov_b32 v{DD+r}, 0")
a("s_branch L_dpub")
for ls, lb, st in slow_blocks:
    a(f"{ls}:")
    for s in st: a(s)
    a(f"s_branch {lb}")
a("L_fin:")
until(2)
if opt["dly"]:
    a(f"s_mov_b32 s{sT0}, {opt['dly']}\nL_dly:\ns_nop 15\ns_nop 15\ns_nop 15\ns_nop 15\ns_sub_u32 s{sT0}, s{sT0}, 1\ns_cbranch_scc0 L_dly")
if TS:
    ts(11)
    ts_flush(24, 12)
    a(f"""v_writelane_b32 v{vTSV}, s{sFAST}, 40
    v_writelane_b32 v{vTSV}, s{sTO}, 41
    s_lshl_b32 s{sT0}, s2, 2
    s_add_u32 s{sT0}, s{sT0}, s{sWV}
    s_lshl_b32 s{sT0}, s{sT0}, 8
    s_add_u32 s{sT0}, s{sT0}, {TS_OFF - LSTR}
    buffer_store_dword v{vTSV}, v{vL4}, {srd(WS_)}, s{sT0} offen""")
    if opt["dbgts"]:
        sel = [int(x) for x in opt["dbgts"].split(",")]
        a(f"s_or_b32 s{sT0}, s2, s{sWV}\ns_cmp_eq_u32 s{sT0}, 0\ns_cbranch_scc0 L_end\nv_readlane_b32 s{sT1}, v{vTSV}, 0\nv_mov_b32 v{T}, 0")
        for pos, k in zip([2,3,4,5,6,7,10,11,12,13,14,15], sel):
            a(f"v_readlane_b32 s{sT0}, v{vTSV}, {k}\ns_sub_u32 s{sT0}, s{sT0}, s{sT1}\nv_writelane_b32 v{T}, s{sT0}, {pos}")
        a(f"s_mov_b64 exec, 0xfcfc\nbuffer_store_dword v{T}, v{vL4}, {srd(DBG_)}, 0 offen sc1")
a("L_end:\ns_endpgm")

body = a.finalize()
kn = opt["name"]
ref = open("cdna_kernels/" + NAME + ".s.ref").read().split("\n")
head = [l for l in ref if l.startswith(";") and "@launch" not in l and "Override launch" not in l and "grid=ceil" not in l]
head = head[:13]
src = "\n".join(head) + f"""
; One persistent launch, one workgroup per CU: K/V stay in registers for both layers, weight tiles in AGPRs.
; @launch grid=(256,1,1) block=(256,1,1) lds={LDS_BYTES}
.amdgcn_target "amdgcn-amd-amdhsa--gfx950"
.text
.globl {kn}
.p2align 8
.type {kn},@function
{kn}:
{body}
.section .rodata,"a"
.p2align 6
.amdhsa_kernel {kn}
  .amdhsa_next_free_vgpr 512
  .amdhsa_next_free_sgpr 102
  .amdhsa_accum_offset 256
  .amdhsa_group_segment_fixed_size 0
  .amdhsa_kernarg_size 96
  .amdhsa_user_sgpr_count 2
  .amdhsa_user_sgpr_kernarg_segment_ptr 1
  .amdhsa_system_sgpr_workgroup_id_x 1
.end_amdhsa_kernel
"""
open(out_path, "w").write(src)
print("nops inserted:", a.nops, "lines:", len(body.split("\n")), file=sys.stderr)
```

```python
import sys, math, struct
from asmlib import Asm

NAME = "interleave_layers__gqa_block_cached__glu_gated_reglu__decode"
opt = dict(kvnt="nt", wnt="none", ts=0, fast=1, tobits=20, name=NAME+"_kernel", dly=0, until=0, upos=0, dbgts="", pre=3, kpat=2, arr="satomic", arrw=0, mack=1, mslp=4, wopos=4, norst=0, nobar=0, noq0=0)
out_path = sys.argv[1]
for x in sys.argv[2:]:
    k, v = x.split("=")
    opt[k] = v if k in ("kvnt", "wnt", "name", "dbgts", "arr") else int(v)
fl = lambda s: "" if s == "none" else " " + s.replace("+", " ")
KVNT = fl(opt["kvnt"]); WNT = fl(opt["wnt"])
TS = opt["ts"]

def f2u(x): return struct.unpack("<I", struct.pack("<f", x))[0]

LSTR = 0xE0000
GR = 0x14000
O_OFF, GU_OFF, X1_OFF, LSE_OFF, ST1_OFF = 0x0, 0x8000, 0x10000, 0x10800, 0x10A00
X2_OFF, ST2_OFF, Q_OFF = 0x11000, 0x11800, 0x12000
WO_OFF, DN_OFF = 0xA0000, 0xC0000
Q0_OFF = 0x200000
TS_OFF = 0x600000
WS_SIZE = 0x800000
WQ_L, WO_L, WG_L, WU_L, WD_L = 0, 16384, 32768, 40960, 49152
OC_L = 57344; OC_W = 2368; OC_G = 592; OC_H = 144
ML_L = OC_L + 4*OC_W
H_L = ML_L + 128
LDS_BYTES = H_L + 256
sWV, sGRP, sIDX, sLAYER, sFAST, sTO = 3, 4, 5, 6, 7, 76
K_, V_, WS_, WQ_, WO_, WG_, WU_, WD_, X_, OUT_, DBG_ = 8, 12, 16, 20, 24, 28, 32, 36, 40, 44, 48
def srd(n): return f"s[{n}:{n+3}]"
sKV, sQld, sQst, sOst, sLst, sOld, sLld, sWOst = 77, 78, 79, 80, 81, 82, 83, 84
sMld, sXst, sSTst, sXC, sXE, sSTld, sGUst, sGUld, sDNst, sFB = 85, 86, 87, 88, 89, 90, 91, 92, 93, 94
sT0, sT1, sT2, sSEL0, sSEL1 = 95, 96, 97, 98, 99
sE = 100
TSB = 52
vL16, vL4, vOs, vOl, vXl, vC16, vG16, vQs, vDNs, vGUl, vXs = 0, 1, 2, 3, 4, 5, 6, 7, 8, 9, 10
vOCw, vOCr, vMLw, vMLr, vHw, vHr, vTR, vSTl = 11, 12, 13, 14, 15, 16, 17, 18
vX0, vX1 = 19, 20
vCSG, vCSU = 21, 22
vTSV = 23
vCSQ = 24
T = 28
QF = 28
DT = 44
ACL = 76
XT, YT = 80, 84
ZA, ZB = 88, 92
VR = 96
def v4(n): return f"v[{n}:{n+3}]"
def v2(n): return f"v[{n}:{n+1}]"
def a4(n): return f"a[{n}:{n+3}]"
aK, aWQ, aWO, aWG, aWU, aWD, aONE = 0, 128, 144, 176, 184, 192, 200

a = Asm()
slow_blocks = []
uid = [0]
def lab(p):
    uid[0] += 1
    return f"L_{p}_{uid[0]}"

def exec_set(lo, hi):
    if lo == 0xffffffff and hi == 0xffffffff: a("s_mov_b64 exec, -1")
    elif hi == 0 and lo <= 64: a(f"s_mov_b64 exec, {lo}")
    else: a(f"s_mov_b32 exec_lo, {lo:#x}\ns_mov_b32 exec_hi, {hi:#x}")
def exec_all(): a("s_mov_b64 exec, -1")

def pub(*stores):
    if not opt["fast"]:
        for s in stores: a(s + (" sc1" if s.startswith("buffer") else ""))
        return
    ls, lb = lab("slow"), lab("back")
    a(f"s_cmp_eq_u32 s{sFAST}, 1\ns_cbranch_scc0 {ls}")
    for s in stores: a(s)
    a(f"{lb}:")
    slow_blocks.append((ls, lb, [s + (" sc1" if s.startswith("buffer") else "") for s in stores]))

def poll(loads, regs, tmp):
    lp, ld = lab("poll"), lab("got")
    a(f"{lp}:")
    for l in loads: a(l + " sc1")
    a("s_waitcnt vmcnt(0)")
    r = list(regs)
    a(f"v_max3_u32 v{tmp}, v{r[0]}, v{r[1]}, v{r[2]}"); r = r[3:]
    while len(r) >= 2:
        a(f"v_max3_u32 v{tmp}, v{r[0]}, v{r[1]}, v{tmp}"); r = r[2:]
    if r: a(f"v_max_u32 v{tmp}, v{r[0]}, v{tmp}")
    a(f"""v_cmp_eq_u32 vcc, -1, v{tmp}
    s_cbranch_vccz {ld}
    s_mov_b64 exec, vcc
    s_sub_u32 s{sTO}, s{sTO}, 1
    s_cbranch_scc0 {lp}
    s_mov_b32 s{sTO}, 0
    {ld}:
    s_mov_b64 exec, -1""")

def until(pos):
    if opt["until"] and opt["upos"] == pos:
        a(f"v_readfirstlane_b32 s54, v23\nL_until:\ns_memrealtime s[52:53]\ns_waitcnt lgkmcnt(0)\ns_sub_u32 s52, s52, s54\ns_cmp_lt_u32 s52, {opt['until']}\ns_cbranch_scc1 L_until")
tsn = [0]
def ts(k):
    if TS: a(f"s_memtime s[{TSB+2*k}:{TSB+2*k+1}]")
def ts_flush(base, n):
    if TS:
        a("s_waitcnt lgkmcnt(0)")
        for k in range(n): a(f"v_writelane_b32 v{vTSV}, s{TSB+2*k}, {base+k}")

def mk_srd(d, lo, size):
    a(f"s_mov_b32 s{d}, s{lo}\ns_and_b32 s{d+1}, s{lo+1}, 0xffff\ns_mov_b32 s{d+2}, {size:#x}\ns_mov_b32 s{d+3}, 0x20000")

def mfma(d, A, B, c):
    a(f"v_mfma_f32_16x16x32_bf16 {d}, {A}, {B}, {c}")
def dpp(op, d, s0, s1, ctrl, bank=0xf):
    if s1 is None: a(f"{op}_dpp v{d}, v{s0} {ctrl} row_mask:0xf bank_mask:{bank:#x}")
    else: a(f"{op}_dpp v{d}, v{s0}, v{s1} {ctrl} row_mask:0xf bank_mask:{bank:#x}")
def allred_rows(op, r, t):
    a(f"v_mov_b32 v{t}, v{r}\nv_permlane16_swap_b32 v{r}, v{t}\n{op} v{r}, v{r}, v{t}")
    a(f"v_mov_b32 v{t}, v{r}\nv_permlane32_swap_b32 v{r}, v{t}\n{op} v{r}, v{r}, v{t}")

def dma(srdn, voff, sbase, step, n, ldsbase):
    for i in range(n):
        a(f"s_lshl_b32 s{sT2}, s{sWV}, 10\ns_add_u32 m0, s{sT2}, {ldsbase + i*4096}")
        if i: a(f"s_add_u32 s{sbase}, s{sbase}, {step}")
        a(f"buffer_load_dwordx4 v{voff}, {srd(srdn)}, s{sbase} offen{WNT} lds")

def trread(areg, vaddr, ldsoff, ksteps):
    for j in range(ksteps):
        for u in range(2):
            a(f"ds_read_b64_tr_b16 a[{areg+4*j+2*u}:{areg+4*j+2*u+1}], v{vaddr} offset:{ldsoff + (32*j+4*u)*128}")

def stats_finalize(S, Q, t):
    a(f"""v_mul_f32 v{S}, {f2u(-1/512):#x}, v{S}
    v_mul_f32 v{Q}, {f2u(1/512):#x}, v{Q}
    v_fma_f32 v{Q}, -v{S}, v{S}, v{Q}
    v_max_f32 v{Q}, 0, v{Q}
    v_add_f32 v{Q}, {f2u(1e-5):#x}, v{Q}
    v_rsq_f32 v{Q}, v{Q}
    v_mul_f32 v{S}, v{S}, v{Q}""")

QSCALE = math.log2(math.e) / math.sqrt(128.0)

def stage_E_tail(XF, S, Q, D, soff):
    for j in range(4): mfma(v4(D), a4(aWQ+4*j), v4(XF+4*j), 0 if j == 0 else v4(D))
    a(f"v_mul_f32 v{S}, {f2u(QSCALE):#x}, v{S}\nv_mul_f32 v{Q}, {f2u(QSCALE):#x}, v{Q}")
    for r in range(4): a(f"v_mul_f32 v{D+4+r}, v{S}, v{vCSQ+r}")
    exec_set(0x00030003, 0x00030003)
    for r in range(4): a(f"v_fmac_f32 v{D+4+r}, v{Q}, v{D+r}")
    a(f"v_cvt_pk_bf16_f32 v{D}, v{D+4}, v{D+5}\nv_cvt_pk_bf16_f32 v{D+1}, v{D+6}, v{D+7}")

ts(0)
if opt["until"]: a("s_memrealtime s[52:53]\ns_waitcnt lgkmcnt(0)\nv_mov_b32 v23, s52")
a(f"""s_cmp_ge_u32 s2, 256
s_cbranch_scc1 L_end
s_load_dwordx16 s[52:67], s[0:1], 0
s_load_dwordx8 s[68:75], s[0:1], 64""" if not TS else f"""s_cmp_ge_u32 s2, 256
s_cbranch_scc1 L_end
s_memrealtime s[54:55]
s_waitcnt lgkmcnt(0)
s_mov_b32 s{sTO}, s{TSB}
s_mov_b32 s{sKV}, s54
s_load_dwordx16 s[52:67], s[0:1], 0
s_load_dwordx8 s[68:75], s[0:1], 64
v_mov_b32 v{vTSV}, 0
v_writelane_b32 v{vTSV}, s{sTO}, 0
v_writelane_b32 v{vTSV}, s{sKV}, 42""")
vLane, vC, vG, vK, vW, vT0, vT1 = 30, 31, 32, 33, 34, 35, 36
a(f"""v_lshrrev_b32 v{vT0}, 6, v0
v_and_b32 v{vLane}, 63, v0
v_readfirstlane_b32 s{sWV}, v{vT0}
s_and_b32 s{sGRP}, s2, 7
s_lshr_b32 s{sIDX}, s2, 3
s_mov_b32 s{sLAYER}, 0
s_mov_b32 s{sTO}, {1 << opt['tobits']:#x}
v_and_b32 v{vC}, 15, v{vLane}
v_lshrrev_b32 v{vG}, 4, v{vLane}
v_lshlrev_b32 v{vL16}, 4, v{vLane}
v_lshlrev_b32 v{vG16}, 4, v{vG}
v_and_b32 v{vT0}, 1, v{vC}
v_lshl_add_u32 v{vXl}, v{vT0}, 10, v{vG16}
v_lshrrev_b32 v{vT0}, 3, v{vLane}
v_and_b32 v{vT1}, 7, v{vLane}
v_lshlrev_b32 v{vT1}, 4, v{vT1}
v_lshl_add_u32 v{vW}, v{vT0}, 13, v{vT1}
""")
if opt["kpat"] == 1:
    a(f"""v_and_b32 v{vT0}, 3, v{vC}
    v_lshrrev_b32 v{vT1}, 2, v{vC}
    v_lshl_add_u32 v{vT0}, v{vT0}, 2, v{vT1}
    v_lshl_add_u32 v{vK}, v{vT0}, 8, v{vG16}""")
else:
    a(f"""v_and_b32 v{vT0}, 3, v{vC}
    v_bfe_u32 v{vT1}, v{vC}, 2, 1
    v_lshl_add_u32 v{vT0}, v{vT0}, 2, v{vT1}
    v_lshl_add_u32 v{vK}, v{vT0}, 8, v{vG16}
    v_lshrrev_b32 v{vT0}, 3, v{vC}
    v_lshl_add_u32 v{vK}, v{vT0}, 6, v{vK}""")
a(f"""s_lshr_b32 s{sT0}, s{sIDX}, 4
s_lshl_b32 s{sT0}, s{sT0}, 3
s_add_u32 s{sT0}, s{sT0}, s{sGRP}
s_lshl_b32 s{sKV}, s{sT0}, 21
s_and_b32 s{sT0}, s{sIDX}, 15
s_lshl_b32 s{sT0}, s{sT0}, 17
s_add_u32 s{sKV}, s{sKV}, s{sT0}
s_lshl_b32 s{sT0}, s{sWV}, 13
s_add_u32 s{sKV}, s{sKV}, s{sT0}
s_lshr_b32 s{sT0}, s{sIDX}, 3
s_lshl_b32 s{sXE}, s{sT0}, 8
s_lshl_b32 s{sT0}, s{sT0}, 4
s_add_u32 s{sT0}, s{sT0}, s{sWV}
s_lshl_b32 s{sT0}, s{sT0}, 16
s_lshl_b32 s{sT1}, s{sGRP}, 10
s_add_u32 s{sT0}, s{sT0}, s{sT1}
s_and_b32 s{sT1}, s{sIDX}, 7
s_lshl_b32 s{sT1}, s{sT1}, 7
s_add_u32 s{sT0}, s{sT0}, s{sT1}
s_mul_i32 s{sT1}, s{sGRP}, {GR}
s_mul_i32 s{sT2}, s{sIDX}, 2176
s_add_u32 s{sT1}, s{sT1}, s{sT2}
s_lshl_b32 s{sT2}, s{sWV}, 10
s_add_u32 s{sT1}, s{sT1}, s{sT2}
s_lshl_b32 s{sT2}, s2, 9
s_add_u32 s{sT2}, s{sT2}, {WO_OFF}
s_cmp_eq_u32 s{sWV}, 3
s_cselect_b32 s{sT1}, s{sT2}, s{sT1}
s_cselect_b32 s{sE}, -1, 0xff
s_cmp_lt_u32 s{sWV}, 2
s_cselect_b32 s{sE}, -1, s{sE}
s_cselect_b32 s{sE+1}, -1, 0
""")
vSX = 37; XS = 80; XF = QF + 16
RST = 88
a(f"""v_lshrrev_b32 v{vT0}, 1, v{vC}
v_lshl_add_u32 v{vT0}, v{vT0}, 2, v{vG}
v_lshlrev_b32 v{vT0}, 5, v{vT0}
v_and_b32 v{vT1}, 1, v{vC}
v_lshl_add_u32 v{vSX}, v{vT1}, 10, v{vT0}
v_mov_b32 v{RST}, -1
v_mov_b32 v{RST+1}, -1
v_mov_b32 v{RST+2}, -1
v_mov_b32 v{RST+3}, -1
v_and_b32 v{vT0}, 7, v{vLane}
v_lshlrev_b32 v{vT0}, 3, v{vT0}
v_lshrrev_b32 v{vT1}, 5, v{vLane}
v_lshl_add_u32 v{vXs}, v{vT1}, 2, v{vT0}
s_waitcnt lgkmcnt(0)""")
mk_srd(WQ_, 58, 512*8192)
dma(WQ_, vW, sT0, 32*8192, 4, WQ_L)
mk_srd(X_, 52, 2048)
for j in range(4): a(f"buffer_load_dwordx4 {v4(XF+4*j)}, v{vXl}, {srd(X_)}, s{sXE} offen offset:{64*j}")
a(f"buffer_load_dwordx4 {v4(XS)}, v{vSX}, {srd(X_)}, 0 offen\nbuffer_load_dwordx4 {v4(XS+4)}, v{vSX}, {srd(X_)}, 0 offen offset:16")
a(f"s_lshl_b32 s{sT0}, s{sIDX}, 6\nbuffer_load_dword v{vX1}, v{vXs}, {srd(X_)}, s{sT0} offen")
mk_srd(WS_, 74, WS_SIZE)
if not opt["norst"]: a(f"""s_mov_b64 exec, s[{sE}:{sE+1}]
buffer_store_dwordx4 {v4(RST)}, v{vL16}, {srd(WS_)}, s{sT1} offen sc1
s_mov_b64 exec, -1""")
mk_srd(K_, 54, 0x2000000)
def kload(t):
    for hi in range(2):
        tau = t + 4*hi
        a(f"s_add_u32 s{sT0}, s{sKV}, {t*32768 + hi*4096}")
        for j in range(4):
            if opt["kpat"] == 1: a(f"buffer_load_dwordx4 {a4(aK+16*tau+4*j)}, v{vK}, {srd(K_)}, s{sT0} offen offset:{64*j}{KVNT}")
            else: a(f"buffer_load_dwordx4 {v4(VR+32*(t+1)+16*hi+4*j)}, v{vK}, {srd(K_)}, s{sT0} offen offset:{128*(j>>1)+512*(j&1)}{KVNT}")
def kfix(t, wait):
    if opt["kpat"] == 1: return
    if wait is not None: a(f"s_waitcnt vmcnt({wait})")
    for hi in range(2):
        for hf in range(2):
            A = VR + 32*(t+1) + 16*hi + 8*hf; B = A + 4; dst = aK + 16*(t+4*hi) + 8*hf
            for r in range(4): a(f"v_mov_b32 v{VR+r}, v{A+r}")
            for r in range(4): dpp("v_mov_b32", VR+r, B+r, None, "row_ror:8", 0xc)
            for r in range(4): dpp("v_mov_b32", B+r, A+r, None, "row_ror:8", 0x3)
            for r in range(4): a(f"v_accvgpr_write_b32 a{dst+r}, v{VR+r}")
            for r in range(4): a(f"v_accvgpr_write_b32 a{dst+4+r}, v{B+r}")
def vload(t):
    for i in range(8):
        if i % 4 == 0: a(f"s_add_u32 s{sT0}, s{sKV}, {t*32768 + (i>>2)*4096}")
        a(f"buffer_load_dwordx4 {v4(VR+32*(t+1)+4*i)}, v{vL16}, {srd(V_)}, s{sT0} offen offset:{1024*(i&3)}{KVNT}")
kload(0)
mk_srd(V_, 56, 0x2000000); mk_srd(WO_, 60, 4096*1024); mk_srd(WG_, 64, 512*3584); mk_srd(WU_, 66, 512*3584)
mk_srd(WD_, 68, 1792*1024); mk_srd(OUT_, 70, 2048); mk_srd(DBG_, 72, 256)
a(f"""v_lshlrev_b32 v{vL4}, 2, v{vLane}
v_lshlrev_b32 v{vC16}, 4, v{vC}
v_lshl_add_u32 v{vOl}, v{vC}, 6, v{vG16}
v_lshlrev_b32 v{vT0}, 2, v{vC}
v_lshl_add_u32 v{vOs}, v{vG}, 10, v{vT0}
v_lshrrev_b32 v{vT0}, 2, v{vC}
v_lshl_add_u32 v{vT0}, v{vG}, 3, v{vT0}
v_lshlrev_b32 v{vTR}, 7, v{vT0}
v_and_b32 v{vT0}, 3, v{vC}
v_lshl_add_u32 v{vTR}, v{vT0}, 3, v{vTR}
s_lshl_b32 s{sT0}, s{sWV}, 5
v_add_u32 v{vTR}, s{sT0}, v{vTR}
v_and_b32 v{vT0}, 1, v{vC}
v_lshlrev_b32 v{vT1}, 3, v{vG}
v_lshl_add_u32 v{vQs}, v{vT0}, 12, v{vT1}
v_lshl_add_u32 v{vDNs}, v{vT0}, 16, v{vG16}
v_lshl_add_u32 v{vHr}, v{vT0}, 7, v{vG16}
v_add_u32 v{vHr}, {H_L}, v{vHr}
v_lshrrev_b32 v{vT1}, 1, v{vC}
v_lshlrev_b32 v{vT1}, 4, v{vT1}
v_lshl_add_u32 v{vSTl}, v{vT0}, 3, v{vT1}
v_lshl_add_u32 v{vGUl}, v{vG}, 11, v{vC16}
v_mul_u32_u24 v{vT0}, {OC_G}, v{vG}
v_mul_u32_u24 v{vT1}, {OC_H}, v{vC}
s_mul_i32 s{sT0}, s{sWV}, {OC_W}
s_add_u32 s{sT0}, s{sT0}, {OC_L}
v_add3_u32 v{vOCw}, v{vT0}, v{vT1}, s{sT0}
v_and_b32 v{vT1}, 3, v{vC}
v_lshl_add_u32 v{vT0}, v{vT1}, 5, v{vT0}
v_and_b32 v{vT1}, 12, v{vC}
s_mul_i32 s{sT0}, s{sWV}, {OC_H}
s_add_u32 s{sT0}, s{sT0}, {OC_L}
v_add3_u32 v{vOCr}, v{vT0}, v{vT1}, s{sT0}
s_lshl_b32 s{sT0}, s{sWV}, 3
s_add_u32 s{sT0}, s{sT0}, {ML_L}
v_and_b32 v{vT1}, 3, v{vC}
v_lshl_add_u32 v{vMLw}, v{vT1}, 5, s{sT0}
s_lshl_b32 s{sT0}, s{sWV}, 5
s_add_u32 s{sT1}, s{sT0}, {ML_L}
v_mov_b32 v{vMLr}, s{sT1}
s_add_u32 s{sT1}, s{sT0}, {H_L}
v_lshrrev_b32 v{vT0}, 5, v{vLane}
v_lshlrev_b32 v{vT0}, 7, v{vT0}
v_lshl_add_u32 v{vT0}, v{vC}, 1, v{vT0}
v_add_u32 v{vHw}, s{sT1}, v{vT0}
v_mov_b32 v{vT0}, 0x3f803f80
v_accvgpr_write_b32 a{aONE}, v{vT0}
v_accvgpr_write_b32 a{aONE+1}, v{vT0}
v_accvgpr_write_b32 a{aONE+2}, v{vT0}
v_accvgpr_write_b32 a{aONE+3}, v{vT0}
""")
sGB = sMld
a(f"""s_mul_i32 s{sGB}, s{sGRP}, {GR}
s_lshr_b32 s{sT0}, s{sIDX}, 4
s_lshl_b32 s{sQld}, s{sT0}, 12
s_lshl_b32 s{sOst}, s{sT0}, 14
s_and_b32 s{sT1}, s{sIDX}, 15
s_lshl_b32 s{sT2}, s{sT1}, 6
s_add_u32 s{sOst}, s{sOst}, s{sT2}
s_lshl_b32 s{sT2}, s{sWV}, 12
s_add_u32 s{sOst}, s{sOst}, s{sT2}
s_add_u32 s{sOst}, s{sOst}, {O_OFF}
s_add_u32 s{sOst}, s{sOst}, s{sGB}
s_lshl_b32 s{sLst}, s{sT0}, 8
s_lshl_b32 s{sT2}, s{sWV}, 6
s_add_u32 s{sLst}, s{sLst}, s{sT2}
s_lshl_b32 s{sT2}, s{sT1}, 2
s_add_u32 s{sLst}, s{sLst}, s{sT2}
s_add_u32 s{sLst}, s{sLst}, {LSE_OFF}
s_add_u32 s{sLst}, s{sLst}, s{sGB}
s_lshl_b32 s{sT2}, s{sT1}, 4
s_lshl_b32 s{sT0}, s{sT0}, 3
s_add_u32 s{sSTst}, s{sT2}, s{sT0}
s_add_u32 s{sSTst}, s{sSTst}, s{sGB}
s_mov_b32 s{sSTld}, s{sGB}
""")
a(f"""s_lshr_b32 s{sT0}, s{sIDX}, 3
s_lshl_b32 s{sQst}, s{sT0}, 8
s_and_b32 s{sT1}, s{sIDX}, 7
s_lshr_b32 s{sT2}, s{sT1}, 1
s_lshl_b32 s{sT2}, s{sT2}, 6
s_add_u32 s{sQst}, s{sQst}, s{sT2}
s_and_b32 s{sT2}, s{sT1}, 1
s_lshl_b32 s{sT2}, s{sT2}, 11
s_add_u32 s{sQst}, s{sQst}, s{sT2}
s_lshr_b32 s{sT2}, s{sWV}, 1
s_lshl_b32 s{sT2}, s{sT2}, 10
s_add_u32 s{sQst}, s{sQst}, s{sT2}
s_and_b32 s{sT2}, s{sWV}, 1
s_lshl_b32 s{sT2}, s{sT2}, 5
s_add_u32 s{sQst}, s{sQst}, s{sT2}
""")
a(f"""s_and_b32 s{sT2}, s{sWV}, 1
s_lshl_b32 s{sOld}, s{sT2}, 14
s_lshl_b32 s{sE+1}, s{sT0}, 12
s_add_u32 s{sOld}, s{sOld}, s{sE+1}
s_add_u32 s{sOld}, s{sOld}, {O_OFF}
s_add_u32 s{sOld}, s{sOld}, s{sGB}
s_lshl_b32 s{sLld}, s{sT2}, 8
s_lshl_b32 s{sE+1}, s{sT0}, 6
s_add_u32 s{sLld}, s{sLld}, s{sE+1}
s_add_u32 s{sLld}, s{sLld}, {LSE_OFF}
s_add_u32 s{sLld}, s{sLld}, s{sGB}
s_lshl_b32 s{sWOst}, s{sT2}, 16
s_lshl_b32 s{sE}, s{sT1}, 1
s_lshr_b32 s{sE+1}, s{sWV}, 1
s_add_u32 s{sE}, s{sE}, s{sE+1}
s_lshl_b32 s{sE}, s{sE}, 12
s_add_u32 s{sWOst}, s{sWOst}, s{sE}
s_lshl_b32 s{sDNst}, s{sE}, 0
s_lshl_b32 s{sE}, s{sGRP}, 2
s_add_u32 s{sE}, s{sE}, s{sT0}
s_lshl_b32 s{sE}, s{sE}, 7
s_add_u32 s{sWOst}, s{sWOst}, s{sE}
s_add_u32 s{sWOst}, s{sWOst}, {WO_OFF}
s_lshl_b32 s{sFB}, s{sT0}, 3
s_add_u32 s{sFB}, s{sFB}, s{sGRP}
s_lshl_b32 s{sE}, s{sFB}, 7
s_add_u32 s{sDNst}, s{sDNst}, s{sE}
s_lshl_b32 s{sE}, s{sT2}, 6
s_add_u32 s{sDNst}, s{sDNst}, s{sE}
s_add_u32 s{sDNst}, s{sDNst}, {DN_OFF}
s_lshl_b32 s{sGUld}, s{sT0}, 13
s_lshl_b32 s{sE}, s{sWV}, 8
s_add_u32 s{sGUld}, s{sGUld}, s{sE}
s_add_u32 s{sGUld}, s{sGUld}, {GU_OFF}
s_add_u32 s{sGUld}, s{sGUld}, s{sGB}
s_lshl_b32 s{sE}, s{sT1}, 10
s_add_u32 s{sGUst}, s{sGUld}, s{sE}
s_lshl_b32 s{sXst}, s{sIDX}, 6
s_add_u32 s{sXst}, s{sXst}, s{sGB}
s_lshl_b32 s{sXC}, s{sT1}, 7
s_add_u32 s{sXC}, s{sXC}, s{sGB}
s_add_u32 s{sXC}, s{sXC}, {X1_OFF}
s_add_u32 s{sXE}, s{sXE}, s{sGB}
s_add_u32 s{sXE}, s{sXE}, {X2_OFF}
s_lshl_b32 s{sMld}, s{sIDX}, 12
s_lshl_b32 s{sSEL0}, s{sGRP}, 18
s_add_u32 s{sSEL0}, s{sSEL0}, {Q0_OFF}
""")
a("s_waitcnt vmcnt(8)")
ts(1)
S, Qr = 90, 91
a(f"v_mov_b32 v{S}, 0\nv_mov_b32 v{Qr}, 0")
for i in range(8):
    a(f"""v_lshlrev_b32 v{vT0}, 16, v{XS+i}
    v_and_b32 v{vT1}, 0xffff0000, v{XS+i}
    v_add_f32 v{S}, v{S}, v{vT0}
    v_fmac_f32 v{Qr}, v{vT0}, v{vT0}
    v_add_f32 v{S}, v{S}, v{vT1}
    v_fmac_f32 v{Qr}, v{vT1}, v{vT1}""")
a(f"v_lshlrev_b32 v{vX0}, 16, v{vX1}\nv_and_b32 v{vX1}, 0xffff0000, v{vX1}")
a("s_barrier")
trread(aWQ, vTR, WQ_L, 4)
for n in (2, 4, 8):
    dpp("v_add_f32", S, S, S, f"row_ror:{n}"); dpp("v_add_f32", Qr, Qr, Qr, f"row_ror:{n}")
allred_rows("v_add_f32", S, vT0); allred_rows("v_add_f32", Qr, vT0)
stats_finalize(S, Qr, vT0)
a("s_waitcnt lgkmcnt(0)")
for j in range(4): mfma(v4(vCSQ), a4(aWQ+4*j), a4(aONE), 0 if j == 0 else v4(vCSQ))
DE = 60
stage_E_tail(XF, S, Qr, DE, sQst)
a(f"v_and_b32 v{vT0}, 1, v{vC}\nv_lshlrev_b32 v{vT1}, 3, v{vG}\nv_lshl_add_u32 v{vT0}, v{vT0}, 17, v{vT1}")
if not opt["noq0"]: a(f"s_add_u32 s{sT0}, s{sQst}, s{sSEL0}\nbuffer_store_dwordx2 {v2(DE)}, v{vT0}, {srd(WS_)}, s{sT0} offen sc1")
exec_all()
ts(2)
kload(1)
a(f"s_waitcnt vmcnt(8)\ns_barrier")
lna = lab("noarr")
a(f"""s_getreg_b32 s{sT0}, hwreg(HW_REG_XCC_ID)
s_and_b32 s{sT0}, s{sT0}, 7""")
if opt["nobar"]:
    a(f"s_mul_i32 s{sFAST}, s{sT0}, 6")
elif opt["arr"] == "satomic":
    a(f"""s_mul_i32 s{sFAST}, s{sT0}, 6
    s_cmp_eq_u32 s{sWV}, {opt['arrw']}
    s_cbranch_scc0 {lna}
    s_lshl_b64 s[{sE}:{sE+1}], 1, s{sFAST}
    s_add_u32 s{sE+1}, s{sE+1}, 0x10000
    s_lshl_b32 s{sT0}, s{sGRP}, 5
    s_atomic_add_x2 s[{sE}:{sE+1}], s[{DBG_}:{DBG_+1}], s{sT0}
    {lna}:""")
elif opt["arr"] == "atomic":
    a(f"""s_mul_i32 s{sFAST}, s{sT0}, 6
    s_cmp_eq_u32 s{sWV}, {opt['arrw']}
    s_cbranch_scc0 {lna}
    s_lshl_b64 s[{sE}:{sE+1}], 1, s{sFAST}
    s_add_u32 s{sE+1}, s{sE+1}, 0x10000
    v_mov_b32 v{vT0+1}, s{sE}
    v_mov_b32 v{vT0+2}, s{sE+1}
    s_lshl_b32 s{sT0}, s{sGRP}, 5
    s_mov_b64 exec, 1
    buffer_atomic_add_x2 {v2(vT0+1)}, off, {srd(DBG_)}, s{sT0} sc1
    s_mov_b64 exec, -1
    {lna}:""")
else:
    a(f"""s_add_u32 s{sFAST}, s{sT0}, 1
    s_cmp_eq_u32 s{sWV}, {opt['arrw']}
    s_cbranch_scc0 {lna}
    v_mov_b32 v{vT0+1}, s{sFAST}
    s_lshl_b32 s{sT0}, s{sGRP}, 5
    s_add_u32 s{sT0}, s{sT0}, s{sIDX}
    s_mov_b64 exec, 1
    buffer_store_byte v{vT0+1}, off, {srd(DBG_)}, s{sT0} sc1
    s_mov_b64 exec, -1
    {lna}:""")
kfix(0, None); kload(2); kfix(1, 8); kload(3); kfix(2, 8)
vload(0)
CT = 80
lp, ld = lab("bar"), lab("barok")
if opt["arr"] in ("atomic", "satomic"):
    a(f"v_and_b32 v{vT0}, 7, v{vLane}\nv_lshlrev_b32 v{vT0}, 5, v{vT0}")
    cl = f"buffer_load_dwordx2 {v2(CT)}, v{vT0}, {srd(DBG_)}, 0 offen sc1"
    chk = f"v_lshrrev_b32 v{vT1}, 16, v{CT+1}\nv_cmp_gt_u32 vcc, 32, v{vT1}"
else:
    cl = f"buffer_load_dword v{CT}, v{vL4}, {srd(DBG_)}, 0 offen sc1"
    chk = f"v_add_u32 v{vT1}, 0x0f0f0f0f, v{CT}\nv_and_b32 v{vT1}, 0x10101010, v{vT1}\nv_cmp_ne_u32 vcc, 0x10101010, v{vT1}"
if not opt["nobar"]: a(cl)
kfix(3, 8 if opt["nobar"] else 9)
vload(1)
if not opt["nobar"]: a(f"""s_waitcnt vmcnt(8)
{lp}:
{chk}
s_cbranch_vccz {ld}
{cl}
s_waitcnt vmcnt(0)
s_sub_u32 s{sTO}, s{sTO}, 1
s_cbranch_scc0 {lp}
s_mov_b32 s{sTO}, 0
{ld}:""")
ts(3)
PT = ACL + 2
if opt["pre"] & 1:
    lx = lab("ptx")
    a(f"""s_cmp_eq_u32 s{sWV}, 1
    s_cbranch_scc0 {lx}
    v_lshlrev_b32 v{PT}, 3, v{vL16}
    s_mul_i32 s{sT0}, s{sIDX}, 2176
    s_add_u32 s{sT0}, s{sT0}, s{sSTld}
    s_mov_b64 exec, 0x1ffff
    buffer_load_dword v{PT+1}, v{PT}, {srd(WS_)}, s{sT0} offen sc1
    s_mov_b64 exec, -1
    {lx}:""")
a(f"s_lshl_b32 s{sT0}, s{sQld}, 5\ns_add_u32 s{sT0}, s{sT0}, s{sSEL0}")
for j in range(4): a(f"buffer_load_dwordx4 {v4(QF+4*j)}, v{vOl}, {srd(WS_)}, s{sT0} offen offset:{1024*j} sc1")
a(f"""s_add_u32 s{sT1}, s{sSTld}, {Q_OFF}
s_add_u32 s{sQld}, s{sQld}, s{sT1}
s_add_u32 s{sQst}, s{sQst}, s{sT1}
s_mov_b32 s{sSEL0}, 0x05040100
s_mov_b32 s{sSEL1}, 0x07060302""")
if opt["arr"] in ("atomic", "satomic"):
    a(f"""s_waitcnt lgkmcnt(0)
    v_readlane_b32 s{sT0}, v{CT}, s{sGRP}
    v_readlane_b32 s{sT1}, v{CT+1}, s{sGRP}
    s_lshl_b64 s[{sE}:{sE+1}], 32, s{sFAST}
    s_add_u32 s{sE+1}, s{sE+1}, 0x200000
    s_xor_b32 s{sT0}, s{sT0}, s{sE}
    s_xor_b32 s{sT1}, s{sT1}, s{sE+1}
    s_or_b32 s{sT0}, s{sT0}, s{sT1}
    s_cmp_eq_u32 s{sT0}, 0
    s_cselect_b32 s{sFAST}, 1, 0""")
else:
    a(f"""s_mul_i32 s{sT0}, s{sFAST}, 0x01010101
    v_cmp_ne_u32 vcc, s{sT0}, v{CT}
    s_lshl_b32 s{sT1}, s{sGRP}, 3
    s_lshr_b64 s[{sE}:{sE+1}], vcc, s{sT1}
    s_and_b32 s{sT0}, s{sE}, 0xff
    s_cmp_eq_u32 s{sT0}, 0
    s_cselect_b32 s{sFAST}, 1, 0""")
vload(2)
a("s_waitcnt vmcnt(8)")
ts(4)
ts_flush(1, 0)
if TS:
    for k in range(1, 5): a(f"v_writelane_b32 v{vTSV}, s{TSB+2*k}, {k}")
a("s_branch L_qk")

a("L_layer:")
until(1)
poll([f"buffer_load_dwordx4 {v4(QF+4*j)}, v{vOl}, {srd(WS_)}, s{sQld} offen offset:{1024*j}" for j in range(4)], range(QF, QF+16), ACL)
a("L_qk:")
ts(0)
D = lambda t: DT + 4*t
def xlo(t, X): return [lambda r=r: dpp("v_add_f32", X+r, D(t)+r, D(t)+r, "row_ror:8", 0x3) for r in range(4)]
def xhi(t, X): return [lambda r=r: dpp("v_add_f32", X+r, D(t)+r, D(t)+r, "row_ror:8", 0xc) for r in range(4)]
def zev(Z): return [lambda r=r: dpp("v_add_f32", Z+r, XT+r, XT+r, "row_ror:12", 0x5) for r in range(4)]
def zod(Z): return [lambda r=r: dpp("v_add_f32", Z+r, YT+r, YT+r, "row_ror:4", 0xa) for r in range(4)]
vM, vM2 = ACL, ACL+1
fill = xlo(0, XT) + xhi(2, XT) + zev(ZA) + xlo(1, YT) + xhi(3, YT) + zod(ZA) + \
    [lambda: a(f"v_max3_f32 v{vM}, v{ZA}, v{ZA+1}, v{ZA+2}"), lambda: a(f"v_max_f32 v{vM}, v{ZA+3}, v{vM}")] + \
    xlo(4, XT) + xhi(6, XT) + zev(ZB) + xlo(5, YT) + xhi(7, YT) + zod(ZB)
n = 0
for tau in (0, 2, 1, 3, 4, 6, 5, 7):
    for j in range(4):
        mfma(v4(D(tau)), a4(aK+16*tau+4*j), v4(QF+4*j), 0 if j == 0 else v4(D(tau)))
        n += 1
        if n >= 12:
            fill.pop(0)(); fill.pop(0)()
while fill: fill.pop(0)()
a(f"v_max3_f32 v{vM}, v{ZB}, v{ZB+1}, v{vM}\nv_max3_f32 v{vM}, v{ZB+2}, v{ZB+3}, v{vM}")
dpp("v_max_f32", vM, vM, vM, "row_ror:4"); dpp("v_max_f32", vM, vM, vM, "row_ror:8")
allred_rows("v_max_f32", vM, vM2)
vMX = QF + 12
a(f"v_mov_b32 v{vMX}, v{vM}")
for r in range(8): a(f"v_sub_f32 v{ZA+r}, v{ZA+r}, v{vM}")
for r in range(8): a(f"v_exp_f32 v{ZA+r}, v{ZA+r}")
P = [XT, YT, QF, QF+4]
for r in range(4): a(f"v_cvt_pk_bf16_f32 v{P[0]+r}, v{ZA+2*r}, v{ZA+2*r+1}")
ts(1)
def wo_dma():
    a(f"""v_lshrrev_b32 v{vWr}, 7, v{vL16}
    v_and_b32 v{vWr+1}, 0x70, v{vL16}
    v_lshl_add_u32 v{vWr}, v{vWr}, 10, v{vWr+1}
    s_lshl_b32 s{sT0}, s{sGRP}, 6
    s_lshr_b32 s{sT1}, s{sIDX}, 3
    s_lshl_b32 s{sT1}, s{sT1}, 4
    s_add_u32 s{sT0}, s{sT0}, s{sT1}
    s_add_u32 s{sT0}, s{sT0}, s{sWV}
    s_lshl_b32 s{sT0}, s{sT0}, 13
    s_and_b32 s{sT1}, s{sIDX}, 7
    s_lshl_b32 s{sT1}, s{sT1}, 7
    s_add_u32 s{sT0}, s{sT0}, s{sT1}""")
    dma(WO_, vWr, sT0, 32*1024, 4, WO_L)
def transpose(t, waits, hooks={}):
    src, dst = VR + 32*(t+1), VR + 32*t
    for p in range(5):
        if p in hooks: hooks[p]()
        if p == 4: break
        if waits[p] is not None: a(f"s_waitcnt vmcnt({waits[p]})")
        for q in range(4):
            a(f"v_perm_b32 v{dst+8*q+p}, v{src+8*p+4+q}, v{src+8*p+q}, s{sSEL0}")
            a(f"v_perm_b32 v{dst+8*q+4+p}, v{src+8*p+4+q}, v{src+8*p+q}, s{sSEL1}")
vWr = ZA
for t in range(4):
    ls = lab("skip")
    a(f"s_cmp_eq_u32 s{sLAYER}, 0\ns_cbranch_scc0 {ls}")
    if t == 0:
        vload(3)
        transpose(0, [None]*4)
    elif t == 1:
        transpose(1, [None]*4)
    elif t == 2:
        if opt["wopos"] == 2: wo_dma()
        transpose(2, [8 + (4 if opt["wopos"] == 2 else 0), None, None, None])
    else:
        if opt["wopos"] == 2: transpose(3, [10, 8, 6, 4])
        elif opt["wopos"] == 3: transpose(3, [6, 4, 6, 4], {2: wo_dma})
        else: transpose(3, [6, 4, 2, 0], {4: wo_dma})
    a(f"{ls}:")
    rot = [lambda tt=tt, r=r: dpp("v_mov_b32", P[tt]+r, P[0]+r, None, f"row_ror:{16-4*tt}") for tt in (1, 2, 3) for r in range(4)] if t == 0 else []
    for e in range(8):
        mfma(v4(DT+4*e), v4(VR+32*t+4*e), v4(P[t]), 0 if t == 0 else v4(DT+4*e))
        for _ in range(2):
            if rot: rot.pop(0)()
    mfma(v4(ACL), a4(aONE), v4(P[t]), 0 if t == 0 else v4(ACL))
ts(2)
until(0)
exec_set(0x000f000f, 0x000f000f)
for e in range(8): a(f"ds_write_b128 v{vOCw}, {v4(DT+4*e)} offset:{16*e}")
a(f"ds_write2_b32 v{vMLw}, v{vMX}, v{ACL} offset0:0 offset1:1")
exec_all()
a("s_waitcnt lgkmcnt(0)\ns_barrier")
ML = T; OV = T + 8; FW = T + 16
a(f"ds_read_b128 {v4(ML)}, v{vMLr}\nds_read_b128 {v4(ML+4)}, v{vMLr} offset:16")
for w in range(4):
    a(f"ds_read_b32 v{OV+2*w}, v{vOCr} offset:{w*OC_W}\nds_read_b32 v{OV+2*w+1}, v{vOCr} offset:{w*OC_W+16}")
a(f"""s_waitcnt lgkmcnt(8)
v_max3_f32 v{FW+4}, v{ML}, v{ML+2}, v{ML+4}
v_max_f32 v{FW+4}, v{ML+6}, v{FW+4}""")
for w in range(4): a(f"v_sub_f32 v{FW+w}, v{ML+2*w}, v{FW+4}")
for w in range(4): a(f"v_exp_f32 v{FW+w}, v{FW+w}")
a(f"v_mul_f32 v{FW+5}, v{FW}, v{ML+1}")
for w in range(1, 4): a(f"v_fmac_f32 v{FW+5}, v{FW+w}, v{ML+2*w+1}")
a(f"v_rcp_f32 v{FW+6}, v{FW+5}\nv_log_f32 v{FW+7}, v{FW+5}\ns_waitcnt lgkmcnt(0)")
a(f"v_mul_f32 v{OV}, v{FW}, v{OV}\nv_mul_f32 v{OV+1}, v{FW}, v{OV+1}")
for w in range(1, 4): a(f"v_fmac_f32 v{OV}, v{FW+w}, v{OV+2*w}\nv_fmac_f32 v{OV+1}, v{FW+w}, v{OV+2*w+1}")
a(f"""v_mul_f32 v{OV}, v{FW+6}, v{OV}
v_mul_f32 v{OV+1}, v{FW+6}, v{OV+1}
v_add_f32 v{FW+7}, v{FW+7}, v{FW+4}
v_cvt_pk_bf16_f32 v{OV}, v{OV}, v{OV+1}""")
pub(f"buffer_store_dword v{OV}, v{vOs}, {srd(WS_)}, s{sOst} offen", "s_mov_b64 exec, 1",
    f"buffer_store_dword v{FW+7}, off, {srd(WS_)}, s{sLst}", "s_mov_b64 exec, -1")
ts(3)
ls = lab("skip")
a(f"s_cmp_eq_u32 s{sLAYER}, 0\ns_cbranch_scc0 {ls}")
a(f"""s_and_b32 s{sT0}, s{sWV}, 1
s_lshl_b32 s{sT0}, s{sT0}, 5
v_subrev_u32 v{T}, s{sT0}, v{vTR}""")
if not opt["norst"]:
    l1, l2 = lab("lr"), lab("lr")
    a(f"""v_mov_b32 v{T+4}, -1
    v_mov_b32 v{T+5}, -1
    v_mov_b32 v{T+6}, -1
    v_mov_b32 v{T+7}, -1
    s_lshl_b32 s{sT0}, s2, 2
    s_add_u32 s{sT0}, s{sT0}, s{sWV}
    s_mul_i32 s{sT0}, s{sT0}, 896
    s_add_u32 s{sT0}, s{sT0}, {LSTR}
    s_mov_b32 exec_hi, 0xffffff
    buffer_store_dwordx4 {v4(T+4)}, v{vL16}, {srd(WS_)}, s{sT0} offen sc1
    s_cmp_lt_u32 s{sWV}, 2
    s_cbranch_scc0 {l2}
    s_lshl_b32 s{sT0}, s{sIDX}, 7
    s_add_u32 s{sT0}, s{sT0}, s{sSTld}
    s_add_u32 s{sT0}, s{sT0}, {X2_OFF}
    s_lshl_b32 s{sT1}, s2, 9
    s_add_u32 s{sT1}, s{sT1}, {DN_OFF}
    s_cmp_eq_u32 s{sWV}, 0
    s_cselect_b32 s{sT0}, s{sT0}, s{sT1}
    s_cselect_b32 exec_lo, 0xff, -1
    s_mov_b32 exec_hi, 0
    buffer_store_dwordx4 {v4(T+4)}, v{vL16}, {srd(WS_)}, s{sT0} offen sc1
    {l2}:
    s_mov_b64 exec, -1""")
a("s_waitcnt vmcnt(0)\ns_barrier")
trread(aWO, T, WO_L, 4); trread(aWO+16, T, WO_L+32, 4)
a(f"s_waitcnt lgkmcnt(0)\n{ls}:")
OF = T; LS = T + 16; DB = T + 20; EB = T + 28
poll([f"buffer_load_dwordx4 {v4(OF+4*j)}, v{vOl}, {srd(WS_)}, s{sOld} offen offset:{1024*j}" for j in range(4)] +
     [f"buffer_load_dwordx4 {v4(LS)}, v{vG16}, {srd(WS_)}, s{sLld} offen"], range(OF, OF+20), EB)
ts(4)
for j in range(4):
    for t in range(2): mfma(v4(DB+4*t), v4(OF+4*j), a4(aWO+16*t+4*j), 0 if j == 0 else v4(DB+4*t))
ls = lab("skip")
a(f"s_cmp_eq_u32 s{sLAYER}, 0\ns_cbranch_scc0 {ls}\ns_cmp_lt_u32 s{sFB}, 28\ns_cbranch_scc0 {ls}")
vWg = EB + 8
a(f"""v_lshrrev_b32 v{vWg+2}, 7, v{vL16}
v_and_b32 v{vWg+1}, 0x70, v{vL16}
v_mul_u32_u24 v{vWg}, 3584, v{vWg+2}
v_add_u32 v{vWg}, v{vWg}, v{vWg+1}
v_lshl_add_u32 v{vWg+1}, v{vWg+2}, 10, v{vWg+1}
s_and_b32 s{sT1}, s{sIDX}, 7
s_lshl_b32 s{sT0}, s{sT1}, 3
s_add_u32 s{sT0}, s{sT0}, s{sWV}
s_mul_i32 s{sT0}, s{sT0}, {8*3584}
s_lshl_b32 s{sE}, s{sFB}, 7
s_add_u32 s{sT0}, s{sT0}, s{sE}
s_mov_b32 s{sE+1}, s{sT0}""")
dma(WG_, vWg, sT0, 32*3584, 2, WG_L); dma(WU_, vWg, sE+1, 32*3584, 2, WU_L)
a(f"""s_lshl_b32 s{sT0}, s{sFB}, 3
s_add_u32 s{sT0}, s{sT0}, s{sWV}
s_lshl_b32 s{sT0}, s{sT0}, 13
s_lshl_b32 s{sT1}, s{sT1}, 7
s_add_u32 s{sT0}, s{sT0}, s{sT1}""")
dma(WD_, vWg+1, sT0, 32*1024, 2, WD_L)
a(f"{ls}:")
a(f"v_max3_f32 v{EB+4}, v{LS}, v{LS+1}, v{LS+2}\nv_max_f32 v{EB+4}, v{LS+3}, v{EB+4}")
allred_rows("v_max_f32", EB+4, EB+5)
for r in range(4): a(f"v_sub_f32 v{EB+r}, v{LS+r}, v{EB+4}")
for r in range(4): a(f"v_exp_f32 v{EB+r}, v{EB+r}")
a(f"v_add_f32 v{EB+4}, v{EB}, v{EB+1}\nv_add_f32 v{EB+5}, v{EB+2}, v{EB+3}")
a(f"v_mul_f32 v{DB}, v{EB}, v{DB}\nv_mul_f32 v{DB+4}, v{EB}, v{DB+4}\nv_add_f32 v{EB+4}, v{EB+4}, v{EB+5}")
for r in range(1, 4): a(f"v_fmac_f32 v{DB}, v{EB+r}, v{DB+r}\nv_fmac_f32 v{DB+4}, v{EB+r}, v{DB+4+r}")
allred_rows("v_add_f32", EB+4, EB+5)
a(f"""v_permlane16_swap_b32 v{DB}, v{DB+4}
v_rcp_f32 v{EB+4}, v{EB+4}
v_add_f32 v{DB}, v{DB}, v{DB+4}
v_mov_b32 v{DB+4}, v{DB}
v_permlane32_swap_b32 v{DB}, v{DB+4}
v_add_f32 v{DB}, v{DB}, v{DB+4}
v_mul_f32 v{DB}, v{DB}, v{EB+4}
s_mov_b32 exec_hi, 0
buffer_store_dword v{DB}, v{vL4}, {srd(WS_)}, s{sWOst} offen sc1
s_mov_b64 exec, -1""")
ts(5)

def middle(off, xoff, stoff, final):
    M = T
    lsk = lab("nomid")
    a(f"s_cmp_eq_u32 s{sWV}, 0\ns_cbranch_scc0 {lsk}")
    a(f"s_add_u32 s{sT0}, s{sMld}, {off}")
    if opt["mack"]: a("s_waitcnt vmcnt(0)")
    if opt["mslp"]: a(f"s_sleep {opt['mslp']}")
    poll([f"buffer_load_dwordx4 {v4(M+4*u)}, v{vL16}, {srd(WS_)}, s{sT0} offen offset:{1024*u}" for u in range(4)], range(M, M+16), M+16)
    for r in range(4): a(f"v_add_f32 v{M+r}, v{M+r}, v{M+4+r}")
    for r in range(4): a(f"v_add_f32 v{M+8+r}, v{M+8+r}, v{M+12+r}")
    for r in range(4): a(f"v_add_f32 v{M+r}, v{M+r}, v{M+8+r}")
    a(f"""v_permlane32_swap_b32 v{M}, v{M+2}
    v_permlane32_swap_b32 v{M+1}, v{M+3}
    v_add_f32 v{M}, v{M}, v{M+2}
    v_add_f32 v{M+1}, v{M+1}, v{M+3}""")
    dpp("v_add_f32", M, M, M, "row_ror:8"); dpp("v_add_f32", M+1, M+1, M+1, "row_ror:8")
    a(f"""v_mov_b32 v{M+2}, v{M}
    v_mov_b32 v{M+3}, v{M+1}
    v_permlane16_swap_b32 v{M}, v{M+2}
    v_permlane16_swap_b32 v{M+1}, v{M+3}
    v_add_f32 v{vX0}, v{vX0}, v{M}
    v_add_f32 v{vX1}, v{vX1}, v{M+1}
    v_add_f32 v{vX0}, v{vX0}, v{M+2}
    v_add_f32 v{vX1}, v{vX1}, v{M+3}
    s_add_u32 s{sT0}, s{sXst}, {xoff}
    s_add_u32 s{sT1}, s{sSTst}, {stoff}
    v_cvt_pk_bf16_f32 v{M}, v{vX0}, v{vX1}""")
    exec_set(0xff, 0xff)
    if final:
        lnf = lab("notfinal")
        a(f"""s_cmp_eq_u32 s{sLAYER}, 0
        s_cbranch_scc1 {lnf}
        s_lshl_b32 s{sT0}, s{sIDX}, 6
        buffer_store_dword v{M}, v{vXs}, {srd(OUT_)}, s{sT0} offen
        s_mov_b64 exec, -1
        s_branch L_fin
        {lnf}:""")
    pub(f"buffer_store_dword v{M}, v{vXs}, {srd(WS_)}, s{sT0} offen")
    exec_all()
    a(f"""v_lshlrev_b32 v{vX0}, 16, v{M}
    v_and_b32 v{vX1}, 0xffff0000, v{M}
    v_add_f32 v{M+1}, v{vX0}, v{vX1}
    v_mul_f32 v{M+2}, v{vX0}, v{vX0}
    v_fmac_f32 v{M+2}, v{vX1}, v{vX1}
    v_permlane32_swap_b32 v{M+1}, v{M+2}
    v_add_f32 v{M+1}, v{M+1}, v{M+2}""")
    dpp("v_add_f32", M+1, M+1, M+1, "quad_perm:[1,0,3,2]")
    dpp("v_add_f32", M+1, M+1, M+1, "quad_perm:[2,3,0,1]")
    dpp("v_add_f32", M+1, M+1, M+1, "row_ror:4")
    a("s_mov_b32 exec_lo, 1\ns_mov_b32 exec_hi, 1")
    pub(f"buffer_store_dword v{M+1}, v{vXs}, {srd(WS_)}, s{sT1} offen")
    exec_all()
    a(f"{lsk}:")

middle(WO_OFF, X1_OFF, ST1_OFF, False)
ts(6)
ls = lab("skip")
a(f"s_cmp_eq_u32 s{sLAYER}, 0\ns_cbranch_scc0 {ls}\ns_waitcnt vmcnt(0)\n{ls}:\ns_barrier")
DD = T + 24
a(f"s_cmp_lt_u32 s{sFB}, 28\ns_cbranch_scc0 L_noffn")
ls = lab("skip")
a(f"s_cmp_eq_u32 s{sLAYER}, 0\ns_cbranch_scc0 {ls}")
trread(aWG, vTR, WG_L, 2); trread(aWU, vTR, WU_L, 2); trread(aWD, vTR, WD_L, 2)
a("s_waitcnt lgkmcnt(0)")
for j in range(2): mfma(v4(T), a4(aONE), a4(aWG+4*j), 0 if j == 0 else v4(T))
for j in range(2): mfma(v4(T+4), a4(aONE), a4(aWU+4*j), 0 if j == 0 else v4(T+4))
a(f"v_mov_b32 v{vCSG}, v{T}\nv_mov_b32 v{vCSU}, v{T+4}\n{ls}:")
def stats_loads(reg, off):
    return [f"buffer_load_dwordx2 {v2(reg)}, v{vSTl}, {srd(WS_)}, s{sT1} offen", f"buffer_load_dwordx2 {v2(reg+2)}, v{vSTl}, {srd(WS_)}, s{sT1} offen offset:128"]
def stats_reduce(reg):
    a(f"v_add_f32 v{reg}, v{reg}, v{reg+2}\nv_add_f32 v{reg+1}, v{reg+1}, v{reg+3}")
    for n in (2, 4, 8):
        dpp("v_add_f32", reg, reg, reg, f"row_ror:{n}"); dpp("v_add_f32", reg+1, reg+1, reg+1, f"row_ror:{n}")
    stats_finalize(reg, reg+1, reg+2)
XC = T; SC = T + 8; DG = T + 12; DU = T + 16; GO = T + 20
a(f"s_add_u32 s{sT1}, s{sSTld}, {ST1_OFF}")
poll([f"buffer_load_dwordx4 {v4(XC+4*j)}, v{vXl}, {srd(WS_)}, s{sXC} offen offset:{64*j}" for j in range(2)] + stats_loads(SC, ST1_OFF), range(XC, XC+12), DG)
ts(7)
for j in range(2):
    mfma(v4(DG), v4(XC+4*j), a4(aWG+4*j), 0 if j == 0 else v4(DG))
    mfma(v4(DU), v4(XC+4*j), a4(aWU+4*j), 0 if j == 0 else v4(DU))
stats_reduce(SC)
qp = ["quad_perm:[0,0,2,2]", "quad_perm:[1,1,3,3]"]
for i, (cs, b) in enumerate(((vCSG, 0), (vCSG, 1), (vCSU, 0), (vCSU, 1))): dpp("v_mul_f32", GO+i, SC, cs, qp[b])
for i, (d, b) in enumerate(((DG, 0), (DG+1, 1), (DU, 0), (DU+1, 1))): dpp("v_fmac_f32", GO+i, SC+1, d, qp[b])
a("s_mov_b64 exec, 0xffff")
pub(f"buffer_store_dwordx4 {v4(GO)}, v{vC16}, {srd(WS_)}, s{sGUst} offen")
exec_all()
G = T
poll([f"buffer_load_dwordx4 {v4(G+4*u)}, v{vGUl}, {srd(WS_)}, s{sGUld} offen offset:{1024*u}" for u in range(2)], range(G, G+8), G+8)
ts(8)
for r in range(4): a(f"v_add_f32 v{G+r}, v{G+r}, v{G+4+r}")
a(f"""v_permlane32_swap_b32 v{G}, v{G+1}
v_permlane32_swap_b32 v{G+2}, v{G+3}
v_add_f32 v{G}, v{G}, v{G+1}
v_add_f32 v{G+2}, v{G+2}, v{G+3}
v_permlane16_swap_b32 v{G}, v{G+2}
v_add_f32 v{G}, v{G}, v{G+2}
v_mov_b32 v{G+1}, v{G}
v_permlane16_swap_b32 v{G}, v{G+1}
v_max_f32 v{G}, 0, v{G}
v_mul_f32 v{G}, v{G}, v{G+1}
v_cvt_pk_bf16_f32 v{G}, v{G}, v{G}
ds_write_b16 v{vHw}, v{G}
s_waitcnt lgkmcnt(0)
s_barrier
ds_read_b128 {v4(G+4)}, v{vHr}
ds_read_b128 {v4(G+8)}, v{vHr} offset:64
s_waitcnt lgkmcnt(1)""")
mfma(v4(DD), a4(aWD), v4(G+4), 0)
a("s_waitcnt lgkmcnt(0)")
mfma(v4(DD), a4(aWD+4), v4(G+8), v4(DD))
a("L_dpub:")
exec_set(0x00030003, 0x00030003)
a(f"buffer_store_dwordx4 {v4(DD)}, v{vDNs}, {srd(WS_)}, s{sDNst} offen sc1")
exec_all()
ts(9)
lgo = lab("go")
a(f"""s_cmp_eq_u32 s{sLAYER}, 0
s_cbranch_scc1 {lgo}
s_or_b32 s{sT0}, s{sGRP}, s{sWV}
s_cmp_eq_u32 s{sT0}, 0
s_cbranch_scc0 L_fin
{lgo}:""")
if opt["pre"] & 2:
    lx = lab("pt")
    a(f"""s_cmp_eq_u32 s{sWV}, 1
    s_cbranch_scc0 {lx}
    v_lshlrev_b32 v{T}, 3, v{vL16}
    s_mul_i32 s{sT0}, s{sIDX}, 2560
    s_add_u32 s{sT0}, s{sT0}, s{sSTld}
    s_add_u32 s{sT0}, s{sT0}, {LSTR}
    s_mov_b64 exec, 0xfffff
    buffer_load_dword v{T+1}, v{T}, {srd(WS_)}, s{sT0} offen sc1
    s_lshl_b32 s{sT0}, s{sIDX}, 7
    s_add_u32 s{sT0}, s{sT0}, s{sSTld}
    s_add_u32 s{sT0}, s{sT0}, {X2_OFF}
    s_mov_b64 exec, 1
    buffer_load_dword v{T+2}, off, {srd(WS_)}, s{sT0} sc1
    s_mov_b64 exec, -1
    s_waitcnt vmcnt(0)
    {lx}:""")
middle(DN_OFF, X2_OFF, ST2_OFF, True)
ts(10)
a("s_barrier")
XE = T; SE = T + 16; DE = T + 20
a(f"s_add_u32 s{sT1}, s{sSTld}, {ST2_OFF}")
poll([f"buffer_load_dwordx4 {v4(XE+4*j)}, v{vXl}, {srd(WS_)}, s{sXE} offen offset:{64*j}" for j in range(4)] + stats_loads(SE, ST2_OFF), range(XE, XE+20), DE)
ts(11)
for j in range(4): mfma(v4(DE), a4(aWQ+4*j), v4(XE+4*j), 0 if j == 0 else v4(DE))
stats_reduce(SE)
a(f"v_mul_f32 v{SE}, {f2u(QSCALE):#x}, v{SE}\nv_mul_f32 v{SE+1}, {f2u(QSCALE):#x}, v{SE+1}")
for r in range(4): a(f"v_mul_f32 v{DE+4+r}, v{SE}, v{vCSQ+r}")
for r in range(4): a(f"v_fmac_f32 v{DE+4+r}, v{SE+1}, v{DE+r}")
a(f"""v_cvt_pk_bf16_f32 v{DE}, v{DE+4}, v{DE+5}
v_cvt_pk_bf16_f32 v{DE+1}, v{DE+6}, v{DE+7}
s_add_u32 s{WS_}, s{WS_}, {LSTR}
s_addc_u32 s{WS_+1}, s{WS_+1}, 0
s_mov_b32 s{sLAYER}, 1""")
exec_set(0x00030003, 0x00030003)
pub(f"buffer_store_dwordx2 {v2(DE)}, v{vQs}, {srd(WS_)}, s{sQst} offen")
exec_all()
ts_flush(8, 12)
a("s_branch L_layer")
a("L_noffn:")
for r in range(4): a(f"v_mov_b32 v{DD+r}, 0")
a("s_branch L_dpub")
for ls, lb, st in slow_blocks:
    a(f"{ls}:")
    for s in st: a(s)
    a(f"s_branch {lb}")
a("L_fin:")
until(2)
if opt["dly"]:
    a(f"s_mov_b32 s{sT0}, {opt['dly']}\nL_dly:\ns_nop 15\ns_nop 15\ns_nop 15\ns_nop 15\ns_sub_u32 s{sT0}, s{sT0}, 1\ns_cbranch_scc0 L_dly")
if TS:
    ts(11)
    a(f"s_memrealtime s[{sE}:{sE+1}]")
    ts_flush(24, 12)
    a(f"""v_writelane_b32 v{vTSV}, s{sE}, 43
    v_writelane_b32 v{vTSV}, s{sFAST}, 40
    v_writelane_b32 v{vTSV}, s{sTO}, 41
    s_lshl_b32 s{sT0}, s2, 2
    s_add_u32 s{sT0}, s{sT0}, s{sWV}
    s_lshl_b32 s{sT0}, s{sT0}, 8
    s_add_u32 s{sT0}, s{sT0}, {TS_OFF - LSTR}
    buffer_store_dword v{vTSV}, v{vL4}, {srd(WS_)}, s{sT0} offen""")
    if opt["dbgts"]:
        sel = [int(x) for x in opt["dbgts"].split(",")]
        a(f"s_or_b32 s{sT0}, s2, s{sWV}\ns_cmp_eq_u32 s{sT0}, 0\ns_cbranch_scc0 L_end\nv_readlane_b32 s{sT1}, v{vTSV}, 0\nv_mov_b32 v{T}, 0")
        for pos, k in zip([2,3,4,5,6,7,10,11,12,13,14,15], sel):
            a(f"v_readlane_b32 s{sT0}, v{vTSV}, {k}\ns_sub_u32 s{sT0}, s{sT0}, s{sT1}\nv_writelane_b32 v{T}, s{sT0}, {pos}")
        a(f"s_mov_b64 exec, 0xfcfc\nbuffer_store_dword v{T}, v{vL4}, {srd(DBG_)}, 0 offen sc1")
a("L_end:\ns_endpgm")

body = a.finalize()
kn = opt["name"]
ref = open("cdna_kernels/" + NAME + ".s.ref").read().split("\n")
head = [l for l in ref if l.startswith(";") and "@launch" not in l and "Override launch" not in l and "grid=ceil" not in l]
head = head[:13]
src = "\n".join(head) + f"""
; One persistent launch, one workgroup per CU: K/V stay in registers for both layers, weight tiles in AGPRs.
; @launch grid=(256,1,1) block=(256,1,1) lds={LDS_BYTES}
.amdgcn_target "amdgcn-amd-amdhsa--gfx950"
.text
.globl {kn}
.p2align 8
.type {kn},@function
{kn}:
{body}
.section .rodata,"a"
.p2align 6
.amdhsa_kernel {kn}
  .amdhsa_next_free_vgpr 512
  .amdhsa_next_free_sgpr 102
  .amdhsa_accum_offset 256
  .amdhsa_group_segment_fixed_size 0
  .amdhsa_kernarg_size 96
  .amdhsa_user_sgpr_count 2
  .amdhsa_user_sgpr_kernarg_segment_ptr 1
  .amdhsa_system_sgpr_workgroup_id_x 1
.end_amdhsa_kernel
"""
open(out_path, "w").write(src)
print("nops inserted:", a.nops, "lines:", len(body.split("\n")), file=sys.stderr)
```

```python
import sys, math, struct
from asmlib import Asm

NAME = "interleave_layers__gqa_block_cached__glu_gated_reglu__decode"
opt = dict(kvnt="nt", wnt="nt", ts=0, fast=1, tobits=20, name=NAME+"_kernel", until=0, upos=0,
           pre=3, slp1=4, slp2=4, wopos=4, specq=1, pipe=0, fack=3, rslp=0, fslp=0, deep=1, opre=1, lrpos=1, tsset="qk_start,softmax_done,pv_done,O_pub,H2_got,WO_pub,M1_done,GU_pub,H4_got,DN_pub,M2_done,H5b_got")
out_path = sys.argv[1]
for x in sys.argv[2:]:
    k, v = x.split("=")
    assert k in opt, k
    opt[k] = v if k in ("kvnt", "wnt", "name", "tsset") else int(v)
fl = lambda s: "" if s == "none" else " " + s.replace("+", " ")
KVNT = fl(opt["kvnt"]); WNT = fl(opt["wnt"])
TS = opt["ts"]
def f2u(x): return struct.unpack("<I", struct.pack("<f", x))[0]

GR = 0x17000
CS_OFF, GU_OFF, ST1_OFF, X2_OFF, ST2_OFF, LSE_OFF, O_OFF, Q_OFF = 0x0, 0x4000, 0xC000, 0xC400, 0xCC00, 0xCE00, 0xD000, 0x15000
WO_OFF, DN_OFF = 8*GR, 8*GR + 0x20000
LSTR = 8*GR + 0x40000
assert LSTR == 1024*992
Q0_OFF = 0x200000
TS_OFF = 0x600000
WS_SIZE = 0x800000
WQ_L, WO_L, WG_L, WU_L, WD_L = 0, 16384, 32768, 40960, 49152
OC_L = 57344; OC_W = 2048
ML_L = OC_L + 4*OC_W
H_L = ML_L + 128
XL_L = H_L + 256
LDS_BYTES = XL_L + 256
sWV, sGB, sFB, sLAYER, sFAST, sTO = 3, 4, 5, 6, 7, 76
K_, V_, WS_, WQ_, WO_, WG_, WU_, WD_, X_, OUT_, DBG_ = 8, 12, 16, 20, 24, 28, 32, 36, 40, 44, 48
def srd(n): return f"s[{n}:{n+3}]"
(sKV, sQld, sQst, sOst, sLst, sOld, sLld, sWOst, sM1, sM2, sXst, sST1st, sST2st, sXE, sST1ld, sST2ld,
 sGUst, sGUld, sDNst) = range(77, 96)
sT0, sT1, sSEL0, sSEL1 = 96, 97, 98, 99
sE = 100
TSB = 52
vL16, vL4, vOs, vOl, vXl, vC16, vG16, vQs, vDNs, vGUl, vXs = range(0, 11)
vOCw, vOCr, vMLw, vMLr, vHw, vHr, vTR, vSTl, vSTd, vXLw = range(11, 21)
vX0, vX1, vCS = 21, 22, 23
vCSQ = 24
T = 28
QF, DT, vM, XT, YT, ZA = 28, 44, 76, 80, 84, 88
VR = 96
vTSV = VR + 128 + 31
def v4(n): return f"v[{n}:{n+3}]"
def v2(n): return f"v[{n}:{n+1}]"
def a4(n): return f"a[{n}:{n+3}]"
aK, aWQ, aWO, aWG, aWU, aWD, aONE, aTS = 0, 128, 144, 176, 184, 192, 200, 204

a = Asm()
deferred = []
uid = [0]
def lab(p):
    uid[0] += 1
    return f"L_{p}_{uid[0]}"
def exec_set(lo, hi):
    if hi == 0: a(f"s_mov_b64 exec, {lo:#x}")
    else: a(f"s_mov_b32 exec_lo, {lo:#x}\ns_mov_b32 exec_hi, {hi:#x}")
def exec_all(): a("s_mov_b64 exec, -1")

F = dict(grp=(2,0,3), idx=(2,3,5), i=(2,3,3), slot=(2,6,2), s=(2,3,4), ba=(2,7,1), wg=(2,0,8),
         i0=(2,3,1), ih=(2,4,2), wv=(sWV,0,2), w0=(sWV,0,1), w1=(sWV,1,1))
def soff(dst, const, gb=False, **terms):
    first = True
    for name, mul in terms.items():
        src, lo, w = F[name]
        d = dst if first else sE
        if name in ("wg", "wv"): s = f"s{src}"
        else:
            a(f"s_bfe_u32 s{d}, s{src}, {(w << 16) | lo:#x}"); s = f"s{d}"
        if mul & (mul-1) == 0: a(f"s_lshl_b32 s{d}, {s}, {mul.bit_length()-1}")
        else: a(f"s_mul_i32 s{d}, {s}, {mul}")
        if not first: a(f"s_add_u32 s{dst}, s{dst}, s{sE}")
        first = False
    if first:
        a(f"s_add_u32 s{dst}, s{sGB}, {const:#x}" if gb else f"s_mov_b32 s{dst}, {const:#x}"); return
    if gb: a(f"s_add_u32 s{dst}, s{dst}, s{sGB}")
    if const: a(f"s_add_u32 s{dst}, s{dst}, {const:#x}")
vLane, vTmp = 30, 31
def voff(dst, terms, sadd=None, const=0):
    first = True
    for lo, w, mul in terms:
        if first:
            if lo == 0 and w == 6: src = vLane
            else: a(f"v_bfe_u32 v{dst}, v{vLane}, {lo}, {w}"); src = dst
            if mul & (mul-1) == 0: a(f"v_lshlrev_b32 v{dst}, {mul.bit_length()-1}, v{src}")
            else: a(f"v_mul_u32_u24 v{dst}, {mul}, v{src}")
        else:
            a(f"v_bfe_u32 v{vTmp}, v{vLane}, {lo}, {w}")
            if mul & (mul-1) == 0: a(f"v_lshl_add_u32 v{dst}, v{vTmp}, {mul.bit_length()-1}, v{dst}")
            else: a(f"v_mul_u32_u24 v{vTmp}, {mul}, v{vTmp}\nv_add_u32 v{dst}, v{dst}, v{vTmp}")
        first = False
    if const: a(f"v_add_u32 v{dst}, {const}, v{dst}")
    if sadd is not None: a(f"v_add_u32 v{dst}, s{sadd}, v{dst}")

def pub(*stores):
    wt = [s + (" sc1" if s.startswith("buffer") else "") for s in stores]
    if not opt["fast"]:
        for s in wt: a(s)
        return
    ls, lb = lab("slow"), lab("back")
    a(f"s_cmp_eq_u32 s{sFAST}, 1\ns_cbranch_scc0 {ls}")
    for s in stores: a(s)
    a(f"{lb}:")
    deferred.append((ls, lambda: a("\n".join(wt) + f"\ns_branch {lb}")))

def layer0(fn, cond=None):
    ls, lb = lab("l0"), lab("l0back")
    a(f"s_cmp_eq_u32 s{sLAYER}, 0\ns_cbranch_scc1 {ls}\n{lb}:")
    def blk():
        fn(lb); a(f"s_branch {lb}")
    deferred.append((ls, blk))

def check_ops(regs, tmp):
    r = list(regs); ops = []
    ops.append(f"v_max3_u32 v{tmp}, v{r[0]}, v{r[1]}, v{r[2]}"); r = r[3:]
    while len(r) >= 2:
        ops.append(f"v_max3_u32 v{tmp}, v{r[0]}, v{r[1]}, v{tmp}"); r = r[2:]
    if r: ops.append(f"v_max_u32 v{tmp}, v{r[0]}, v{tmp}")
    return ops
def poll(loads, regs, tmp, between=None, spec=(), pipe=False, ack=0, l0=None):
    lc, lr, ld = lab("chk"), lab("retry"), lab("got")
    if l0:
        lw = lab("l0chk")
        def blk(lb):
            for l in loads: a(l + " sc1")
            l0(lb)
            a(f"s_branch {lw}")
        layer0(blk)
    if ack & opt["fack"]:
        a("s_waitcnt vmcnt(0)")
        if opt["fslp"]: a(f"s_sleep {opt['fslp']}")
    for l in loads: a(l + " sc1")
    if between: between()
    a("s_waitcnt vmcnt(0)")
    if l0: a(f"{lw}:")
    ops = check_ops(regs, tmp)
    if not pipe: a(f"{lc}:")
    o, sp = list(ops), list(spec)
    while o or sp:
        if sp: sp.pop(0)()
        for _ in range(2 if sp else len(o)):
            if o: a(o.pop(0))
    a(f"v_cmp_eq_u32 vcc, -1, v{tmp}\ns_cbranch_vccnz {lr}\n{ld}:")
    def retry():
        lx = lab("giveup")
        if not pipe:
            a(f"s_sub_u32 s{sTO}, s{sTO}, 1\ns_cbranch_scc1 {lx}\ns_mov_b64 exec, vcc")
            if ack and opt["rslp"]: a(f"s_sleep {opt['rslp']}")
            for l in loads: a(l + " sc1")
            a(f"s_mov_b64 exec, -1\ns_waitcnt vmcnt(0)\ns_branch {lc}\n{lx}:\ns_mov_b32 s{sTO}, 0\ns_branch {ld}")
            return
        a("s_mov_b64 exec, vcc")
        for l in loads: a(l + " sc1")
        a(f"s_sleep {opt['pipe']}\n{lc}:")
        for l in loads: a(l + " sc1")
        a(f"s_waitcnt vmcnt({len(loads)})")
        for x in ops: a(x)
        a(f"v_cmp_eq_u32 vcc, -1, v{tmp}\ns_sub_u32 s{sTO}, s{sTO}, 1\ns_cbranch_scc1 {lx}\ns_and_b64 exec, exec, vcc\ns_cbranch_scc1 {lc}")
        lo = lab("ok")
        a(f"{lo}:\ns_mov_b64 exec, -1")
        for f in spec: f()
        a(f"s_branch {ld}\n{lx}:\ns_mov_b32 s{sTO}, 0\ns_branch {lo}")
    deferred.append((lr, retry))
PIPE = bool(opt["pipe"])

def ts(k):
    if TS: a(f"s_memtime s[{TSB+2*k}:{TSB+2*k+1}]")
TSSET = opt["tsset"].split(",")
assert len(TSSET) <= 12
def tsn(name):
    if name in TSSET: ts(TSSET.index(name))
def ts_put(pairs, tmp):
    if not TS: return
    a(f"s_waitcnt lgkmcnt(0)\nv_accvgpr_read_b32 v{tmp}, a{aTS}")
    for s, l in pairs: a(f"v_writelane_b32 v{tmp}, s{s}, {l}")
    a(f"v_accvgpr_write_b32 a{aTS}, v{tmp}")
def until(pos):
    if opt["until"] and opt["upos"] == pos:
        l = lab("until")
        a(f"v_accvgpr_read_b32 v79, a{aTS}\nv_readfirstlane_b32 s54, v79\n{l}:\ns_memrealtime s[52:53]\ns_waitcnt lgkmcnt(0)\ns_sub_u32 s52, s52, s54\ns_cmp_lt_u32 s52, {opt['until']}\ns_cbranch_scc1 {l}")

def mk_srd(d, lo, size):
    a(f"s_mov_b32 s{d}, s{lo}\ns_and_b32 s{d+1}, s{lo+1}, 0xffff\ns_mov_b32 s{d+2}, {size:#x}\ns_mov_b32 s{d+3}, 0x20000")
def mfma(d, A, B, c): a(f"v_mfma_f32_16x16x32_bf16 {d}, {A}, {B}, {c}")
def dpp_s(op, d, s0, s1, ctrl, bank=0xf):
    if s1 is None: return f"{op}_dpp v{d}, v{s0} {ctrl} row_mask:0xf bank_mask:{bank:#x}"
    return f"{op}_dpp v{d}, v{s0}, v{s1} {ctrl} row_mask:0xf bank_mask:{bank:#x}"
def dpp(*k): a(dpp_s(*k))
def rows_s(op, r, t):
    return [f"v_mov_b32 v{t}, v{r}", f"v_permlane16_swap_b32 v{r}, v{t}", f"{op} v{r}, v{r}, v{t}",
            f"v_mov_b32 v{t}, v{r}", f"v_permlane32_swap_b32 v{r}, v{t}", f"{op} v{r}, v{r}, v{t}"]
def mix(main, fill, per=2, start=0):
    fill = list(fill)
    for n, m in enumerate(main):
        a(m)
        if n >= start:
            for _ in range(per):
                if fill: a(fill.pop(0))
    for f in fill: a(f)
def mf(d, A, B, c): return f"v_mfma_f32_16x16x32_bf16 {d}, {A}, {B}, {c}"

def dma(srdn, voff_, sbase, step, n, ldsbase):
    for i in range(n):
        a(f"s_lshl_b32 s{sE}, s{sWV}, 10\ns_add_u32 m0, s{sE}, {ldsbase + i*4096}")
        if i: a(f"s_add_u32 s{sbase}, s{sbase}, {step}")
        a(f"buffer_load_dwordx4 v{voff_}, {srd(srdn)}, s{sbase} offen{WNT} lds")
def trread(areg, vaddr, ldsoff, ksteps):
    for j in range(ksteps):
        for u in range(2):
            a(f"ds_read_b64_tr_b16 a[{areg+4*j+2*u}:{areg+4*j+2*u+1}], v{vaddr} offset:{ldsoff + (32*j+4*u)*128}")
def fin_s(S, Q, scale=1.0):
    r = [f"v_mul_f32 v{S}, {f2u(-1/512):#x}, v{S}", f"v_mul_f32 v{Q}, {f2u(1/512):#x}, v{Q}",
         f"v_fma_f32 v{Q}, -v{S}, v{S}, v{Q}", f"v_max_f32 v{Q}, 0, v{Q}", f"v_add_f32 v{Q}, {f2u(1e-5):#x}, v{Q}",
         f"v_rsq_f32 v{Q}, v{Q}"]
    if scale != 1.0: r.append(f"v_mul_f32 v{Q}, {f2u(scale):#x}, v{Q}")
    r.append(f"v_mul_f32 v{S}, v{S}, v{Q}")
    return r
QSCALE = math.log2(math.e) / math.sqrt(128.0)

if TS or opt["until"]:
    a(f"s_memtime s[52:53]\ns_memrealtime s[54:55]\ns_waitcnt lgkmcnt(0)\nv_mov_b32 v40, 0")
    if TS: a("v_writelane_b32 v40, s52, 0\nv_writelane_b32 v40, s54, 42")
    else: a("v_mov_b32 v40, s54")
    a(f"v_accvgpr_write_b32 a{aTS}, v40")
a(f"""s_cmp_ge_u32 s2, 256
s_cbranch_scc1 L_end
s_load_dwordx16 s[52:67], s[0:1], 0
s_load_dwordx8 s[68:75], s[0:1], 64
v_lshrrev_b32 v{vTmp}, 6, v0
v_and_b32 v{vLane}, 63, v0
v_readfirstlane_b32 s{sWV}, v{vTmp}
s_mov_b32 s{sLAYER}, 0
s_mov_b32 s{sTO}, {1 << opt['tobits']:#x}""")
vK, vW, vSX, vQ0 = 32, 33, 34, 35
XF, XS, RST = 44, 80, 88
voff(vL16, [(0,6,16)])
voff(vW, [(3,3,8192), (0,3,16)])
voff(vXl, [(0,1,1024), (4,2,16)])
voff(vSX, [(0,1,1024), (1,3,128), (4,2,32)])
voff(vXs, [(0,3,8), (5,1,4)])
voff(vK, [(0,2,1024), (2,1,256), (3,1,64), (4,2,16)])
for r in range(4): a(f"v_mov_b32 v{RST+r}, -1")
soff(sT0, 0, slot=128*8192, wv=8*8192, grp=1024, i=128)
soff(sXE, 0, slot=256)
soff(sXst, 0, w1=1024, i=128, w0=64)
soff(sT1, 0, wg=4*992, wv=992)
soff(sKV, 0, ba=8<<21, grp=1<<21, s=1<<17, wv=1<<13)
a("s_waitcnt lgkmcnt(0)")
mk_srd(WQ_, 58, 512*8192)
dma(WQ_, vW, sT0, 32*8192, 4, WQ_L)
mk_srd(X_, 52, 2048)
for j in range(4): a(f"buffer_load_dwordx4 {v4(XF+4*j)}, v{vXl}, {srd(X_)}, s{sXE} offen offset:{64*j}")
a(f"buffer_load_dwordx4 {v4(XS)}, v{vSX}, {srd(X_)}, 0 offen\nbuffer_load_dwordx4 {v4(XS+4)}, v{vSX}, {srd(X_)}, 0 offen offset:16")
a(f"buffer_load_dword v{vX1}, v{vXs}, {srd(X_)}, s{sXst} offen")
mk_srd(WS_, 74, WS_SIZE)
a(f"s_mov_b32 exec_hi, 0x3fffffff\nbuffer_store_dwordx4 {v4(RST)}, v{vL16}, {srd(WS_)}, s{sT1} offen sc1\ns_mov_b64 exec, -1")
mk_srd(K_, 54, 0x2000000)
def kload(t):
    for hi in range(2):
        a(f"s_add_u32 s{sT0}, s{sKV}, {t*32768 + hi*4096}")
        for j in range(4):
            a(f"buffer_load_dwordx4 {v4(VR+32*(t+1)+16*hi+4*j)}, v{vK}, {srd(K_)}, s{sT0} offen offset:{128*(j>>1)+512*(j&1)}{KVNT}")
def kfix(t, wait):
    if wait is not None: a(f"s_waitcnt vmcnt({wait})")
    if t: ts(3 + t)
    for hi in range(2):
        for hf in range(2):
            A = VR + 32*(t+1) + 16*hi + 8*hf; B = A + 4; dst = aK + 16*(t+4*hi) + 8*hf
            for r in range(4): a(f"v_mov_b32 v{VR+r}, v{A+r}")
            for r in range(4): dpp("v_mov_b32", VR+r, B+r, None, "row_ror:8", 0xc)
            for r in range(4): dpp("v_mov_b32", B+r, A+r, None, "row_ror:8", 0x3)
            for r in range(4): a(f"v_accvgpr_write_b32 a{dst+r}, v{VR+r}")
            for r in range(4): a(f"v_accvgpr_write_b32 a{dst+4+r}, v{B+r}")
def vload(t):
    for i in range(8):
        if i % 4 == 0: a(f"s_add_u32 s{sT0}, s{sKV}, {t*32768 + (i>>2)*4096}")
        a(f"buffer_load_dwordx4 {v4(VR+32*(t+1)+4*i)}, v{vL16}, {srd(V_)}, s{sT0} offen offset:{1024*(i&3)}{KVNT}")
kload(0)
if opt["deep"] in (1, 2, 4): kload(1)
mk_srd(V_, 56, 0x2000000); mk_srd(WO_, 60, 4096*1024); mk_srd(WG_, 64, 512*3584); mk_srd(WU_, 66, 512*3584)
mk_srd(WD_, 68, 1792*1024); mk_srd(OUT_, 70, 2048); mk_srd(DBG_, 72, 256)
voff(vL4, [(0,6,4)]); voff(vC16, [(0,4,16)]); voff(vG16, [(4,2,16)])
voff(vOl, [(0,4,64), (4,2,16)]); voff(vOs, [(4,2,1024), (0,4,4)])
voff(vQs, [(0,1,4096), (4,2,8)]); voff(vQ0, [(0,1,0x20000), (4,2,8)])
voff(vDNs, [(0,1,0x10000), (4,2,16)]); voff(vGUl, [(4,2,2048), (0,4,16)])
voff(vSTl, [(1,3,16), (0,1,8)]); voff(vSTd, [(0,4,16), (5,1,8)])
voff(vHr, [(0,1,128), (4,2,16)], const=H_L)
soff(sT0, 0, wv=32); voff(vTR, [(4,2,1024), (2,2,128), (0,2,8)], sadd=sT0)
soff(sT0, H_L, wv=32); voff(vHw, [(5,1,128), (0,4,2)], sadd=sT0)
voff(vOCw, [(4,1,2), (3,1,1)]); a(f"v_xor_b32 v{vOCw}, v{vOCw}, v{vLane}\nv_lshlrev_b32 v{vOCw}, 4, v{vOCw}")
soff(sT0, OC_L, wv=OC_W); a(f"v_add_u32 v{vOCw}, s{sT0}, v{vOCw}")
voff(vOCr, [(4,1,2), (1,1,1)]); a(f"v_xor_b32 v{vOCr}, s{sWV}, v{vOCr}\nv_lshlrev_b32 v{vOCr}, 4, v{vOCr}")
voff(vSX+2, [(4,2,256), (0,2,64), (2,2,4)], const=OC_L); a(f"v_add_u32 v{vOCr}, v{vOCr}, v{vSX+2}")
soff(sT0, ML_L, wv=8); voff(vMLw, [(0,2,32)], sadd=sT0)
soff(sT0, ML_L, wv=32); a(f"v_mov_b32 v{vMLr}, s{sT0}")
soff(sT0, XL_L, wv=64); a(f"v_add_u32 v{vXLw}, s{sT0}, v{vXs}")
a(f"v_mov_b32 v{vTmp}, 0x3f803f80")
for r in range(4): a(f"v_accvgpr_write_b32 a{aONE+r}, v{vTmp}")
for r in range(8): a(f"v_accvgpr_write_b32 a{aWD+r}, 0")
soff(sGB, 0, grp=GR)
soff(sFB, 0, slot=8, grp=1)
soff(sOst, O_OFF, True, ba=16384, wv=4096, s=64)
soff(sLst, LSE_OFF, True, ba=256, wv=64, s=4)
soff(sOld, O_OFF, True, w0=16384, slot=4096)
soff(sLld, LSE_OFF, True, w0=256, slot=64)
soff(sWOst, WO_OFF, w0=0x10000, i=8192, w1=4096, grp=512, slot=128)
soff(sDNst, DN_OFF, i=8192, w1=4096, slot=1024, grp=128, w0=64)
soff(sM1, WO_OFF, w1=0x10000, i=8192, w0=4096)
a(f"s_add_u32 s{sM2}, s{sM1}, {DN_OFF - WO_OFF:#x}")
soff(sST2st, ST2_OFF, True, i=32, w0=16, w1=8)
soff(sST1st, ST1_OFF, True, slot=256, i=32, w0=16, w1=8)
soff(sST2ld, ST2_OFF, True)
soff(sGUst, GU_OFF, True, slot=8192, i=1024, wv=256)
soff(sT0, 0, slot=1)
a(f"s_cmp_lt_u32 s{sFB}, 28\ns_cselect_b32 s{sT0}, s{sT0}, 0\ns_lshl_b32 s{sST1ld}, s{sT0}, 8\ns_lshl_b32 s{sT0}, s{sT0}, 13")
soff(sGUld, GU_OFF, True, wv=256)
a(f"s_add_u32 s{sGUld}, s{sGUld}, s{sT0}\ns_add_u32 s{sST1ld}, s{sST1ld}, s{sGB}\ns_add_u32 s{sST1ld}, s{sST1ld}, {ST1_OFF:#x}")
a(f"s_add_u32 s{sT0}, s{sGB}, {X2_OFF:#x}\ns_add_u32 s{sXE}, s{sXE}, s{sT0}\ns_add_u32 s{sXst}, s{sXst}, s{sT0}")
soff(sQst, 0, slot=256, ih=64, i0=2048, w1=1024, w0=32)
soff(sQld, 0, ba=4096)
soff(sSEL0, Q0_OFF, grp=0x40000)
a(f"s_waitcnt vmcnt({16 if opt['deep'] in (1, 2, 4) else 8})")
ts(1)
S, Qr, t0, t1 = 90, 91, 36, 37
a(f"v_mov_b32 v{S}, 0\nv_mov_b32 v{Qr}, 0")
for i in range(8):
    a(f"""v_lshlrev_b32 v{t0}, 16, v{XS+i}
    v_and_b32 v{t1}, 0xffff0000, v{XS+i}
    v_add_f32 v{S}, v{S}, v{t0}
    v_fmac_f32 v{Qr}, v{t0}, v{t0}
    v_add_f32 v{S}, v{S}, v{t1}
    v_fmac_f32 v{Qr}, v{t1}, v{t1}""")
a(f"v_lshlrev_b32 v{vX0}, 16, v{vX1}\nv_and_b32 v{vX1}, 0xffff0000, v{vX1}")
a("s_barrier")
trread(aWQ, vTR, WQ_L, 4)
for n in (2, 4, 8):
    dpp("v_add_f32", S, S, S, f"row_ror:{n}"); dpp("v_add_f32", Qr, Qr, Qr, f"row_ror:{n}")
for x, y in zip(rows_s("v_add_f32", S, t0), rows_s("v_add_f32", Qr, t1)): a(x); a(y)
for x in fin_s(S, Qr, QSCALE): a(x)
a("s_waitcnt lgkmcnt(0)")
DE = 60
for j in range(4): mfma(v4(vCSQ), a4(aWQ+4*j), a4(aONE), 0 if j == 0 else v4(vCSQ))
for j in range(4): mfma(v4(DE), a4(aWQ+4*j), v4(XF+4*j), 0 if j == 0 else v4(DE))
for r in range(4): a(f"v_mul_f32 v{DE+4+r}, v{S}, v{vCSQ+r}")
for r in range(4): a(f"v_fmac_f32 v{DE+4+r}, v{Qr}, v{DE+r}")
a(f"v_cvt_pk_bf16_f32 v{DE}, v{DE+4}, v{DE+5}\nv_cvt_pk_bf16_f32 v{DE+1}, v{DE+6}, v{DE+7}\ns_add_u32 s{sT0}, s{sQst}, s{sSEL0}")
exec_set(0x00030003, 0x00030003)
a(f"buffer_store_dwordx2 {v2(DE)}, v{vQ0}, {srd(WS_)}, s{sT0} offen sc1")
exec_all()
ts(2)
if opt["deep"] == 1:
    kload(2); kload(3)
    a("s_waitcnt vmcnt(16)\ns_barrier")
elif opt["deep"] in (2, 4):
    kload(2)
    a("s_waitcnt vmcnt(8)\ns_barrier")
else:
    kload(1)
    a("s_waitcnt vmcnt(8)\ns_barrier")
    ts(3)
lna = lab("noarr")
a(f"""s_getreg_b32 s{sT0}, hwreg(HW_REG_XCC_ID)
s_and_b32 s{sT0}, s{sT0}, 7
s_mul_i32 s{sFAST}, s{sT0}, 6
s_cmp_eq_u32 s{sWV}, 0
s_cbranch_scc0 {lna}
s_and_b32 s{sT0}, s2, 7
s_lshl_b32 s{sT0}, s{sT0}, 5
s_lshl_b64 s[{sE}:{sE+1}], 1, s{sFAST}
s_add_u32 s{sE+1}, s{sE+1}, 0x10000
s_atomic_add_x2 s[{sE}:{sE+1}], s[{DBG_}:{DBG_+1}], s{sT0}
{lna}:""")
NPRE = 2 if opt["opre"] else 0
def opre():
    a(f"buffer_load_dword a{aTS+1}, v{vOs}, {srd(WS_)}, s{sOst} offen\nbuffer_load_dword a{aTS+2}, off, {srd(WS_)}, s{sLst}")
CT = 80
voff(t0, [(0,3,32)])
cl = f"buffer_load_dwordx2 {v2(CT)}, v{t0}, {srd(DBG_)}, 0 offen sc1"
if opt["deep"] == 1:
    kfix(0, None); vload(0); a(cl); kfix(1, None); vload(1); kfix(2, 25); vload(2); w = 16
elif opt["deep"] == 2:
    kload(3); kfix(0, None); vload(0); kfix(1, None); a(cl); vload(1); kfix(2, 25); vload(2); w = 16
elif opt["deep"] == 4:
    kload(3); kfix(0, None); vload(0); a(cl); kfix(1, None); kfix(2, 17); vload(1); kfix(3, 17); w = 8
elif opt["deep"] == 5:
    kfix(0, None); kload(2); kfix(1, 8); kload(3); a(cl); kfix(2, 9); vload(0); w = 8
elif opt["deep"] == 6:
    kfix(0, None); kload(2); a(cl); kfix(1, 9); kload(3); w = 8
else:
    kfix(0, None); kload(2); kfix(1, 8); kload(3); kfix(2, 8); vload(0); a(cl); kfix(3, 9); vload(1); w = 8
lp, ld = lab("bar"), lab("barok")
a(f"""s_waitcnt vmcnt({w})
{lp}:
v_lshrrev_b32 v{t1}, 16, v{CT+1}
v_cmp_gt_u32 vcc, 32, v{t1}
s_cbranch_vccz {ld}
{cl}
s_waitcnt vmcnt(0)
s_sub_u32 s{sTO}, s{sTO}, 1
s_cbranch_scc0 {lp}
s_mov_b32 s{sTO}, 0
{ld}:""")
a(f"s_lshl_b32 s{sT0}, s{sQld}, 5\ns_add_u32 s{sT0}, s{sT0}, s{sSEL0}")
for j in range(4): a(f"buffer_load_dwordx4 {v4(QF+4*j)}, v{vOl}, {srd(WS_)}, s{sT0} offen offset:{1024*j} sc1")
if opt["deep"] in (1, 2):
    kfix(3, None); vload(3)
    if opt["opre"]: opre()
elif opt["deep"] == 5:
    kfix(3, None); vload(1)
elif opt["deep"] == 6:
    kfix(2, None); vload(0); kfix(3, 8)
elif opt["deep"]:
    vload(2); vload(3)
    if opt["opre"]: opre()
else: vload(2)
a(f"""s_add_u32 s{sT1}, s{sGB}, {Q_OFF:#x}
s_add_u32 s{sQld}, s{sQld}, s{sT1}
s_add_u32 s{sQst}, s{sQst}, s{sT1}
s_mov_b32 s{sSEL0}, 0x05040100
s_mov_b32 s{sSEL1}, 0x07060302
s_and_b32 s{sT1}, s2, 7
s_waitcnt lgkmcnt(0)
v_readlane_b32 s{sT0}, v{CT}, s{sT1}
v_readlane_b32 s{sT1}, v{CT+1}, s{sT1}
s_lshl_b64 s[{sE}:{sE+1}], 32, s{sFAST}
s_add_u32 s{sE+1}, s{sE+1}, 0x200000
s_xor_b32 s{sT0}, s{sT0}, s{sE}
s_xor_b32 s{sT1}, s{sT1}, s{sE+1}
s_or_b32 s{sT0}, s{sT0}, s{sT1}
s_cmp_eq_u32 s{sT0}, 0
s_cselect_b32 s{sFAST}, 1, 0
s_waitcnt vmcnt({(16 if opt['deep'] in (3, 4) else 8) + (NPRE if opt['deep'] in (1, 2, 3, 4) else 0)})""")
ts(7)
ts_put([(TSB+2*k, k) for k in range(1, 8)], vM)
Dt = lambda t: DT + 4*t
qk = [mf(v4(Dt(tau)), a4(aK+16*tau+4*j), v4(QF+4*j), 0 if j == 0 else v4(Dt(tau))) for tau in (0, 2, 1, 3, 4, 6, 5, 7) for j in range(4)]
NSP = 4 if opt["specq"] else 0
for m in qk[:NSP]: a(m)
a("s_branch L_qk")

a("L_layer:")
until(1)
poll([f"buffer_load_dwordx4 {v4(QF+4*j)}, v{vOl}, {srd(WS_)}, s{sQld} offen offset:{1024*j}" for j in range(4)],
     range(QF, QF+16), vM, spec=[(lambda m=m: a(m)) for m in qk[:NSP]], pipe=PIPE, ack=1)
a("L_qk:")
tsn('qk_start')
ZB = ZA + 4
def xlo(t, X): return [dpp_s("v_add_f32", X+r, Dt(t)+r, Dt(t)+r, "row_ror:8", 0x3) for r in range(4)]
def xhi(t, X): return [dpp_s("v_add_f32", X+r, Dt(t)+r, Dt(t)+r, "row_ror:8", 0xc) for r in range(4)]
def zev(Z): return [dpp_s("v_add_f32", Z+r, XT+r, XT+r, "row_ror:12", 0x5) for r in range(4)]
def zod(Z): return [dpp_s("v_add_f32", Z+r, YT+r, YT+r, "row_ror:4", 0xa) for r in range(4)]
fill = xlo(0, XT) + xhi(2, XT) + zev(ZA) + xlo(1, YT) + xhi(3, YT) + zod(ZA) + \
    [f"v_max3_f32 v{vM}, v{ZA}, v{ZA+1}, v{ZA+2}", f"v_max_f32 v{vM}, v{ZA+3}, v{vM}"] + \
    xlo(4, XT) + xhi(6, XT) + zev(ZB) + xlo(5, YT) + xhi(7, YT) + zod(ZB)
mix(qk[NSP:], fill, 2, 11 - NSP)
vLs, vU = vM + 1, vM + 2
a(f"v_max3_f32 v{vM}, v{ZB}, v{ZB+1}, v{vM}\nv_max3_f32 v{vM}, v{ZB+2}, v{ZB+3}, v{vM}")
dpp("v_max_f32", vM, vM, vM, "row_ror:4"); dpp("v_max_f32", vM, vM, vM, "row_ror:8")
for x in rows_s("v_max_f32", vM, vU): a(x)
P = [XT, YT, QF, QF+4]
for r in range(8): a(f"v_sub_f32 v{ZA+r}, v{ZA+r}, v{vM}")
for r in range(8): a(f"v_exp_f32 v{ZA+r}, v{ZA+r}")
for r in range(4): a(f"v_cvt_pk_bf16_f32 v{P[0]+r}, v{ZA+2*r}, v{ZA+2*r+1}")
tsn('softmax_done')
def late_loads():
    R4 = VR + 128
    a(f"v_lshrrev_b32 v{vU}, 7, v{vL16}\nv_and_b32 v{vU+1}, 0x70, v{vL16}\nv_lshl_add_u32 v{vU}, v{vU}, 10, v{vU+1}")
    soff(sT0, 0, grp=512*1024, slot=128*1024, wv=8*1024, i=128)
    dma(WO_, vU, sT0, 32*1024, 4, WO_L)
def late_resets():
    R4 = VR + 128
    for r in range(4): a(f"v_mov_b32 v{R4+r}, -1")
    soff(sT0, LSTR, wg=4*992, wv=992)
    a(f"s_mov_b32 exec_hi, 0x3fffffff\nbuffer_store_dwordx4 {v4(R4)}, v{vL16}, {srd(WS_)}, s{sT0} offen sc1\ns_mov_b64 exec, -1")
def transpose(t, waits, hooks={}):
    src, dst = VR + 32*(t+1), VR + 32*t
    for p in range(5):
        if p in hooks: hooks[p]()
        if p == 4: break
        if waits[p] is not None: a(f"s_waitcnt vmcnt({waits[p]})")
        for q in range(4):
            a(f"v_perm_b32 v{dst+8*q+p}, v{src+8*p+4+q}, v{src+8*p+q}, s{sSEL0}")
            a(f"v_perm_b32 v{dst+8*q+4+p}, v{src+8*p+4+q}, v{src+8*p+q}, s{sSEL1}")
def pv(t): return [mf(v4(DT+4*e), v4(VR+32*t+4*e), v4(P[t]), 0 if t == 0 else v4(DT+4*e)) for e in range(8)]
FW, vMM, vL, vR, vLSE = QF+8, QF+12, QF+13, QF+14, QF+15
ML = ZA
if opt["deep"] == 5: layer0(lambda lb: (vload(2), transpose(0, [None]*4)))
elif opt["deep"] == 6: layer0(lambda lb: (vload(1), vload(2) if 0 else None, transpose(0, [8, None, None, None])))
elif opt["deep"]: layer0(lambda lb: transpose(0, [None]*4))
else: layer0(lambda lb: (vload(3), (opre() if opt["opre"] else None), transpose(0, [None]*4)))
rot = lambda tt: [dpp_s("v_mov_b32", P[tt]+r, P[0]+r, None, f"row_ror:{16-4*tt}") for r in range(4)]
rs = rows_s("v_add_f32", vLs, vU)
r1, r2, r3 = rot(1), rot(2), rot(3)
s0 = [f"v_add_f32 v{ZA+2*r}, v{ZA+2*r}, v{ZA+2*r+1}" for r in range(4)] + \
     [f"v_add_f32 v{ZA}, v{ZA}, v{ZA+2}", f"v_add_f32 v{ZA+4}, v{ZA+4}, v{ZA+6}", f"v_add_f32 v{vLs}, v{ZA}, v{ZA+4}", r1[0],
      dpp_s("v_add_f32", vLs, vLs, vLs, "row_ror:4"), r1[1], dpp_s("v_add_f32", vLs, vLs, vLs, "row_ror:8"), rs[0], r1[2], rs[1], rs[2], r1[3]]
mix(pv(0), s0)
tsn('pv0')
if PIPE: a(f"s_cmp_eq_u32 s{sLAYER}, 0\ns_cbranch_scc1 L_nq\ns_waitcnt vmcnt(0)\nL_nq:")
if opt["deep"] == 5: layer0(lambda lb: (vload(3), transpose(1, [16, None, None, None])))
elif opt["deep"] == 6: layer0(lambda lb: (vload(2), transpose(1, [8, None, None, None])))
else: layer0(lambda lb: transpose(1, [None]*4))
p1 = pv(1)
for x in [p1[0], rs[3], r2[0], p1[1], rs[4], rs[5], p1[2], "s_mov_b64 exec, 15", f"ds_write_b64 v{vMLw}, {v2(vM)}", "s_mov_b64 exec, -1",
          p1[3], r2[1], r2[2], p1[4], r2[3], r3[0], p1[5], r3[1], r3[2], p1[6], "s_waitcnt lgkmcnt(0)", "s_barrier",
          f"ds_read_b128 {v4(ML)}, v{vMLr}", f"ds_read_b128 {v4(ML+4)}, v{vMLr} offset:16", p1[7], r3[3]]: a(x)
tsn('pv1')
layer0(lambda lb: ((vload(3) if opt["deep"] == 6 else None), (late_loads() if opt["wopos"] == 2 else None), transpose(2, [8 + NPRE + (4 if opt["wopos"] == 2 else 0), None, None, None])))
fac = ["s_waitcnt lgkmcnt(0)", f"v_max3_f32 v{vMM}, v{ML}, v{ML+2}, v{ML+4}", f"v_max_f32 v{vMM}, v{ML+6}, v{vMM}"] + \
      [f"v_sub_f32 v{FW+w}, v{ML+2*w}, v{vMM}" for w in range(4)] + [f"v_exp_f32 v{FW+w}, v{FW+w}" for w in range(4)] + \
      [f"v_mul_f32 v{vL}, v{FW}, v{ML+1}"] + [f"v_fmac_f32 v{vL}, v{FW+w}, v{ML+2*w+1}" for w in range(1, 4)] + \
      [f"v_rcp_f32 v{vR}, v{vL}", f"v_log_f32 v{vLSE}, v{vL}"] + [f"v_mul_f32 v{FW+w}, v{FW+w}, v{vR}" for w in range(4)] + \
      [f"v_add_f32 v{vLSE}, v{vLSE}, v{vMM}"]
mix(pv(2), fac[:12], 2, 2)
tsn('pv2')
def blk3(lb):
    lr = late_resets if opt["lrpos"] == 0 else (lambda: None)
    n = NPRE
    if opt["wopos"] == 2: transpose(3, [10+n, 8+n, 6+n, 4+n], {4: lr})
    elif opt["wopos"] == 3: transpose(3, [6+n, 4+n, 6+n, 4+n], {2: late_loads, 4: lr})
    else: transpose(3, [6+n, 4+n, 2+n, n], {4: lambda: (late_loads(), lr())})
layer0(blk3)
gath = lambda u: [dpp_s("v_mov_b32", DT+k, DT+8*u+k, None, f"row_ror:{4*u}", 1 << u) for k in range(8)]
mix(pv(3), fac[12:] + gath(1)[:6])
for x in gath(1)[6:] + gath(2) + gath(3): a(x)
tsn('pv_done')
until(0)
a(f"ds_write_b128 v{vOCw}, {v4(DT)}\nds_write_b128 v{vOCw}, {v4(DT+4)} offset:1024\ns_mov_b64 exec, 1")
pub(f"buffer_store_dword v{vLSE}, off, {srd(WS_)}, s{sLst}")
a("s_mov_b64 exec, -1\ns_waitcnt lgkmcnt(0)")
tsn('ocw')
a("s_barrier")
tsn('ocbar')
OV = ZA
for w in range(4): a(f"ds_read2st64_b32 {v2(OV+2*w)}, v{vOCr} offset0:{8*w} offset1:{8*w+4}")
a(f"s_waitcnt lgkmcnt(3)\nv_mul_f32 v{OV}, v{FW}, v{OV}\nv_mul_f32 v{OV+1}, v{FW}, v{OV+1}")
for w in range(1, 4): a(f"s_waitcnt lgkmcnt({3-w})\nv_fmac_f32 v{OV}, v{FW+w}, v{OV+2*w}\nv_fmac_f32 v{OV+1}, v{FW+w}, v{OV+2*w+1}")
a(f"v_cvt_pk_bf16_f32 v{OV}, v{OV}, v{OV+1}")
pub(f"buffer_store_dword v{OV}, v{vOs}, {srd(WS_)}, s{sOst} offen")
tsn('O_pub')
OF, LS, DB, EB = T, T+16, T+20, T+28
def wo_frags(lb):
    a(f"s_and_b32 s{sT0}, s{sWV}, 1\ns_lshl_b32 s{sT0}, s{sT0}, 5\nv_subrev_u32 v{EB}, s{sT0}, v{vTR}\ns_waitcnt vmcnt(0)\ns_barrier")
    trread(aWO, EB, WO_L, 4); trread(aWO+16, EB, WO_L+32, 4)
    a("s_waitcnt lgkmcnt(0)")
poll([f"buffer_load_dwordx4 {v4(OF+4*j)}, v{vOl}, {srd(WS_)}, s{sOld} offen offset:{1024*j}" for j in range(4)] +
     [f"buffer_load_dwordx4 {v4(LS)}, v{vG16}, {srd(WS_)}, s{sLld} offen"], range(OF, OF+20), EB, l0=wo_frags, pipe=PIPE, ack=2)
tsn('H2_got')
rm = rows_s("v_max_f32", EB+4, EB+5)
chain = [f"v_max3_f32 v{EB+4}, v{LS}, v{LS+1}, v{LS+2}", f"v_max_f32 v{EB+4}, v{LS+3}, v{EB+4}"] + rm + \
        [f"v_sub_f32 v{EB+r}, v{LS+r}, v{EB+4}" for r in range(4)] + [f"v_exp_f32 v{EB+r}, v{EB+r}" for r in range(4)]
bm = [mf(v4(DB+4*t), v4(OF+4*j), a4(aWO+16*t+4*j), 0 if j == 0 else v4(DB+4*t)) for j in range(4) for t in range(2)]
order = [bm[0], chain[0], chain[1], chain[2], bm[1], bm[2], chain[3], chain[4], chain[5], bm[3], bm[4], chain[6], chain[7], chain[8], bm[5],
         chain[9], chain[10], bm[6], chain[11], chain[12], bm[7], chain[13], chain[14], chain[15]]
for x in order: a(x)
ra = rows_s("v_add_f32", EB+4, EB+5)
a(f"""v_add_f32 v{EB+4}, v{EB}, v{EB+1}
v_add_f32 v{EB+5}, v{EB+2}, v{EB+3}
v_add_f32 v{EB+4}, v{EB+4}, v{EB+5}
{ra[0]}
s_mov_b32 exec_hi, -1
v_mul_f32 v{DB}, v{EB}, v{DB}
{ra[1]}
v_mul_f32 v{DB+4}, v{EB}, v{DB+4}
{ra[2]}
v_fmac_f32 v{DB}, v{EB+1}, v{DB+1}
{ra[3]}
v_fmac_f32 v{DB+4}, v{EB+1}, v{DB+5}
v_fmac_f32 v{DB}, v{EB+2}, v{DB+2}
{ra[4]}
v_fmac_f32 v{DB+4}, v{EB+2}, v{DB+6}
{ra[5]}
v_fmac_f32 v{DB}, v{EB+3}, v{DB+3}
v_fmac_f32 v{DB+4}, v{EB+3}, v{DB+7}
v_rcp_f32 v{EB+4}, v{EB+4}
v_permlane16_swap_b32 v{DB}, v{DB+4}
v_add_f32 v{DB}, v{DB}, v{DB+4}
v_mov_b32 v{DB+4}, v{DB}
v_permlane32_swap_b32 v{DB}, v{DB+4}
v_add_f32 v{DB}, v{DB}, v{DB+4}
s_mov_b32 exec_hi, 0
v_mul_f32 v{DB}, v{DB}, v{EB+4}
buffer_store_dword v{DB}, v{vL4}, {srd(WS_)}, s{sWOst} offen sc1
s_mov_b64 exec, -1""")
tsn('WO_pub')

def ffn_loads(lb):
    W = T + 36
    n = 6
    if opt["lrpos"] == 1: late_resets()
    a(f"""s_cmp_lt_u32 s{sFB}, 28
    s_cbranch_scc0 {lb}
    v_lshrrev_b32 v{W+2}, 7, v{vL16}
    v_and_b32 v{W+1}, 0x70, v{vL16}
    v_mul_u32_u24 v{W}, 3584, v{W+2}
    v_add_u32 v{W}, v{W}, v{W+1}
    v_lshl_add_u32 v{W+1}, v{W+2}, 10, v{W+1}""")
    soff(sT0, 0, i=64*3584, wv=8*3584, slot=1024, grp=128)
    a(f"s_mov_b32 s{sT1}, s{sT0}")
    dma(WG_, W, sT0, 32*3584, 2, WG_L); dma(WU_, W, sT1, 32*3584, 2, WU_L)
    soff(sT0, 0, slot=8*65536, grp=65536, wv=8192, i=128)
    dma(WD_, W+1, sT0, 32*1024, 2, WD_L)
    if opt["pre"] & 1:
        a(f"v_lshlrev_b32 v{W}, 3, v{vL16}")
        soff(sT0, 0, True, idx=13*128, wv=4*128)
        a(f"s_cmp_eq_u32 s{sWV}, 3\ns_cselect_b32 exec_lo, 1, 15\ns_mov_b32 exec_hi, 0\nbuffer_load_dword v{W+3}, v{W}, {srd(WS_)}, s{sT0} offen sc1\ns_mov_b64 exec, -1")
        n += 1
    a(f"s_waitcnt vmcnt({n})\ns_branch L_acked")
M = T
def reduce32(soffr, slp, first=False):
    if first: layer0(ffn_loads)
    a("s_waitcnt vmcnt(0)")
    if first: a("L_acked:")
    if slp: a(f"s_sleep {slp}")
    poll([f"buffer_load_dwordx4 {v4(M+4*u)}, v{vL16}, {srd(WS_)}, s{soffr} offen offset:{1024*u}" for u in range(4)], range(M, M+16), M+16)
    for r in range(4): a(f"v_add_f32 v{M+r}, v{M+r}, v{M+4+r}")
    for r in range(4): a(f"v_add_f32 v{M+8+r}, v{M+8+r}, v{M+12+r}")
    for r in (0, 2, 1, 3): a(f"v_add_f32 v{M+r}, v{M+r}, v{M+8+r}")
    a(f"""v_permlane32_swap_b32 v{M}, v{M+2}
    v_permlane32_swap_b32 v{M+1}, v{M+3}
    v_add_f32 v{M}, v{M}, v{M+2}
    v_add_f32 v{M+1}, v{M+1}, v{M+3}""")
    dpp("v_add_f32", M, M, M, "row_ror:8"); dpp("v_add_f32", M+1, M+1, M+1, "row_ror:8")
    a(f"""v_mov_b32 v{M+2}, v{M}
    v_mov_b32 v{M+3}, v{M+1}
    v_permlane16_swap_b32 v{M}, v{M+2}
    v_permlane16_swap_b32 v{M+1}, v{M+3}
    v_add_f32 v{vX0}, v{vX0}, v{M}
    v_add_f32 v{vX1}, v{vX1}, v{M+1}
    v_add_f32 v{vX0}, v{vX0}, v{M+2}
    v_add_f32 v{vX1}, v{vX1}, v{M+3}
    v_cvt_pk_bf16_f32 v{M}, v{vX0}, v{vX1}""")
def stats_s():
    return [f"v_lshlrev_b32 v{vX0}, 16, v{M}", f"v_and_b32 v{vX1}, 0xffff0000, v{M}", f"v_add_f32 v{M+1}, v{vX0}, v{vX1}",
            f"v_mul_f32 v{M+2}, v{vX0}, v{vX0}", f"v_fmac_f32 v{M+2}, v{vX1}, v{vX1}", f"v_permlane32_swap_b32 v{M+1}, v{M+2}",
            f"v_add_f32 v{M+1}, v{M+1}, v{M+2}", dpp_s("v_add_f32", M+1, M+1, M+1, "quad_perm:[1,0,3,2]"),
            dpp_s("v_add_f32", M+1, M+1, M+1, "quad_perm:[2,3,0,1]"), dpp_s("v_add_f32", M+1, M+1, M+1, "row_ror:4")]
reduce32(sM1, opt["slp1"], True)
tsn('M1_done')
XC, DG, DU = T+4, T+12, T+16
st = stats_s()
a(f"ds_write_b32 v{vXLw}, v{M}")
for x in st[:5]: a(x)
a(f"s_waitcnt lgkmcnt(0)\ns_barrier\ns_cmp_lt_u32 s{sFB}, 28\ns_cbranch_scc0 L_stageD")
a(f"ds_read_b128 {v4(XC)}, v{vHr} offset:256\nds_read_b128 {v4(XC+4)}, v{vHr} offset:{256+64}")
def ffn_frags(lb):
    trread(aWG, vTR, WG_L, 2); trread(aWU, vTR, WU_L, 2)
layer0(ffn_frags)
for x in st[5:8]: a(x)
a("s_waitcnt lgkmcnt(0)")
cm = [mf(v4(DG), v4(XC), a4(aWG), 0), mf(v4(DU), v4(XC), a4(aWU), 0), mf(v4(DG), v4(XC+4), a4(aWG+4), v4(DG)), mf(v4(DU), v4(XC+4), a4(aWU+4), v4(DU))]
mix(cm, st[8:], 1)
a("s_mov_b32 exec_lo, 1\ns_mov_b32 exec_hi, 1")
pub(f"buffer_store_dword v{M+1}, v{vXs}, {srd(WS_)}, s{sST1st} offen")
a(f"s_mov_b64 exec, 0xffff\nv_mov_b32 v{DG+2}, v{DU}\nv_mov_b32 v{DG+3}, v{DU+1}")
pub(f"buffer_store_dwordx4 {v4(DG)}, v{vC16}, {srd(WS_)}, s{sGUst} offen")
exec_all()
def cs_pub(lb):
    C = T + 24
    for j in range(2): mfma(v4(C), a4(aONE), a4(aWG+4*j), 0 if j == 0 else v4(C))
    for j in range(2): mfma(v4(C+4), a4(aONE), a4(aWU+4*j), 0 if j == 0 else v4(C+4))
    trread(aWD, vTR, WD_L, 2)
    soff(sT0, CS_OFF, True, slot=4096, i=512, wv=128)
    a(f"v_lshrrev_b32 v{C+8}, 1, v{vC16}\nv_mov_b32 v{C+1}, v{C+4}\ns_mov_b64 exec, 0xffff")
    pub(f"buffer_store_dwordx2 {v2(C)}, v{C+8}, {srd(WS_)}, s{sT0} offen")
    exec_all()
layer0(cs_pub)
tsn('GU_pub')
a("L_stageD:")
G, SD, DD = T, T+8, T+12
def colsums(lb):
    C = T + 16
    a(f"v_lshrrev_b32 v{C+4}, 1, v{vGUl}\ns_sub_u32 s{sT0}, s{sGUld}, s{sGB}\ns_sub_u32 s{sT0}, s{sT0}, {GU_OFF:#x}\ns_lshr_b32 s{sT0}, s{sT0}, 1\ns_add_u32 s{sT0}, s{sT0}, s{sGB}")
    poll([f"buffer_load_dwordx2 {v2(C+2*u)}, v{C+4}, {srd(WS_)}, s{sT0} offen offset:{512*u}" for u in range(2)], range(C, C+4), C+5)
    a(f"""v_add_f32 v{C}, v{C}, v{C+2}
    v_add_f32 v{C+1}, v{C+1}, v{C+3}
    v_permlane16_swap_b32 v{C}, v{C+1}
    v_add_f32 v{vCS}, v{C}, v{C+1}
    v_mov_b32 v{C}, v{vCS}
    v_permlane32_swap_b32 v{vCS}, v{C}
    v_add_f32 v{vCS}, v{vCS}, v{C}""")
poll([f"buffer_load_dwordx4 {v4(G+4*u)}, v{vGUl}, {srd(WS_)}, s{sGUld} offen offset:{1024*u}" for u in range(2)] +
     [f"buffer_load_dwordx2 {v2(SD)}, v{vSTd}, {srd(WS_)}, s{sST1ld} offen"], range(G, G+10), DD, between=lambda: layer0(colsums), pipe=PIPE, ack=4)
tsn('H4_got')
S2, G2, HF = T+24, T+26, T+32
sd = [dpp_s("v_add_f32", S2, SD, SD, "row_ror:1"), dpp_s("v_add_f32", S2+1, SD+1, SD+1, "row_ror:1")]
for n in (2, 4, 8): sd += [dpp_s("v_add_f32", S2, S2, S2, f"row_ror:{n}"), dpp_s("v_add_f32", S2+1, S2+1, S2+1, f"row_ror:{n}")]
sd += fin_s(S2, S2+1) + [f"v_mul_f32 v{S2}, v{S2}, v{vCS}"]
gd = [f"v_add_f32 v{G2+r}, v{G+r}, v{G+4+r}" for r in range(4)] + \
     [f"v_permlane32_swap_b32 v{G2}, v{G2+1}", f"v_permlane32_swap_b32 v{G2+2}, v{G2+3}", f"v_add_f32 v{G2}, v{G2}, v{G2+1}",
      f"v_add_f32 v{G2+2}, v{G2+2}, v{G2+3}", f"v_permlane16_swap_b32 v{G2}, v{G2+2}", f"v_add_f32 v{G2}, v{G2}, v{G2+2}"]
for x in [sd[0], sd[1], gd[0], sd[2], sd[3], gd[1], sd[4], sd[5], gd[2], sd[6], sd[7], gd[3], sd[8], sd[9], gd[4], sd[10], gd[5], sd[11], gd[6],
          sd[12], gd[7], sd[13], gd[8], sd[14], gd[9], sd[15]]: a(x)
a(f"""v_fmac_f32 v{S2}, v{S2+1}, v{G2}
v_mov_b32 v{G2+1}, v{S2}
v_permlane16_swap_b32 v{S2}, v{G2+1}
v_max_f32 v{S2}, 0, v{S2}
v_mul_f32 v{G2}, v{S2}, v{G2+1}
v_cvt_pk_bf16_f32 v{G2}, v{G2}, v{G2}
ds_write_b16 v{vHw}, v{G2}
s_waitcnt lgkmcnt(0)
s_barrier
ds_read_b128 {v4(HF)}, v{vHr}
ds_read_b128 {v4(HF+4)}, v{vHr} offset:64
s_waitcnt lgkmcnt(1)""")
mfma(v4(DD), a4(aWD), v4(HF), 0)
a("s_waitcnt lgkmcnt(0)")
mfma(v4(DD), a4(aWD+4), v4(HF+4), v4(DD))
a(f"s_bfe_u32 s{sT0}, s2, 0x20006\ns_and_b32 s{sT1}, s2, 7")
exec_set(0x00030003, 0x00030003)
a(f"buffer_store_dwordx4 {v4(DD)}, v{vDNs}, {srd(WS_)}, s{sDNst} offen sc1")
exec_all()
tsn('DN_pub')
lgo, lnm = lab("go"), lab("nomid")
a(f"""s_mul_i32 s{sT1}, s{sT1}, s{sLAYER}
s_cmp_eq_u32 s{sT0}, s{sWV}
s_cbranch_scc0 {lnm}
s_cmp_eq_u32 s{sT1}, 0
s_cbranch_scc0 L_fin""")
reduce32(sM2, opt["slp2"])
exec_set(0xff, 0xff)
a(f"s_cmp_eq_u32 s{sLAYER}, 0\ns_cbranch_scc0 L_out")
pub(f"buffer_store_dword v{M}, v{vXs}, {srd(WS_)}, s{sXst} offen")
exec_all()
for x in stats_s()[:]: a(x)
a("s_mov_b32 exec_lo, 1\ns_mov_b32 exec_hi, 1")
pub(f"buffer_store_dword v{M+1}, v{vXs}, {srd(WS_)}, s{sST2st} offen")
exec_all()
a("L_midback:")
tsn('M2_done')
a("s_barrier")
def nomid():
    a(f"s_cmp_eq_u32 s{sLAYER}, 0\ns_cbranch_scc0 L_fin")
    if opt["pre"] & 2:
        a(f"s_add_u32 s{sT0}, s{sT0}, 1\ns_and_b32 s{sT0}, s{sT0}, 3\ns_cmp_eq_u32 s{sT0}, s{sWV}\ns_cbranch_scc0 L_midback\nv_lshlrev_b32 v{T+40}, 3, v{vL16}")
        soff(sT0, LSTR + GU_OFF, True, idx=19*128)
        a(f"s_mov_b64 exec, 0x7ffff\nbuffer_load_dword v{T+41}, v{T+40}, {srd(WS_)}, s{sT0} offen sc1\ns_mov_b64 exec, -1\ns_waitcnt vmcnt(0)")
    a("s_branch L_midback")
deferred.append((lnm, nomid))
XE, SE, XR, DE = T, T+16, T+20, T+24
poll([f"buffer_load_dwordx4 {v4(XE+4*j)}, v{vXl}, {srd(WS_)}, s{sXE} offen offset:{64*j}" for j in range(4)] +
     [f"buffer_load_dwordx2 {v2(SE)}, v{vSTl}, {srd(WS_)}, s{sST2ld} offen", f"buffer_load_dwordx2 {v2(SE+2)}, v{vSTl}, {srd(WS_)}, s{sST2ld} offen offset:128",
      f"buffer_load_dword v{XR}, v{vXs}, {srd(WS_)}, s{sXst} offen"], range(XE, XE+21), DE, pipe=PIPE, ack=8)
tsn('H5b_got')
se = [f"v_add_f32 v{SE+6}, v{SE}, v{SE+2}", f"v_add_f32 v{SE+7}, v{SE+1}, v{SE+3}"]
SE += 6
for n in (2, 4, 8): se += [dpp_s("v_add_f32", SE, SE, SE, f"row_ror:{n}"), dpp_s("v_add_f32", SE+1, SE+1, SE+1, f"row_ror:{n}")]
em = [mf(v4(DE), a4(aWQ+4*j), v4(XE+4*j), 0 if j == 0 else v4(DE)) for j in range(4)]
for x in [se[0], se[1], em[0], se[2], se[3], em[1], se[4], se[5], em[2], se[6], se[7], em[3]]: a(x)
fs = fin_s(SE, SE+1, QSCALE)
for x in fs[:6] + [f"s_add_u32 s{WS_}, s{WS_}, {LSTR:#x}"] + fs[6:] + [f"s_addc_u32 s{WS_+1}, s{WS_+1}, 0"]: a(x)
for r in range(4): a(f"v_mul_f32 v{DE+4+r}, v{SE}, v{vCSQ+r}")
exec_set(0x00030003, 0x00030003)
for r in range(4): a(f"v_fmac_f32 v{DE+4+r}, v{SE+1}, v{DE+r}")
a(f"v_cvt_pk_bf16_f32 v{DE}, v{DE+4}, v{DE+5}\nv_cvt_pk_bf16_f32 v{DE+1}, v{DE+6}, v{DE+7}")
pub(f"buffer_store_dwordx2 {v2(DE)}, v{vQs}, {srd(WS_)}, s{sQst} offen")
exec_all()
a(f"s_mov_b32 s{sLAYER}, 1\nv_lshlrev_b32 v{vX0}, 16, v{XR}\nv_and_b32 v{vX1}, 0xffff0000, v{XR}")
ts_put([(TSB+2*k, 8+k) for k in range(12)], DE+8)
a("s_branch L_layer")
n = 0
while n < len(deferred):
    l, fn = deferred[n]; a(f"{l}:"); fn(); n += 1
a(f"""L_out:
s_sub_u32 s{sT0}, s{sXst}, s{sGB}
s_sub_u32 s{sT0}, s{sT0}, {X2_OFF:#x}
buffer_store_dword v{M}, v{vXs}, {srd(OUT_)}, s{sT0} offen
s_mov_b64 exec, -1
L_fin:""")
until(2)
if TS:
    ts(11)
    a(f"s_memrealtime s[{sE}:{sE+1}]")
    ts_put([(TSB+2*k, 24+k) for k in range(12)] + [(sE, 43), (sFAST, 40), (sTO, 41)], T+40)
    soff(sT0, TS_OFF - LSTR, wg=1024, wv=256)
    a(f"buffer_store_dword v{T+40}, v{vL4}, {srd(WS_)}, s{sT0} offen")
a("L_end:\ns_endpgm")

body = a.finalize()
kn = opt["name"]
ref = open("cdna_kernels/" + NAME + ".s.ref").read().split("\n")
head = [l for l in ref if l.startswith(";") and "@launch" not in l and "Override launch" not in l and "grid=ceil" not in l][:13]
src = "\n".join(head) + f"""
{"; tsset " + opt["tsset"] + chr(10) if TS else ""}; One persistent launch, one workgroup per CU: K/V stay in registers for both layers, weight tiles in AGPRs.
; @launch grid=(256,1,1) block=(256,1,1) lds={LDS_BYTES}
.amdgcn_target "amdgcn-amd-amdhsa--gfx950"
.text
.globl {kn}
.p2align 8
.type {kn},@function
{kn}:
{body}
.section .rodata,"a"
.p2align 6
.amdhsa_kernel {kn}
  .amdhsa_next_free_vgpr 512
  .amdhsa_next_free_sgpr 102
  .amdhsa_accum_offset 256
  .amdhsa_group_segment_fixed_size 0
  .amdhsa_kernarg_size 96
  .amdhsa_user_sgpr_count 2
  .amdhsa_user_sgpr_kernarg_segment_ptr 1
  .amdhsa_system_sgpr_workgroup_id_x 1
.end_amdhsa_kernel
"""
open(out_path, "w").write(src)
print("nops inserted:", a.nops, "lines:", len(body.split("\n")), file=sys.stderr)
```

```python
import sys, math, struct
from asmlib import Asm

NAME = "interleave_layers__gqa_block_cached__glu_gated_reglu__decode"
opt = dict(kvnt="nt", wnt="nt", ts=0, fast=1, tobits=20, name=NAME+"_kernel", until=0, upos=0,
           pre=3, slp1=4, slp2=4, wopos=4, specq=1, outw=0, outpre=0, ldspad=0, pipe=0, fack=3, rslp=0, fslp=0, deep=1, opre=1, lrpos=1, tsset="qk_start,softmax_done,pv_done,O_pub,H2_got,WO_pub,M1_done,GU_pub,H4_got,DN_pub,M2_done,H5b_got")
out_path = sys.argv[1]
for x in sys.argv[2:]:
    k, v = x.split("=")
    assert k in opt, k
    opt[k] = v if k in ("kvnt", "wnt", "name", "tsset") else int(v)
fl = lambda s: "" if s == "none" else " " + s.replace("+", " ")
KVNT = fl(opt["kvnt"]); WNT = fl(opt["wnt"])
TS = opt["ts"]
def f2u(x): return struct.unpack("<I", struct.pack("<f", x))[0]

GR = 0x17000
CS_OFF, GU_OFF, ST1_OFF, X2_OFF, ST2_OFF, LSE_OFF, O_OFF, Q_OFF = 0x0, 0x4000, 0xC000, 0xC400, 0xCC00, 0xCE00, 0xD000, 0x15000
WO_OFF, DN_OFF = 8*GR, 8*GR + 0x20000
LSTR = 8*GR + 0x40000
assert LSTR == 1024*992
Q0_OFF = 0x200000
TS_OFF = 0x600000
WS_SIZE = 0x800000
WQ_L, WO_L, WG_L, WU_L, WD_L = 0, 16384, 32768, 40960, 49152
OC_L = 57344; OC_W = 2048
ML_L = OC_L + 4*OC_W
H_L = ML_L + 128
XL_L = H_L + 256
LDS_BYTES = XL_L + 256
sWV, sGB, sFB, sLAYER, sFAST, sTO = 3, 4, 5, 6, 7, 76
K_, V_, WS_, WQ_, WO_, WG_, WU_, WD_, X_, OUT_, DBG_ = 8, 12, 16, 20, 24, 28, 32, 36, 40, 44, 48
def srd(n): return f"s[{n}:{n+3}]"
(sKV, sQld, sQst, sOst, sLst, sOld, sLld, sWOst, sM1, sM2, sXst, sST1st, sST2st, sXE, sST1ld, sST2ld,
 sGUst, sGUld, sDNst) = range(77, 96)
sT0, sT1, sSEL0, sSEL1 = 96, 97, 98, 99
sE = 100
TSB = 52
vL16, vL4, vOs, vOl, vXl, vC16, vG16, vQs, vDNs, vGUl, vXs = range(0, 11)
vOCw, vOCr, vMLw, vMLr, vHw, vHr, vTR, vSTl, vSTd, vXLw = range(11, 21)
vX0, vX1, vCS = 21, 22, 23
vCSQ = 24
T = 28
QF, DT, vM, XT, YT, ZA = 28, 44, 76, 80, 84, 88
VR = 96
vTSV = VR + 128 + 31
def v4(n): return f"v[{n}:{n+3}]"
def v2(n): return f"v[{n}:{n+1}]"
def a4(n): return f"a[{n}:{n+3}]"
aK, aWQ, aWO, aWG, aWU, aWD, aONE, aTS = 0, 128, 144, 176, 184, 192, 200, 204

a = Asm()
deferred = []
uid = [0]
def lab(p):
    uid[0] += 1
    return f"L_{p}_{uid[0]}"
def exec_set(lo, hi):
    if hi == 0: a(f"s_mov_b64 exec, {lo:#x}")
    else: a(f"s_mov_b32 exec_lo, {lo:#x}\ns_mov_b32 exec_hi, {hi:#x}")
def exec_all(): a("s_mov_b64 exec, -1")

F = dict(grp=(2,0,3), idx=(2,3,5), i=(2,3,3), slot=(2,6,2), s=(2,3,4), ba=(2,7,1), wg=(2,0,8),
         i0=(2,3,1), ih=(2,4,2), wv=(sWV,0,2), w0=(sWV,0,1), w1=(sWV,1,1))
def soff(dst, const, gb=False, **terms):
    first = True
    for name, mul in terms.items():
        src, lo, w = F[name]
        d = dst if first else sE
        if name in ("wg", "wv"): s = f"s{src}"
        else:
            a(f"s_bfe_u32 s{d}, s{src}, {(w << 16) | lo:#x}"); s = f"s{d}"
        if mul & (mul-1) == 0: a(f"s_lshl_b32 s{d}, {s}, {mul.bit_length()-1}")
        else: a(f"s_mul_i32 s{d}, {s}, {mul}")
        if not first: a(f"s_add_u32 s{dst}, s{dst}, s{sE}")
        first = False
    if first:
        a(f"s_add_u32 s{dst}, s{sGB}, {const:#x}" if gb else f"s_mov_b32 s{dst}, {const:#x}"); return
    if gb: a(f"s_add_u32 s{dst}, s{dst}, s{sGB}")
    if const: a(f"s_add_u32 s{dst}, s{dst}, {const:#x}")
vLane, vTmp = 30, 31
def voff(dst, terms, sadd=None, const=0):
    first = True
    for lo, w, mul in terms:
        if first:
            if lo == 0 and w == 6: src = vLane
            else: a(f"v_bfe_u32 v{dst}, v{vLane}, {lo}, {w}"); src = dst
            if mul & (mul-1) == 0: a(f"v_lshlrev_b32 v{dst}, {mul.bit_length()-1}, v{src}")
            else: a(f"v_mul_u32_u24 v{dst}, {mul}, v{src}")
        else:
            a(f"v_bfe_u32 v{vTmp}, v{vLane}, {lo}, {w}")
            if mul & (mul-1) == 0: a(f"v_lshl_add_u32 v{dst}, v{vTmp}, {mul.bit_length()-1}, v{dst}")
            else: a(f"v_mul_u32_u24 v{vTmp}, {mul}, v{vTmp}\nv_add_u32 v{dst}, v{dst}, v{vTmp}")
        first = False
    if const: a(f"v_add_u32 v{dst}, {const}, v{dst}")
    if sadd is not None: a(f"v_add_u32 v{dst}, s{sadd}, v{dst}")

def pub(*stores):
    wt = [s + (" sc1" if s.startswith("buffer") else "") for s in stores]
    if not opt["fast"]:
        for s in wt: a(s)
        return
    ls, lb = lab("slow"), lab("back")
    a(f"s_cmp_eq_u32 s{sFAST}, 1\ns_cbranch_scc0 {ls}")
    for s in stores: a(s)
    a(f"{lb}:")
    deferred.append((ls, lambda: a("\n".join(wt) + f"\ns_branch {lb}")))

def layer0(fn, cond=None):
    ls, lb = lab("l0"), lab("l0back")
    a(f"s_cmp_eq_u32 s{sLAYER}, 0\ns_cbranch_scc1 {ls}\n{lb}:")
    def blk():
        fn(lb); a(f"s_branch {lb}")
    deferred.append((ls, blk))

def check_ops(regs, tmp):
    r = list(regs); ops = []
    ops.append(f"v_max3_u32 v{tmp}, v{r[0]}, v{r[1]}, v{r[2]}"); r = r[3:]
    while len(r) >= 2:
        ops.append(f"v_max3_u32 v{tmp}, v{r[0]}, v{r[1]}, v{tmp}"); r = r[2:]
    if r: ops.append(f"v_max_u32 v{tmp}, v{r[0]}, v{tmp}")
    return ops
def poll(loads, regs, tmp, between=None, spec=(), pipe=False, ack=0, l0=None):
    lc, lr, ld = lab("chk"), lab("retry"), lab("got")
    if l0:
        lw = lab("l0chk")
        def blk(lb):
            for l in loads: a(l + " sc1")
            l0(lb)
            a(f"s_branch {lw}")
        layer0(blk)
    if ack & opt["fack"]:
        a("s_waitcnt vmcnt(0)")
        if opt["fslp"]: a(f"s_sleep {opt['fslp']}")
    for l in loads: a(l + " sc1")
    if between: between()
    a("s_waitcnt vmcnt(0)")
    if l0: a(f"{lw}:")
    ops = check_ops(regs, tmp)
    if not pipe: a(f"{lc}:")
    o, sp = list(ops), list(spec)
    while o or sp:
        if sp: sp.pop(0)()
        for _ in range(2 if sp else len(o)):
            if o: a(o.pop(0))
    a(f"v_cmp_eq_u32 vcc, -1, v{tmp}\ns_cbranch_vccnz {lr}\n{ld}:")
    def retry():
        lx = lab("giveup")
        if not pipe:
            a(f"s_sub_u32 s{sTO}, s{sTO}, 1\ns_cbranch_scc1 {lx}\ns_mov_b64 exec, vcc")
            if ack and opt["rslp"]: a(f"s_sleep {opt['rslp']}")
            for l in loads: a(l + " sc1")
            a(f"s_mov_b64 exec, -1\ns_waitcnt vmcnt(0)\ns_branch {lc}\n{lx}:\ns_mov_b32 s{sTO}, 0\ns_branch {ld}")
            return
        a("s_mov_b64 exec, vcc")
        for l in loads: a(l + " sc1")
        a(f"s_sleep {opt['pipe']}\n{lc}:")
        for l in loads: a(l + " sc1")
        a(f"s_waitcnt vmcnt({len(loads)})")
        for x in ops: a(x)
        a(f"v_cmp_eq_u32 vcc, -1, v{tmp}\ns_sub_u32 s{sTO}, s{sTO}, 1\ns_cbranch_scc1 {lx}\ns_and_b64 exec, exec, vcc\ns_cbranch_scc1 {lc}")
        lo = lab("ok")
        a(f"{lo}:\ns_mov_b64 exec, -1")
        for f in spec: f()
        a(f"s_branch {ld}\n{lx}:\ns_mov_b32 s{sTO}, 0\ns_branch {lo}")
    deferred.append((lr, retry))
PIPE = bool(opt["pipe"])

def ts(k):
    if TS: a(f"s_memtime s[{TSB+2*k}:{TSB+2*k+1}]")
TSSET = opt["tsset"].split(",")
assert len(TSSET) <= 12
def tsn(name):
    if name in TSSET: ts(TSSET.index(name))
def ts_put(pairs, tmp):
    if not TS: return
    a(f"s_waitcnt lgkmcnt(0)\nv_accvgpr_read_b32 v{tmp}, a{aTS}")
    for s, l in pairs: a(f"v_writelane_b32 v{tmp}, s{s}, {l}")
    a(f"v_accvgpr_write_b32 a{aTS}, v{tmp}")
def until(pos):
    if opt["until"] and opt["upos"] == pos:
        l = lab("until")
        a(f"v_accvgpr_read_b32 v79, a{aTS}\nv_readfirstlane_b32 s54, v79\n{l}:\ns_memrealtime s[52:53]\ns_waitcnt lgkmcnt(0)\ns_sub_u32 s52, s52, s54\ns_cmp_lt_u32 s52, {opt['until']}\ns_cbranch_scc1 {l}")

def mk_srd(d, lo, size):
    a(f"s_mov_b32 s{d}, s{lo}\ns_and_b32 s{d+1}, s{lo+1}, 0xffff\ns_mov_b32 s{d+2}, {size:#x}\ns_mov_b32 s{d+3}, 0x20000")
def mfma(d, A, B, c): a(f"v_mfma_f32_16x16x32_bf16 {d}, {A}, {B}, {c}")
def dpp_s(op, d, s0, s1, ctrl, bank=0xf):
    if s1 is None: return f"{op}_dpp v{d}, v{s0} {ctrl} row_mask:0xf bank_mask:{bank:#x}"
    return f"{op}_dpp v{d}, v{s0}, v{s1} {ctrl} row_mask:0xf bank_mask:{bank:#x}"
def dpp(*k): a(dpp_s(*k))
def rows_s(op, r, t):
    return [f"v_mov_b32 v{t}, v{r}", f"v_permlane16_swap_b32 v{r}, v{t}", f"{op} v{r}, v{r}, v{t}",
            f"v_mov_b32 v{t}, v{r}", f"v_permlane32_swap_b32 v{r}, v{t}", f"{op} v{r}, v{r}, v{t}"]
def mix(main, fill, per=2, start=0):
    fill = list(fill)
    for n, m in enumerate(main):
        a(m)
        if n >= start:
            for _ in range(per):
                if fill: a(fill.pop(0))
    for f in fill: a(f)
def mf(d, A, B, c): return f"v_mfma_f32_16x16x32_bf16 {d}, {A}, {B}, {c}"

def dma(srdn, voff_, sbase, step, n, ldsbase):
    for i in range(n):
        a(f"s_lshl_b32 s{sE}, s{sWV}, 10\ns_add_u32 m0, s{sE}, {ldsbase + i*4096}")
        if i: a(f"s_add_u32 s{sbase}, s{sbase}, {step}")
        a(f"buffer_load_dwordx4 v{voff_}, {srd(srdn)}, s{sbase} offen{WNT} lds")
def trread(areg, vaddr, ldsoff, ksteps):
    for j in range(ksteps):
        for u in range(2):
            a(f"ds_read_b64_tr_b16 a[{areg+4*j+2*u}:{areg+4*j+2*u+1}], v{vaddr} offset:{ldsoff + (32*j+4*u)*128}")
def fin_s(S, Q, scale=1.0):
    r = [f"v_mul_f32 v{S}, {f2u(-1/512):#x}, v{S}", f"v_mul_f32 v{Q}, {f2u(1/512):#x}, v{Q}",
         f"v_fma_f32 v{Q}, -v{S}, v{S}, v{Q}", f"v_max_f32 v{Q}, 0, v{Q}", f"v_add_f32 v{Q}, {f2u(1e-5):#x}, v{Q}",
         f"v_rsq_f32 v{Q}, v{Q}"]
    if scale != 1.0: r.append(f"v_mul_f32 v{Q}, {f2u(scale):#x}, v{Q}")
    r.append(f"v_mul_f32 v{S}, v{S}, v{Q}")
    return r
QSCALE = math.log2(math.e) / math.sqrt(128.0)

if TS or opt["until"]:
    a(f"s_memtime s[52:53]\ns_memrealtime s[54:55]\ns_waitcnt lgkmcnt(0)\nv_mov_b32 v40, 0")
    if TS: a("v_writelane_b32 v40, s52, 0\nv_writelane_b32 v40, s54, 42")
    else: a("v_mov_b32 v40, s54")
    a(f"v_accvgpr_write_b32 a{aTS}, v40")
a(f"""s_cmp_ge_u32 s2, 256
s_cbranch_scc1 L_end
s_load_dwordx16 s[52:67], s[0:1], 0
s_load_dwordx8 s[68:75], s[0:1], 64
v_lshrrev_b32 v{vTmp}, 6, v0
v_and_b32 v{vLane}, 63, v0
v_readfirstlane_b32 s{sWV}, v{vTmp}
s_mov_b32 s{sLAYER}, 0
s_mov_b32 s{sTO}, {1 << opt['tobits']:#x}""")
vK, vW, vSX, vQ0 = 32, 33, 34, 35
XF, XS, RST = 44, 80, 88
voff(vL16, [(0,6,16)])
voff(vW, [(3,3,8192), (0,3,16)])
voff(vXl, [(0,1,1024), (4,2,16)])
voff(vSX, [(0,1,1024), (1,3,128), (4,2,32)])
voff(vXs, [(0,3,8), (5,1,4)])
voff(vK, [(0,2,1024), (2,1,256), (3,1,64), (4,2,16)])
for r in range(4): a(f"v_mov_b32 v{RST+r}, -1")
soff(sT0, 0, slot=128*8192, wv=8*8192, grp=1024, i=128)
soff(sXE, 0, slot=256)
soff(sXst, 0, w1=1024, i=128, w0=64)
soff(sT1, 0, wg=4*992, wv=992)
soff(sKV, 0, ba=8<<21, grp=1<<21, s=1<<17, wv=1<<13)
a("s_waitcnt lgkmcnt(0)")
mk_srd(WQ_, 58, 512*8192)
dma(WQ_, vW, sT0, 32*8192, 4, WQ_L)
mk_srd(X_, 52, 2048)
for j in range(4): a(f"buffer_load_dwordx4 {v4(XF+4*j)}, v{vXl}, {srd(X_)}, s{sXE} offen offset:{64*j}")
a(f"buffer_load_dwordx4 {v4(XS)}, v{vSX}, {srd(X_)}, 0 offen\nbuffer_load_dwordx4 {v4(XS+4)}, v{vSX}, {srd(X_)}, 0 offen offset:16")
a(f"buffer_load_dword v{vX1}, v{vXs}, {srd(X_)}, s{sXst} offen")
mk_srd(WS_, 74, WS_SIZE)
a(f"s_mov_b32 exec_hi, 0x3fffffff\nbuffer_store_dwordx4 {v4(RST)}, v{vL16}, {srd(WS_)}, s{sT1} offen sc1\ns_mov_b64 exec, -1")
mk_srd(K_, 54, 0x2000000)
def kload(t):
    for hi in range(2):
        a(f"s_add_u32 s{sT0}, s{sKV}, {t*32768 + hi*4096}")
        for j in range(4):
            a(f"buffer_load_dwordx4 {v4(VR+32*(t+1)+16*hi+4*j)}, v{vK}, {srd(K_)}, s{sT0} offen offset:{128*(j>>1)+512*(j&1)}{KVNT}")
def kfix(t, wait):
    if wait is not None: a(f"s_waitcnt vmcnt({wait})")
    if t: ts(3 + t)
    for hi in range(2):
        for hf in range(2):
            A = VR + 32*(t+1) + 16*hi + 8*hf; B = A + 4; dst = aK + 16*(t+4*hi) + 8*hf
            for r in range(4): a(f"v_mov_b32 v{VR+r}, v{A+r}")
            for r in range(4): dpp("v_mov_b32", VR+r, B+r, None, "row_ror:8", 0xc)
            for r in range(4): dpp("v_mov_b32", B+r, A+r, None, "row_ror:8", 0x3)
            for r in range(4): a(f"v_accvgpr_write_b32 a{dst+r}, v{VR+r}")
            for r in range(4): a(f"v_accvgpr_write_b32 a{dst+4+r}, v{B+r}")
def vload(t):
    for i in range(8):
        if i % 4 == 0: a(f"s_add_u32 s{sT0}, s{sKV}, {t*32768 + (i>>2)*4096}")
        a(f"buffer_load_dwordx4 {v4(VR+32*(t+1)+4*i)}, v{vL16}, {srd(V_)}, s{sT0} offen offset:{1024*(i&3)}{KVNT}")
kload(0)
if opt["deep"] in (1, 2, 4): kload(1)
mk_srd(V_, 56, 0x2000000); mk_srd(WO_, 60, 4096*1024); mk_srd(WG_, 64, 512*3584); mk_srd(WU_, 66, 512*3584)
mk_srd(WD_, 68, 1792*1024); mk_srd(OUT_, 70, 2048); mk_srd(DBG_, 72, 256)
voff(vL4, [(0,6,4)]); voff(vC16, [(0,4,16)]); voff(vG16, [(4,2,16)])
voff(vOl, [(0,4,64), (4,2,16)]); voff(vOs, [(4,2,1024), (0,4,4)])
voff(vQs, [(0,1,4096), (4,2,8)]); voff(vQ0, [(0,1,0x20000), (4,2,8)])
voff(vDNs, [(0,1,0x10000), (4,2,16)]); voff(vGUl, [(4,2,2048), (0,4,16)])
voff(vSTl, [(1,3,16), (0,1,8)]); voff(vSTd, [(0,4,16), (5,1,8)])
voff(vHr, [(0,1,128), (4,2,16)], const=H_L)
soff(sT0, 0, wv=32); voff(vTR, [(4,2,1024), (2,2,128), (0,2,8)], sadd=sT0)
soff(sT0, H_L, wv=32); voff(vHw, [(5,1,128), (0,4,2)], sadd=sT0)
voff(vOCw, [(4,1,2), (3,1,1)]); a(f"v_xor_b32 v{vOCw}, v{vOCw}, v{vLane}\nv_lshlrev_b32 v{vOCw}, 4, v{vOCw}")
soff(sT0, OC_L, wv=OC_W); a(f"v_add_u32 v{vOCw}, s{sT0}, v{vOCw}")
voff(vOCr, [(4,1,2), (1,1,1)]); a(f"v_xor_b32 v{vOCr}, s{sWV}, v{vOCr}\nv_lshlrev_b32 v{vOCr}, 4, v{vOCr}")
voff(vSX+2, [(4,2,256), (0,2,64), (2,2,4)], const=OC_L); a(f"v_add_u32 v{vOCr}, v{vOCr}, v{vSX+2}")
soff(sT0, ML_L, wv=8); voff(vMLw, [(0,2,32)], sadd=sT0)
soff(sT0, ML_L, wv=32); a(f"v_mov_b32 v{vMLr}, s{sT0}")
soff(sT0, XL_L, wv=64); a(f"v_add_u32 v{vXLw}, s{sT0}, v{vXs}")
a(f"v_mov_b32 v{vTmp}, 0x3f803f80")
for r in range(4): a(f"v_accvgpr_write_b32 a{aONE+r}, v{vTmp}")
for r in range(8): a(f"v_accvgpr_write_b32 a{aWD+r}, 0")
soff(sGB, 0, grp=GR)
soff(sFB, 0, slot=8, grp=1)
soff(sOst, O_OFF, True, ba=16384, wv=4096, s=64)
soff(sLst, LSE_OFF, True, ba=256, wv=64, s=4)
soff(sOld, O_OFF, True, w0=16384, slot=4096)
soff(sLld, LSE_OFF, True, w0=256, slot=64)
soff(sWOst, WO_OFF, w0=0x10000, i=8192, w1=4096, grp=512, slot=128)
soff(sDNst, DN_OFF, i=8192, w1=4096, slot=1024, grp=128, w0=64)
soff(sM1, WO_OFF, w1=0x10000, i=8192, w0=4096)
a(f"s_add_u32 s{sM2}, s{sM1}, {DN_OFF - WO_OFF:#x}")
soff(sST2st, ST2_OFF, True, i=32, w0=16, w1=8)
soff(sST1st, ST1_OFF, True, slot=256, i=32, w0=16, w1=8)
soff(sST2ld, ST2_OFF, True)
soff(sGUst, GU_OFF, True, slot=8192, i=1024, wv=256)
soff(sT0, 0, slot=1)
a(f"s_cmp_lt_u32 s{sFB}, 28\ns_cselect_b32 s{sT0}, s{sT0}, 0\ns_lshl_b32 s{sST1ld}, s{sT0}, 8\ns_lshl_b32 s{sT0}, s{sT0}, 13")
soff(sGUld, GU_OFF, True, wv=256)
a(f"s_add_u32 s{sGUld}, s{sGUld}, s{sT0}\ns_add_u32 s{sST1ld}, s{sST1ld}, s{sGB}\ns_add_u32 s{sST1ld}, s{sST1ld}, {ST1_OFF:#x}")
a(f"s_add_u32 s{sT0}, s{sGB}, {X2_OFF:#x}\ns_add_u32 s{sXE}, s{sXE}, s{sT0}\ns_add_u32 s{sXst}, s{sXst}, s{sT0}")
soff(sQst, 0, slot=256, ih=64, i0=2048, w1=1024, w0=32)
soff(sQld, 0, ba=4096)
soff(sSEL0, Q0_OFF, grp=0x40000)
a(f"s_waitcnt vmcnt({16 if opt['deep'] in (1, 2, 4) else 8})")
ts(1)
S, Qr, t0, t1 = 90, 91, 36, 37
a(f"v_mov_b32 v{S}, 0\nv_mov_b32 v{Qr}, 0")
for i in range(8):
    a(f"""v_lshlrev_b32 v{t0}, 16, v{XS+i}
    v_and_b32 v{t1}, 0xffff0000, v{XS+i}
    v_add_f32 v{S}, v{S}, v{t0}
    v_fmac_f32 v{Qr}, v{t0}, v{t0}
    v_add_f32 v{S}, v{S}, v{t1}
    v_fmac_f32 v{Qr}, v{t1}, v{t1}""")
a(f"v_lshlrev_b32 v{vX0}, 16, v{vX1}\nv_and_b32 v{vX1}, 0xffff0000, v{vX1}")
a("s_barrier")
trread(aWQ, vTR, WQ_L, 4)
for n in (2, 4, 8):
    dpp("v_add_f32", S, S, S, f"row_ror:{n}"); dpp("v_add_f32", Qr, Qr, Qr, f"row_ror:{n}")
for x, y in zip(rows_s("v_add_f32", S, t0), rows_s("v_add_f32", Qr, t1)): a(x); a(y)
for x in fin_s(S, Qr, QSCALE): a(x)
a("s_waitcnt lgkmcnt(0)")
DE = 60
for j in range(4): mfma(v4(vCSQ), a4(aWQ+4*j), a4(aONE), 0 if j == 0 else v4(vCSQ))
for j in range(4): mfma(v4(DE), a4(aWQ+4*j), v4(XF+4*j), 0 if j == 0 else v4(DE))
for r in range(4): a(f"v_mul_f32 v{DE+4+r}, v{S}, v{vCSQ+r}")
for r in range(4): a(f"v_fmac_f32 v{DE+4+r}, v{Qr}, v{DE+r}")
a(f"v_cvt_pk_bf16_f32 v{DE}, v{DE+4}, v{DE+5}\nv_cvt_pk_bf16_f32 v{DE+1}, v{DE+6}, v{DE+7}\ns_add_u32 s{sT0}, s{sQst}, s{sSEL0}")
exec_set(0x00030003, 0x00030003)
a(f"buffer_store_dwordx2 {v2(DE)}, v{vQ0}, {srd(WS_)}, s{sT0} offen sc1")
exec_all()
ts(2)
if opt["deep"] == 1:
    kload(2); kload(3)
    a("s_waitcnt vmcnt(16)\ns_barrier")
elif opt["deep"] in (2, 4):
    kload(2)
    a("s_waitcnt vmcnt(8)\ns_barrier")
else:
    kload(1)
    a("s_waitcnt vmcnt(8)\ns_barrier")
    ts(3)
lna = lab("noarr")
a(f"""s_getreg_b32 s{sT0}, hwreg(HW_REG_XCC_ID)
s_and_b32 s{sT0}, s{sT0}, 7
s_mul_i32 s{sFAST}, s{sT0}, 6
s_cmp_eq_u32 s{sWV}, 0
s_cbranch_scc0 {lna}
s_and_b32 s{sT0}, s2, 7
s_lshl_b32 s{sT0}, s{sT0}, 5
s_lshl_b64 s[{sE}:{sE+1}], 1, s{sFAST}
s_add_u32 s{sE+1}, s{sE+1}, 0x10000
s_atomic_add_x2 s[{sE}:{sE+1}], s[{DBG_}:{DBG_+1}], s{sT0}
{lna}:""")
NPRE = 2 if opt["opre"] else 0
def opre():
    a(f"buffer_load_dword a{aTS+1}, v{vOs}, {srd(WS_)}, s{sOst} offen\nbuffer_load_dword a{aTS+2}, off, {srd(WS_)}, s{sLst}")
CT = 80
voff(t0, [(0,3,32)])
cl = f"buffer_load_dwordx2 {v2(CT)}, v{t0}, {srd(DBG_)}, 0 offen sc1"
if opt["deep"] == 1:
    kfix(0, None); vload(0); a(cl); kfix(1, None); vload(1); kfix(2, 25); vload(2); w = 16
elif opt["deep"] == 2:
    kload(3); kfix(0, None); vload(0); kfix(1, None); a(cl); vload(1); kfix(2, 25); vload(2); w = 16
elif opt["deep"] == 4:
    kload(3); kfix(0, None); vload(0); a(cl); kfix(1, None); kfix(2, 17); vload(1); kfix(3, 17); w = 8
elif opt["deep"] == 5:
    kfix(0, None); kload(2); kfix(1, 8); kload(3); a(cl); kfix(2, 9); vload(0); w = 8
elif opt["deep"] == 6:
    kfix(0, None); kload(2); a(cl); kfix(1, 9); kload(3); w = 8
else:
    kfix(0, None); kload(2); kfix(1, 8); kload(3); kfix(2, 8); vload(0); a(cl); kfix(3, 9); vload(1); w = 8
lp, ld = lab("bar"), lab("barok")
a(f"""s_waitcnt vmcnt({w})
{lp}:
v_lshrrev_b32 v{t1}, 16, v{CT+1}
v_cmp_gt_u32 vcc, 32, v{t1}
s_cbranch_vccz {ld}
{cl}
s_waitcnt vmcnt(0)
s_sub_u32 s{sTO}, s{sTO}, 1
s_cbranch_scc0 {lp}
s_mov_b32 s{sTO}, 0
{ld}:""")
a(f"s_lshl_b32 s{sT0}, s{sQld}, 5\ns_add_u32 s{sT0}, s{sT0}, s{sSEL0}")
for j in range(4): a(f"buffer_load_dwordx4 {v4(QF+4*j)}, v{vOl}, {srd(WS_)}, s{sT0} offen offset:{1024*j} sc1")
if opt["deep"] in (1, 2):
    kfix(3, None); vload(3)
    if opt["opre"]: opre()
elif opt["deep"] == 5:
    kfix(3, None); vload(1)
elif opt["deep"] == 6:
    kfix(2, None); vload(0); kfix(3, 8)
elif opt["deep"]:
    vload(2); vload(3)
    if opt["opre"]: opre()
else: vload(2)
a(f"""s_add_u32 s{sT1}, s{sGB}, {Q_OFF:#x}
s_add_u32 s{sQld}, s{sQld}, s{sT1}
s_add_u32 s{sQst}, s{sQst}, s{sT1}
s_mov_b32 s{sSEL0}, 0x05040100
s_mov_b32 s{sSEL1}, 0x07060302
s_and_b32 s{sT1}, s2, 7
s_waitcnt lgkmcnt(0)
v_readlane_b32 s{sT0}, v{CT}, s{sT1}
v_readlane_b32 s{sT1}, v{CT+1}, s{sT1}
s_lshl_b64 s[{sE}:{sE+1}], 32, s{sFAST}
s_add_u32 s{sE+1}, s{sE+1}, 0x200000
s_xor_b32 s{sT0}, s{sT0}, s{sE}
s_xor_b32 s{sT1}, s{sT1}, s{sE+1}
s_or_b32 s{sT0}, s{sT0}, s{sT1}
s_cmp_eq_u32 s{sT0}, 0
s_cselect_b32 s{sFAST}, 1, 0
s_waitcnt vmcnt({(16 if opt['deep'] in (3, 4) else 8) + (NPRE if opt['deep'] in (1, 2, 3, 4) else 0)})""")
ts(7)
ts_put([(TSB+2*k, k) for k in range(1, 8)], vM)
Dt = lambda t: DT + 4*t
qk = [mf(v4(Dt(tau)), a4(aK+16*tau+4*j), v4(QF+4*j), 0 if j == 0 else v4(Dt(tau))) for tau in (0, 2, 1, 3, 4, 6, 5, 7) for j in range(4)]
NSP = 4 if opt["specq"] else 0
for m in qk[:NSP]: a(m)
a("s_branch L_qk")

a("L_layer:")
until(1)
poll([f"buffer_load_dwordx4 {v4(QF+4*j)}, v{vOl}, {srd(WS_)}, s{sQld} offen offset:{1024*j}" for j in range(4)],
     range(QF, QF+16), vM, spec=[(lambda m=m: a(m)) for m in qk[:NSP]], pipe=PIPE, ack=1)
a("L_qk:")
tsn('qk_start')
ZB = ZA + 4
def xlo(t, X): return [dpp_s("v_add_f32", X+r, Dt(t)+r, Dt(t)+r, "row_ror:8", 0x3) for r in range(4)]
def xhi(t, X): return [dpp_s("v_add_f32", X+r, Dt(t)+r, Dt(t)+r, "row_ror:8", 0xc) for r in range(4)]
def zev(Z): return [dpp_s("v_add_f32", Z+r, XT+r, XT+r, "row_ror:12", 0x5) for r in range(4)]
def zod(Z): return [dpp_s("v_add_f32", Z+r, YT+r, YT+r, "row_ror:4", 0xa) for r in range(4)]
fill = xlo(0, XT) + xhi(2, XT) + zev(ZA) + xlo(1, YT) + xhi(3, YT) + zod(ZA) + \
    [f"v_max3_f32 v{vM}, v{ZA}, v{ZA+1}, v{ZA+2}", f"v_max_f32 v{vM}, v{ZA+3}, v{vM}"] + \
    xlo(4, XT) + xhi(6, XT) + zev(ZB) + xlo(5, YT) + xhi(7, YT) + zod(ZB)
mix(qk[NSP:], fill, 2, 11 - NSP)
vLs, vU = vM + 1, vM + 2
a(f"v_max3_f32 v{vM}, v{ZB}, v{ZB+1}, v{vM}\nv_max3_f32 v{vM}, v{ZB+2}, v{ZB+3}, v{vM}")
dpp("v_max_f32", vM, vM, vM, "row_ror:4"); dpp("v_max_f32", vM, vM, vM, "row_ror:8")
for x in rows_s("v_max_f32", vM, vU): a(x)
P = [XT, YT, QF, QF+4]
for r in range(8): a(f"v_sub_f32 v{ZA+r}, v{ZA+r}, v{vM}")
for r in range(8): a(f"v_exp_f32 v{ZA+r}, v{ZA+r}")
for r in range(4): a(f"v_cvt_pk_bf16_f32 v{P[0]+r}, v{ZA+2*r}, v{ZA+2*r+1}")
tsn('softmax_done')
def late_loads():
    R4 = VR + 128
    a(f"v_lshrrev_b32 v{vU}, 7, v{vL16}\nv_and_b32 v{vU+1}, 0x70, v{vL16}\nv_lshl_add_u32 v{vU}, v{vU}, 10, v{vU+1}")
    soff(sT0, 0, grp=512*1024, slot=128*1024, wv=8*1024, i=128)
    dma(WO_, vU, sT0, 32*1024, 4, WO_L)
def late_resets():
    R4 = VR + 128
    for r in range(4): a(f"v_mov_b32 v{R4+r}, -1")
    soff(sT0, LSTR, wg=4*992, wv=992)
    a(f"s_mov_b32 exec_hi, 0x3fffffff\nbuffer_store_dwordx4 {v4(R4)}, v{vL16}, {srd(WS_)}, s{sT0} offen sc1\ns_mov_b64 exec, -1")
def transpose(t, waits, hooks={}):
    src, dst = VR + 32*(t+1), VR + 32*t
    for p in range(5):
        if p in hooks: hooks[p]()
        if p == 4: break
        if waits[p] is not None: a(f"s_waitcnt vmcnt({waits[p]})")
        for q in range(4):
            a(f"v_perm_b32 v{dst+8*q+p}, v{src+8*p+4+q}, v{src+8*p+q}, s{sSEL0}")
            a(f"v_perm_b32 v{dst+8*q+4+p}, v{src+8*p+4+q}, v{src+8*p+q}, s{sSEL1}")
def pv(t): return [mf(v4(DT+4*e), v4(VR+32*t+4*e), v4(P[t]), 0 if t == 0 else v4(DT+4*e)) for e in range(8)]
FW, vMM, vL, vR, vLSE = QF+8, QF+12, QF+13, QF+14, QF+15
ML = ZA
if opt["deep"] == 5: layer0(lambda lb: (vload(2), transpose(0, [None]*4)))
elif opt["deep"] == 6: layer0(lambda lb: (vload(1), vload(2) if 0 else None, transpose(0, [8, None, None, None])))
elif opt["deep"]: layer0(lambda lb: transpose(0, [None]*4))
else: layer0(lambda lb: (vload(3), (opre() if opt["opre"] else None), transpose(0, [None]*4)))
rot = lambda tt: [dpp_s("v_mov_b32", P[tt]+r, P[0]+r, None, f"row_ror:{16-4*tt}") for r in range(4)]
rs = rows_s("v_add_f32", vLs, vU)
r1, r2, r3 = rot(1), rot(2), rot(3)
s0 = [f"v_add_f32 v{ZA+2*r}, v{ZA+2*r}, v{ZA+2*r+1}" for r in range(4)] + \
     [f"v_add_f32 v{ZA}, v{ZA}, v{ZA+2}", f"v_add_f32 v{ZA+4}, v{ZA+4}, v{ZA+6}", f"v_add_f32 v{vLs}, v{ZA}, v{ZA+4}", r1[0],
      dpp_s("v_add_f32", vLs, vLs, vLs, "row_ror:4"), r1[1], dpp_s("v_add_f32", vLs, vLs, vLs, "row_ror:8"), rs[0], r1[2], rs[1], rs[2], r1[3]]
mix(pv(0), s0)
tsn('pv0')
if PIPE: a(f"s_cmp_eq_u32 s{sLAYER}, 0\ns_cbranch_scc1 L_nq\ns_waitcnt vmcnt(0)\nL_nq:")
if opt["deep"] == 5: layer0(lambda lb: (vload(3), transpose(1, [16, None, None, None])))
elif opt["deep"] == 6: layer0(lambda lb: (vload(2), transpose(1, [8, None, None, None])))
else: layer0(lambda lb: transpose(1, [None]*4))
p1 = pv(1)
for x in [p1[0], rs[3], r2[0], p1[1], rs[4], rs[5], p1[2], "s_mov_b64 exec, 15", f"ds_write_b64 v{vMLw}, {v2(vM)}", "s_mov_b64 exec, -1",
          p1[3], r2[1], r2[2], p1[4], r2[3], r3[0], p1[5], r3[1], r3[2], p1[6], "s_waitcnt lgkmcnt(0)", "s_barrier",
          f"ds_read_b128 {v4(ML)}, v{vMLr}", f"ds_read_b128 {v4(ML+4)}, v{vMLr} offset:16", p1[7], r3[3]]: a(x)
tsn('pv1')
layer0(lambda lb: ((vload(3) if opt["deep"] == 6 else None), (late_loads() if opt["wopos"] == 2 else None), transpose(2, [8 + NPRE + (4 if opt["wopos"] == 2 else 0), None, None, None])))
fac = ["s_waitcnt lgkmcnt(0)", f"v_max3_f32 v{vMM}, v{ML}, v{ML+2}, v{ML+4}", f"v_max_f32 v{vMM}, v{ML+6}, v{vMM}"] + \
      [f"v_sub_f32 v{FW+w}, v{ML+2*w}, v{vMM}" for w in range(4)] + [f"v_exp_f32 v{FW+w}, v{FW+w}" for w in range(4)] + \
      [f"v_mul_f32 v{vL}, v{FW}, v{ML+1}"] + [f"v_fmac_f32 v{vL}, v{FW+w}, v{ML+2*w+1}" for w in range(1, 4)] + \
      [f"v_rcp_f32 v{vR}, v{vL}", f"v_log_f32 v{vLSE}, v{vL}"] + [f"v_mul_f32 v{FW+w}, v{FW+w}, v{vR}" for w in range(4)] + \
      [f"v_add_f32 v{vLSE}, v{vLSE}, v{vMM}"]
mix(pv(2), fac[:12], 2, 2)
tsn('pv2')
def blk3(lb):
    lr = late_resets if opt["lrpos"] == 0 else (lambda: None)
    n = NPRE
    if opt["wopos"] == 2: transpose(3, [10+n, 8+n, 6+n, 4+n], {4: lr})
    elif opt["wopos"] == 3: transpose(3, [6+n, 4+n, 6+n, 4+n], {2: late_loads, 4: lr})
    else: transpose(3, [6+n, 4+n, 2+n, n], {4: lambda: (late_loads(), lr())})
layer0(blk3)
gath = lambda u: [dpp_s("v_mov_b32", DT+k, DT+8*u+k, None, f"row_ror:{4*u}", 1 << u) for k in range(8)]
mix(pv(3), fac[12:] + gath(1)[:6])
for x in gath(1)[6:] + gath(2) + gath(3): a(x)
tsn('pv_done')
until(0)
a(f"ds_write_b128 v{vOCw}, {v4(DT)}\nds_write_b128 v{vOCw}, {v4(DT+4)} offset:1024\ns_mov_b64 exec, 1")
pub(f"buffer_store_dword v{vLSE}, off, {srd(WS_)}, s{sLst}")
a("s_mov_b64 exec, -1\ns_waitcnt lgkmcnt(0)")
tsn('ocw')
a("s_barrier")
tsn('ocbar')
OV = ZA
for w in range(4): a(f"ds_read2st64_b32 {v2(OV+2*w)}, v{vOCr} offset0:{8*w} offset1:{8*w+4}")
a(f"s_waitcnt lgkmcnt(3)\nv_mul_f32 v{OV}, v{FW}, v{OV}\nv_mul_f32 v{OV+1}, v{FW}, v{OV+1}")
for w in range(1, 4): a(f"s_waitcnt lgkmcnt({3-w})\nv_fmac_f32 v{OV}, v{FW+w}, v{OV+2*w}\nv_fmac_f32 v{OV+1}, v{FW+w}, v{OV+2*w+1}")
a(f"v_cvt_pk_bf16_f32 v{OV}, v{OV}, v{OV+1}")
pub(f"buffer_store_dword v{OV}, v{vOs}, {srd(WS_)}, s{sOst} offen")
tsn('O_pub')
OF, LS, DB, EB = T, T+16, T+20, T+28
def wo_frags(lb):
    a(f"s_and_b32 s{sT0}, s{sWV}, 1\ns_lshl_b32 s{sT0}, s{sT0}, 5\nv_subrev_u32 v{EB}, s{sT0}, v{vTR}\ns_waitcnt vmcnt(0)\ns_barrier")
    trread(aWO, EB, WO_L, 4); trread(aWO+16, EB, WO_L+32, 4)
    a("s_waitcnt lgkmcnt(0)")
poll([f"buffer_load_dwordx4 {v4(OF+4*j)}, v{vOl}, {srd(WS_)}, s{sOld} offen offset:{1024*j}" for j in range(4)] +
     [f"buffer_load_dwordx4 {v4(LS)}, v{vG16}, {srd(WS_)}, s{sLld} offen"], range(OF, OF+20), EB, l0=wo_frags, pipe=PIPE, ack=2)
tsn('H2_got')
rm = rows_s("v_max_f32", EB+4, EB+5)
chain = [f"v_max3_f32 v{EB+4}, v{LS}, v{LS+1}, v{LS+2}", f"v_max_f32 v{EB+4}, v{LS+3}, v{EB+4}"] + rm + \
        [f"v_sub_f32 v{EB+r}, v{LS+r}, v{EB+4}" for r in range(4)] + [f"v_exp_f32 v{EB+r}, v{EB+r}" for r in range(4)]
bm = [mf(v4(DB+4*t), v4(OF+4*j), a4(aWO+16*t+4*j), 0 if j == 0 else v4(DB+4*t)) for j in range(4) for t in range(2)]
order = [bm[0], chain[0], chain[1], chain[2], bm[1], bm[2], chain[3], chain[4], chain[5], bm[3], bm[4], chain[6], chain[7], chain[8], bm[5],
         chain[9], chain[10], bm[6], chain[11], chain[12], bm[7], chain[13], chain[14], chain[15]]
for x in order: a(x)
ra = rows_s("v_add_f32", EB+4, EB+5)
a(f"""v_add_f32 v{EB+4}, v{EB}, v{EB+1}
v_add_f32 v{EB+5}, v{EB+2}, v{EB+3}
v_add_f32 v{EB+4}, v{EB+4}, v{EB+5}
{ra[0]}
s_mov_b32 exec_hi, -1
v_mul_f32 v{DB}, v{EB}, v{DB}
{ra[1]}
v_mul_f32 v{DB+4}, v{EB}, v{DB+4}
{ra[2]}
v_fmac_f32 v{DB}, v{EB+1}, v{DB+1}
{ra[3]}
v_fmac_f32 v{DB+4}, v{EB+1}, v{DB+5}
v_fmac_f32 v{DB}, v{EB+2}, v{DB+2}
{ra[4]}
v_fmac_f32 v{DB+4}, v{EB+2}, v{DB+6}
{ra[5]}
v_fmac_f32 v{DB}, v{EB+3}, v{DB+3}
v_fmac_f32 v{DB+4}, v{EB+3}, v{DB+7}
v_rcp_f32 v{EB+4}, v{EB+4}
v_permlane16_swap_b32 v{DB}, v{DB+4}
v_add_f32 v{DB}, v{DB}, v{DB+4}
v_mov_b32 v{DB+4}, v{DB}
v_permlane32_swap_b32 v{DB}, v{DB+4}
v_add_f32 v{DB}, v{DB}, v{DB+4}
s_mov_b32 exec_hi, 0
v_mul_f32 v{DB}, v{DB}, v{EB+4}
buffer_store_dword v{DB}, v{vL4}, {srd(WS_)}, s{sWOst} offen sc1
s_mov_b64 exec, -1""")
tsn('WO_pub')

def ffn_loads(lb):
    W = T + 36
    n = 6
    if opt["lrpos"] == 1: late_resets()
    a(f"""s_cmp_lt_u32 s{sFB}, 28
    s_cbranch_scc0 {lb}
    v_lshrrev_b32 v{W+2}, 7, v{vL16}
    v_and_b32 v{W+1}, 0x70, v{vL16}
    v_mul_u32_u24 v{W}, 3584, v{W+2}
    v_add_u32 v{W}, v{W}, v{W+1}
    v_lshl_add_u32 v{W+1}, v{W+2}, 10, v{W+1}""")
    soff(sT0, 0, i=64*3584, wv=8*3584, slot=1024, grp=128)
    a(f"s_mov_b32 s{sT1}, s{sT0}")
    dma(WG_, W, sT0, 32*3584, 2, WG_L); dma(WU_, W, sT1, 32*3584, 2, WU_L)
    soff(sT0, 0, slot=8*65536, grp=65536, wv=8192, i=128)
    dma(WD_, W+1, sT0, 32*1024, 2, WD_L)
    if opt["pre"] & 1:
        a(f"v_lshlrev_b32 v{W}, 3, v{vL16}")
        soff(sT0, 0, True, idx=13*128, wv=4*128)
        a(f"s_cmp_eq_u32 s{sWV}, 3\ns_cselect_b32 exec_lo, 1, 15\ns_mov_b32 exec_hi, 0\nbuffer_load_dword v{W+3}, v{W}, {srd(WS_)}, s{sT0} offen sc1\ns_mov_b64 exec, -1")
        n += 1
    a(f"s_waitcnt vmcnt({n})\ns_branch L_acked")
M = T
def reduce32(soffr, slp, first=False):
    if first: layer0(ffn_loads)
    a("s_waitcnt vmcnt(0)")
    if first: a("L_acked:")
    if slp: a(f"s_sleep {slp}")
    poll([f"buffer_load_dwordx4 {v4(M+4*u)}, v{vL16}, {srd(WS_)}, s{soffr} offen offset:{1024*u}" for u in range(4)], range(M, M+16), M+16)
    for r in range(4): a(f"v_add_f32 v{M+r}, v{M+r}, v{M+4+r}")
    for r in range(4): a(f"v_add_f32 v{M+8+r}, v{M+8+r}, v{M+12+r}")
    for r in (0, 2, 1, 3): a(f"v_add_f32 v{M+r}, v{M+r}, v{M+8+r}")
    a(f"""v_permlane32_swap_b32 v{M}, v{M+2}
    v_permlane32_swap_b32 v{M+1}, v{M+3}
    v_add_f32 v{M}, v{M}, v{M+2}
    v_add_f32 v{M+1}, v{M+1}, v{M+3}""")
    dpp("v_add_f32", M, M, M, "row_ror:8"); dpp("v_add_f32", M+1, M+1, M+1, "row_ror:8")
    a(f"""v_mov_b32 v{M+2}, v{M}
    v_mov_b32 v{M+3}, v{M+1}
    v_permlane16_swap_b32 v{M}, v{M+2}
    v_permlane16_swap_b32 v{M+1}, v{M+3}
    v_add_f32 v{vX0}, v{vX0}, v{M}
    v_add_f32 v{vX1}, v{vX1}, v{M+1}
    v_add_f32 v{vX0}, v{vX0}, v{M+2}
    v_add_f32 v{vX1}, v{vX1}, v{M+3}
    v_cvt_pk_bf16_f32 v{M}, v{vX0}, v{vX1}""")
def stats_s():
    return [f"v_lshlrev_b32 v{vX0}, 16, v{M}", f"v_and_b32 v{vX1}, 0xffff0000, v{M}", f"v_add_f32 v{M+1}, v{vX0}, v{vX1}",
            f"v_mul_f32 v{M+2}, v{vX0}, v{vX0}", f"v_fmac_f32 v{M+2}, v{vX1}, v{vX1}", f"v_permlane32_swap_b32 v{M+1}, v{M+2}",
            f"v_add_f32 v{M+1}, v{M+1}, v{M+2}", dpp_s("v_add_f32", M+1, M+1, M+1, "quad_perm:[1,0,3,2]"),
            dpp_s("v_add_f32", M+1, M+1, M+1, "quad_perm:[2,3,0,1]"), dpp_s("v_add_f32", M+1, M+1, M+1, "row_ror:4")]
reduce32(sM1, opt["slp1"], True)
tsn('M1_done')
XC, DG, DU = T+4, T+12, T+16
st = stats_s()
a(f"ds_write_b32 v{vXLw}, v{M}")
for x in st[:5]: a(x)
a(f"s_waitcnt lgkmcnt(0)\ns_barrier\ns_cmp_lt_u32 s{sFB}, 28\ns_cbranch_scc0 L_stageD")
a(f"ds_read_b128 {v4(XC)}, v{vHr} offset:256\nds_read_b128 {v4(XC+4)}, v{vHr} offset:{256+64}")
def ffn_frags(lb):
    trread(aWG, vTR, WG_L, 2); trread(aWU, vTR, WU_L, 2)
layer0(ffn_frags)
for x in st[5:8]: a(x)
a("s_waitcnt lgkmcnt(0)")
cm = [mf(v4(DG), v4(XC), a4(aWG), 0), mf(v4(DU), v4(XC), a4(aWU), 0), mf(v4(DG), v4(XC+4), a4(aWG+4), v4(DG)), mf(v4(DU), v4(XC+4), a4(aWU+4), v4(DU))]
mix(cm, st[8:], 1)
a("s_mov_b32 exec_lo, 1\ns_mov_b32 exec_hi, 1")
pub(f"buffer_store_dword v{M+1}, v{vXs}, {srd(WS_)}, s{sST1st} offen")
a(f"s_mov_b64 exec, 0xffff\nv_mov_b32 v{DG+2}, v{DU}\nv_mov_b32 v{DG+3}, v{DU+1}")
pub(f"buffer_store_dwordx4 {v4(DG)}, v{vC16}, {srd(WS_)}, s{sGUst} offen")
exec_all()
def cs_pub(lb):
    C = T + 24
    for j in range(2): mfma(v4(C), a4(aONE), a4(aWG+4*j), 0 if j == 0 else v4(C))
    for j in range(2): mfma(v4(C+4), a4(aONE), a4(aWU+4*j), 0 if j == 0 else v4(C+4))
    trread(aWD, vTR, WD_L, 2)
    soff(sT0, CS_OFF, True, slot=4096, i=512, wv=128)
    a(f"v_lshrrev_b32 v{C+8}, 1, v{vC16}\nv_mov_b32 v{C+1}, v{C+4}\ns_mov_b64 exec, 0xffff")
    pub(f"buffer_store_dwordx2 {v2(C)}, v{C+8}, {srd(WS_)}, s{sT0} offen")
    exec_all()
layer0(cs_pub)
tsn('GU_pub')
a("L_stageD:")
G, SD, DD = T, T+8, T+12
def colsums(lb):
    C = T + 16
    a(f"v_lshrrev_b32 v{C+4}, 1, v{vGUl}\ns_sub_u32 s{sT0}, s{sGUld}, s{sGB}\ns_sub_u32 s{sT0}, s{sT0}, {GU_OFF:#x}\ns_lshr_b32 s{sT0}, s{sT0}, 1\ns_add_u32 s{sT0}, s{sT0}, s{sGB}")
    poll([f"buffer_load_dwordx2 {v2(C+2*u)}, v{C+4}, {srd(WS_)}, s{sT0} offen offset:{512*u}" for u in range(2)], range(C, C+4), C+5)
    a(f"""v_add_f32 v{C}, v{C}, v{C+2}
    v_add_f32 v{C+1}, v{C+1}, v{C+3}
    v_permlane16_swap_b32 v{C}, v{C+1}
    v_add_f32 v{vCS}, v{C}, v{C+1}
    v_mov_b32 v{C}, v{vCS}
    v_permlane32_swap_b32 v{vCS}, v{C}
    v_add_f32 v{vCS}, v{vCS}, v{C}""")
poll([f"buffer_load_dwordx4 {v4(G+4*u)}, v{vGUl}, {srd(WS_)}, s{sGUld} offen offset:{1024*u}" for u in range(2)] +
     [f"buffer_load_dwordx2 {v2(SD)}, v{vSTd}, {srd(WS_)}, s{sST1ld} offen"], range(G, G+10), DD, between=lambda: layer0(colsums), pipe=PIPE, ack=4)
tsn('H4_got')
S2, G2, HF = T+24, T+26, T+32
sd = [dpp_s("v_add_f32", S2, SD, SD, "row_ror:1"), dpp_s("v_add_f32", S2+1, SD+1, SD+1, "row_ror:1")]
for n in (2, 4, 8): sd += [dpp_s("v_add_f32", S2, S2, S2, f"row_ror:{n}"), dpp_s("v_add_f32", S2+1, S2+1, S2+1, f"row_ror:{n}")]
sd += fin_s(S2, S2+1) + [f"v_mul_f32 v{S2}, v{S2}, v{vCS}"]
gd = [f"v_add_f32 v{G2+r}, v{G+r}, v{G+4+r}" for r in range(4)] + \
     [f"v_permlane32_swap_b32 v{G2}, v{G2+1}", f"v_permlane32_swap_b32 v{G2+2}, v{G2+3}", f"v_add_f32 v{G2}, v{G2}, v{G2+1}",
      f"v_add_f32 v{G2+2}, v{G2+2}, v{G2+3}", f"v_permlane16_swap_b32 v{G2}, v{G2+2}", f"v_add_f32 v{G2}, v{G2}, v{G2+2}"]
for x in [sd[0], sd[1], gd[0], sd[2], sd[3], gd[1], sd[4], sd[5], gd[2], sd[6], sd[7], gd[3], sd[8], sd[9], gd[4], sd[10], gd[5], sd[11], gd[6],
          sd[12], gd[7], sd[13], gd[8], sd[14], gd[9], sd[15]]: a(x)
a(f"""v_fmac_f32 v{S2}, v{S2+1}, v{G2}
v_mov_b32 v{G2+1}, v{S2}
v_permlane16_swap_b32 v{S2}, v{G2+1}
v_max_f32 v{S2}, 0, v{S2}
v_mul_f32 v{G2}, v{S2}, v{G2+1}
v_cvt_pk_bf16_f32 v{G2}, v{G2}, v{G2}
ds_write_b16 v{vHw}, v{G2}
s_waitcnt lgkmcnt(0)
s_barrier
ds_read_b128 {v4(HF)}, v{vHr}
ds_read_b128 {v4(HF+4)}, v{vHr} offset:64
s_waitcnt lgkmcnt(1)""")
mfma(v4(DD), a4(aWD), v4(HF), 0)
a("s_waitcnt lgkmcnt(0)")
mfma(v4(DD), a4(aWD+4), v4(HF+4), v4(DD))
a(f"s_bfe_u32 s{sT0}, s2, 0x20006\ns_and_b32 s{sT1}, s2, 7")
exec_set(0x00030003, 0x00030003)
a(f"buffer_store_dwordx4 {v4(DD)}, v{vDNs}, {srd(WS_)}, s{sDNst} offen sc1")
exec_all()
tsn('DN_pub')
lgo, lnm = lab("go"), lab("nomid")
a(f"""s_mul_i32 s{sT1}, s{sT1}, s{sLAYER}
s_cmp_eq_u32 s{sT0}, s{sWV}
s_cbranch_scc0 {lnm}
s_cmp_eq_u32 s{sT1}, 0
s_cbranch_scc0 L_fin""")
reduce32(sM2, opt["slp2"])
exec_set(0xff, 0xff)
a(f"s_cmp_eq_u32 s{sLAYER}, 0\ns_cbranch_scc0 L_out")
pub(f"buffer_store_dword v{M}, v{vXs}, {srd(WS_)}, s{sXst} offen")
exec_all()
for x in stats_s()[:]: a(x)
a("s_mov_b32 exec_lo, 1\ns_mov_b32 exec_hi, 1")
pub(f"buffer_store_dword v{M+1}, v{vXs}, {srd(WS_)}, s{sST2st} offen")
exec_all()
a("L_midback:")
tsn('M2_done')
a("s_barrier")
def nomid():
    a(f"s_cmp_eq_u32 s{sLAYER}, 0\ns_cbranch_scc0 L_fin")
    if opt["outpre"]:
        a(f"s_sub_u32 s{sT1}, s{sXst}, s{sGB}\ns_sub_u32 s{sT1}, s{sT1}, {X2_OFF:#x}\nbuffer_load_dword a{aTS+2}, off, {srd(OUT_)}, s{sT1}")
    if opt["pre"] & 2:
        a(f"s_add_u32 s{sT0}, s{sT0}, 1\ns_and_b32 s{sT0}, s{sT0}, 3\ns_cmp_eq_u32 s{sT0}, s{sWV}\ns_cbranch_scc0 L_midback\nv_lshlrev_b32 v{T+40}, 3, v{vL16}")
        soff(sT0, LSTR + GU_OFF, True, idx=19*128)
        a(f"s_mov_b64 exec, 0x7ffff\nbuffer_load_dword v{T+41}, v{T+40}, {srd(WS_)}, s{sT0} offen sc1\ns_mov_b64 exec, -1\ns_waitcnt vmcnt(0)")
    a("s_branch L_midback")
deferred.append((lnm, nomid))
XE, SE, XR, DE = T, T+16, T+20, T+24
poll([f"buffer_load_dwordx4 {v4(XE+4*j)}, v{vXl}, {srd(WS_)}, s{sXE} offen offset:{64*j}" for j in range(4)] +
     [f"buffer_load_dwordx2 {v2(SE)}, v{vSTl}, {srd(WS_)}, s{sST2ld} offen", f"buffer_load_dwordx2 {v2(SE+2)}, v{vSTl}, {srd(WS_)}, s{sST2ld} offen offset:128",
      f"buffer_load_dword v{XR}, v{vXs}, {srd(WS_)}, s{sXst} offen"], range(XE, XE+21), DE, pipe=PIPE, ack=8)
tsn('H5b_got')
se = [f"v_add_f32 v{SE+6}, v{SE}, v{SE+2}", f"v_add_f32 v{SE+7}, v{SE+1}, v{SE+3}"]
SE += 6
for n in (2, 4, 8): se += [dpp_s("v_add_f32", SE, SE, SE, f"row_ror:{n}"), dpp_s("v_add_f32", SE+1, SE+1, SE+1, f"row_ror:{n}")]
em = [mf(v4(DE), a4(aWQ+4*j), v4(XE+4*j), 0 if j == 0 else v4(DE)) for j in range(4)]
for x in [se[0], se[1], em[0], se[2], se[3], em[1], se[4], se[5], em[2], se[6], se[7], em[3]]: a(x)
fs = fin_s(SE, SE+1, QSCALE)
for x in fs[:6] + [f"s_add_u32 s{WS_}, s{WS_}, {LSTR:#x}"] + fs[6:] + [f"s_addc_u32 s{WS_+1}, s{WS_+1}, 0"]: a(x)
for r in range(4): a(f"v_mul_f32 v{DE+4+r}, v{SE}, v{vCSQ+r}")
exec_set(0x00030003, 0x00030003)
for r in range(4): a(f"v_fmac_f32 v{DE+4+r}, v{SE+1}, v{DE+r}")
a(f"v_cvt_pk_bf16_f32 v{DE}, v{DE+4}, v{DE+5}\nv_cvt_pk_bf16_f32 v{DE+1}, v{DE+6}, v{DE+7}")
pub(f"buffer_store_dwordx2 {v2(DE)}, v{vQs}, {srd(WS_)}, s{sQst} offen")
exec_all()
a(f"s_mov_b32 s{sLAYER}, 1\nv_lshlrev_b32 v{vX0}, 16, v{XR}\nv_and_b32 v{vX1}, 0xffff0000, v{XR}")
ts_put([(TSB+2*k, 8+k) for k in range(12)], DE+8)
a("s_branch L_layer")
n = 0
while n < len(deferred):
    l, fn = deferred[n]; a(f"{l}:"); fn(); n += 1
a(f"""L_out:
s_sub_u32 s{sT0}, s{sXst}, s{sGB}
s_sub_u32 s{sT0}, s{sT0}, {X2_OFF:#x}
buffer_store_dword v{M}, v{vXs}, {srd(OUT_)}, s{sT0} offen
s_mov_b64 exec, -1""")
if opt["outw"]: a("s_waitcnt vmcnt(0)")
a("L_fin:")
until(2)
if TS:
    ts(11)
    a(f"s_memrealtime s[{sE}:{sE+1}]")
    ts_put([(TSB+2*k, 24+k) for k in range(12)] + [(sE, 43), (sFAST, 40), (sTO, 41)], T+40)
    soff(sT0, TS_OFF - LSTR, wg=1024, wv=256)
    a(f"buffer_store_dword v{T+40}, v{vL4}, {srd(WS_)}, s{sT0} offen")
a("L_end:\ns_endpgm")

body = a.finalize()
kn = opt["name"]
ref = open("cdna_kernels/" + NAME + ".s.ref").read().split("\n")
head = [l for l in ref if l.startswith(";") and "@launch" not in l and "Override launch" not in l and "grid=ceil" not in l][:13]
src = "\n".join(head) + f"""
{"; tsset " + opt["tsset"] + chr(10) if TS else ""}; One persistent launch, one workgroup per CU: K/V stay in registers for both layers, weight tiles in AGPRs.
; @launch grid=(256,1,1) block=(256,1,1) lds={LDS_BYTES + opt['ldspad']}
.amdgcn_target "amdgcn-amd-amdhsa--gfx950"
.text
.globl {kn}
.p2align 8
.type {kn},@function
{kn}:
{body}
.section .rodata,"a"
.p2align 6
.amdhsa_kernel {kn}
  .amdhsa_next_free_vgpr 512
  .amdhsa_next_free_sgpr 102
  .amdhsa_accum_offset 256
  .amdhsa_group_segment_fixed_size 0
  .amdhsa_kernarg_size 96
  .amdhsa_user_sgpr_count 2
  .amdhsa_user_sgpr_kernarg_segment_ptr 1
  .amdhsa_system_sgpr_workgroup_id_x 1
.end_amdhsa_kernel
"""
open(out_path, "w").write(src)
print("nops inserted:", a.nops, "lines:", len(body.split("\n")), file=sys.stderr)
```

```python
import sys, math, struct
from asmlib import Asm

NAME = "interleave_layers__gqa_block_cached__glu_gated_reglu__decode"
opt = dict(kvnt="nt", wnt="nt", ts=0, fast=1, tobits=20, name=NAME+"_kernel", until=0, upos=0,
           pre=3, slp1=0, slp2=0, wopos=3, specq=1, wbar=3, fbar=0, mack2=0, nobr=0, ilv=0, q0lds=0, diag=0, rmask=15, estrep=0, nv3=0, tree=1, tlb=0, rloc=0, swz=1, bord=2, outw=0, outpre=0, ldspad=0, pipe=0, fack=3, rslp=0, fslp=0, deep=0, opre=0, lrpos=1, tsset="qk_start,softmax_done,pv_done,O_pub,H2_got,WO_pub,M1_done,GU_pub,H4_got,DN_pub,M2_done,H5b_got")
out_path = sys.argv[1]
for x in sys.argv[2:]:
    k, v = x.split("=")
    assert k in opt, k
    opt[k] = v if k in ("kvnt", "wnt", "name", "tsset") else int(v)
fl = lambda s: "" if s == "none" else " " + s.replace("+", " ")
KVNT = fl(opt["kvnt"]); WNT = fl(opt["wnt"])
TS = opt["ts"]
def f2u(x): return struct.unpack("<I", struct.pack("<f", x))[0]

GR = 0x17000
CS_OFF, GU_OFF, ST1_OFF, X2_OFF, ST2_OFF, LSE_OFF, O_OFF, Q_OFF = 0x0, 0x4000, 0xC000, 0xC400, 0xCC00, 0xCE00, 0xD000, 0x15000
if opt["estrep"]:
    ST2_OFF, X2_OFF = X2_OFF, Q_OFF
WO_OFF, DN_OFF = 8*GR, 8*GR + 0x20000
LSTR = 8*GR + 0x40000
assert LSTR == 1024*992
Q0_OFF = 0x200000
TS_OFF = 0x600000
WS_SIZE = 0x800000
WQ_L, WO_L, WG_L, WU_L, WD_L = 0, 16384, 32768, 40960, 49152
OC_L = 57344; OC_W = 2048
ML_L = OC_L + 4*OC_W
H_L = ML_L + 128
XL_L = H_L + 256
LDS_BYTES = XL_L + 256
sWV, sGB, sFB, sLAYER, sFAST, sTO = 3, 4, 5, 6, 7, 76
K_, V_, WS_, WQ_, WO_, WG_, WU_, WD_, X_, OUT_, DBG_ = 8, 12, 16, 20, 24, 28, 32, 36, 40, 44, 48
def srd(n): return f"s[{n}:{n+3}]"
(sKV, sQld, sQst, sOst, sLst, sOld, sLld, sWOst, sM1, sM2, sXst, sST1st, sST2st, sXE, sST1ld, sST2ld,
 sGUst, sGUld, sDNst) = range(77, 96)
sT0, sT1, sSEL0, sSEL1 = 96, 97, 98, 99
sE = 100
TSB = 52
vL16, vL4, vOs, vOl, vXl, vC16, vG16, vQs, vDNs, vGUl, vXs = range(0, 11)
vOCw, vOCr, vMLw, vMLr, vHw, vHr, vTR, vSTl, vSTd, vXLw = range(11, 21)
vX0, vX1, vCS = 21, 22, 23
vCSQ = 24
T = 28
QF, DT, vM, XT, YT, ZA = 28, 44, 76, 80, 84, 88
VR = 96
vTSV = VR + 128 + 31
def v4(n): return f"v[{n}:{n+3}]"
def v2(n): return f"v[{n}:{n+1}]"
def a4(n): return f"a[{n}:{n+3}]"
aK, aWQ, aWO, aWG, aWU, aWD, aONE, aTS = 0, 128, 144, 176, 184, 192, 200, 204

a = Asm()
deferred = []
uid = [0]
def lab(p):
    uid[0] += 1
    return f"L_{p}_{uid[0]}"
def exec_set(lo, hi):
    if hi == 0: a(f"s_mov_b64 exec, {lo:#x}")
    else: a(f"s_mov_b32 exec_lo, {lo:#x}\ns_mov_b32 exec_hi, {hi:#x}")
def exec_all(): a("s_mov_b64 exec, -1")

F = dict(grp=(2,0,3), idx=(2,3,5), i=(2,3,3), slot=(2,6,2), s=(2,3,4), ba=(2,7,1), wg=(2,0,8),
         i0=(2,3,1), ih=(2,4,2), wv=(sWV,0,2), w0=(sWV,0,1), w1=(sWV,1,1))
def soff(dst, const, gb=False, **terms):
    first = True
    for name, mul in terms.items():
        src, lo, w = F[name]
        d = dst if first else sE
        if name in ("wg", "wv"): s = f"s{src}"
        else:
            a(f"s_bfe_u32 s{d}, s{src}, {(w << 16) | lo:#x}"); s = f"s{d}"
        if mul & (mul-1) == 0: a(f"s_lshl_b32 s{d}, {s}, {mul.bit_length()-1}")
        else: a(f"s_mul_i32 s{d}, {s}, {mul}")
        if not first: a(f"s_add_u32 s{dst}, s{dst}, s{sE}")
        first = False
    if first:
        a(f"s_add_u32 s{dst}, s{sGB}, {const:#x}" if gb else f"s_mov_b32 s{dst}, {const:#x}"); return
    if gb: a(f"s_add_u32 s{dst}, s{dst}, s{sGB}")
    if const: a(f"s_add_u32 s{dst}, s{dst}, {const:#x}")
vLane, vTmp = 30, 31
def voff(dst, terms, sadd=None, const=0):
    first = True
    for lo, w, mul in terms:
        if first:
            if lo == 0 and w == 6: src = vLane
            else: a(f"v_bfe_u32 v{dst}, v{vLane}, {lo}, {w}"); src = dst
            if mul & (mul-1) == 0: a(f"v_lshlrev_b32 v{dst}, {mul.bit_length()-1}, v{src}")
            else: a(f"v_mul_u32_u24 v{dst}, {mul}, v{src}")
        else:
            a(f"v_bfe_u32 v{vTmp}, v{vLane}, {lo}, {w}")
            if mul & (mul-1) == 0: a(f"v_lshl_add_u32 v{dst}, v{vTmp}, {mul.bit_length()-1}, v{dst}")
            else: a(f"v_mul_u32_u24 v{vTmp}, {mul}, v{vTmp}\nv_add_u32 v{dst}, v{dst}, v{vTmp}")
        first = False
    if const: a(f"v_add_u32 v{dst}, {const}, v{dst}")
    if sadd is not None: a(f"v_add_u32 v{dst}, s{sadd}, v{dst}")

def pub(*stores):
    wt = [s + (" sc1" if s.startswith("buffer") else "") for s in stores]
    if not opt["fast"]:
        for s in wt: a(s)
        return
    ls, lb = lab("slow"), lab("back")
    a(f"s_cmp_eq_u32 s{sFAST}, 1\ns_cbranch_scc0 {ls}")
    for s in stores: a(s)
    a(f"{lb}:")
    deferred.append((ls, lambda: a("\n".join(wt) + f"\ns_branch {lb}")))

def layer0(fn, cond=None):
    ls, lb = lab("l0"), lab("l0back")
    a(f"s_cmp_eq_u32 s{sLAYER}, 0\ns_cbranch_scc1 {ls}\n{lb}:")
    def blk():
        fn(lb); a(f"s_branch {lb}")
    deferred.append((ls, blk))

def check_ops(regs, tmp):
    r = list(regs); ops = []
    if opt["tree"] and len(r) >= 8:
        A, B = r[:len(r)//2], r[len(r)//2:]
        if len(A) % 2 == 0: A, B = A + B[:1], B[1:]
        last = B.pop() if len(B) % 2 == 0 else None
        def chain(x, t):
            o = [f"v_max3_u32 v{t}, v{x[0]}, v{x[1]}, v{x[2]}"]; x = x[3:]
            while x: o.append(f"v_max3_u32 v{t}, v{x[0]}, v{x[1]}, v{t}"); x = x[2:]
            return o
        ca, cb = chain(A, tmp), chain(B, tmp+1)
        while ca or cb:
            if ca: ops.append(ca.pop(0))
            if cb: ops.append(cb.pop(0))
        ops.append(f"v_max3_u32 v{tmp}, v{tmp}, v{tmp+1}, v{last}" if last is not None else f"v_max_u32 v{tmp}, v{tmp}, v{tmp+1}")
        return ops
    ops.append(f"v_max3_u32 v{tmp}, v{r[0]}, v{r[1]}, v{r[2]}"); r = r[3:]
    while len(r) >= 2:
        ops.append(f"v_max3_u32 v{tmp}, v{r[0]}, v{r[1]}, v{tmp}"); r = r[2:]
    if r: ops.append(f"v_max_u32 v{tmp}, v{r[0]}, v{tmp}")
    return ops
def poll(loads, regs, tmp, between=None, spec=(), pipe=False, ack=0, l0=None):
    lc, lr, ld = lab("chk"), lab("retry"), lab("got")
    if l0:
        lw = lab("l0chk")
        def blk(lb):
            if opt["bord"] == 2: a("s_waitcnt vmcnt(0)")
            for l in loads: a(l + " sc1")
            l0(lb)
            a(f"s_branch {lw}")
        layer0(blk)
    if ack & opt["fack"]:
        a("s_waitcnt vmcnt(0)")
        if ack & opt["fbar"]: a("s_barrier")
        if opt["fslp"]: a(f"s_sleep {opt['fslp']}")
    for l in loads: a(l + " sc1")
    if between: between()
    a("s_waitcnt vmcnt(0)")
    if l0: a(f"{lw}:")
    ops = check_ops(regs, tmp)
    if not pipe: a(f"{lc}:")
    o, sp = list(ops), list(spec)
    while o or sp:
        if sp: sp.pop(0)()
        for _ in range(2 if sp else len(o)):
            if o: a(o.pop(0))
    a(f"v_cmp_eq_u32 vcc, -1, v{tmp}\ns_cbranch_vccnz {lr}\n{ld}:")
    def retry():
        lx = lab("giveup")
        if not pipe:
            a(f"s_sub_u32 s{sTO}, s{sTO}, 1\ns_cbranch_scc1 {lx}\ns_mov_b64 exec, vcc")
            if (ack & opt["rmask"]) and opt["rslp"]: a(f"s_sleep {opt['rslp']}")
            for l in loads: a(l + " sc1")
            a(f"s_mov_b64 exec, -1\ns_waitcnt vmcnt(0)\ns_branch {lc}\n{lx}:\ns_mov_b32 s{sTO}, 0\ns_branch {ld}")
            return
        a("s_mov_b64 exec, vcc")
        for l in loads: a(l + " sc1")
        a(f"s_sleep {opt['pipe']}\n{lc}:")
        for l in loads: a(l + " sc1")
        a(f"s_waitcnt vmcnt({len(loads)})")
        for x in ops: a(x)
        a(f"v_cmp_eq_u32 vcc, -1, v{tmp}\ns_sub_u32 s{sTO}, s{sTO}, 1\ns_cbranch_scc1 {lx}\ns_and_b64 exec, exec, vcc\ns_cbranch_scc1 {lc}")
        lo = lab("ok")
        a(f"{lo}:\ns_mov_b64 exec, -1")
        for f in spec: f()
        a(f"s_branch {ld}\n{lx}:\ns_mov_b32 s{sTO}, 0\ns_branch {lo}")
    deferred.append((lr, retry))
PIPE = bool(opt["pipe"])

def ts(k):
    if TS: a(f"s_memtime s[{TSB+2*k}:{TSB+2*k+1}]")
TSSET = opt["tsset"].split(",")
assert len(TSSET) <= 12
def tsn(name):
    if name in TSSET: ts(TSSET.index(name))
def ts_put(pairs, tmp):
    if not TS: return
    a(f"s_waitcnt lgkmcnt(0)\nv_accvgpr_read_b32 v{tmp}, a{aTS}")
    for s, l in pairs: a(f"v_writelane_b32 v{tmp}, s{s}, {l}")
    a(f"v_accvgpr_write_b32 a{aTS}, v{tmp}")
def until(pos):
    if opt["until"] and opt["upos"] == pos:
        l = lab("until")
        a(f"v_accvgpr_read_b32 v79, a{aTS}\nv_readfirstlane_b32 s54, v79\n{l}:\ns_memrealtime s[52:53]\ns_waitcnt lgkmcnt(0)\ns_sub_u32 s52, s52, s54\ns_cmp_lt_u32 s52, {opt['until']}\ns_cbranch_scc1 {l}")

def mk_srd(d, lo, size):
    a(f"s_mov_b32 s{d}, s{lo}\ns_and_b32 s{d+1}, s{lo+1}, 0xffff\ns_mov_b32 s{d+2}, {size:#x}\ns_mov_b32 s{d+3}, 0x20000")
def mfma(d, A, B, c): a(f"v_mfma_f32_16x16x32_bf16 {d}, {A}, {B}, {c}")
def dpp_s(op, d, s0, s1, ctrl, bank=0xf):
    if s1 is None: return f"{op}_dpp v{d}, v{s0} {ctrl} row_mask:0xf bank_mask:{bank:#x}"
    return f"{op}_dpp v{d}, v{s0}, v{s1} {ctrl} row_mask:0xf bank_mask:{bank:#x}"
def dpp(*k): a(dpp_s(*k))
def rows_s(op, r, t):
    return [f"v_mov_b32 v{t}, v{r}", f"v_permlane16_swap_b32 v{r}, v{t}", f"{op} v{r}, v{r}, v{t}",
            f"v_mov_b32 v{t}, v{r}", f"v_permlane32_swap_b32 v{r}, v{t}", f"{op} v{r}, v{r}, v{t}"]
def mix(main, fill, per=2, start=0):
    fill = list(fill)
    for n, m in enumerate(main):
        a(m)
        if n >= start:
            for _ in range(per):
                if fill: a(fill.pop(0))
    for f in fill: a(f)
def mf(d, A, B, c): return f"v_mfma_f32_16x16x32_bf16 {d}, {A}, {B}, {c}"

def dma(srdn, voff_, sbase, step, n, ldsbase):
    for i in range(n):
        a(f"s_lshl_b32 s{sE}, s{sWV}, 10\ns_add_u32 m0, s{sE}, {ldsbase + i*4096}")
        if i: a(f"s_add_u32 s{sbase}, s{sbase}, {step}")
        a(f"buffer_load_dwordx4 v{voff_}, {srd(srdn)}, s{sbase} offen{WNT} lds")
def trread(areg, vaddr, ldsoff, ksteps):
    for j in range(ksteps):
        for u in range(2):
            a(f"ds_read_b64_tr_b16 a[{areg+4*j+2*u}:{areg+4*j+2*u+1}], v{vaddr} offset:{ldsoff + (32*j+4*u)*128}")
def fin_s(S, Q, scale=1.0):
    r = [f"v_mul_f32 v{S}, {f2u(-1/512):#x}, v{S}", f"v_mul_f32 v{Q}, {f2u(1/512):#x}, v{Q}",
         f"v_fma_f32 v{Q}, -v{S}, v{S}, v{Q}", f"v_max_f32 v{Q}, 0, v{Q}", f"v_add_f32 v{Q}, {f2u(1e-5):#x}, v{Q}",
         f"v_rsq_f32 v{Q}, v{Q}"]
    if scale != 1.0: r.append(f"v_mul_f32 v{Q}, {f2u(scale):#x}, v{Q}")
    r.append(f"v_mul_f32 v{S}, v{S}, v{Q}")
    return r
QSCALE = math.log2(math.e) / math.sqrt(128.0)

if TS or opt["until"]:
    a(f"s_memtime s[52:53]\ns_memrealtime s[54:55]\ns_waitcnt lgkmcnt(0)\nv_mov_b32 v40, 0")
    if TS: a("v_writelane_b32 v40, s52, 0\nv_writelane_b32 v40, s54, 42")
    else: a("v_mov_b32 v40, s54")
    a(f"v_accvgpr_write_b32 a{aTS}, v40")
a(f"""s_cmp_ge_u32 s2, 256
s_cbranch_scc1 L_end
s_load_dwordx16 s[52:67], s[0:1], 0
s_load_dwordx8 s[68:75], s[0:1], 64
v_lshrrev_b32 v{vTmp}, 6, v0
v_and_b32 v{vLane}, 63, v0
v_readfirstlane_b32 s{sWV}, v{vTmp}
s_mov_b32 s{sLAYER}, 0
s_mov_b32 s{sTO}, {1 << opt['tobits']:#x}""")
vK, vW, vSX, vQ0 = 32, 33, 34, 35
XF, XS, RST = 44, 80, 88
voff(vL16, [(0,6,16)])
def piece(dst):
    a(f"v_and_b32 v{dst}, 0x70, v{vL16}")
    if opt["swz"]:
        a(f"v_lshrrev_b32 v{dst+1}, 3, v{vL16}\nv_and_b32 v{dst+1}, 32, v{dst+1}\nv_xor_b32 v{dst}, v{dst}, v{dst+1}\ns_and_b32 s{sE}, s{sWV}, 1\ns_lshl_b32 s{sE}, s{sE}, 6\nv_xor_b32 v{dst}, s{sE}, v{dst}")
piece(vW)
a(f"v_lshrrev_b32 v{vW+1}, 3, v{vLane}\nv_lshl_add_u32 v{vW}, v{vW+1}, 13, v{vW}")
voff(vXl, [(0,1,1024), (4,2,16)])
voff(vSX, [(0,1,1024), (1,3,128), (4,2,32)])
voff(vXs, [(0,3,8), (5,1,4)])
voff(vK, [(0,2,1024), (2,1,256), (3,1,64), (4,2,16)])
for r in range(4): a(f"v_mov_b32 v{RST+r}, -1")
soff(sT0, 0, slot=128*8192, wv=8*8192, grp=1024, i=128)
soff(sXE, 0, slot=256)
soff(sXst, 0, w1=1024, i=128, w0=64)
def reset_addr(vd, t):
    soff(sT1, 0, grp=GR, idx=4*736, wv=736)
    a(f"v_add_u32 v{vd}, s{sT1}, v{vL16}")
    soff(sT1, WO_OFF - 46*16, wg=1024, wv=256)
    a(f"v_add_u32 v{t}, s{sT1}, v{vL16}\nv_cmp_gt_u32 vcc, {46*16}, v{vL16}\nv_cndmask_b32 v{vd}, v{t}, v{vd}, vcc")
vRA = 38
if opt["rloc"]: reset_addr(vRA, vRA+1)
else: soff(sT1, 0, wg=4*992, wv=992)
soff(sKV, 0, ba=8<<21, grp=1<<21, s=1<<17, wv=1<<13)
a("s_waitcnt lgkmcnt(0)")
mk_srd(WQ_, 58, 512*8192)
if opt["diag"] & 32: a(f"s_mov_b32 s{sT0}, 0x7000000")
dma(WQ_, vW, sT0, 32*8192, 4, WQ_L)
mk_srd(X_, 52, 2048)
for j in range(4): a(f"buffer_load_dwordx4 {v4(XF+4*j)}, v{vXl}, {srd(X_)}, s{sXE} offen offset:{64*j}")
a(f"buffer_load_dwordx4 {v4(XS)}, v{vSX}, {srd(X_)}, 0 offen\nbuffer_load_dwordx4 {v4(XS+4)}, v{vSX}, {srd(X_)}, 0 offen offset:16")
a(f"buffer_load_dword v{vX1}, v{vXs}, {srd(X_)}, s{sXst} offen")
mk_srd(WS_, 74, WS_SIZE)
if opt["rloc"]: a(f"s_mov_b32 exec_hi, 0x3fffffff\nbuffer_store_dwordx4 {v4(RST)}, v{vRA}, {srd(WS_)}, 0 offen sc1\ns_mov_b64 exec, -1")
elif not opt["diag"] & 1: a(f"s_mov_b32 exec_hi, 0x3fffffff\nbuffer_store_dwordx4 {v4(RST)}, v{vL16}, {srd(WS_)}, s{sT1} offen sc1\ns_mov_b64 exec, -1")
mk_srd(K_, 54, 0x2000000)
def kload_s(t):
    r = []
    for hi in range(2):
        for j in range(4):
            p = f"s_add_u32 s{sT0}, s{sKV}, {t*32768 + hi*4096}\n" if j == 0 else ""
            r.append(p + f"buffer_load_dwordx4 {v4(VR+32*(t+1)+16*hi+4*j)}, v{vK}, {srd(K_)}, s{sT0} offen offset:{128*(j>>1)+512*(j&1)}{KVNT}")
    return r
def vload_s(t, lo=0, hi=8):
    r = []
    for i in range(lo, hi):
        p = f"s_add_u32 s{sT0}, s{sKV}, {t*32768 + (i>>2)*4096}\n" if (i % 4 == 0 or i == lo) else ""
        r.append(p + f"buffer_load_dwordx4 {v4(VR+32*(t+1)+4*i)}, v{vL16}, {srd(V_)}, s{sT0} offen offset:{1024*(i&3)}{KVNT}")
    return r
def kload(t):
    for x in kload_s(t): a(x)
def vload(t, lo=0, hi=8):
    for x in vload_s(t, lo, hi): a(x)
def kfix(t, wait, loads=()):
    loads = list(loads)
    if wait is not None: a(f"s_waitcnt vmcnt({wait})")
    if t: ts(3 + t)
    for hi in range(2):
        for hf in range(2):
            A = VR + 32*(t+1) + 16*hi + 8*hf; B = A + 4; dst = aK + 16*(t+4*hi) + 8*hf
            if loads: a(loads.pop(0))
            if not opt["diag"] & 16:
                for r in range(4): a(f"v_mov_b32 v{VR+r}, v{A+r}")
                for r in range(4): dpp("v_mov_b32", VR+r, B+r, None, "row_ror:8", 0xc)
                for r in range(2): dpp("v_mov_b32", B+r, A+r, None, "row_ror:8", 0x3)
            if loads: a(loads.pop(0))
            if not opt["diag"] & 16:
                for r in range(2, 4): dpp("v_mov_b32", B+r, A+r, None, "row_ror:8", 0x3)
                for r in range(4): a(f"v_accvgpr_write_b32 a{dst+r}, v{VR+r}")
                for r in range(4): a(f"v_accvgpr_write_b32 a{dst+4+r}, v{B+r}")
kload(0)
if opt["deep"] in (1, 2, 4): kload(1)
mk_srd(V_, 56, 0x2000000); mk_srd(WO_, 60, 4096*1024); mk_srd(WG_, 64, 512*3584); mk_srd(WU_, 66, 512*3584)
mk_srd(WD_, 68, 1792*1024); mk_srd(OUT_, 70, 2048); mk_srd(DBG_, 72, 256)
voff(vL4, [(0,6,4)]); voff(vC16, [(0,4,16)]); voff(vG16, [(4,2,16)])
voff(vOl, [(0,4,64), (4,2,16)]); voff(vOs, [(4,2,1024), (0,4,4)])
voff(vQs, [(0,1,4096), (4,2,8)]); voff(vQ0, [(0,1,0x20000), (4,2,8)])
voff(vDNs, [(0,1,0x10000), (4,2,16)]); voff(vGUl, [(4,2,2048), (0,4,16)])
voff(vSTl, [(1,3,16), (0,1,8)]); voff(vSTd, [(0,4,16), (5,1,8)])
voff(vHr, [(0,1,128), (4,2,16)], const=H_L)
if opt["swz"]:
    voff(vTR, [(4,2,1024), (2,2,128), (0,2,8)])
    a(f"v_bfe_u32 v{vTmp}, v{vLane}, 3, 2\nv_xor_b32 v{vTmp}, s{sWV}, v{vTmp}\nv_lshl_add_u32 v{vTR}, v{vTmp}, 5, v{vTR}")
else:
    soff(sT0, 0, wv=32); voff(vTR, [(4,2,1024), (2,2,128), (0,2,8)], sadd=sT0)
soff(sT0, H_L, wv=32); voff(vHw, [(5,1,128), (0,4,2)], sadd=sT0)
voff(vOCw, [(4,1,2), (3,1,1)]); a(f"v_xor_b32 v{vOCw}, v{vOCw}, v{vLane}\nv_lshlrev_b32 v{vOCw}, 4, v{vOCw}")
soff(sT0, OC_L, wv=OC_W); a(f"v_add_u32 v{vOCw}, s{sT0}, v{vOCw}")
voff(vOCr, [(4,1,2), (1,1,1)]); a(f"v_xor_b32 v{vOCr}, s{sWV}, v{vOCr}\nv_lshlrev_b32 v{vOCr}, 4, v{vOCr}")
voff(vSX+2, [(4,2,256), (0,2,64), (2,2,4)], const=OC_L); a(f"v_add_u32 v{vOCr}, v{vOCr}, v{vSX+2}")
soff(sT0, ML_L, wv=8); voff(vMLw, [(0,2,32)], sadd=sT0)
soff(sT0, ML_L, wv=32); a(f"v_mov_b32 v{vMLr}, s{sT0}")
soff(sT0, XL_L, wv=64); a(f"v_add_u32 v{vXLw}, s{sT0}, v{vXs}")
a(f"v_mov_b32 v{vTmp}, 0x3f803f80")
for r in range(4): a(f"v_accvgpr_write_b32 a{aONE+r}, v{vTmp}")
for r in range(8): a(f"v_accvgpr_write_b32 a{aWD+r}, 0")
NT = 0
if opt["tlb"]:
    a(f"s_mov_b64 exec, 1\nbuffer_load_dword a{aTS+1}, off, {srd(V_)}, s{sKV}{KVNT}"); NT += 1
    if opt["tlb"] > 1:
        soff(sT0, 0, grp=512*1024, slot=128*1024, wv=8*1024, i=128)
        a(f"buffer_load_dword a{aTS+1}, off, {srd(WO_)}, s{sT0}{KVNT}")
        soff(sT0, 0, i=64*3584, wv=8*3584, slot=1024, grp=128)
        a(f"buffer_load_dword a{aTS+1}, off, {srd(WG_)}, s{sT0}{KVNT}\nbuffer_load_dword a{aTS+1}, off, {srd(WU_)}, s{sT0}{KVNT}")
        soff(sT0, 0, slot=8*65536, grp=65536, wv=8192, i=128)
        a(f"buffer_load_dword a{aTS+1}, off, {srd(WD_)}, s{sT0}{KVNT}"); NT += 4
    exec_all()
soff(sGB, 0, grp=GR)
soff(sFB, 0, slot=8, grp=1)
soff(sOst, O_OFF, True, ba=16384, wv=4096, s=64)
soff(sLst, LSE_OFF, True, ba=256, wv=64, s=4)
soff(sOld, O_OFF, True, w0=16384, slot=4096)
soff(sLld, LSE_OFF, True, w0=256, slot=64)
soff(sWOst, WO_OFF, w0=0x10000, i=8192, w1=4096, grp=512, slot=128)
soff(sDNst, DN_OFF, i=8192, w1=4096, slot=1024, grp=128, w0=64)
soff(sM1, WO_OFF, w1=0x10000, i=8192, w0=4096)
a(f"s_add_u32 s{sM2}, s{sM1}, {DN_OFF - WO_OFF:#x}")
soff(sST2st, ST2_OFF, True, i=32, w0=16, w1=8)
soff(sST1st, ST1_OFF, True, slot=256, i=32, w0=16, w1=8)
if opt["estrep"]: soff(sST2ld, ST2_OFF, True, i=256)
else: soff(sST2ld, ST2_OFF, True)
soff(sGUst, GU_OFF, True, slot=8192, i=1024, wv=256)
soff(sT0, 0, slot=1)
a(f"s_cmp_lt_u32 s{sFB}, 28\ns_cselect_b32 s{sT0}, s{sT0}, 0\ns_lshl_b32 s{sST1ld}, s{sT0}, 8\ns_lshl_b32 s{sT0}, s{sT0}, 13")
soff(sGUld, GU_OFF, True, wv=256)
a(f"s_add_u32 s{sGUld}, s{sGUld}, s{sT0}\ns_add_u32 s{sST1ld}, s{sST1ld}, s{sGB}\ns_add_u32 s{sST1ld}, s{sST1ld}, {ST1_OFF:#x}")
a(f"s_add_u32 s{sT0}, s{sGB}, {X2_OFF:#x}\ns_add_u32 s{sXE}, s{sXE}, s{sT0}\ns_add_u32 s{sXst}, s{sXst}, s{sT0}")
if opt["estrep"]:
    soff(sT0, 0, ih=2048); a(f"s_add_u32 s{sXE}, s{sXE}, s{sT0}")
soff(sQst, 0, slot=256, ih=64, i0=2048, w1=1024, w0=32)
soff(sQld, 0, ba=4096)
soff(sSEL0, Q0_OFF, grp=0x40000)
a(f"s_waitcnt vmcnt({NT + (16 if opt['deep'] in (1, 2, 4) else 8)})")
ts(1)
S, Qr, t0, t1 = 90, 91, 36, 37
a(f"v_mov_b32 v{S}, 0\nv_mov_b32 v{Qr}, 0")
for i in range(8):
    a(f"""v_lshlrev_b32 v{t0}, 16, v{XS+i}
    v_and_b32 v{t1}, 0xffff0000, v{XS+i}
    v_add_f32 v{S}, v{S}, v{t0}
    v_fmac_f32 v{Qr}, v{t0}, v{t0}
    v_add_f32 v{S}, v{S}, v{t1}
    v_fmac_f32 v{Qr}, v{t1}, v{t1}""")
a(f"v_lshlrev_b32 v{vX0}, 16, v{vX1}\nv_and_b32 v{vX1}, 0xffff0000, v{vX1}")
a("s_barrier")
trread(aWQ, vTR, WQ_L, 4)
for n in (2, 4, 8):
    dpp("v_add_f32", S, S, S, f"row_ror:{n}"); dpp("v_add_f32", Qr, Qr, Qr, f"row_ror:{n}")
for x, y in zip(rows_s("v_add_f32", S, t0), rows_s("v_add_f32", Qr, t1)): a(x); a(y)
for x in fin_s(S, Qr, QSCALE): a(x)
a("s_waitcnt lgkmcnt(0)")
DE = 60
for j in range(4): mfma(v4(vCSQ), a4(aWQ+4*j), a4(aONE), 0 if j == 0 else v4(vCSQ))
for j in range(4): mfma(v4(DE), a4(aWQ+4*j), v4(XF+4*j), 0 if j == 0 else v4(DE))
for r in range(4): a(f"v_mul_f32 v{DE+4+r}, v{S}, v{vCSQ+r}")
for r in range(4): a(f"v_fmac_f32 v{DE+4+r}, v{Qr}, v{DE+r}")
a(f"v_cvt_pk_bf16_f32 v{DE}, v{DE+4}, v{DE+5}\nv_cvt_pk_bf16_f32 v{DE+1}, v{DE+6}, v{DE+7}\ns_add_u32 s{sT0}, s{sQst}, s{sSEL0}")
if opt["q0lds"]:
    assert opt["deep"] == 0
    voff(t0, [(0,1,128), (4,2,8)]); soff(sT1, OC_L, wv=32)
    a(f"v_add_u32 v{t0}, s{sT1}, v{t0}")
    exec_set(0x00030003, 0x00030003)
    a(f"ds_write_b64 v{t0}, {v2(DE)}")
    exec_all()
    voff(vQ0, [(3,1,0x20000), (2,1,1024), (0,2,16)])
    lq = lab("q0")
    a(f"""s_waitcnt lgkmcnt(0)
    s_barrier
    s_cmp_eq_u32 s{sWV}, 0
    s_cbranch_scc0 {lq}
    s_mov_b64 exec, 0xffff
    ds_read_b128 {v4(DE)}, v{vL16} offset:{OC_L}
    s_waitcnt lgkmcnt(0)""")
    if not opt["diag"] & 8: a(f"buffer_store_dwordx4 {v4(DE)}, v{vQ0}, {srd(WS_)}, s{sT0} offen sc1")
    a(f"s_mov_b64 exec, -1\n{lq}:")
    ts(2)
    kload(1)
    a("s_waitcnt vmcnt(8)")
    ts(3)
else:
    exec_set(0x00030003, 0x00030003)
    if not opt["diag"] & 8: a(f"buffer_store_dwordx2 {v2(DE)}, v{vQ0}, {srd(WS_)}, s{sT0} offen sc1")
    exec_all()
    ts(2)
    if opt["deep"] == 1:
        kload(2); kload(3)
        a("s_waitcnt vmcnt(16)\ns_barrier")
    elif opt["deep"] in (2, 4):
        kload(2)
        a("s_waitcnt vmcnt(8)\ns_barrier")
    else:
        kload(1)
        a("s_waitcnt vmcnt(8)\ns_barrier")
        ts(3)
lna = lab("noarr")
a(f"""s_getreg_b32 s{sT0}, hwreg(HW_REG_XCC_ID)
s_and_b32 s{sT0}, s{sT0}, 7
s_mul_i32 s{sFAST}, s{sT0}, 6
s_cmp_eq_u32 s{sWV}, 0
s_cbranch_scc0 {lna}
s_and_b32 s{sT0}, s2, 7
s_lshl_b32 s{sT0}, s{sT0}, 5
s_lshl_b64 s[{sE}:{sE+1}], 1, s{sFAST}
s_add_u32 s{sE+1}, s{sE+1}, 0x10000
{"" if opt["diag"] & 4 else f"s_atomic_add_x2 s[{sE}:{sE+1}], s[{DBG_}:{DBG_+1}], s{sT0}"}
{lna}:""")
NPRE = 2 if opt["opre"] else 0
def opre():
    a(f"buffer_load_dword a{aTS+1}, v{vOs}, {srd(WS_)}, s{sOst} offen\nbuffer_load_dword a{aTS+2}, off, {srd(WS_)}, s{sLst}")
CT = 80
voff(t0, [(0,3,32)])
cl = f"buffer_load_dwordx2 {v2(CT)}, v{t0}, {srd(DBG_)}, 0 offen sc1"
if opt["deep"] == 1:
    kfix(0, None); vload(0); a(cl); kfix(1, None); vload(1); kfix(2, 25); vload(2); w = 16
elif opt["deep"] == 2:
    kload(3); kfix(0, None); vload(0); kfix(1, None); a(cl); vload(1); kfix(2, 25); vload(2); w = 16
elif opt["deep"] == 4:
    kload(3); kfix(0, None); vload(0); a(cl); kfix(1, None); kfix(2, 17); vload(1); kfix(3, 17); w = 8
elif opt["deep"] == 5:
    kfix(0, None); kload(2); kfix(1, 8); kload(3); a(cl); kfix(2, 9); vload(0); w = 8
elif opt["deep"] == 6:
    kfix(0, None); kload(2); a(cl); kfix(1, 9); kload(3); w = 8
elif opt["ilv"]:
    kfix(0, 8, kload_s(2)); kfix(1, 8, kload_s(3)); kfix(2, 8, vload_s(0)); a(cl); kfix(3, 9, vload_s(1)); w = 8
else:
    kfix(0, 8); kload(2); kfix(1, 8); kload(3); kfix(2, 8); vload(0); a(cl); kfix(3, 9); vload(1); w = 8
lp, ld = lab("bar"), lab("barok")
a(f"""s_waitcnt vmcnt({w})
{lp}:
v_lshrrev_b32 v{t1}, 16, v{CT+1}
v_cmp_gt_u32 vcc, {0 if opt["diag"] & 4 else 32}, v{t1}
s_cbranch_vccz {ld}
{cl}
s_waitcnt vmcnt(0)
s_sub_u32 s{sTO}, s{sTO}, 1
s_cbranch_scc0 {lp}
s_mov_b32 s{sTO}, 0
{ld}:""")
a(f"s_lshl_b32 s{sT0}, s{sQld}, 5\ns_add_u32 s{sT0}, s{sT0}, s{sSEL0}")
if opt["diag"] & 64: a(f"s_mov_b32 s{sT0}, 0x7000000")
for j in range(4): a(f"buffer_load_dwordx4 {v4(QF+4*j)}, v{vOl}, {srd(WS_)}, s{sT0} offen offset:{1024*j} sc1")
if opt["deep"] in (1, 2):
    kfix(3, None); vload(3)
    if opt["opre"]: opre()
elif opt["deep"] == 5:
    kfix(3, None); vload(1)
elif opt["deep"] == 6:
    kfix(2, None); vload(0); kfix(3, 8)
elif opt["deep"]:
    vload(2); vload(3)
    if opt["opre"]: opre()
else: vload(2)
a(f"""s_add_u32 s{sT1}, s{sGB}, {Q_OFF:#x}
s_add_u32 s{sQld}, s{sQld}, s{sT1}
s_add_u32 s{sQst}, s{sQst}, s{sT1}
s_mov_b32 s{sSEL0}, 0x05040100
s_mov_b32 s{sSEL1}, 0x07060302
s_and_b32 s{sT1}, s2, 7
s_waitcnt lgkmcnt(0)
v_readlane_b32 s{sT0}, v{CT}, s{sT1}
v_readlane_b32 s{sT1}, v{CT+1}, s{sT1}
s_lshl_b64 s[{sE}:{sE+1}], 32, s{sFAST}
s_add_u32 s{sE+1}, s{sE+1}, 0x200000
s_xor_b32 s{sT0}, s{sT0}, s{sE}
s_xor_b32 s{sT1}, s{sT1}, s{sE+1}
s_or_b32 s{sT0}, s{sT0}, s{sT1}
s_cmp_eq_u32 s{sT0}, 0
s_cselect_b32 s{sFAST}, 1, 0
s_waitcnt vmcnt({(16 if opt['deep'] in (3, 4) else 8) + (NPRE if opt['deep'] in (1, 2, 3, 4) else 0)})""")
if opt['nv3']: vload(3, 0, opt['nv3'])
ts(7)
ts_put([(TSB+2*k, k) for k in range(1, 8)], vM)
Dt = lambda t: DT + 4*t
qk = [mf(v4(Dt(tau)), a4(aK+16*tau+4*j), v4(QF+4*j), 0 if j == 0 else v4(Dt(tau))) for tau in (0, 2, 1, 3, 4, 6, 5, 7) for j in range(4)]
NSP = 4 if opt["specq"] else 0
for m in qk[:NSP]: a(m)
a("s_branch L_qk")

a("L_layer:")
until(1)
poll([f"buffer_load_dwordx4 {v4(QF+4*j)}, v{vOl}, {srd(WS_)}, s{sQld} offen offset:{1024*j}" for j in range(4)],
     range(QF, QF+16), vM, spec=[(lambda m=m: a(m)) for m in qk[:NSP]], pipe=PIPE, ack=1)
a("L_qk:")
tsn('qk_start')
ZB = ZA + 4
def xlo(t, X): return [dpp_s("v_add_f32", X+r, Dt(t)+r, Dt(t)+r, "row_ror:8", 0x3) for r in range(4)]
def xhi(t, X): return [dpp_s("v_add_f32", X+r, Dt(t)+r, Dt(t)+r, "row_ror:8", 0xc) for r in range(4)]
def zev(Z): return [dpp_s("v_add_f32", Z+r, XT+r, XT+r, "row_ror:12", 0x5) for r in range(4)]
def zod(Z): return [dpp_s("v_add_f32", Z+r, YT+r, YT+r, "row_ror:4", 0xa) for r in range(4)]
fill = xlo(0, XT) + xhi(2, XT) + zev(ZA) + xlo(1, YT) + xhi(3, YT) + zod(ZA) + \
    [f"v_max3_f32 v{vM}, v{ZA}, v{ZA+1}, v{ZA+2}", f"v_max_f32 v{vM}, v{ZA+3}, v{vM}"] + \
    xlo(4, XT) + xhi(6, XT) + zev(ZB) + xlo(5, YT) + xhi(7, YT) + zod(ZB)
mix(qk[NSP:], fill, 2, 11 - NSP)
vLs, vU = vM + 1, vM + 2
a(f"v_max3_f32 v{vM}, v{ZB}, v{ZB+1}, v{vM}\nv_max3_f32 v{vM}, v{ZB+2}, v{ZB+3}, v{vM}")
dpp("v_max_f32", vM, vM, vM, "row_ror:4"); dpp("v_max_f32", vM, vM, vM, "row_ror:8")
for x in rows_s("v_max_f32", vM, vU): a(x)
P = [XT, YT, QF, QF+4]
for r in range(8): a(f"v_sub_f32 v{ZA+r}, v{ZA+r}, v{vM}")
for r in range(8): a(f"v_exp_f32 v{ZA+r}, v{ZA+r}")
for r in range(4): a(f"v_cvt_pk_bf16_f32 v{P[0]+r}, v{ZA+2*r}, v{ZA+2*r+1}")
tsn('softmax_done')
def late_loads():
    R4 = VR + 128
    piece(vU)
    a(f"v_lshrrev_b32 v{vU+1}, 7, v{vL16}\nv_lshl_add_u32 v{vU}, v{vU+1}, 10, v{vU}")
    soff(sT0, 0, grp=512*1024, slot=128*1024, wv=8*1024, i=128)
    if opt["diag"] & 2: a(f"s_mov_b32 s{sT0}, 0x7000000")
    dma(WO_, vU, sT0, 32*1024, 4, WO_L)
def late_resets():
    R4 = VR + 128
    for r in range(4): a(f"v_mov_b32 v{R4+r}, -1")
    if opt["rloc"]:
        reset_addr(R4+4, R4+5)
        a(f"s_mov_b32 s{sT0}, {LSTR:#x}\ns_mov_b32 exec_hi, 0x3fffffff\nbuffer_store_dwordx4 {v4(R4)}, v{R4+4}, {srd(WS_)}, s{sT0} offen sc1\ns_mov_b64 exec, -1")
        return
    soff(sT0, LSTR, wg=4*992, wv=992)
    a(f"s_mov_b32 exec_hi, 0x3fffffff\nbuffer_store_dwordx4 {v4(R4)}, v{vL16}, {srd(WS_)}, s{sT0} offen sc1\ns_mov_b64 exec, -1")
def transpose(t, waits, hooks={}):
    src, dst = VR + 32*(t+1), VR + 32*t
    for p in range(5):
        if p in hooks: hooks[p]()
        if p == 4: break
        if waits[p] is not None: a(f"s_waitcnt vmcnt({waits[p]})")
        for q in range(4):
            a(f"v_perm_b32 v{dst+8*q+p}, v{src+8*p+4+q}, v{src+8*p+q}, s{sSEL0}")
            a(f"v_perm_b32 v{dst+8*q+4+p}, v{src+8*p+4+q}, v{src+8*p+q}, s{sSEL1}")
def pv(t): return [mf(v4(DT+4*e), v4(VR+32*t+4*e), v4(P[t]), 0 if t == 0 else v4(DT+4*e)) for e in range(8)]
FW, vMM, vL, vR, vLSE = QF+8, QF+12, QF+13, QF+14, QF+15
ML = ZA
if opt["deep"] == 5: layer0(lambda lb: (vload(2), transpose(0, [None]*4)))
elif opt["deep"] == 6: layer0(lambda lb: (vload(1), vload(2) if 0 else None, transpose(0, [8, None, None, None])))
elif opt["deep"]: layer0(lambda lb: transpose(0, [None]*4))
else: layer0(lambda lb: (vload(3, opt['nv3'], 8), (opre() if opt["opre"] else None), transpose(0, [None]*4)))
rot = lambda tt: [dpp_s("v_mov_b32", P[tt]+r, P[0]+r, None, f"row_ror:{16-4*tt}") for r in range(4)]
rs = rows_s("v_add_f32", vLs, vU)
r1, r2, r3 = rot(1), rot(2), rot(3)
s0 = [f"v_add_f32 v{ZA+2*r}, v{ZA+2*r}, v{ZA+2*r+1}" for r in range(4)] + \
     [f"v_add_f32 v{ZA}, v{ZA}, v{ZA+2}", f"v_add_f32 v{ZA+4}, v{ZA+4}, v{ZA+6}", f"v_add_f32 v{vLs}, v{ZA}, v{ZA+4}", r1[0],
      dpp_s("v_add_f32", vLs, vLs, vLs, "row_ror:4"), r1[1], dpp_s("v_add_f32", vLs, vLs, vLs, "row_ror:8"), rs[0], r1[2], rs[1], rs[2], r1[3]]
mix(pv(0), s0)
tsn('pv0')
if PIPE: a(f"s_cmp_eq_u32 s{sLAYER}, 0\ns_cbranch_scc1 L_nq\ns_waitcnt vmcnt(0)\nL_nq:")
if opt["deep"] == 5: layer0(lambda lb: (vload(3), transpose(1, [16, None, None, None])))
elif opt["deep"] == 6: layer0(lambda lb: (vload(2), transpose(1, [8, None, None, None])))
else: layer0(lambda lb: transpose(1, [None]*4))
p1 = pv(1)
for x in [p1[0], rs[3], r2[0], p1[1], rs[4], rs[5], p1[2], "s_mov_b64 exec, 15", f"ds_write_b64 v{vMLw}, {v2(vM)}", "s_mov_b64 exec, -1",
          p1[3], r2[1], r2[2], p1[4], r2[3], r3[0], p1[5], r3[1], r3[2], p1[6], "s_waitcnt lgkmcnt(0)", "s_barrier",
          f"ds_read_b128 {v4(ML)}, v{vMLr}", f"ds_read_b128 {v4(ML+4)}, v{vMLr} offset:16", p1[7], r3[3]]: a(x)
tsn('pv1')
layer0(lambda lb: ((vload(3) if opt["deep"] == 6 else None), (late_loads() if opt["wopos"] == 2 else None), transpose(2, [8 + NPRE + (4 if opt["wopos"] == 2 else 0), None, None, None])))
fac = ["s_waitcnt lgkmcnt(0)", f"v_max3_f32 v{vMM}, v{ML}, v{ML+2}, v{ML+4}", f"v_max_f32 v{vMM}, v{ML+6}, v{vMM}"] + \
      [f"v_sub_f32 v{FW+w}, v{ML+2*w}, v{vMM}" for w in range(4)] + [f"v_exp_f32 v{FW+w}, v{FW+w}" for w in range(4)] + \
      [f"v_mul_f32 v{vL}, v{FW}, v{ML+1}"] + [f"v_fmac_f32 v{vL}, v{FW+w}, v{ML+2*w+1}" for w in range(1, 4)] + \
      [f"v_rcp_f32 v{vR}, v{vL}", f"v_log_f32 v{vLSE}, v{vL}"] + [f"v_mul_f32 v{FW+w}, v{FW+w}, v{vR}" for w in range(4)] + \
      [f"v_add_f32 v{vLSE}, v{vLSE}, v{vMM}"]
mix(pv(2), fac[:12], 2, 2)
tsn('pv2')
def blk3(lb):
    lr = late_resets if opt["lrpos"] == 0 else (lambda: None)
    n = NPRE
    if opt["wopos"] == 2: transpose(3, [10+n, 8+n, 6+n, 4+n], {4: lr})
    elif opt["wopos"] == 3: transpose(3, [6+n, 4+n, 6+n, 4+n], {2: late_loads, 4: lr})
    else: transpose(3, [6+n, 4+n, 2+n, n], {4: lambda: (late_loads(), lr())})
layer0(blk3)
gath = lambda u: [dpp_s("v_mov_b32", DT+k, DT+8*u+k, None, f"row_ror:{4*u}", 1 << u) for k in range(8)]
mix(pv(3), fac[12:] + gath(1)[:6])
for x in gath(1)[6:] + gath(2) + gath(3): a(x)
tsn('pv_done')
until(0)
a(f"ds_write_b128 v{vOCw}, {v4(DT)}\nds_write_b128 v{vOCw}, {v4(DT+4)} offset:1024\ns_mov_b64 exec, 1")
pub(f"buffer_store_dword v{vLSE}, off, {srd(WS_)}, s{sLst}")
a("s_mov_b64 exec, -1\ns_waitcnt lgkmcnt(0)")
tsn('ocw')
a("s_barrier")
tsn('ocbar')
OV = ZA
for w in range(4): a(f"ds_read2st64_b32 {v2(OV+2*w)}, v{vOCr} offset0:{8*w} offset1:{8*w+4}")
a(f"s_waitcnt lgkmcnt(3)\nv_mul_f32 v{OV}, v{FW}, v{OV}\nv_mul_f32 v{OV+1}, v{FW}, v{OV+1}")
for w in range(1, 4): a(f"s_waitcnt lgkmcnt({3-w})\nv_fmac_f32 v{OV}, v{FW+w}, v{OV+2*w}\nv_fmac_f32 v{OV+1}, v{FW+w}, v{OV+2*w+1}")
a(f"v_cvt_pk_bf16_f32 v{OV}, v{OV}, v{OV+1}")
pub(f"buffer_store_dword v{OV}, v{vOs}, {srd(WS_)}, s{sOst} offen")
tsn('O_pub')
OF, LS, DB, EB = T, T+16, T+20, T+28
def wo_frags(lb):
    a(f"s_and_b32 s{sT0}, s{sWV}, 1\ns_lshl_b32 s{sT0}, s{sT0}, 5\nv_xor_b32 v{EB}, s{sT0}, v{vTR}\nv_xor_b32 v{EB+1}, 32, v{EB}\ns_waitcnt vmcnt(5)")
    tsn('b_wo')
    if opt["bord"] == 0: a("s_waitcnt vmcnt(0)")
    tsn('b_wait')
    a("s_barrier")
    tsn('b_bar')
    trread(aWO, EB, WO_L, 4); trread(aWO+16, EB+1, WO_L, 4)
    a("s_waitcnt lgkmcnt(0)")
    tsn('b_tr')
    a("s_waitcnt vmcnt(0)")
poll([f"buffer_load_dwordx4 {v4(OF+4*j)}, v{vOl}, {srd(WS_)}, s{sOld} offen offset:{1024*j}" for j in range(4)] +
     [f"buffer_load_dwordx4 {v4(LS)}, v{vG16}, {srd(WS_)}, s{sLld} offen"], range(OF, OF+20), EB, l0=wo_frags, pipe=PIPE, ack=2)
tsn('H2_got')
rm = rows_s("v_max_f32", EB+4, EB+5)
chain = [f"v_max3_f32 v{EB+4}, v{LS}, v{LS+1}, v{LS+2}", f"v_max_f32 v{EB+4}, v{LS+3}, v{EB+4}"] + rm + \
        [f"v_sub_f32 v{EB+r}, v{LS+r}, v{EB+4}" for r in range(4)] + [f"v_exp_f32 v{EB+r}, v{EB+r}" for r in range(4)]
bm = [mf(v4(DB+4*t), v4(OF+4*j), a4(aWO+16*t+4*j), 0 if j == 0 else v4(DB+4*t)) for j in range(4) for t in range(2)]
order = [bm[0], chain[0], chain[1], chain[2], bm[1], bm[2], chain[3], chain[4], chain[5], bm[3], bm[4], chain[6], chain[7], chain[8], bm[5],
         chain[9], chain[10], bm[6], chain[11], chain[12], bm[7], chain[13], chain[14], chain[15]]
for x in order: a(x)
ra = rows_s("v_add_f32", EB+4, EB+5)
a(f"""v_add_f32 v{EB+4}, v{EB}, v{EB+1}
v_add_f32 v{EB+5}, v{EB+2}, v{EB+3}
v_add_f32 v{EB+4}, v{EB+4}, v{EB+5}
{ra[0]}
s_mov_b32 exec_hi, -1
v_mul_f32 v{DB}, v{EB}, v{DB}
{ra[1]}
v_mul_f32 v{DB+4}, v{EB}, v{DB+4}
{ra[2]}
v_fmac_f32 v{DB}, v{EB+1}, v{DB+1}
{ra[3]}
v_fmac_f32 v{DB+4}, v{EB+1}, v{DB+5}
v_fmac_f32 v{DB}, v{EB+2}, v{DB+2}
{ra[4]}
v_fmac_f32 v{DB+4}, v{EB+2}, v{DB+6}
{ra[5]}
v_fmac_f32 v{DB}, v{EB+3}, v{DB+3}
v_fmac_f32 v{DB+4}, v{EB+3}, v{DB+7}
v_rcp_f32 v{EB+4}, v{EB+4}
v_permlane16_swap_b32 v{DB}, v{DB+4}
v_add_f32 v{DB}, v{DB}, v{DB+4}
v_mov_b32 v{DB+4}, v{DB}
v_permlane32_swap_b32 v{DB}, v{DB+4}
v_add_f32 v{DB}, v{DB}, v{DB+4}
s_mov_b32 exec_hi, 0
v_mul_f32 v{DB}, v{DB}, v{EB+4}
buffer_store_dword v{DB}, v{vL4}, {srd(WS_)}, s{sWOst} offen sc1
s_mov_b64 exec, -1""")
tsn('WO_pub')

def ffn_loads(lb):
    W = T + 36
    n = 6
    if opt["lrpos"] == 1: late_resets()
    a(f"""s_cmp_lt_u32 s{sFB}, 28
    s_cbranch_scc0 {lb}""")
    piece(W+1)
    a(f"""v_lshrrev_b32 v{W+2}, 7, v{vL16}
    v_mul_u32_u24 v{W}, 3584, v{W+2}
    v_add_u32 v{W}, v{W}, v{W+1}
    v_lshl_add_u32 v{W+1}, v{W+2}, 10, v{W+1}""")
    soff(sT0, 0, i=64*3584, wv=8*3584, slot=1024, grp=128)
    a(f"s_mov_b32 s{sT1}, s{sT0}")
    dma(WG_, W, sT0, 32*3584, 2, WG_L); dma(WU_, W, sT1, 32*3584, 2, WU_L)
    soff(sT0, 0, slot=8*65536, grp=65536, wv=8192, i=128)
    dma(WD_, W+1, sT0, 32*1024, 2, WD_L)
    if opt["pre"] & 1:
        a(f"v_lshlrev_b32 v{W}, 3, v{vL16}")
        soff(sT0, 0, True, idx=13*128, wv=4*128)
        a(f"s_cmp_eq_u32 s{sWV}, 3\ns_cselect_b32 exec_lo, 1, 15\ns_mov_b32 exec_hi, 0\nbuffer_load_dword v{W+3}, v{W}, {srd(WS_)}, s{sT0} offen sc1\ns_mov_b64 exec, -1")
        n += 1
    a(f"s_waitcnt vmcnt({n})\ns_branch L_acked")
M = T
def reduce32(soffr, slp, first=False):
    if first: layer0(ffn_loads)
    a("s_waitcnt vmcnt(0)")
    if first: a("L_acked:")
    if opt["wbar"] & (1 if first else 2): a("s_barrier")
    if slp: a(f"s_sleep {slp}")
    poll([f"buffer_load_dwordx4 {v4(M+4*u)}, v{vL16}, {srd(WS_)}, s{soffr} offen offset:{1024*u}" for u in range(4)], range(M, M+16), M+16, ack=16)
    for r in range(4): a(f"v_add_f32 v{M+r}, v{M+r}, v{M+4+r}")
    for r in range(4): a(f"v_add_f32 v{M+8+r}, v{M+8+r}, v{M+12+r}")
    for r in (0, 2, 1, 3): a(f"v_add_f32 v{M+r}, v{M+r}, v{M+8+r}")
    a(f"""v_permlane32_swap_b32 v{M}, v{M+2}
    v_permlane32_swap_b32 v{M+1}, v{M+3}
    v_add_f32 v{M}, v{M}, v{M+2}
    v_add_f32 v{M+1}, v{M+1}, v{M+3}""")
    dpp("v_add_f32", M, M, M, "row_ror:8"); dpp("v_add_f32", M+1, M+1, M+1, "row_ror:8")
    a(f"""v_mov_b32 v{M+2}, v{M}
    v_mov_b32 v{M+3}, v{M+1}
    v_permlane16_swap_b32 v{M}, v{M+2}
    v_permlane16_swap_b32 v{M+1}, v{M+3}
    v_add_f32 v{vX0}, v{vX0}, v{M}
    v_add_f32 v{vX1}, v{vX1}, v{M+1}
    v_add_f32 v{vX0}, v{vX0}, v{M+2}
    v_add_f32 v{vX1}, v{vX1}, v{M+3}
    v_cvt_pk_bf16_f32 v{M}, v{vX0}, v{vX1}""")
def stats_s():
    return [f"v_lshlrev_b32 v{vX0}, 16, v{M}", f"v_and_b32 v{vX1}, 0xffff0000, v{M}", f"v_add_f32 v{M+1}, v{vX0}, v{vX1}",
            f"v_mul_f32 v{M+2}, v{vX0}, v{vX0}", f"v_fmac_f32 v{M+2}, v{vX1}, v{vX1}", f"v_permlane32_swap_b32 v{M+1}, v{M+2}",
            f"v_add_f32 v{M+1}, v{M+1}, v{M+2}", dpp_s("v_add_f32", M+1, M+1, M+1, "quad_perm:[1,0,3,2]"),
            dpp_s("v_add_f32", M+1, M+1, M+1, "quad_perm:[2,3,0,1]"), dpp_s("v_add_f32", M+1, M+1, M+1, "row_ror:4")]
reduce32(sM1, opt["slp1"], True)
tsn('M1_done')
XC, DG, DU = T+4, T+12, T+16
st = stats_s()
a(f"ds_write_b32 v{vXLw}, v{M}")
for x in st[:5]: a(x)
a(f"s_waitcnt lgkmcnt(0)\ns_barrier\ns_cmp_lt_u32 s{sFB}, 28\ns_cbranch_scc0 L_stageD")
a(f"ds_read_b128 {v4(XC)}, v{vHr} offset:256\nds_read_b128 {v4(XC+4)}, v{vHr} offset:{256+64}")
def ffn_frags(lb):
    trread(aWG, vTR, WG_L, 2); trread(aWU, vTR, WU_L, 2)
layer0(ffn_frags)
for x in st[5:8]: a(x)
a("s_waitcnt lgkmcnt(0)")
cm = [mf(v4(DG), v4(XC), a4(aWG), 0), mf(v4(DU), v4(XC), a4(aWU), 0), mf(v4(DG), v4(XC+4), a4(aWG+4), v4(DG)), mf(v4(DU), v4(XC+4), a4(aWU+4), v4(DU))]
mix(cm, st[8:], 1)
a("s_mov_b32 exec_lo, 1\ns_mov_b32 exec_hi, 1")
pub(f"buffer_store_dword v{M+1}, v{vXs}, {srd(WS_)}, s{sST1st} offen")
a(f"s_mov_b64 exec, 0xffff\nv_mov_b32 v{DG+2}, v{DU}\nv_mov_b32 v{DG+3}, v{DU+1}")
pub(f"buffer_store_dwordx4 {v4(DG)}, v{vC16}, {srd(WS_)}, s{sGUst} offen")
exec_all()
def cs_pub(lb):
    C = T + 24
    for j in range(2): mfma(v4(C), a4(aONE), a4(aWG+4*j), 0 if j == 0 else v4(C))
    for j in range(2): mfma(v4(C+4), a4(aONE), a4(aWU+4*j), 0 if j == 0 else v4(C+4))
    soff(sT0, CS_OFF, True, slot=4096, i=512, wv=128)
    a(f"v_lshrrev_b32 v{C+8}, 1, v{vC16}\nv_mov_b32 v{C+1}, v{C+4}\ns_mov_b64 exec, 0xffff")
    pub(f"buffer_store_dwordx2 {v2(C)}, v{C+8}, {srd(WS_)}, s{sT0} offen")
    exec_all()
    trread(aWD, vTR, WD_L, 2)
layer0(cs_pub)
tsn('GU_pub')
a("L_stageD:")
G, SD, DD = T, T+8, T+12
def colsums(lb):
    C = T + 16
    a(f"v_lshrrev_b32 v{C+4}, 1, v{vGUl}\ns_sub_u32 s{sT0}, s{sGUld}, s{sGB}\ns_sub_u32 s{sT0}, s{sT0}, {GU_OFF:#x}\ns_lshr_b32 s{sT0}, s{sT0}, 1\ns_add_u32 s{sT0}, s{sT0}, s{sGB}")
    poll([f"buffer_load_dwordx2 {v2(C+2*u)}, v{C+4}, {srd(WS_)}, s{sT0} offen offset:{512*u}" for u in range(2)], range(C, C+4), C+5)
    a(f"""v_add_f32 v{C}, v{C}, v{C+2}
    v_add_f32 v{C+1}, v{C+1}, v{C+3}
    v_permlane16_swap_b32 v{C}, v{C+1}
    v_add_f32 v{vCS}, v{C}, v{C+1}
    v_mov_b32 v{C}, v{vCS}
    v_permlane32_swap_b32 v{vCS}, v{C}
    v_add_f32 v{vCS}, v{vCS}, v{C}""")
poll([f"buffer_load_dwordx4 {v4(G+4*u)}, v{vGUl}, {srd(WS_)}, s{sGUld} offen offset:{1024*u}" for u in range(2)] +
     [f"buffer_load_dwordx2 {v2(SD)}, v{vSTd}, {srd(WS_)}, s{sST1ld} offen"], range(G, G+10), DD, between=lambda: layer0(colsums), pipe=PIPE, ack=4)
tsn('H4_got')
S2, G2, HF = T+24, T+26, T+32
sd = [dpp_s("v_add_f32", S2, SD, SD, "row_ror:1"), dpp_s("v_add_f32", S2+1, SD+1, SD+1, "row_ror:1")]
for n in (2, 4, 8): sd += [dpp_s("v_add_f32", S2, S2, S2, f"row_ror:{n}"), dpp_s("v_add_f32", S2+1, S2+1, S2+1, f"row_ror:{n}")]
sd += fin_s(S2, S2+1) + [f"v_mul_f32 v{S2}, v{S2}, v{vCS}"]
gd = [f"v_add_f32 v{G2+r}, v{G+r}, v{G+4+r}" for r in range(4)] + \
     [f"v_permlane32_swap_b32 v{G2}, v{G2+1}", f"v_permlane32_swap_b32 v{G2+2}, v{G2+3}", f"v_add_f32 v{G2}, v{G2}, v{G2+1}",
      f"v_add_f32 v{G2+2}, v{G2+2}, v{G2+3}", f"v_permlane16_swap_b32 v{G2}, v{G2+2}", f"v_add_f32 v{G2}, v{G2}, v{G2+2}"]
for x in [sd[0], sd[1], gd[0], sd[2], sd[3], gd[1], sd[4], sd[5], gd[2], sd[6], sd[7], gd[3], sd[8], sd[9], gd[4], sd[10], gd[5], sd[11], gd[6],
          sd[12], gd[7], sd[13], gd[8], sd[14], gd[9], sd[15]]: a(x)
a(f"""v_fmac_f32 v{S2}, v{S2+1}, v{G2}
v_mov_b32 v{G2+1}, v{S2}
v_permlane16_swap_b32 v{S2}, v{G2+1}
v_max_f32 v{S2}, 0, v{S2}
v_mul_f32 v{G2}, v{S2}, v{G2+1}
v_cvt_pk_bf16_f32 v{G2}, v{G2}, v{G2}
ds_write_b16 v{vHw}, v{G2}
s_waitcnt lgkmcnt(0)
s_barrier
ds_read_b128 {v4(HF)}, v{vHr}
ds_read_b128 {v4(HF+4)}, v{vHr} offset:64
s_waitcnt lgkmcnt(1)""")
mfma(v4(DD), a4(aWD), v4(HF), 0)
a("s_waitcnt lgkmcnt(0)")
mfma(v4(DD), a4(aWD+4), v4(HF+4), v4(DD))
a(f"s_bfe_u32 s{sT0}, s2, 0x20006\ns_and_b32 s{sT1}, s2, 7")
exec_set(0x00030003, 0x00030003)
a(f"buffer_store_dwordx4 {v4(DD)}, v{vDNs}, {srd(WS_)}, s{sDNst} offen sc1")
exec_all()
tsn('DN_pub')
lgo, lnm = lab("go"), lab("nomid")
a(f"""s_mul_i32 s{sT1}, s{sT1}, s{sLAYER}
s_cmp_eq_u32 s{sT1}, 0
s_cbranch_scc0 L_fin
s_cmp_eq_u32 s{sT0}, s{sWV}
s_cbranch_scc0 {lnm}""")
vRX = T + 40
if opt["estrep"]:
    a(f"""v_bfe_u32 v{vRX}, v{vL4}, 5, 2
    v_lshl_add_u32 v{vRX}, v{vRX}, 11, v{vXs}
    v_and_b32 v{vRX+1}, 0x70, v{vL16}
    v_lshlrev_b32 v{vRX+1}, 4, v{vRX+1}
    v_and_b32 v{vRX+2}, 4, v{vXs}
    v_add_u32 v{vRX+1}, v{vRX+1}, v{vRX+2}""")
reduce32(sM2, opt["slp2"])
if opt["estrep"]:
    a(f"s_cmp_eq_u32 s{sLAYER}, 0\ns_cbranch_scc0 L_out")
    pub(f"buffer_store_dword v{M}, v{vRX}, {srd(WS_)}, s{sXst} offen")
    for x in stats_s()[:]: a(x)
    exec_set(0xff, 0xff)
    pub(f"buffer_store_dword v{M+1}, v{vRX+1}, {srd(WS_)}, s{sST2st} offen")
    exec_all()
else:
    exec_set(0xff, 0xff)
    a(f"s_cmp_eq_u32 s{sLAYER}, 0\ns_cbranch_scc0 L_out")
    pub(f"buffer_store_dword v{M}, v{vXs}, {srd(WS_)}, s{sXst} offen")
    exec_all()
    for x in stats_s()[:]: a(x)
    a("s_mov_b32 exec_lo, 1\ns_mov_b32 exec_hi, 1")
    pub(f"buffer_store_dword v{M+1}, v{vXs}, {srd(WS_)}, s{sST2st} offen")
    exec_all()
if opt["mack2"]: a("s_waitcnt vmcnt(0)")
if opt["mack2"] > 1: a(f"s_sleep {opt['mack2'] - 1}")
a("L_midback:")
tsn('M2_done')
a("s_barrier")
def nomid():
    if opt["wbar"] & 2: a("s_waitcnt vmcnt(0)\ns_barrier")
    a(f"s_cmp_eq_u32 s{sLAYER}, 0\ns_cbranch_scc0 L_fin")
    if opt["outpre"]:
        a(f"s_sub_u32 s{sT1}, s{sXst}, s{sGB}\ns_sub_u32 s{sT1}, s{sT1}, {X2_OFF:#x}\nbuffer_load_dword a{aTS+2}, off, {srd(OUT_)}, s{sT1}")
    if opt["pre"] & 2:
        a(f"s_add_u32 s{sT0}, s{sT0}, 1\ns_and_b32 s{sT0}, s{sT0}, 3\ns_cmp_eq_u32 s{sT0}, s{sWV}\ns_cbranch_scc0 L_midback\nv_lshlrev_b32 v{T+40}, 3, v{vL16}")
        soff(sT0, LSTR + GU_OFF, True, idx=19*128)
        a(f"s_mov_b64 exec, 0x7ffff\nbuffer_load_dword v{T+41}, v{T+40}, {srd(WS_)}, s{sT0} offen sc1")
        if opt["estrep"]:
            soff(sT0, X2_OFF, True, idx=256)
            a(f"s_mov_b64 exec, 3\nbuffer_load_dword v{T+42}, v{T+40}, {srd(WS_)}, s{sT0} offen sc1")
        a("s_mov_b64 exec, -1\ns_waitcnt vmcnt(0)")
    a("s_branch L_midback")
deferred.append((lnm, nomid))
XE, SE, XR, DE = T, T+16, T+20, T+24
poll([f"buffer_load_dwordx4 {v4(XE+4*j)}, v{vXl}, {srd(WS_)}, s{sXE} offen offset:{64*j}" for j in range(4)] +
     [f"buffer_load_dwordx2 {v2(SE)}, v{vSTl}, {srd(WS_)}, s{sST2ld} offen", f"buffer_load_dwordx2 {v2(SE+2)}, v{vSTl}, {srd(WS_)}, s{sST2ld} offen offset:128",
      f"buffer_load_dword v{XR}, v{vXs}, {srd(WS_)}, s{sXst} offen"], range(XE, XE+21), DE, pipe=PIPE, ack=8)
tsn('H5b_got')
se = [f"v_add_f32 v{SE+6}, v{SE}, v{SE+2}", f"v_add_f32 v{SE+7}, v{SE+1}, v{SE+3}"]
SE += 6
for n in (2, 4, 8): se += [dpp_s("v_add_f32", SE, SE, SE, f"row_ror:{n}"), dpp_s("v_add_f32", SE+1, SE+1, SE+1, f"row_ror:{n}")]
em = [mf(v4(DE), a4(aWQ+4*j), v4(XE+4*j), 0 if j == 0 else v4(DE)) for j in range(4)]
for x in [se[0], se[1], em[0], se[2], se[3], em[1], se[4], se[5], em[2], se[6], se[7], em[3]]: a(x)
fs = fin_s(SE, SE+1, QSCALE)
for x in fs[:6] + [f"s_add_u32 s{WS_}, s{WS_}, {LSTR:#x}"] + fs[6:] + [f"s_addc_u32 s{WS_+1}, s{WS_+1}, 0"]: a(x)
for r in range(4): a(f"v_mul_f32 v{DE+4+r}, v{SE}, v{vCSQ+r}")
exec_set(0x00030003, 0x00030003)
for r in range(4): a(f"v_fmac_f32 v{DE+4+r}, v{SE+1}, v{DE+r}")
a(f"v_cvt_pk_bf16_f32 v{DE}, v{DE+4}, v{DE+5}\nv_cvt_pk_bf16_f32 v{DE+1}, v{DE+6}, v{DE+7}")
pub(f"buffer_store_dwordx2 {v2(DE)}, v{vQs}, {srd(WS_)}, s{sQst} offen")
exec_all()
a(f"s_mov_b32 s{sLAYER}, 1\nv_lshlrev_b32 v{vX0}, 16, v{XR}\nv_and_b32 v{vX1}, 0xffff0000, v{XR}")
ts_put([(TSB+2*k, 8+k) for k in range(12)], DE+8)
a("s_branch L_layer")
n = 0
while n < len(deferred):
    l, fn = deferred[n]; a(f"{l}:"); fn(); n += 1
a("L_out:")
if opt["estrep"]: exec_set(0xff, 0xff)
a(f"""s_sub_u32 s{sT0}, s{sXst}, s{sGB}
s_sub_u32 s{sT0}, s{sT0}, {X2_OFF:#x}
buffer_store_dword v{M}, v{vXs}, {srd(OUT_)}, s{sT0} offen
s_mov_b64 exec, -1""")
if opt["outw"]: a("s_waitcnt vmcnt(0)")
a("L_fin:")
until(2)
if TS:
    ts(11)
    a(f"s_memrealtime s[{sE}:{sE+1}]")
    ts_put([(TSB+2*k, 24+k) for k in range(12)] + [(sE, 43), (sFAST, 40), (sTO, 41)], T+40)
    soff(sT0, TS_OFF - LSTR, wg=1024, wv=256)
    a(f"buffer_store_dword v{T+40}, v{vL4}, {srd(WS_)}, s{sT0} offen")
a("L_end:\ns_endpgm")

import asmlib
asmlib.BRANCH_MARGIN = 0 if opt['nobr'] else 1
body = a.finalize()
kn = opt["name"]
ref = open("cdna_kernels/" + NAME + ".s.ref").read().split("\n")
head = [l for l in ref if l.startswith(";") and "@launch" not in l and "Override launch" not in l and "grid=ceil" not in l][:13]
src = "\n".join(head) + f"""
{"; tsset " + opt["tsset"] + chr(10) + "; opts " + sys.argv[0] + " " + " ".join(x for x in sys.argv[2:] if not x.startswith("ts") and not x.startswith("tobits") and not x.startswith("outw")) + chr(10) if TS else ""}; One persistent launch, one workgroup per CU: K/V stay in registers for both layers, weight tiles in AGPRs.
; @launch grid=(256,1,1) block=(256,1,1) lds={LDS_BYTES + opt['ldspad']}
.amdgcn_target "amdgcn-amd-amdhsa--gfx950"
.text
.globl {kn}
.p2align 8
.type {kn},@function
{kn}:
{body}
.section .rodata,"a"
.p2align 6
.amdhsa_kernel {kn}
  .amdhsa_next_free_vgpr 512
  .amdhsa_next_free_sgpr 102
  .amdhsa_accum_offset 256
  .amdhsa_group_segment_fixed_size 0
  .amdhsa_kernarg_size 96
  .amdhsa_user_sgpr_count 2
  .amdhsa_user_sgpr_kernarg_segment_ptr 1
  .amdhsa_system_sgpr_workgroup_id_x 1
.end_amdhsa_kernel
"""
open(out_path, "w").write(src)
print("nops inserted:", a.nops, "lines:", len(body.split("\n")), file=sys.stderr)
```

```python
import sys, math, struct
from asmlib import Asm

NAME = "interleave_layers__gqa_block_cached__glu_gated_reglu__decode"
opt = dict(kvnt="nt", wnt="nt", ts=0, fast=1, tobits=20, name=NAME+"_kernel", until=0, upos=0,
           pre=3, slp1=0, slp2=0, wopos=3, specq=1, blse=0, onesrow=1, pkadd=1, cwarm=0, pord=0, tska=0, wbar=3, fbar=0, mack2=0, nobr=0, ilv=0, q0lds=0, diag=0, rmask=15, estrep=0, nv3=0, tree=1, tlb=0, rloc=0, swz=1, bord=2, outw=0, outpre=0, ldspad=0, pipe=0, fack=3, rslp=0, fslp=0, deep=0, opre=0, lrpos=1, tsset="qk_start,softmax_done,pv_done,O_pub,H2_got,WO_pub,M1_done,GU_pub,H4_got,DN_pub,M2_done,H5b_got")
out_path = sys.argv[1]
for x in sys.argv[2:]:
    k, v = x.split("=")
    assert k in opt, k
    opt[k] = v if k in ("kvnt", "wnt", "name", "tsset") else int(v)
fl = lambda s: "" if s == "none" else " " + s.replace("+", " ")
KVNT = fl(opt["kvnt"]); WNT = fl(opt["wnt"])
TS = opt["ts"]
def f2u(x): return struct.unpack("<I", struct.pack("<f", x))[0]

GR = 0x17000
CS_OFF, GU_OFF, ST1_OFF, X2_OFF, ST2_OFF, LSE_OFF, O_OFF, Q_OFF = 0x0, 0x4000, 0xC000, 0xC400, 0xCC00, 0xCE00, 0xD000, 0x15000
if opt["estrep"]:
    ST2_OFF, X2_OFF = X2_OFF, Q_OFF
WO_OFF, DN_OFF = 8*GR, 8*GR + 0x20000
LSTR = 8*GR + 0x40000
assert LSTR == 1024*992
Q0_OFF = 0x200000
TS_OFF = 0x600000
WS_SIZE = 0x800000
WQ_L, WO_L, WG_L, WU_L, WD_L = 0, 16384, 32768, 40960, 49152
OC_L = 57344; OC_W = 2048
ML_L = OC_L + 4*OC_W
H_L = ML_L + 128
XL_L = H_L + 256
ONE_L = XL_L + 256
LDS_BYTES = ONE_L + 256
sWV, sGB, sFB, sLAYER, sFAST, sTO = 3, 4, 5, 6, 7, 76
K_, V_, WS_, WQ_, WO_, WG_, WU_, WD_, X_, OUT_, DBG_ = 8, 12, 16, 20, 24, 28, 32, 36, 40, 44, 48
def srd(n): return f"s[{n}:{n+3}]"
(sKV, sQld, sQst, sOst, sLst, sOld, sLld, sWOst, sM1, sM2, sXst, sST1st, sST2st, sXE, sST1ld, sST2ld,
 sGUst, sGUld, sDNst) = range(77, 96)
sT0, sT1, sSEL0, sSEL1 = 96, 97, 98, 99
sE = 100
TSB = 52
vL16, vL4, vOs, vOl, vXl, vC16, vG16, vQs, vDNs, vGUl, vXs = range(0, 11)
vOCw, vOCr, vMLw, vMLr, vHw, vHr, vTR, vSTl, vSTd, vXLw = range(11, 21)
vX0, vX1, vCS = 21, 22, 23
vCSQ = 24
T = 28
QF, DT, vM, XT, YT, ZA = 28, 44, 76, 80, 84, 88
VR = 96
vTSV = VR + 128 + 31
def v4(n): return f"v[{n}:{n+3}]"
def v2(n): return f"v[{n}:{n+1}]"
def a4(n): return f"a[{n}:{n+3}]"
aK, aWQ, aWO, aWG, aWU, aWD, aONE, aTS = 0, 128, 144, 176, 184, 192, 200, 204

a = Asm()
deferred = []
uid = [0]
def lab(p):
    uid[0] += 1
    return f"L_{p}_{uid[0]}"
def exec_set(lo, hi):
    if hi == 0: a(f"s_mov_b64 exec, {lo:#x}")
    else: a(f"s_mov_b32 exec_lo, {lo:#x}\ns_mov_b32 exec_hi, {hi:#x}")
def exec_all(): a("s_mov_b64 exec, -1")

F = dict(grp=(2,0,3), idx=(2,3,5), i=(2,3,3), slot=(2,6,2), s=(2,3,4), ba=(2,7,1), wg=(2,0,8),
         i0=(2,3,1), ih=(2,4,2), wv=(sWV,0,2), w0=(sWV,0,1), w1=(sWV,1,1))
def soff(dst, const, gb=False, **terms):
    first = True
    for name, mul in terms.items():
        src, lo, w = F[name]
        d = dst if first else sE
        if name in ("wg", "wv"): s = f"s{src}"
        else:
            a(f"s_bfe_u32 s{d}, s{src}, {(w << 16) | lo:#x}"); s = f"s{d}"
        if mul & (mul-1) == 0: a(f"s_lshl_b32 s{d}, {s}, {mul.bit_length()-1}")
        else: a(f"s_mul_i32 s{d}, {s}, {mul}")
        if not first: a(f"s_add_u32 s{dst}, s{dst}, s{sE}")
        first = False
    if first:
        a(f"s_add_u32 s{dst}, s{sGB}, {const:#x}" if gb else f"s_mov_b32 s{dst}, {const:#x}"); return
    if gb: a(f"s_add_u32 s{dst}, s{dst}, s{sGB}")
    if const: a(f"s_add_u32 s{dst}, s{dst}, {const:#x}")
vLane, vTmp = 30, 31
def voff(dst, terms, sadd=None, const=0):
    first = True
    for lo, w, mul in terms:
        if first:
            if lo == 0 and w == 6: src = vLane
            else: a(f"v_bfe_u32 v{dst}, v{vLane}, {lo}, {w}"); src = dst
            if mul & (mul-1) == 0: a(f"v_lshlrev_b32 v{dst}, {mul.bit_length()-1}, v{src}")
            else: a(f"v_mul_u32_u24 v{dst}, {mul}, v{src}")
        else:
            a(f"v_bfe_u32 v{vTmp}, v{vLane}, {lo}, {w}")
            if mul & (mul-1) == 0: a(f"v_lshl_add_u32 v{dst}, v{vTmp}, {mul.bit_length()-1}, v{dst}")
            else: a(f"v_mul_u32_u24 v{vTmp}, {mul}, v{vTmp}\nv_add_u32 v{dst}, v{dst}, v{vTmp}")
        first = False
    if const: a(f"v_add_u32 v{dst}, {const}, v{dst}")
    if sadd is not None: a(f"v_add_u32 v{dst}, s{sadd}, v{dst}")

def pub(*stores):
    wt = [s + (" sc1" if s.startswith("buffer") else "") for s in stores]
    if not opt["fast"]:
        for s in wt: a(s)
        return
    ls, lb = lab("slow"), lab("back")
    a(f"s_cmp_eq_u32 s{sFAST}, 1\ns_cbranch_scc0 {ls}")
    for s in stores: a(s)
    a(f"{lb}:")
    deferred.append((ls, lambda: a("\n".join(wt) + f"\ns_branch {lb}")))

def layer0(fn, cond=None):
    ls, lb = lab("l0"), lab("l0back")
    a(f"s_cmp_eq_u32 s{sLAYER}, 0\ns_cbranch_scc1 {ls}\n{lb}:")
    def blk():
        fn(lb); a(f"s_branch {lb}")
    deferred.append((ls, blk))

def check_ops(regs, tmp):
    r = list(regs); ops = []
    if opt["tree"] and len(r) >= 8:
        A, B = r[:len(r)//2], r[len(r)//2:]
        if len(A) % 2 == 0: A, B = A + B[:1], B[1:]
        last = B.pop() if len(B) % 2 == 0 else None
        def chain(x, t):
            o = [f"v_max3_u32 v{t}, v{x[0]}, v{x[1]}, v{x[2]}"]; x = x[3:]
            while x: o.append(f"v_max3_u32 v{t}, v{x[0]}, v{x[1]}, v{t}"); x = x[2:]
            return o
        ca, cb = chain(A, tmp), chain(B, tmp+1)
        while ca or cb:
            if ca: ops.append(ca.pop(0))
            if cb: ops.append(cb.pop(0))
        ops.append(f"v_max3_u32 v{tmp}, v{tmp}, v{tmp+1}, v{last}" if last is not None else f"v_max_u32 v{tmp}, v{tmp}, v{tmp+1}")
        return ops
    ops.append(f"v_max3_u32 v{tmp}, v{r[0]}, v{r[1]}, v{r[2]}"); r = r[3:]
    while len(r) >= 2:
        ops.append(f"v_max3_u32 v{tmp}, v{r[0]}, v{r[1]}, v{tmp}"); r = r[2:]
    if r: ops.append(f"v_max_u32 v{tmp}, v{r[0]}, v{tmp}")
    return ops
def poll(loads, regs, tmp, between=None, spec=(), pipe=False, ack=0, l0=None):
    lc, lr, ld = lab("chk"), lab("retry"), lab("got")
    if l0:
        lw = lab("l0chk")
        def blk(lb):
            if opt["bord"] == 2: a("s_waitcnt vmcnt(0)")
            for l in loads: a(l + " sc1")
            l0(lb)
            a(f"s_branch {lw}")
        layer0(blk)
    if ack & opt["fack"]:
        a("s_waitcnt vmcnt(0)")
        if ack & opt["fbar"]: a("s_barrier")
        if opt["fslp"]: a(f"s_sleep {opt['fslp']}")
    for l in loads: a(l + " sc1")
    if between: between()
    a("s_waitcnt vmcnt(0)")
    if l0: a(f"{lw}:")
    ops = check_ops(regs, tmp)
    if not pipe: a(f"{lc}:")
    o, sp = list(ops), list(spec)
    while o or sp:
        if sp: sp.pop(0)()
        for _ in range(2 if sp else len(o)):
            if o: a(o.pop(0))
    a(f"v_cmp_eq_u32 vcc, -1, v{tmp}\ns_cbranch_vccnz {lr}\n{ld}:")
    def retry():
        lx = lab("giveup")
        if not pipe:
            a(f"s_sub_u32 s{sTO}, s{sTO}, 1\ns_cbranch_scc1 {lx}\ns_mov_b64 exec, vcc")
            if (ack & opt["rmask"]) and opt["rslp"]: a(f"s_sleep {opt['rslp']}")
            for l in loads: a(l + " sc1")
            a(f"s_mov_b64 exec, -1\ns_waitcnt vmcnt(0)\ns_branch {lc}\n{lx}:\ns_mov_b32 s{sTO}, 0\ns_branch {ld}")
            return
        a("s_mov_b64 exec, vcc")
        for l in loads: a(l + " sc1")
        a(f"s_sleep {opt['pipe']}\n{lc}:")
        for l in loads: a(l + " sc1")
        a(f"s_waitcnt vmcnt({len(loads)})")
        for x in ops: a(x)
        a(f"v_cmp_eq_u32 vcc, -1, v{tmp}\ns_sub_u32 s{sTO}, s{sTO}, 1\ns_cbranch_scc1 {lx}\ns_and_b64 exec, exec, vcc\ns_cbranch_scc1 {lc}")
        lo = lab("ok")
        a(f"{lo}:\ns_mov_b64 exec, -1")
        for f in spec: f()
        a(f"s_branch {ld}\n{lx}:\ns_mov_b32 s{sTO}, 0\ns_branch {lo}")
    deferred.append((lr, retry))
PIPE = bool(opt["pipe"])

def ts(k):
    if TS: a(f"s_memtime s[{TSB+2*k}:{TSB+2*k+1}]")
TSSET = opt["tsset"].split(",")
assert len(TSSET) <= 12
def tsn(name):
    if name in TSSET: ts(TSSET.index(name))
def ts_put(pairs, tmp):
    if not TS: return
    a(f"s_waitcnt lgkmcnt(0)\nv_accvgpr_read_b32 v{tmp}, a{aTS}")
    for s, l in pairs: a(f"v_writelane_b32 v{tmp}, s{s}, {l}")
    a(f"v_accvgpr_write_b32 a{aTS}, v{tmp}")
def until(pos):
    if opt["until"] and opt["upos"] == pos:
        l = lab("until")
        a(f"v_accvgpr_read_b32 v79, a{aTS}\nv_readfirstlane_b32 s54, v79\n{l}:\ns_memrealtime s[52:53]\ns_waitcnt lgkmcnt(0)\ns_sub_u32 s52, s52, s54\ns_cmp_lt_u32 s52, {opt['until']}\ns_cbranch_scc1 {l}")

def mk_srd(d, lo, size):
    a(f"s_mov_b32 s{d}, s{lo}\ns_and_b32 s{d+1}, s{lo+1}, 0xffff\ns_mov_b32 s{d+2}, {size:#x}\ns_mov_b32 s{d+3}, 0x20000")
def mfma(d, A, B, c): a(f"v_mfma_f32_16x16x32_bf16 {d}, {A}, {B}, {c}")
def dpp_s(op, d, s0, s1, ctrl, bank=0xf):
    if s1 is None: return f"{op}_dpp v{d}, v{s0} {ctrl} row_mask:0xf bank_mask:{bank:#x}"
    return f"{op}_dpp v{d}, v{s0}, v{s1} {ctrl} row_mask:0xf bank_mask:{bank:#x}"
def dpp(*k): a(dpp_s(*k))
def rows_s(op, r, t):
    return [f"v_mov_b32 v{t}, v{r}", f"v_permlane16_swap_b32 v{r}, v{t}", f"{op} v{r}, v{r}, v{t}",
            f"v_mov_b32 v{t}, v{r}", f"v_permlane32_swap_b32 v{r}, v{t}", f"{op} v{r}, v{r}, v{t}"]
def mix(main, fill, per=2, start=0):
    fill = list(fill)
    for n, m in enumerate(main):
        a(m)
        if n >= start:
            for _ in range(per):
                if fill: a(fill.pop(0))
    for f in fill: a(f)
def mf(d, A, B, c): return f"v_mfma_f32_16x16x32_bf16 {d}, {A}, {B}, {c}"

def dma(srdn, voff_, sbase, step, n, ldsbase):
    for i in range(n):
        a(f"s_lshl_b32 s{sE}, s{sWV}, 10\ns_add_u32 m0, s{sE}, {ldsbase + i*4096}")
        if i: a(f"s_add_u32 s{sbase}, s{sbase}, {step}")
        a(f"buffer_load_dwordx4 v{voff_}, {srd(srdn)}, s{sbase} offen{WNT} lds")
def trread(areg, vaddr, ldsoff, ksteps):
    for j in range(ksteps):
        for u in range(2):
            a(f"ds_read_b64_tr_b16 a[{areg+4*j+2*u}:{areg+4*j+2*u+1}], v{vaddr} offset:{ldsoff + (32*j+4*u)*128}")
def fin_s(S, Q, scale=1.0):
    r = [f"v_mul_f32 v{S}, {f2u(-1/512):#x}, v{S}", f"v_mul_f32 v{Q}, {f2u(1/512):#x}, v{Q}",
         f"v_fma_f32 v{Q}, -v{S}, v{S}, v{Q}", f"v_max_f32 v{Q}, 0, v{Q}", f"v_add_f32 v{Q}, {f2u(1e-5):#x}, v{Q}",
         f"v_rsq_f32 v{Q}, v{Q}"]
    if scale != 1.0: r.append(f"v_mul_f32 v{Q}, {f2u(scale):#x}, v{Q}")
    r.append(f"v_mul_f32 v{S}, v{S}, v{Q}")
    return r
QSCALE = math.log2(math.e) / math.sqrt(128.0)

if TS or opt["until"]:
    a(f"s_memtime s[52:53]\ns_memrealtime s[54:55]\ns_waitcnt lgkmcnt(0)\nv_mov_b32 v40, 0")
    if TS: a("v_writelane_b32 v40, s52, 0\nv_writelane_b32 v40, s54, 42")
    else: a("v_mov_b32 v40, s54")
    a(f"v_accvgpr_write_b32 a{aTS}, v40")
a(f"""s_cmp_ge_u32 s2, 256
s_cbranch_scc1 L_end
s_load_dwordx16 s[52:67], s[0:1], 0
s_load_dwordx8 s[68:75], s[0:1], 64
v_lshrrev_b32 v{vTmp}, 6, v0
v_and_b32 v{vLane}, 63, v0
v_readfirstlane_b32 s{sWV}, v{vTmp}
s_mov_b32 s{sLAYER}, 0
s_mov_b32 s{sTO}, {1 << opt['tobits']:#x}""")
vK, vW, vSX, vQ0 = 32, 33, 34, 35
XF, XS, RST = 44, 80, 88
voff(vL16, [(0,6,16)])
def piece(dst):
    a(f"v_and_b32 v{dst}, 0x70, v{vL16}")
    if opt["swz"]:
        a(f"v_lshrrev_b32 v{dst+1}, 3, v{vL16}\nv_and_b32 v{dst+1}, 32, v{dst+1}\nv_xor_b32 v{dst}, v{dst}, v{dst+1}\ns_and_b32 s{sE}, s{sWV}, 1\ns_lshl_b32 s{sE}, s{sE}, 6\nv_xor_b32 v{dst}, s{sE}, v{dst}")
def reset_addr(vd, t):
    soff(sT1, 0, grp=GR, idx=4*736, wv=736)
    a(f"v_add_u32 v{vd}, s{sT1}, v{vL16}")
    soff(sT1, WO_OFF - 46*16, wg=1024, wv=256)
    a(f"v_add_u32 v{t}, s{sT1}, v{vL16}\nv_cmp_gt_u32 vcc, {46*16}, v{vL16}\nv_cndmask_b32 v{vd}, v{t}, v{vd}, vcc")
vRA = 38
def p_wq_addr():
    piece(vW)
    a(f"v_lshrrev_b32 v{vW+1}, 3, v{vLane}\nv_lshl_add_u32 v{vW}, v{vW+1}, 13, v{vW}")
    soff(sT1, 0, slot=128*8192, wv=8*8192, grp=1024, i=128)
def p_wq():
    mk_srd(WQ_, 58, 512*8192)
    if opt["diag"] & 32: a(f"s_mov_b32 s{sT1}, 0x7000000")
    dma(WQ_, vW, sT1, 32*8192, 4, WQ_L)
def p_x_addr():
    voff(vXl, [(0,1,1024), (4,2,16)])
    voff(vSX, [(0,1,1024), (1,3,128), (4,2,32)])
    voff(vXs, [(0,3,8), (5,1,4)])
    soff(sXE, 0, slot=256)
    soff(sXst, 0, w1=1024, i=128, w0=64)
def p_x():
    mk_srd(X_, 52, 2048)
    for j in range(4): a(f"buffer_load_dwordx4 {v4(XF+4*j)}, v{vXl}, {srd(X_)}, s{sXE} offen offset:{64*j}")
    a(f"buffer_load_dwordx4 {v4(XS)}, v{vSX}, {srd(X_)}, 0 offen\nbuffer_load_dwordx4 {v4(XS+4)}, v{vSX}, {srd(X_)}, 0 offen offset:16")
    a(f"buffer_load_dword v{vX1}, v{vXs}, {srd(X_)}, s{sXst} offen")
def p_rst():
    for r in range(4): a(f"v_mov_b32 v{RST+r}, -1")
    if opt["rloc"]: reset_addr(vRA, vRA+1)
    else: soff(sT1, 0, wg=4*992, wv=992)
    mk_srd(WS_, 74, WS_SIZE)
    if opt["rloc"]: a(f"s_mov_b32 exec_hi, 0x3fffffff\nbuffer_store_dwordx4 {v4(RST)}, v{vRA}, {srd(WS_)}, 0 offen sc1\ns_mov_b64 exec, -1")
    elif not opt["diag"] & 1: a(f"s_mov_b32 exec_hi, 0x3fffffff\nbuffer_store_dwordx4 {v4(RST)}, v{vL16}, {srd(WS_)}, s{sT1} offen sc1\ns_mov_b64 exec, -1")
def p_k_addr():
    voff(vK, [(0,2,1024), (2,1,256), (3,1,64), (4,2,16)])
    soff(sKV, 0, ba=8<<21, grp=1<<21, s=1<<17, wv=1<<13)
def p_wait():
    a("s_waitcnt lgkmcnt(0)")
    if opt["tska"]: a(f"s_memtime s[{sOld}:{sOld+1}]")
def kload_s(t):
    r = []
    for hi in range(2):
        for j in range(4):
            p = f"s_add_u32 s{sT0}, s{sKV}, {t*32768 + hi*4096}\n" if j == 0 else ""
            r.append(p + f"buffer_load_dwordx4 {v4(VR+32*(t+1)+16*hi+4*j)}, v{vK}, {srd(K_)}, s{sT0} offen offset:{128*(j>>1)+512*(j&1)}{KVNT}")
    return r
def vload_s(t, lo=0, hi=8):
    r = []
    for i in range(lo, hi):
        p = f"s_add_u32 s{sT0}, s{sKV}, {t*32768 + (i>>2)*4096}\n" if (i % 4 == 0 or i == lo) else ""
        r.append(p + f"buffer_load_dwordx4 {v4(VR+32*(t+1)+4*i)}, v{vL16}, {srd(V_)}, s{sT0} offen offset:{1024*(i&3)}{KVNT}")
    return r
def kload(t):
    for x in kload_s(t): a(x)
def vload(t, lo=0, hi=8):
    for x in vload_s(t, lo, hi): a(x)
def kfix(t, wait, loads=()):
    loads = list(loads)
    if wait is not None: a(f"s_waitcnt vmcnt({wait})")
    if t: ts(3 + t)
    for hi in range(2):
        for hf in range(2):
            A = VR + 32*(t+1) + 16*hi + 8*hf; B = A + 4; dst = aK + 16*(t+4*hi) + 8*hf
            if loads: a(loads.pop(0))
            if not opt["diag"] & 16:
                for r in range(4): a(f"v_mov_b32 v{VR+r}, v{A+r}")
                for r in range(4): dpp("v_mov_b32", VR+r, B+r, None, "row_ror:8", 0xc)
                for r in range(2): dpp("v_mov_b32", B+r, A+r, None, "row_ror:8", 0x3)
            if loads: a(loads.pop(0))
            if not opt["diag"] & 16:
                for r in range(2, 4): dpp("v_mov_b32", B+r, A+r, None, "row_ror:8", 0x3)
                for r in range(4): a(f"v_accvgpr_write_b32 a{dst+r}, v{VR+r}")
                for r in range(4): a(f"v_accvgpr_write_b32 a{dst+4+r}, v{B+r}")
K0 = kload_s(0); p_k = lambda: mk_srd(K_, 54, 0x2000000)
em_ = lambda l: [a(x) for x in l]
if opt["pord"] == 0:
    p_wq_addr(); p_x_addr(); p_k_addr(); p_wait(); p_wq(); p_x(); p_rst(); p_k(); em_(K0); W0 = 8
elif opt["pord"] == 1:
    p_wq_addr(); p_wait(); p_wq(); p_k_addr(); p_k(); em_(K0[:4]); p_x_addr(); p_x(); p_rst(); em_(K0[4:]); W0 = 4
elif opt["pord"] == 2:
    p_k_addr(); p_wait(); p_k(); em_(K0[:4]); p_wq_addr(); p_wq(); p_x_addr(); p_x(); p_rst(); em_(K0[4:]); W0 = 4
elif opt["pord"] == 3:
    p_wq_addr(); p_wait(); p_wq(); p_x_addr(); p_x(); p_k_addr(); p_k(); em_(K0[:4]); p_rst(); em_(K0[4:]); W0 = 4
elif opt["pord"] == 4:
    p_wq_addr(); p_wait(); p_wq(); p_x_addr(); p_x(); p_rst(); p_k_addr(); p_k(); em_(K0); W0 = 8
if opt["tska"]: a(f"s_memtime s[{sWOst}:{sWOst+1}]\ns_waitcnt lgkmcnt(0)\nv_accvgpr_read_b32 v40, a{aTS}\nv_writelane_b32 v40, s{sOld}, 44\nv_writelane_b32 v40, s{sWOst}, 45\nv_accvgpr_write_b32 a{aTS}, v40")
if opt["deep"] in (1, 2, 4): kload(1)
mk_srd(V_, 56, 0x2000000); mk_srd(WO_, 60, 4096*1024); mk_srd(WG_, 64, 512*3584); mk_srd(WU_, 66, 512*3584)
mk_srd(WD_, 68, 1792*1024); mk_srd(OUT_, 70, 2048); mk_srd(DBG_, 72, 256)
voff(vL4, [(0,6,4)]); voff(vC16, [(0,4,16)]); voff(vG16, [(4,2,16)])
voff(vOl, [(0,4,64), (4,2,16)]); voff(vOs, [(4,2,1024), (0,4,4)])
voff(vQs, [(0,1,4096), (4,2,8)]); voff(vQ0, [(0,1,0x20000), (4,2,8)])
voff(vDNs, [(0,1,0x10000), (4,2,16)]); voff(vGUl, [(4,2,2048), (0,4,16)])
voff(vSTl, [(1,3,16), (0,1,8)]); voff(vSTd, [(0,4,16), (5,1,8)])
voff(vHr, [(0,1,128), (4,2,16)], const=H_L)
if opt["swz"]:
    voff(vTR, [(4,2,1024), (2,2,128), (0,2,8)])
    a(f"v_bfe_u32 v{vTmp}, v{vLane}, 3, 2\nv_xor_b32 v{vTmp}, s{sWV}, v{vTmp}\nv_lshl_add_u32 v{vTR}, v{vTmp}, 5, v{vTR}")
else:
    soff(sT0, 0, wv=32); voff(vTR, [(4,2,1024), (2,2,128), (0,2,8)], sadd=sT0)
soff(sT0, H_L, wv=32); voff(vHw, [(5,1,128), (0,4,2)], sadd=sT0)
voff(vOCw, [(4,1,2), (3,1,1)]); a(f"v_xor_b32 v{vOCw}, v{vOCw}, v{vLane}\nv_lshlrev_b32 v{vOCw}, 4, v{vOCw}")
soff(sT0, OC_L, wv=OC_W); a(f"v_add_u32 v{vOCw}, s{sT0}, v{vOCw}")
voff(vOCr, [(4,1,2), (1,1,1)]); a(f"v_xor_b32 v{vOCr}, s{sWV}, v{vOCr}\nv_lshlrev_b32 v{vOCr}, 4, v{vOCr}")
voff(vSX+2, [(4,2,256), (0,2,64), (2,2,4)], const=OC_L); a(f"v_add_u32 v{vOCr}, v{vOCr}, v{vSX+2}")
soff(sT0, ML_L, wv=8); voff(vMLw, [(0,2,32)], sadd=sT0)
soff(sT0, ML_L, wv=32); a(f"v_mov_b32 v{vMLr}, s{sT0}")
soff(sT0, XL_L, wv=64); a(f"v_add_u32 v{vXLw}, s{sT0}, v{vXs}")
a(f"v_mov_b32 v{vTmp}, 0x3f803f80")
for r in range(4): a(f"v_accvgpr_write_b32 a{aONE+r}, v{vTmp}")
vXLr = VR + 128 + 8
if opt["onesrow"]: a(f"v_add_u32 v{vSX+2}, {ONE_L}, v{vL4}\nds_write_b32 v{vSX+2}, v{vTmp}")
for r in range(8): a(f"v_accvgpr_write_b32 a{aWD+r}, 0")
NT = 0
if opt["tlb"]:
    a(f"s_mov_b64 exec, 1\nbuffer_load_dword a{aTS+1}, off, {srd(V_)}, s{sKV}{KVNT}"); NT += 1
    if opt["tlb"] > 1:
        soff(sT0, 0, grp=512*1024, slot=128*1024, wv=8*1024, i=128)
        a(f"buffer_load_dword a{aTS+1}, off, {srd(WO_)}, s{sT0}{KVNT}")
        soff(sT0, 0, i=64*3584, wv=8*3584, slot=1024, grp=128)
        a(f"buffer_load_dword a{aTS+1}, off, {srd(WG_)}, s{sT0}{KVNT}\nbuffer_load_dword a{aTS+1}, off, {srd(WU_)}, s{sT0}{KVNT}")
        soff(sT0, 0, slot=8*65536, grp=65536, wv=8192, i=128)
        a(f"buffer_load_dword a{aTS+1}, off, {srd(WD_)}, s{sT0}{KVNT}"); NT += 4
    exec_all()
soff(sGB, 0, grp=GR)
soff(sFB, 0, slot=8, grp=1)
soff(sOst, O_OFF, True, ba=16384, wv=4096, s=64)
soff(sLst, LSE_OFF, True, ba=256, wv=64, s=4)
soff(sOld, O_OFF, True, w0=16384, slot=4096)
soff(sLld, LSE_OFF, True, w0=256, slot=64)
soff(sWOst, WO_OFF, w0=0x10000, i=8192, w1=4096, grp=512, slot=128)
soff(sDNst, DN_OFF, i=8192, w1=4096, slot=1024, grp=128, w0=64)
soff(sM1, WO_OFF, w1=0x10000, i=8192, w0=4096)
a(f"s_add_u32 s{sM2}, s{sM1}, {DN_OFF - WO_OFF:#x}")
soff(sST2st, ST2_OFF, True, i=32, w0=16, w1=8)
soff(sST1st, ST1_OFF, True, slot=256, i=32, w0=16, w1=8)
if opt["estrep"]: soff(sST2ld, ST2_OFF, True, i=256)
else: soff(sST2ld, ST2_OFF, True)
soff(sGUst, GU_OFF, True, slot=8192, i=1024, wv=256)
soff(sT0, 0, slot=1)
a(f"s_cmp_lt_u32 s{sFB}, 28\ns_cselect_b32 s{sT0}, s{sT0}, 0\ns_lshl_b32 s{sST1ld}, s{sT0}, 8\ns_lshl_b32 s{sT0}, s{sT0}, 13")
soff(sGUld, GU_OFF, True, wv=256)
a(f"s_add_u32 s{sGUld}, s{sGUld}, s{sT0}\ns_add_u32 s{sST1ld}, s{sST1ld}, s{sGB}\ns_add_u32 s{sST1ld}, s{sST1ld}, {ST1_OFF:#x}")
a(f"s_add_u32 s{sT0}, s{sGB}, {X2_OFF:#x}\ns_add_u32 s{sXE}, s{sXE}, s{sT0}\ns_add_u32 s{sXst}, s{sXst}, s{sT0}")
if opt["estrep"]:
    soff(sT0, 0, ih=2048); a(f"s_add_u32 s{sXE}, s{sXE}, s{sT0}")
soff(sQst, 0, slot=256, ih=64, i0=2048, w1=1024, w0=32)
soff(sQld, 0, ba=4096)
soff(sSEL0, Q0_OFF, grp=0x40000)
a(f"s_waitcnt vmcnt({NT + W0 + (8 if opt['deep'] in (1, 2, 4) else 0)})")
ts(1)
S, Qr, t0, t1 = 90, 91, 36, 37
a(f"v_mov_b32 v{S}, 0\nv_mov_b32 v{Qr}, 0")
for i in range(8):
    a(f"""v_lshlrev_b32 v{t0}, 16, v{XS+i}
    v_and_b32 v{t1}, 0xffff0000, v{XS+i}
    v_add_f32 v{S}, v{S}, v{t0}
    v_fmac_f32 v{Qr}, v{t0}, v{t0}
    v_add_f32 v{S}, v{S}, v{t1}
    v_fmac_f32 v{Qr}, v{t1}, v{t1}""")
a(f"v_lshlrev_b32 v{vX0}, 16, v{vX1}\nv_and_b32 v{vX1}, 0xffff0000, v{vX1}")
a("s_barrier")
trread(aWQ, vTR, WQ_L, 4)
for n in (2, 4, 8):
    dpp("v_add_f32", S, S, S, f"row_ror:{n}"); dpp("v_add_f32", Qr, Qr, Qr, f"row_ror:{n}")
for x, y in zip(rows_s("v_add_f32", S, t0), rows_s("v_add_f32", Qr, t1)): a(x); a(y)
for x in fin_s(S, Qr, QSCALE): a(x)
a("s_waitcnt lgkmcnt(0)")
DE = 60
for j in range(4): mfma(v4(vCSQ), a4(aWQ+4*j), a4(aONE), 0 if j == 0 else v4(vCSQ))
for j in range(4): mfma(v4(DE), a4(aWQ+4*j), v4(XF+4*j), 0 if j == 0 else v4(DE))
for r in range(4): a(f"v_mul_f32 v{DE+4+r}, v{S}, v{vCSQ+r}")
for r in range(4): a(f"v_fmac_f32 v{DE+4+r}, v{Qr}, v{DE+r}")
a(f"v_cvt_pk_bf16_f32 v{DE}, v{DE+4}, v{DE+5}\nv_cvt_pk_bf16_f32 v{DE+1}, v{DE+6}, v{DE+7}\ns_add_u32 s{sT0}, s{sQst}, s{sSEL0}")
if opt["q0lds"]:
    assert opt["deep"] == 0
    voff(t0, [(0,1,128), (4,2,8)]); soff(sT1, OC_L, wv=32)
    a(f"v_add_u32 v{t0}, s{sT1}, v{t0}")
    exec_set(0x00030003, 0x00030003)
    a(f"ds_write_b64 v{t0}, {v2(DE)}")
    exec_all()
    voff(vQ0, [(3,1,0x20000), (2,1,1024), (0,2,16)])
    lq = lab("q0")
    a(f"""s_waitcnt lgkmcnt(0)
    s_barrier
    s_cmp_eq_u32 s{sWV}, 0
    s_cbranch_scc0 {lq}
    s_mov_b64 exec, 0xffff
    ds_read_b128 {v4(DE)}, v{vL16} offset:{OC_L}
    s_waitcnt lgkmcnt(0)""")
    if not opt["diag"] & 8: a(f"buffer_store_dwordx4 {v4(DE)}, v{vQ0}, {srd(WS_)}, s{sT0} offen sc1")
    a(f"s_mov_b64 exec, -1\n{lq}:")
    ts(2)
    kload(1)
    a("s_waitcnt vmcnt(8)")
    ts(3)
else:
    exec_set(0x00030003, 0x00030003)
    if not opt["diag"] & 8: a(f"buffer_store_dwordx2 {v2(DE)}, v{vQ0}, {srd(WS_)}, s{sT0} offen sc1")
    exec_all()
    ts(2)
    if opt["deep"] == 1:
        kload(2); kload(3)
        a("s_waitcnt vmcnt(16)\ns_barrier")
    elif opt["deep"] in (2, 4):
        kload(2)
        a("s_waitcnt vmcnt(8)\ns_barrier")
    else:
        kload(1)
        a("s_waitcnt vmcnt(8)\ns_barrier")
        ts(3)
lna = lab("noarr")
a(f"""s_getreg_b32 s{sT0}, hwreg(HW_REG_XCC_ID)
s_and_b32 s{sT0}, s{sT0}, 7
s_mul_i32 s{sFAST}, s{sT0}, 6
s_cmp_eq_u32 s{sWV}, 0
s_cbranch_scc0 {lna}
s_and_b32 s{sT0}, s2, 7
s_lshl_b32 s{sT0}, s{sT0}, 5
s_lshl_b64 s[{sE}:{sE+1}], 1, s{sFAST}
s_add_u32 s{sE+1}, s{sE+1}, 0x10000
{"" if opt["diag"] & 4 else f"s_atomic_add_x2 s[{sE}:{sE+1}], s[{DBG_}:{DBG_+1}], s{sT0}"}
{lna}:""")
NPRE = 2 if opt["opre"] else 0
def opre():
    a(f"buffer_load_dword a{aTS+1}, v{vOs}, {srd(WS_)}, s{sOst} offen\nbuffer_load_dword a{aTS+2}, off, {srd(WS_)}, s{sLst}")
CT = 80
voff(t0, [(0,3,32)])
cl = f"buffer_load_dwordx2 {v2(CT)}, v{t0}, {srd(DBG_)}, 0 offen sc1"
if opt["deep"] == 1:
    kfix(0, None); vload(0); a(cl); kfix(1, None); vload(1); kfix(2, 25); vload(2); w = 16
elif opt["deep"] == 2:
    kload(3); kfix(0, None); vload(0); kfix(1, None); a(cl); vload(1); kfix(2, 25); vload(2); w = 16
elif opt["deep"] == 4:
    kload(3); kfix(0, None); vload(0); a(cl); kfix(1, None); kfix(2, 17); vload(1); kfix(3, 17); w = 8
elif opt["deep"] == 5:
    kfix(0, None); kload(2); kfix(1, 8); kload(3); a(cl); kfix(2, 9); vload(0); w = 8
elif opt["deep"] == 6:
    kfix(0, None); kload(2); a(cl); kfix(1, 9); kload(3); w = 8
elif opt["ilv"]:
    kfix(0, 8, kload_s(2)); kfix(1, 8, kload_s(3)); kfix(2, 8, vload_s(0)); a(cl); kfix(3, 9, vload_s(1)); w = 8
else:
    kfix(0, 8); kload(2); kfix(1, 8); kload(3); kfix(2, 8); vload(0); a(cl); kfix(3, 9); vload(1); w = 8
lp, ld = lab("bar"), lab("barok")
a(f"""s_waitcnt vmcnt({w})
{lp}:
v_lshrrev_b32 v{t1}, 16, v{CT+1}
v_cmp_gt_u32 vcc, {0 if opt["diag"] & 4 else 32}, v{t1}
s_cbranch_vccz {ld}
{cl}
s_waitcnt vmcnt(0)
s_sub_u32 s{sTO}, s{sTO}, 1
s_cbranch_scc0 {lp}
s_mov_b32 s{sTO}, 0
{ld}:""")
a(f"s_lshl_b32 s{sT0}, s{sQld}, 5\ns_add_u32 s{sT0}, s{sT0}, s{sSEL0}")
if opt["diag"] & 64: a(f"s_mov_b32 s{sT0}, 0x7000000")
for j in range(4): a(f"buffer_load_dwordx4 {v4(QF+4*j)}, v{vOl}, {srd(WS_)}, s{sT0} offen offset:{1024*j} sc1")
if opt["deep"] in (1, 2):
    kfix(3, None); vload(3)
    if opt["opre"]: opre()
elif opt["deep"] == 5:
    kfix(3, None); vload(1)
elif opt["deep"] == 6:
    kfix(2, None); vload(0); kfix(3, 8)
elif opt["deep"]:
    vload(2); vload(3)
    if opt["opre"]: opre()
else: vload(2)
a(f"""s_add_u32 s{sT1}, s{sGB}, {Q_OFF:#x}
s_add_u32 s{sQld}, s{sQld}, s{sT1}
s_add_u32 s{sQst}, s{sQst}, s{sT1}
s_mov_b32 s{sSEL0}, 0x05040100
s_mov_b32 s{sSEL1}, 0x07060302
s_and_b32 s{sT1}, s2, 7
s_waitcnt lgkmcnt(0)
v_readlane_b32 s{sT0}, v{CT}, s{sT1}
v_readlane_b32 s{sT1}, v{CT+1}, s{sT1}
s_lshl_b64 s[{sE}:{sE+1}], 32, s{sFAST}
s_add_u32 s{sE+1}, s{sE+1}, 0x200000
s_xor_b32 s{sT0}, s{sT0}, s{sE}
s_xor_b32 s{sT1}, s{sT1}, s{sE+1}
s_or_b32 s{sT0}, s{sT0}, s{sT1}
s_cmp_eq_u32 s{sT0}, 0
s_cselect_b32 s{sFAST}, 1, 0
s_waitcnt vmcnt({(16 if opt['deep'] in (3, 4) else 8) + (NPRE if opt['deep'] in (1, 2, 3, 4) else 0)})""")
if opt['nv3']: vload(3, 0, opt['nv3'])
ts(7)
ts_put([(TSB+2*k, k) for k in range(1, 8)], vM)
Dt = lambda t: DT + 4*t
qk = [mf(v4(Dt(tau)), a4(aK+16*tau+4*j), v4(QF+4*j), 0 if j == 0 else v4(Dt(tau))) for tau in (0, 2, 1, 3, 4, 6, 5, 7) for j in range(4)]
NSP = 4 if opt["specq"] else 0
def code_warm(back):
    soff(sT0, 0, idx=256, wv=64)
    a(f"s_min_u32 s{sT0}, s{sT0}, L_end-L_layer\ns_getpc_b64 s[{X_+2}:{X_+3}]\nL_pc:")
    if back: a(f"s_sub_u32 s{X_+2}, s{X_+2}, L_pc-L_layer\ns_subb_u32 s{X_+3}, s{X_+3}, 0")
    else: a(f"s_add_u32 s{X_+2}, s{X_+2}, L_layer-L_pc\ns_addc_u32 s{X_+3}, s{X_+3}, 0")
    a(f"s_load_dword s{X_+1}, s[{X_+2}:{X_+3}], s{sT0}")
if opt["cwarm"] == 1: code_warm(False)
for m in qk[:NSP]: a(m)
a("s_branch L_qk")

a("L_layer:")
until(1)
poll([f"buffer_load_dwordx4 {v4(QF+4*j)}, v{vOl}, {srd(WS_)}, s{sQld} offen offset:{1024*j}" for j in range(4)],
     range(QF, QF+16), vM, spec=[(lambda m=m: a(m)) for m in qk[:NSP]], pipe=PIPE, ack=1)
if opt["diag"] & 128:
    for k in range(55): a(f"v_add_f32 v{vM+1}, v{vM+2}, v{vM+2}")
    a(f"v_add_u32 v{vM+1}, {OC_L}, v{vL16}\nds_write_b128 v{vM+1}, {v4(QF)}\ns_waitcnt lgkmcnt(0)\ns_barrier")
    for j in range(4): a(f"ds_read_b128 {v4(QF+4*j)}, v{vM+1}")
    a("s_waitcnt lgkmcnt(0)")
    for m in qk[:NSP]: a(m)
if opt["pre"] & 4:
    a(f"s_cmp_eq_u32 s{sWV}, 3\ns_cselect_b32 exec_lo, 3, 31\ns_mov_b32 exec_hi, 0\nbuffer_load_dword a{aTS+1}, v{vM+3}, {srd(WS_)}, s{sXE} offen sc1\ns_mov_b64 exec, -1")
a("L_qk:")
tsn('qk_start')
ZB = ZA + 4
def xlo(t, X): return [dpp_s("v_add_f32", X+r, Dt(t)+r, Dt(t)+r, "row_ror:8", 0x3) for r in range(4)]
def xhi(t, X): return [dpp_s("v_add_f32", X+r, Dt(t)+r, Dt(t)+r, "row_ror:8", 0xc) for r in range(4)]
def zev(Z): return [dpp_s("v_add_f32", Z+r, XT+r, XT+r, "row_ror:12", 0x5) for r in range(4)]
def zod(Z): return [dpp_s("v_add_f32", Z+r, YT+r, YT+r, "row_ror:4", 0xa) for r in range(4)]
fill = xlo(0, XT) + xhi(2, XT) + zev(ZA) + xlo(1, YT) + xhi(3, YT) + zod(ZA) + \
    [f"v_max3_f32 v{vM}, v{ZA}, v{ZA+1}, v{ZA+2}", f"v_max_f32 v{vM}, v{ZA+3}, v{vM}"] + \
    xlo(4, XT) + xhi(6, XT) + zev(ZB) + xlo(5, YT) + xhi(7, YT) + zod(ZB)
mix(qk[NSP:], fill, 2, 11 - NSP)
vLs, vU = vM + 1, vM + 2
a(f"v_max3_f32 v{vM}, v{ZB}, v{ZB+1}, v{vM}\nv_max3_f32 v{vM}, v{ZB+2}, v{ZB+3}, v{vM}")
dpp("v_max_f32", vM, vM, vM, "row_ror:4"); dpp("v_max_f32", vM, vM, vM, "row_ror:8")
for x in rows_s("v_max_f32", vM, vU): a(x)
P = [XT, YT, QF, QF+4]
for r in range(8): a(f"v_sub_f32 v{ZA+r}, v{ZA+r}, v{vM}")
for r in range(8): a(f"v_exp_f32 v{ZA+r}, v{ZA+r}")
for r in range(4): a(f"v_cvt_pk_bf16_f32 v{P[0]+r}, v{ZA+2*r}, v{ZA+2*r+1}")
tsn('softmax_done')
def late_loads():
    R4 = VR + 128
    piece(vU)
    a(f"v_lshrrev_b32 v{vU+1}, 7, v{vL16}\nv_lshl_add_u32 v{vU}, v{vU+1}, 10, v{vU}")
    soff(sT0, 0, grp=512*1024, slot=128*1024, wv=8*1024, i=128)
    if opt["diag"] & 2: a(f"s_mov_b32 s{sT0}, 0x7000000")
    dma(WO_, vU, sT0, 32*1024, 4, WO_L)
def late_resets():
    R4 = VR + 128
    for r in range(4): a(f"v_mov_b32 v{R4+r}, -1")
    if opt["rloc"]:
        reset_addr(R4+4, R4+5)
        a(f"s_mov_b32 s{sT0}, {LSTR:#x}\ns_mov_b32 exec_hi, 0x3fffffff\nbuffer_store_dwordx4 {v4(R4)}, v{R4+4}, {srd(WS_)}, s{sT0} offen sc1\ns_mov_b64 exec, -1")
        return
    soff(sT0, LSTR, wg=4*992, wv=992)
    a(f"s_mov_b32 exec_hi, 0x3fffffff\nbuffer_store_dwordx4 {v4(R4)}, v{vL16}, {srd(WS_)}, s{sT0} offen sc1\ns_mov_b64 exec, -1")
def transpose(t, waits, hooks={}):
    src, dst = VR + 32*(t+1), VR + 32*t
    for p in range(5):
        if p in hooks: hooks[p]()
        if p == 4: break
        if waits[p] is not None: a(f"s_waitcnt vmcnt({waits[p]})")
        for q in range(4):
            a(f"v_perm_b32 v{dst+8*q+p}, v{src+8*p+4+q}, v{src+8*p+q}, s{sSEL0}")
            a(f"v_perm_b32 v{dst+8*q+4+p}, v{src+8*p+4+q}, v{src+8*p+q}, s{sSEL1}")
def pv(t): return [mf(v4(DT+4*e), v4(VR+32*t+4*e), v4(P[t]), 0 if t == 0 else v4(DT+4*e)) for e in range(8)]
FW, vMM, vL, vR, vLSE = QF+8, QF+12, QF+13, QF+14, QF+15
ML = ZA
if opt["deep"] == 5: layer0(lambda lb: (vload(2), transpose(0, [None]*4)))
elif opt["deep"] == 6: layer0(lambda lb: (vload(1), vload(2) if 0 else None, transpose(0, [8, None, None, None])))
elif opt["deep"]: layer0(lambda lb: transpose(0, [None]*4))
else: layer0(lambda lb: (vload(3, opt['nv3'], 8), (opre() if opt["opre"] else None), transpose(0, [None]*4)))
rot = lambda tt: [dpp_s("v_mov_b32", P[tt]+r, P[0]+r, None, f"row_ror:{16-4*tt}") for r in range(4)]
rs = rows_s("v_add_f32", vLs, vU)
r1, r2, r3 = rot(1), rot(2), rot(3)
s0 = [f"v_add_f32 v{ZA+2*r}, v{ZA+2*r}, v{ZA+2*r+1}" for r in range(4)] + \
     [f"v_add_f32 v{ZA}, v{ZA}, v{ZA+2}", f"v_add_f32 v{ZA+4}, v{ZA+4}, v{ZA+6}", f"v_add_f32 v{vLs}, v{ZA}, v{ZA+4}", r1[0],
      dpp_s("v_add_f32", vLs, vLs, vLs, "row_ror:4"), r1[1], dpp_s("v_add_f32", vLs, vLs, vLs, "row_ror:8"), rs[0], r1[2], rs[1], rs[2], r1[3]]
mix(pv(0), s0)
tsn('pv0')
if PIPE: a(f"s_cmp_eq_u32 s{sLAYER}, 0\ns_cbranch_scc1 L_nq\ns_waitcnt vmcnt(0)\nL_nq:")
if opt["deep"] == 5: layer0(lambda lb: (vload(3), transpose(1, [16, None, None, None])))
elif opt["deep"] == 6: layer0(lambda lb: (vload(2), transpose(1, [8, None, None, None])))
else: layer0(lambda lb: transpose(1, [None]*4))
p1 = pv(1)
for x in [p1[0], rs[3], r2[0], p1[1], rs[4], rs[5], p1[2], "s_mov_b64 exec, 15", f"ds_write_b64 v{vMLw}, {v2(vM)}", "s_mov_b64 exec, -1",
          p1[3], r2[1], r2[2], p1[4], r2[3], r3[0], p1[5], r3[1], r3[2], p1[6], "s_waitcnt lgkmcnt(0)", "s_barrier",
          f"ds_read_b128 {v4(ML)}, v{vMLr}", f"ds_read_b128 {v4(ML+4)}, v{vMLr} offset:16", p1[7], r3[3]]: a(x)
tsn('pv1')
layer0(lambda lb: ((vload(3) if opt["deep"] == 6 else None), (late_loads() if opt["wopos"] == 2 else None), transpose(2, [8 + NPRE + (4 if opt["wopos"] == 2 else 0), None, None, None])))
fac = ["s_waitcnt lgkmcnt(0)", f"v_max3_f32 v{vMM}, v{ML}, v{ML+2}, v{ML+4}", f"v_max_f32 v{vMM}, v{ML+6}, v{vMM}"] + \
      [f"v_sub_f32 v{FW+w}, v{ML+2*w}, v{vMM}" for w in range(4)] + [f"v_exp_f32 v{FW+w}, v{FW+w}" for w in range(4)] + \
      [f"v_mul_f32 v{vL}, v{FW}, v{ML+1}"] + [f"v_fmac_f32 v{vL}, v{FW+w}, v{ML+2*w+1}" for w in range(1, 4)] + \
      [f"v_rcp_f32 v{vR}, v{vL}", f"v_log_f32 v{vLSE}, v{vL}"] + [f"v_mul_f32 v{FW+w}, v{FW+w}, v{vR}" for w in range(4)] + \
      [f"v_add_f32 v{vLSE}, v{vLSE}, v{vMM}"]
mix(pv(2), fac[:12], 2, 2)
tsn('pv2')
def blk3(lb):
    if opt["cwarm"] == 3: code_warm(True)
    lr = late_resets if opt["lrpos"] == 0 else (lambda: None)
    n = NPRE
    if opt["wopos"] == 2: transpose(3, [10+n, 8+n, 6+n, 4+n], {4: lr})
    elif opt["wopos"] == 3: transpose(3, [6+n, 4+n, 6+n, 4+n], {2: late_loads, 4: lr})
    else: transpose(3, [6+n, 4+n, 2+n, n], {4: lambda: (late_loads(), lr())})
layer0(blk3)
gath = lambda u: [dpp_s("v_mov_b32", DT+k, DT+8*u+k, None, f"row_ror:{4*u}", 1 << u) for k in range(8)]
mix(pv(3), fac[12:] + gath(1)[:6])
for x in gath(1)[6:] + gath(2) + gath(3): a(x)
tsn('pv_done')
until(0)
a(f"ds_write_b128 v{vOCw}, {v4(DT)}\nds_write_b128 v{vOCw}, {v4(DT+4)} offset:1024\ns_mov_b64 exec, 1")
pub(f"buffer_store_dword v{vLSE}, off, {srd(WS_)}, s{sLst}")
a("s_mov_b64 exec, -1\ns_waitcnt lgkmcnt(0)")
tsn('ocw')
a("s_barrier")
tsn('ocbar')
OV = ZA
for w in range(4): a(f"ds_read2st64_b32 {v2(OV+2*w)}, v{vOCr} offset0:{8*w} offset1:{8*w+4}")
a(f"s_waitcnt lgkmcnt(3)\nv_mul_f32 v{OV}, v{FW}, v{OV}\nv_mul_f32 v{OV+1}, v{FW}, v{OV+1}")
for w in range(1, 4): a(f"s_waitcnt lgkmcnt({3-w})\nv_fmac_f32 v{OV}, v{FW+w}, v{OV+2*w}\nv_fmac_f32 v{OV+1}, v{FW+w}, v{OV+2*w+1}")
a(f"v_cvt_pk_bf16_f32 v{OV}, v{OV}, v{OV+1}")
pub(f"buffer_store_dword v{OV}, v{vOs}, {srd(WS_)}, s{sOst} offen")
tsn('O_pub')
OF, LS, DB, EB = T, T+16, T+20, T+28
def wo_frags(lb):
    a(f"s_and_b32 s{sT0}, s{sWV}, 1\ns_lshl_b32 s{sT0}, s{sT0}, 5\nv_xor_b32 v{EB}, s{sT0}, v{vTR}\nv_xor_b32 v{EB+1}, 32, v{EB}\ns_waitcnt vmcnt(5)")
    tsn('b_wo')
    if opt["bord"] == 0: a("s_waitcnt vmcnt(0)")
    tsn('b_wait')
    a("s_barrier")
    tsn('b_bar')
    trread(aWO, EB, WO_L, 4); trread(aWO+16, EB+1, WO_L, 4)
    a("s_waitcnt lgkmcnt(0)")
    tsn('b_tr')
    a("s_waitcnt vmcnt(0)")
rm = rows_s("v_max_f32", EB+4, EB+5)
ra = rows_s("v_add_f32", EB+4, EB+5)
chain = [f"v_max3_f32 v{EB+4}, v{LS}, v{LS+1}, v{LS+2}", f"v_max_f32 v{EB+4}, v{LS+3}, v{EB+4}"] + rm + \
        [f"v_sub_f32 v{EB+r}, v{LS+r}, v{EB+4}" for r in range(4)] + [f"v_exp_f32 v{EB+r}, v{EB+r}" for r in range(4)]
bm = [mf(v4(DB+4*t), v4(OF+4*j), a4(aWO+16*t+4*j), 0 if j == 0 else v4(DB+4*t)) for j in range(4) for t in range(2)]
oloads = [f"buffer_load_dwordx4 {v4(OF+4*j)}, v{vOl}, {srd(WS_)}, s{sOld} offen offset:{1024*j}" for j in range(4)]
lload = [f"buffer_load_dwordx4 {v4(LS)}, v{vG16}, {srd(WS_)}, s{sLld} offen"]
def b_joint(only0):
    if only0 and opt['bord'] == 2: a('s_waitcnt vmcnt(0)')
    poll([f"buffer_load_dwordx4 {v4(OF+4*j)}, v{vOl}, {srd(WS_)}, s{sOld} offen offset:{1024*j}" for j in range(4)] +
         [f"buffer_load_dwordx4 {v4(LS)}, v{vG16}, {srd(WS_)}, s{sLld} offen"], range(OF, OF+20), EB, **(dict(between=lambda: wo_frags(None)) if only0 else dict(l0=wo_frags, pipe=PIPE, ack=2)))
    tsn('H2_got')
    rm = rows_s("v_max_f32", EB+4, EB+5)
    chain = [f"v_max3_f32 v{EB+4}, v{LS}, v{LS+1}, v{LS+2}", f"v_max_f32 v{EB+4}, v{LS+3}, v{EB+4}"] + rm + \
            [f"v_sub_f32 v{EB+r}, v{LS+r}, v{EB+4}" for r in range(4)] + [f"v_exp_f32 v{EB+r}, v{EB+r}" for r in range(4)]
    bm = [mf(v4(DB+4*t), v4(OF+4*j), a4(aWO+16*t+4*j), 0 if j == 0 else v4(DB+4*t)) for j in range(4) for t in range(2)]
    order = [bm[0], chain[0], chain[1], chain[2], bm[1], bm[2], chain[3], chain[4], chain[5], bm[3], bm[4], chain[6], chain[7], chain[8], bm[5],
             chain[9], chain[10], bm[6], chain[11], chain[12], bm[7], chain[13], chain[14], chain[15]]
    for x in order: a(x)
    ra = rows_s("v_add_f32", EB+4, EB+5)
    a(f"""v_add_f32 v{EB+4}, v{EB}, v{EB+1}
    v_add_f32 v{EB+5}, v{EB+2}, v{EB+3}
    v_add_f32 v{EB+4}, v{EB+4}, v{EB+5}
    {ra[0]}
    s_mov_b32 exec_hi, -1
    v_mul_f32 v{DB}, v{EB}, v{DB}
    {ra[1]}
    v_mul_f32 v{DB+4}, v{EB}, v{DB+4}
    {ra[2]}
    v_fmac_f32 v{DB}, v{EB+1}, v{DB+1}
    {ra[3]}
    v_fmac_f32 v{DB+4}, v{EB+1}, v{DB+5}
    v_fmac_f32 v{DB}, v{EB+2}, v{DB+2}
    {ra[4]}
    v_fmac_f32 v{DB+4}, v{EB+2}, v{DB+6}
    {ra[5]}
    v_fmac_f32 v{DB}, v{EB+3}, v{DB+3}
    v_fmac_f32 v{DB+4}, v{EB+3}, v{DB+7}
    v_rcp_f32 v{EB+4}, v{EB+4}
    v_permlane16_swap_b32 v{DB}, v{DB+4}
    v_add_f32 v{DB}, v{DB}, v{DB+4}
    v_mov_b32 v{DB+4}, v{DB}
    v_permlane32_swap_b32 v{DB}, v{DB+4}
    v_add_f32 v{DB}, v{DB}, v{DB+4}
    s_mov_b32 exec_hi, 0
    v_mul_f32 v{DB}, v{DB}, v{EB+4}
    buffer_store_dword v{DB}, v{vL4}, {srd(WS_)}, s{sWOst} offen sc1
    s_mov_b64 exec, -1""")
if opt["blse"]:
    layer0(lambda lb: (b_joint(True), a('s_branch L_Bdone')))
    poll(lload, range(LS, LS+4), EB+6, ack=64)
    def weights():
        for x in chain: a(x)
        a(f"v_add_f32 v{EB+4}, v{EB}, v{EB+1}\nv_add_f32 v{EB+5}, v{EB+2}, v{EB+3}\nv_add_f32 v{EB+4}, v{EB+4}, v{EB+5}")
        for x in ra: a(x)
        a(f"v_rcp_f32 v{EB+4}, v{EB+4}")
        for r in range(4): a(f"v_mul_f32 v{EB+r}, v{EB+r}, v{EB+4}")
    ns = 4 if opt["blse"] > 1 else 0
    poll(oloads, range(OF, OF+16), EB+6, between=weights, spec=[(lambda m=m: a(m)) for m in bm[:ns]], ack=128)
    tsn('H2_got')
    for x in bm[ns:]: a(x)
    a(f"s_mov_b32 exec_hi, -1\nv_mul_f32 v{DB}, v{EB}, v{DB}\nv_mul_f32 v{DB+4}, v{EB}, v{DB+4}")
    for r in range(1, 4): a(f"v_fmac_f32 v{DB}, v{EB+r}, v{DB+r}\nv_fmac_f32 v{DB+4}, v{EB+r}, v{DB+4+r}")
    a(f"""v_permlane16_swap_b32 v{DB}, v{DB+4}
    v_add_f32 v{DB}, v{DB}, v{DB+4}
    v_mov_b32 v{DB+4}, v{DB}
    v_permlane32_swap_b32 v{DB}, v{DB+4}
    s_mov_b32 exec_hi, 0
    v_add_f32 v{DB}, v{DB}, v{DB+4}
    buffer_store_dword v{DB}, v{vL4}, {srd(WS_)}, s{sWOst} offen sc1
    s_mov_b64 exec, -1""")
    a('L_Bdone:')
else: b_joint(False)
tsn('WO_pub')

def ffn_loads(lb):
    W = T + 36
    n = 6
    if opt["cwarm"] == 2: code_warm(True)
    if opt["onesrow"]:
        a(f"v_and_b32 v{vXLr}, 32, v{vL16}\nv_lshl_add_u32 v{vXLr}, v{vXLr}, 3, v{vHr}")
        soff(X_, CS_OFF, True, slot=4096, i=512, wv=128)
    if opt["lrpos"] == 1: late_resets()
    a(f"""s_cmp_lt_u32 s{sFB}, 28
    s_cbranch_scc0 {lb}""")
    piece(W+1)
    a(f"""v_lshrrev_b32 v{W+2}, 7, v{vL16}
    v_mul_u32_u24 v{W}, 3584, v{W+2}
    v_add_u32 v{W}, v{W}, v{W+1}
    v_lshl_add_u32 v{W+1}, v{W+2}, 10, v{W+1}""")
    soff(sT0, 0, i=64*3584, wv=8*3584, slot=1024, grp=128)
    a(f"s_mov_b32 s{sT1}, s{sT0}")
    dma(WG_, W, sT0, 32*3584, 2, WG_L); dma(WU_, W, sT1, 32*3584, 2, WU_L)
    soff(sT0, 0, slot=8*65536, grp=65536, wv=8192, i=128)
    dma(WD_, W+1, sT0, 32*1024, 2, WD_L)
    if opt["pre"] & 1:
        a(f"v_lshlrev_b32 v{W}, 3, v{vL16}")
        soff(sT0, 0, True, idx=13*128, wv=4*128)
        a(f"s_cmp_eq_u32 s{sWV}, 3\ns_cselect_b32 exec_lo, 1, 15\ns_mov_b32 exec_hi, 0\nbuffer_load_dword v{W+3}, v{W}, {srd(WS_)}, s{sT0} offen sc1\ns_mov_b64 exec, -1")
        n += 1
    a(f"s_waitcnt vmcnt({n})\ns_branch L_acked")
M = T
def reduce32(soffr, slp, first=False):
    if first: layer0(ffn_loads)
    a("s_waitcnt vmcnt(0)")
    if first: a("L_acked:")
    if opt["wbar"] & (1 if first else 2): a("s_barrier")
    if slp: a(f"s_sleep {slp}")
    poll([f"buffer_load_dwordx4 {v4(M+4*u)}, v{vL16}, {srd(WS_)}, s{soffr} offen offset:{1024*u}" for u in range(4)], range(M, M+16), M+16, ack=16)
    if opt["pkadd"]:
        for d, x in ((0, 4), (2, 6), (8, 12), (10, 14), (0, 8), (2, 10)): a(f"v_pk_add_f32 {v2(M+d)}, {v2(M+d)}, {v2(M+x)}")
    else:
        for r in range(4): a(f"v_add_f32 v{M+r}, v{M+r}, v{M+4+r}")
        for r in range(4): a(f"v_add_f32 v{M+8+r}, v{M+8+r}, v{M+12+r}")
        for r in (0, 2, 1, 3): a(f"v_add_f32 v{M+r}, v{M+r}, v{M+8+r}")
    a(f"""v_permlane32_swap_b32 v{M}, v{M+2}
    v_permlane32_swap_b32 v{M+1}, v{M+3}
    v_add_f32 v{M}, v{M}, v{M+2}
    v_add_f32 v{M+1}, v{M+1}, v{M+3}""")
    dpp("v_add_f32", M, M, M, "row_ror:8"); dpp("v_add_f32", M+1, M+1, M+1, "row_ror:8")
    a(f"""v_mov_b32 v{M+2}, v{M}
    v_mov_b32 v{M+3}, v{M+1}
    v_permlane16_swap_b32 v{M}, v{M+2}
    v_permlane16_swap_b32 v{M+1}, v{M+3}
    v_add_f32 v{vX0}, v{vX0}, v{M}
    v_add_f32 v{vX1}, v{vX1}, v{M+1}
    v_add_f32 v{vX0}, v{vX0}, v{M+2}
    v_add_f32 v{vX1}, v{vX1}, v{M+3}
    v_cvt_pk_bf16_f32 v{M}, v{vX0}, v{vX1}""")
def stats_s():
    return [f"v_lshlrev_b32 v{vX0}, 16, v{M}", f"v_and_b32 v{vX1}, 0xffff0000, v{M}", f"v_add_f32 v{M+1}, v{vX0}, v{vX1}",
            f"v_mul_f32 v{M+2}, v{vX0}, v{vX0}", f"v_fmac_f32 v{M+2}, v{vX1}, v{vX1}", f"v_permlane32_swap_b32 v{M+1}, v{M+2}",
            f"v_add_f32 v{M+1}, v{M+1}, v{M+2}", dpp_s("v_add_f32", M+1, M+1, M+1, "quad_perm:[1,0,3,2]"),
            dpp_s("v_add_f32", M+1, M+1, M+1, "quad_perm:[2,3,0,1]"), dpp_s("v_add_f32", M+1, M+1, M+1, "row_ror:4")]
reduce32(sM1, opt["slp1"], True)
tsn('M1_done')
XC, DG, DU = T+4, T+12, T+16
st = stats_s()
a(f"ds_write_b32 v{vXLw}, v{M}")
for x in st[:5]: a(x)
a(f"s_waitcnt lgkmcnt(0)\ns_barrier\ns_cmp_lt_u32 s{sFB}, 28\ns_cbranch_scc0 L_stageD")
vXr = vXLr if opt["onesrow"] else vHr
a(f"ds_read_b128 {v4(XC)}, v{vXr} offset:256\nds_read_b128 {v4(XC+4)}, v{vXr} offset:{256+64}")
def ffn_frags(lb):
    trread(aWG, vTR, WG_L, 2); trread(aWU, vTR, WU_L, 2)
layer0(ffn_frags)
for x in st[5:8]: a(x)
a("s_waitcnt lgkmcnt(0)")
cm = [mf(v4(DG), v4(XC), a4(aWG), 0), mf(v4(DU), v4(XC), a4(aWU), 0), mf(v4(DG), v4(XC+4), a4(aWG+4), v4(DG)), mf(v4(DU), v4(XC+4), a4(aWU+4), v4(DU))]
mix(cm, st[8:], 1)
a("s_mov_b32 exec_lo, 1\ns_mov_b32 exec_hi, 1")
pub(f"buffer_store_dword v{M+1}, v{vXs}, {srd(WS_)}, s{sST1st} offen")
if opt["onesrow"]: a(f"s_mov_b64 exec, 0xffff\nv_mov_b32 v{DU+3}, v{DG+2}\nv_mov_b32 v{DG+2}, v{DU}\nv_mov_b32 v{DG+3}, v{DU+1}")
else: a(f"s_mov_b64 exec, 0xffff\nv_mov_b32 v{DG+2}, v{DU}\nv_mov_b32 v{DG+3}, v{DU+1}")
pub(f"buffer_store_dwordx4 {v4(DG)}, v{vC16}, {srd(WS_)}, s{sGUst} offen")
exec_all()
def cs_pub(lb):
    C = T + 24
    if opt["onesrow"]:
        a(f"v_lshrrev_b32 v{C+8}, 1, v{vC16}\ns_mov_b64 exec, 0xffff")
        pub(f"buffer_store_dwordx2 {v2(DU+2)}, v{C+8}, {srd(WS_)}, s{X_} offen")
        exec_all()
        trread(aWD, vTR, WD_L, 2)
        return
    for j in range(2): mfma(v4(C), a4(aONE), a4(aWG+4*j), 0 if j == 0 else v4(C))
    for j in range(2): mfma(v4(C+4), a4(aONE), a4(aWU+4*j), 0 if j == 0 else v4(C+4))
    soff(sT0, CS_OFF, True, slot=4096, i=512, wv=128)
    a(f"v_lshrrev_b32 v{C+8}, 1, v{vC16}\nv_mov_b32 v{C+1}, v{C+4}\ns_mov_b64 exec, 0xffff")
    pub(f"buffer_store_dwordx2 {v2(C)}, v{C+8}, {srd(WS_)}, s{sT0} offen")
    exec_all()
    trread(aWD, vTR, WD_L, 2)
layer0(cs_pub)
tsn('GU_pub')
a("L_stageD:")
G, SD, DD = T, T+8, T+12
def colsums(lb):
    C = T + 16
    a(f"v_lshrrev_b32 v{C+4}, 1, v{vGUl}\ns_sub_u32 s{sT0}, s{sGUld}, s{sGB}\ns_sub_u32 s{sT0}, s{sT0}, {GU_OFF:#x}\ns_lshr_b32 s{sT0}, s{sT0}, 1\ns_add_u32 s{sT0}, s{sT0}, s{sGB}")
    poll([f"buffer_load_dwordx2 {v2(C+2*u)}, v{C+4}, {srd(WS_)}, s{sT0} offen offset:{512*u}" for u in range(2)], range(C, C+4), C+5)
    a(f"""v_add_f32 v{C}, v{C}, v{C+2}
    v_add_f32 v{C+1}, v{C+1}, v{C+3}
    v_permlane16_swap_b32 v{C+1 if opt["onesrow"] else C}, v{C if opt["onesrow"] else C+1}
    v_add_f32 v{vCS}, v{C}, v{C+1}
    v_mov_b32 v{C}, v{vCS}
    v_permlane32_swap_b32 v{vCS}, v{C}
    v_add_f32 v{vCS}, v{vCS}, v{C}""")
poll([f"buffer_load_dwordx4 {v4(G+4*u)}, v{vGUl}, {srd(WS_)}, s{sGUld} offen offset:{1024*u}" for u in range(2)] +
     [f"buffer_load_dwordx2 {v2(SD)}, v{vSTd}, {srd(WS_)}, s{sST1ld} offen"], range(G, G+10), DD, between=lambda: layer0(colsums), pipe=PIPE, ack=4)
tsn('H4_got')
S2, G2, HF = T+24, T+26, T+32
sd = [dpp_s("v_add_f32", S2, SD, SD, "row_ror:1"), dpp_s("v_add_f32", S2+1, SD+1, SD+1, "row_ror:1")]
for n in (2, 4, 8): sd += [dpp_s("v_add_f32", S2, S2, S2, f"row_ror:{n}"), dpp_s("v_add_f32", S2+1, S2+1, S2+1, f"row_ror:{n}")]
sd += fin_s(S2, S2+1) + [f"v_mul_f32 v{S2}, v{S2}, v{vCS}"]
gd = [f"v_add_f32 v{G2+r}, v{G+r}, v{G+4+r}" for r in range(4)] + \
     [f"v_permlane32_swap_b32 v{G2}, v{G2+1}", f"v_permlane32_swap_b32 v{G2+2}, v{G2+3}", f"v_add_f32 v{G2}, v{G2}, v{G2+1}",
      f"v_add_f32 v{G2+2}, v{G2+2}, v{G2+3}", f"v_permlane16_swap_b32 v{G2}, v{G2+2}", f"v_add_f32 v{G2}, v{G2}, v{G2+2}"]
for x in [sd[0], sd[1], gd[0], sd[2], sd[3], gd[1], sd[4], sd[5], gd[2], sd[6], sd[7], gd[3], sd[8], sd[9], gd[4], sd[10], gd[5], sd[11], gd[6],
          sd[12], gd[7], sd[13], gd[8], sd[14], gd[9], sd[15]]: a(x)
a(f"""v_fmac_f32 v{S2}, v{S2+1}, v{G2}
v_mov_b32 v{G2+1}, v{S2}
v_permlane16_swap_b32 v{S2}, v{G2+1}
v_max_f32 v{S2}, 0, v{S2}
v_mul_f32 v{G2}, v{S2}, v{G2+1}
v_cvt_pk_bf16_f32 v{G2}, v{G2}, v{G2}
ds_write_b16 v{vHw}, v{G2}
s_waitcnt lgkmcnt(0)
s_barrier
ds_read_b128 {v4(HF)}, v{vHr}
ds_read_b128 {v4(HF+4)}, v{vHr} offset:64
s_waitcnt lgkmcnt(1)""")
mfma(v4(DD), a4(aWD), v4(HF), 0)
a("s_waitcnt lgkmcnt(0)")
mfma(v4(DD), a4(aWD+4), v4(HF+4), v4(DD))
a(f"s_bfe_u32 s{sT0}, s2, 0x20006\ns_and_b32 s{sT1}, s2, 7")
exec_set(0x00030003, 0x00030003)
a(f"buffer_store_dwordx4 {v4(DD)}, v{vDNs}, {srd(WS_)}, s{sDNst} offen sc1")
exec_all()
tsn('DN_pub')
lgo, lnm = lab("go"), lab("nomid")
if opt["diag"] & 128:
    a(f"s_cmp_eq_u32 s{sLAYER}, 0\ns_cbranch_scc0 L_normalM")
    a(f"v_lshlrev_b32 v{T+40}, 3, v{vL16}")
    soff(sXE, LSTR + GU_OFF, True, idx=19*128, wv=5*128)
    a(f"s_cmp_eq_u32 s{sWV}, 3\ns_cselect_b32 exec_lo, 15, 31\ns_mov_b32 exec_hi, 0\nbuffer_load_dword a{aTS+1}, v{T+40}, {srd(WS_)}, s{sXE} offen sc1\ns_mov_b64 exec, -1")
    reduce32(sM2, 0)
    a(f"ds_write_b32 v{vXLw}, v{M}")
    for x in stats_s()[:5]: a(x)
    a(f"s_waitcnt lgkmcnt(0)\ns_barrier\nds_read_b128 {v4(T+4)}, v{vHr} offset:256\nds_read_b128 {v4(T+8)}, v{vHr} offset:{256+64}")
    for x in stats_s()[5:8]: a(x)
    a("s_waitcnt lgkmcnt(0)")
    for j in range(4): mfma(v4(T+24+4*(j&1)), a4(aWQ+4*j), v4(T+4+4*(j>>1)), 0 if j < 2 else v4(T+24+4*(j&1)))
    for x in stats_s()[8:]: a(x)
    a(f"s_add_u32 s{WS_}, s{WS_}, {LSTR:#x}\ns_addc_u32 s{WS_+1}, s{WS_+1}, 0\nv_and_b32 v{T+24}, 0x3f803f80, v{T+24}\nv_and_b32 v{T+25}, 0x3f803f80, v{T+28}")
    exec_set(0x00030003, 0x00030003)
    a(f"buffer_store_dwordx2 {v2(T+24)}, v{vQs}, {srd(WS_)}, s{sQst} offen\nbuffer_store_dwordx2 {v2(T+24)}, v{vQs}, {srd(WS_)}, s{sQst} offen")
    exec_all()
    a(f"s_mov_b32 s{sLAYER}, 1")
    ts_put([(TSB+2*k, 8+k) for k in range(12)], T+40)
    a("s_branch L_layer\nL_normalM:")
a(f"""s_mul_i32 s{sT1}, s{sT1}, s{sLAYER}
s_cmp_eq_u32 s{sT1}, 0
s_cbranch_scc0 L_fin
s_cmp_eq_u32 s{sT0}, s{sWV}
s_cbranch_scc0 {lnm}""")
vRX = T + 40
if opt["estrep"]:
    a(f"""v_bfe_u32 v{vRX}, v{vL4}, 5, 2
    v_lshl_add_u32 v{vRX}, v{vRX}, 11, v{vXs}
    v_and_b32 v{vRX+1}, 0x70, v{vL16}
    v_lshlrev_b32 v{vRX+1}, 4, v{vRX+1}
    v_and_b32 v{vRX+2}, 4, v{vXs}
    v_add_u32 v{vRX+1}, v{vRX+1}, v{vRX+2}""")
reduce32(sM2, opt["slp2"])
if opt["estrep"]:
    a(f"s_cmp_eq_u32 s{sLAYER}, 0\ns_cbranch_scc0 L_out")
    pub(f"buffer_store_dword v{M}, v{vRX}, {srd(WS_)}, s{sXst} offen")
    for x in stats_s()[:]: a(x)
    exec_set(0xff, 0xff)
    pub(f"buffer_store_dword v{M+1}, v{vRX+1}, {srd(WS_)}, s{sST2st} offen")
    exec_all()
else:
    exec_set(0xff, 0xff)
    a(f"s_cmp_eq_u32 s{sLAYER}, 0\ns_cbranch_scc0 L_out")
    pub(f"buffer_store_dword v{M}, v{vXs}, {srd(WS_)}, s{sXst} offen")
    exec_all()
    for x in stats_s()[:]: a(x)
    a("s_mov_b32 exec_lo, 1\ns_mov_b32 exec_hi, 1")
    pub(f"buffer_store_dword v{M+1}, v{vXs}, {srd(WS_)}, s{sST2st} offen")
    exec_all()
if opt["mack2"]: a("s_waitcnt vmcnt(0)")
if opt["mack2"] > 1: a(f"s_sleep {opt['mack2'] - 1}")
a("L_midback:")
tsn('M2_done')
a("s_barrier")
def nomid():
    if opt["wbar"] & 2: a("s_waitcnt vmcnt(0)\ns_barrier")
    a(f"s_cmp_eq_u32 s{sLAYER}, 0\ns_cbranch_scc0 L_fin")
    if opt["outpre"]:
        a(f"s_sub_u32 s{sT1}, s{sXst}, s{sGB}\ns_sub_u32 s{sT1}, s{sT1}, {X2_OFF:#x}\nbuffer_load_dword a{aTS+2}, off, {srd(OUT_)}, s{sT1}")
    if opt["pre"] & 2:
        a(f"s_add_u32 s{sT0}, s{sT0}, 1\ns_and_b32 s{sT0}, s{sT0}, 3\ns_cmp_eq_u32 s{sT0}, s{sWV}\ns_cbranch_scc0 L_midback\nv_lshlrev_b32 v{T+40}, 3, v{vL16}")
        if opt["pre"] & 4:
            soff(sT0, LSTR + Q_OFF, True, idx=2*128)
            a(f"s_mov_b64 exec, 3\nbuffer_load_dword v{T+41}, v{T+40}, {srd(WS_)}, s{sT0} offen sc1")
        else:
            soff(sT0, LSTR + GU_OFF, True, idx=19*128)
            a(f"s_mov_b64 exec, 0x7ffff\nbuffer_load_dword v{T+41}, v{T+40}, {srd(WS_)}, s{sT0} offen sc1")
        if opt["estrep"]:
            soff(sT0, X2_OFF, True, idx=256)
            a(f"s_mov_b64 exec, 3\nbuffer_load_dword v{T+42}, v{T+40}, {srd(WS_)}, s{sT0} offen sc1")
        a("s_mov_b64 exec, -1\ns_waitcnt vmcnt(0)")
    a("s_branch L_midback")
deferred.append((lnm, nomid))
XE, SE, XR, DE = T, T+16, T+20, T+24
poll([f"buffer_load_dwordx4 {v4(XE+4*j)}, v{vXl}, {srd(WS_)}, s{sXE} offen offset:{64*j}" for j in range(4)] +
     [f"buffer_load_dwordx2 {v2(SE)}, v{vSTl}, {srd(WS_)}, s{sST2ld} offen", f"buffer_load_dwordx2 {v2(SE+2)}, v{vSTl}, {srd(WS_)}, s{sST2ld} offen offset:128",
      f"buffer_load_dword v{XR}, v{vXs}, {srd(WS_)}, s{sXst} offen"], range(XE, XE+21), DE, pipe=PIPE, ack=8)
tsn('H5b_got')
se = [f"v_add_f32 v{SE+6}, v{SE}, v{SE+2}", f"v_add_f32 v{SE+7}, v{SE+1}, v{SE+3}"]
SE += 6
for n in (2, 4, 8): se += [dpp_s("v_add_f32", SE, SE, SE, f"row_ror:{n}"), dpp_s("v_add_f32", SE+1, SE+1, SE+1, f"row_ror:{n}")]
em = [mf(v4(DE), a4(aWQ+4*j), v4(XE+4*j), 0 if j == 0 else v4(DE)) for j in range(4)]
for x in [se[0], se[1], em[0], se[2], se[3], em[1], se[4], se[5], em[2], se[6], se[7], em[3]]: a(x)
fs = fin_s(SE, SE+1, QSCALE)
for x in fs[:6] + [f"s_add_u32 s{WS_}, s{WS_}, {LSTR:#x}"] + fs[6:] + [f"s_addc_u32 s{WS_+1}, s{WS_+1}, 0"]: a(x)
for r in range(4): a(f"v_mul_f32 v{DE+4+r}, v{SE}, v{vCSQ+r}")
exec_set(0x00030003, 0x00030003)
for r in range(4): a(f"v_fmac_f32 v{DE+4+r}, v{SE+1}, v{DE+r}")
a(f"v_cvt_pk_bf16_f32 v{DE}, v{DE+4}, v{DE+5}\nv_cvt_pk_bf16_f32 v{DE+1}, v{DE+6}, v{DE+7}")
pub(f"buffer_store_dwordx2 {v2(DE)}, v{vQs}, {srd(WS_)}, s{sQst} offen")
exec_all()
if opt["pre"] & 4:
    a(f"v_lshlrev_b32 v{vM+3}, 3, v{vL16}")
    soff(sXE, GU_OFF, True, idx=17*128, wv=5*128)
a(f"s_mov_b32 s{sLAYER}, 1\nv_lshlrev_b32 v{vX0}, 16, v{XR}\nv_and_b32 v{vX1}, 0xffff0000, v{XR}")
ts_put([(TSB+2*k, 8+k) for k in range(12)], DE+8)
a("s_branch L_layer")
n = 0
while n < len(deferred):
    l, fn = deferred[n]; a(f"{l}:"); fn(); n += 1
a("L_out:")
if opt["estrep"]: exec_set(0xff, 0xff)
a(f"""s_sub_u32 s{sT0}, s{sXst}, s{sGB}
s_sub_u32 s{sT0}, s{sT0}, {X2_OFF:#x}
buffer_store_dword v{M}, v{vXs}, {srd(OUT_)}, s{sT0} offen
s_mov_b64 exec, -1""")
if opt["outw"]: a("s_waitcnt vmcnt(0)")
a("L_fin:")
until(2)
if TS:
    ts(11)
    a(f"s_memrealtime s[{sE}:{sE+1}]")
    ts_put([(TSB+2*k, 24+k) for k in range(12)] + [(sE, 43), (sFAST, 40), (sTO, 41)], T+40)
    soff(sT0, TS_OFF - LSTR, wg=1024, wv=256)
    a(f"buffer_store_dword v{T+40}, v{vL4}, {srd(WS_)}, s{sT0} offen")
a("L_end:\ns_endpgm")

import asmlib
asmlib.BRANCH_MARGIN = 0 if opt['nobr'] else 1
body = a.finalize()
kn = opt["name"]
ref = open("cdna_kernels/" + NAME + ".s.ref").read().split("\n")
head = [l for l in ref if l.startswith(";") and "@launch" not in l and "Override launch" not in l and "grid=ceil" not in l][:13]
src = "\n".join(head) + f"""
{"; tsset " + opt["tsset"] + chr(10) + "; opts " + sys.argv[0] + " " + " ".join(x for x in sys.argv[2:] if not x.startswith("ts") and not x.startswith("tobits") and not x.startswith("outw")) + chr(10) if TS else ""}; One persistent launch, one workgroup per CU: K/V stay in registers for both layers, weight tiles in AGPRs.
; @launch grid=(256,1,1) block=(256,1,1) lds={LDS_BYTES + opt['ldspad']}
.amdgcn_target "amdgcn-amd-amdhsa--gfx950"
.text
.globl {kn}
.p2align 8
.type {kn},@function
{kn}:
{body}
.section .rodata,"a"
.p2align 6
.amdhsa_kernel {kn}
  .amdhsa_next_free_vgpr 512
  .amdhsa_next_free_sgpr 102
  .amdhsa_accum_offset 256
  .amdhsa_group_segment_fixed_size 0
  .amdhsa_kernarg_size 96
  .amdhsa_user_sgpr_count 2
  .amdhsa_user_sgpr_kernarg_segment_ptr 1
  .amdhsa_system_sgpr_workgroup_id_x 1
.end_amdhsa_kernel
"""
open(out_path, "w").write(src)
print("nops inserted:", a.nops, "lines:", len(body.split("\n")), file=sys.stderr)
```

```python
import sys, math, struct
from asmlib import Asm

NAME = "interleave_layers__gqa_block_cached__glu_gated_reglu__decode"
opt = dict(kvnt="nt", wnt="nt", ts=0, fast=1, tobits=20, name=NAME+"_kernel", until=0, upos=0,
           pre=3, slp1=0, slp2=0, wopos=2, specq=1, lateq=1, cpos=3, qoff=0, qneg=0, spr=4, win=0, r3=0, blse=0, onesrow=1, pkadd=1, cwarm=0, pord=0, tska=0, wbar=3, fbar=0, mack2=0, nobr=0, ilv=1, q0lds=0, diag=0, rmask=15, estrep=0, nv3=0, tree=1, tlb=0, rloc=0, swz=1, bord=2, outw=0, outpre=0, ldspad=0, pipe=0, fack=3, rslp=0, fslp=0, deep=0, opre=0, lrpos=1, tsset="qk_start,softmax_done,pv_done,O_pub,H2_got,WO_pub,M1_done,GU_pub,H4_got,DN_pub,M2_done,H5b_got")
out_path = sys.argv[1]
for x in sys.argv[2:]:
    k, v = x.split("=")
    assert k in opt, k
    opt[k] = v if k in ("kvnt", "wnt", "name", "tsset") else int(v)
fl = lambda s: "" if s == "none" else " " + s.replace("+", " ")
KVNT = fl(opt["kvnt"]); WNT = fl(opt["wnt"])
TS = opt["ts"]
def f2u(x): return struct.unpack("<I", struct.pack("<f", x))[0]

GR = 0x17000
CS_OFF, GU_OFF, ST1_OFF, X2_OFF, ST2_OFF, LSE_OFF, O_OFF, Q_OFF = 0x0, 0x4000, 0xC000, 0xC400, 0xCC00, 0xCE00, 0xD000, 0x15000
if opt["estrep"]:
    ST2_OFF, X2_OFF = X2_OFF, Q_OFF
WO_OFF, DN_OFF = 8*GR, 8*GR + 0x20000
LSTR = 8*GR + 0x40000
assert LSTR == 1024*992
Q0_OFF = 0x200000
TS_OFF = 0x600000
WS_SIZE = 0x800000
WQ_L, WO_L, WG_L, WU_L, WD_L = 0, 16384, 32768, 40960, 49152
OC_L = 57344; OC_W = 2048
ML_L = OC_L + 4*OC_W
H_L = ML_L + 128
XL_L = H_L + 256
ONE_L = XL_L + 256
LDS_BYTES = ONE_L + 256
sWV, sGB, sFB, sLAYER, sFAST, sTO = 3, 4, 5, 6, 7, 76
K_, V_, WS_, WQ_, WO_, WG_, WU_, WD_, X_, OUT_, DBG_ = 8, 12, 16, 20, 24, 28, 32, 36, 40, 44, 48
def srd(n): return f"s[{n}:{n+3}]"
(sKV, sQld, sQst, sOst, sLst, sOld, sLld, sWOst, sM1, sM2, sXst, sST1st, sST2st, sXE, sST1ld, sST2ld,
 sGUst, sGUld, sDNst) = range(77, 96)
sT0, sT1, sSEL0, sSEL1 = 96, 97, 98, 99
sE = 100
TSB = 52
vL16, vL4, vOs, vOl, vXl, vC16, vG16, vQs, vDNs, vGUl, vXs = range(0, 11)
vOCw, vOCr, vMLw, vMLr, vHw, vHr, vTR, vSTl, vSTd, vXLw = range(11, 21)
vX0, vX1, vCS = 21, 22, 23
vCSQ = 24
T = 28
QF, DT, vM, XT, YT, ZA = 28, 44, 76, 80, 84, 88
VR = 96
vTSV = VR + 128 + 31
def v4(n): return f"v[{n}:{n+3}]"
def v2(n): return f"v[{n}:{n+1}]"
def a4(n): return f"a[{n}:{n+3}]"
aK, aWQ, aWO, aWG, aWU, aWD, aONE, aTS = 0, 128, 144, 176, 184, 192, 200, 204

a = Asm()
deferred = []
uid = [0]
def lab(p):
    uid[0] += 1
    return f"L_{p}_{uid[0]}"
def exec_set(lo, hi):
    if hi == 0: a(f"s_mov_b64 exec, {lo:#x}")
    else: a(f"s_mov_b32 exec_lo, {lo:#x}\ns_mov_b32 exec_hi, {hi:#x}")
def exec_all(): a("s_mov_b64 exec, -1")

F = dict(grp=(2,0,3), idx=(2,3,5), i=(2,3,3), slot=(2,6,2), s=(2,3,4), ba=(2,7,1), wg=(2,0,8),
         i0=(2,3,1), ih=(2,4,2), wv=(sWV,0,2), w0=(sWV,0,1), w1=(sWV,1,1))
def soff(dst, const, gb=False, **terms):
    first = True
    for name, mul in terms.items():
        src, lo, w = F[name]
        d = dst if first else sE
        if name in ("wg", "wv"): s = f"s{src}"
        else:
            a(f"s_bfe_u32 s{d}, s{src}, {(w << 16) | lo:#x}"); s = f"s{d}"
        if mul & (mul-1) == 0: a(f"s_lshl_b32 s{d}, {s}, {mul.bit_length()-1}")
        else: a(f"s_mul_i32 s{d}, {s}, {mul}")
        if not first: a(f"s_add_u32 s{dst}, s{dst}, s{sE}")
        first = False
    if first:
        a(f"s_add_u32 s{dst}, s{sGB}, {const:#x}" if gb else f"s_mov_b32 s{dst}, {const:#x}"); return
    if gb: a(f"s_add_u32 s{dst}, s{dst}, s{sGB}")
    if const: a(f"s_add_u32 s{dst}, s{dst}, {const:#x}")
vLane, vTmp = 30, 31
def voff(dst, terms, sadd=None, const=0):
    first = True
    for lo, w, mul in terms:
        if first:
            if lo == 0 and w == 6: src = vLane
            else: a(f"v_bfe_u32 v{dst}, v{vLane}, {lo}, {w}"); src = dst
            if mul & (mul-1) == 0: a(f"v_lshlrev_b32 v{dst}, {mul.bit_length()-1}, v{src}")
            else: a(f"v_mul_u32_u24 v{dst}, {mul}, v{src}")
        else:
            a(f"v_bfe_u32 v{vTmp}, v{vLane}, {lo}, {w}")
            if mul & (mul-1) == 0: a(f"v_lshl_add_u32 v{dst}, v{vTmp}, {mul.bit_length()-1}, v{dst}")
            else: a(f"v_mul_u32_u24 v{vTmp}, {mul}, v{vTmp}\nv_add_u32 v{dst}, v{dst}, v{vTmp}")
        first = False
    if const: a(f"v_add_u32 v{dst}, {const}, v{dst}")
    if sadd is not None: a(f"v_add_u32 v{dst}, s{sadd}, v{dst}")

def pub(*stores):
    wt = [s + (" sc1" if s.startswith("buffer") else "") for s in stores]
    if not opt["fast"]:
        for s in wt: a(s)
        return
    ls, lb = lab("slow"), lab("back")
    a(f"s_cmp_eq_u32 s{sFAST}, 1\ns_cbranch_scc0 {ls}")
    for s in stores: a(s)
    a(f"{lb}:")
    deferred.append((ls, lambda: a("\n".join(wt) + f"\ns_branch {lb}")))

def layer0(fn, cond=None):
    ls, lb = lab("l0"), lab("l0back")
    a(f"s_cmp_eq_u32 s{sLAYER}, 0\ns_cbranch_scc1 {ls}\n{lb}:")
    def blk():
        fn(lb); a(f"s_branch {lb}")
    deferred.append((ls, blk))

def check_ops(regs, tmp):
    r = list(regs); ops = []
    if opt["tree"] and len(r) >= 8:
        A, B = r[:len(r)//2], r[len(r)//2:]
        if len(A) % 2 == 0: A, B = A + B[:1], B[1:]
        last = B.pop() if len(B) % 2 == 0 else None
        def chain(x, t):
            o = [f"v_max3_u32 v{t}, v{x[0]}, v{x[1]}, v{x[2]}"]; x = x[3:]
            while x: o.append(f"v_max3_u32 v{t}, v{x[0]}, v{x[1]}, v{t}"); x = x[2:]
            return o
        ca, cb = chain(A, tmp), chain(B, tmp+1)
        while ca or cb:
            if ca: ops.append(ca.pop(0))
            if cb: ops.append(cb.pop(0))
        ops.append(f"v_max3_u32 v{tmp}, v{tmp}, v{tmp+1}, v{last}" if last is not None else f"v_max_u32 v{tmp}, v{tmp}, v{tmp+1}")
        return ops
    ops.append(f"v_max3_u32 v{tmp}, v{r[0]}, v{r[1]}, v{r[2]}"); r = r[3:]
    while len(r) >= 2:
        ops.append(f"v_max3_u32 v{tmp}, v{r[0]}, v{r[1]}, v{tmp}"); r = r[2:]
    if r: ops.append(f"v_max_u32 v{tmp}, v{r[0]}, v{tmp}")
    return ops
def poll(loads, regs, tmp, between=None, spec=(), pipe=False, ack=0, l0=None, wait1=0):
    lc, lr, ld = lab("chk"), lab("retry"), lab("got")
    if l0:
        lw = lab("l0chk")
        def blk(lb):
            if opt["bord"] == 2: a("s_waitcnt vmcnt(0)")
            for l in loads: a(l + " sc1")
            l0(lb)
            a(f"s_branch {lw}")
        layer0(blk)
    if ack & opt["fack"]:
        a("s_waitcnt vmcnt(0)")
        if ack & opt["fbar"]: a("s_barrier")
        if opt["fslp"]: a(f"s_sleep {opt['fslp']}")
    for l in loads: a(l + " sc1")
    if between: between()
    a(f"s_waitcnt vmcnt({wait1})")
    if l0: a(f"{lw}:")
    ops = check_ops(regs, tmp)
    if not pipe: a(f"{lc}:")
    o, sp = list(ops), list(spec)
    while o or sp:
        if sp: sp.pop(0)()
        for _ in range(2 if sp else len(o)):
            if o: a(o.pop(0))
    a(f"v_cmp_eq_u32 vcc, -1, v{tmp}\ns_cbranch_vccnz {lr}\n{ld}:")
    def retry():
        lx = lab("giveup")
        if not pipe:
            a(f"s_sub_u32 s{sTO}, s{sTO}, 1\ns_cbranch_scc1 {lx}\ns_mov_b64 exec, vcc")
            if (ack & opt["rmask"]) and opt["rslp"]: a(f"s_sleep {opt['rslp']}")
            for l in loads: a(l + " sc1")
            a(f"s_mov_b64 exec, -1\ns_waitcnt vmcnt(0)\ns_branch {lc}\n{lx}:\ns_mov_b32 s{sTO}, 0\ns_branch {ld}")
            return
        a("s_mov_b64 exec, vcc")
        for l in loads: a(l + " sc1")
        a(f"s_sleep {opt['pipe']}\n{lc}:")
        for l in loads: a(l + " sc1")
        a(f"s_waitcnt vmcnt({len(loads)})")
        for x in ops: a(x)
        a(f"v_cmp_eq_u32 vcc, -1, v{tmp}\ns_sub_u32 s{sTO}, s{sTO}, 1\ns_cbranch_scc1 {lx}\ns_and_b64 exec, exec, vcc\ns_cbranch_scc1 {lc}")
        lo = lab("ok")
        a(f"{lo}:\ns_mov_b64 exec, -1")
        for f in spec: f()
        a(f"s_branch {ld}\n{lx}:\ns_mov_b32 s{sTO}, 0\ns_branch {lo}")
    deferred.append((lr, retry))
PIPE = bool(opt["pipe"])

def ts(k):
    if TS: a(f"s_memtime s[{TSB+2*k}:{TSB+2*k+1}]")
TSSET = opt["tsset"].split(",")
assert len(TSSET) <= 12
def tsn(name):
    if name in TSSET: ts(TSSET.index(name))
def ts_put(pairs, tmp):
    if not TS: return
    a(f"s_waitcnt lgkmcnt(0)\nv_accvgpr_read_b32 v{tmp}, a{aTS}")
    for s, l in pairs: a(f"v_writelane_b32 v{tmp}, s{s}, {l}")
    a(f"v_accvgpr_write_b32 a{aTS}, v{tmp}")
def until(pos):
    if opt["until"] and opt["upos"] == pos:
        l = lab("until")
        a(f"v_accvgpr_read_b32 v79, a{aTS}\nv_readfirstlane_b32 s54, v79\n{l}:\ns_memrealtime s[52:53]\ns_waitcnt lgkmcnt(0)\ns_sub_u32 s52, s52, s54\ns_cmp_lt_u32 s52, {opt['until']}\ns_cbranch_scc1 {l}")

def mk_srd(d, lo, size):
    a(f"s_mov_b32 s{d}, s{lo}\ns_and_b32 s{d+1}, s{lo+1}, 0xffff\ns_mov_b32 s{d+2}, {size:#x}\ns_mov_b32 s{d+3}, 0x20000")
def mfma(d, A, B, c): a(f"v_mfma_f32_16x16x32_bf16 {d}, {A}, {B}, {c}")
def dpp_s(op, d, s0, s1, ctrl, bank=0xf):
    if s1 is None: return f"{op}_dpp v{d}, v{s0} {ctrl} row_mask:0xf bank_mask:{bank:#x}"
    return f"{op}_dpp v{d}, v{s0}, v{s1} {ctrl} row_mask:0xf bank_mask:{bank:#x}"
def dpp(*k): a(dpp_s(*k))
def rows_s(op, r, t):
    return [f"v_mov_b32 v{t}, v{r}", f"v_permlane16_swap_b32 v{r}, v{t}", f"{op} v{r}, v{r}, v{t}",
            f"v_mov_b32 v{t}, v{r}", f"v_permlane32_swap_b32 v{r}, v{t}", f"{op} v{r}, v{r}, v{t}"]
def mix(main, fill, per=2, start=0):
    fill = list(fill)
    for n, m in enumerate(main):
        a(m)
        if n >= start:
            for _ in range(per):
                if fill: a(fill.pop(0))
    for f in fill: a(f)
def mf(d, A, B, c): return f"v_mfma_f32_16x16x32_bf16 {d}, {A}, {B}, {c}"

def dma(srdn, voff_, sbase, step, n, ldsbase):
    for i in range(n):
        a(f"s_lshl_b32 s{sE}, s{sWV}, 10\ns_add_u32 m0, s{sE}, {ldsbase + i*4096}")
        if i: a(f"s_add_u32 s{sbase}, s{sbase}, {step}")
        a(f"buffer_load_dwordx4 v{voff_}, {srd(srdn)}, s{sbase} offen{WNT} lds")
def trread(areg, vaddr, ldsoff, ksteps):
    for j in range(ksteps):
        for u in range(2):
            a(f"ds_read_b64_tr_b16 a[{areg+4*j+2*u}:{areg+4*j+2*u+1}], v{vaddr} offset:{ldsoff + (32*j+4*u)*128}")
def fin_s(S, Q, scale=1.0):
    r = [f"v_mul_f32 v{S}, {f2u(-1/512):#x}, v{S}", f"v_mul_f32 v{Q}, {f2u(1/512):#x}, v{Q}",
         f"v_fma_f32 v{Q}, -v{S}, v{S}, v{Q}", f"v_max_f32 v{Q}, 0, v{Q}", f"v_add_f32 v{Q}, {f2u(1e-5):#x}, v{Q}",
         f"v_rsq_f32 v{Q}, v{Q}"]
    if scale != 1.0: r.append(f"v_mul_f32 v{Q}, {f2u(scale):#x}, v{Q}")
    r.append(f"v_mul_f32 v{S}, v{S}, v{Q}")
    return r
QSCALE = math.log2(math.e) / math.sqrt(128.0)

if TS or opt["until"]:
    a(f"s_memtime s[52:53]\ns_memrealtime s[54:55]\ns_waitcnt lgkmcnt(0)\nv_mov_b32 v40, 0")
    if TS: a("v_writelane_b32 v40, s52, 0\nv_writelane_b32 v40, s54, 42")
    else: a("v_mov_b32 v40, s54")
    a(f"v_accvgpr_write_b32 a{aTS}, v40")
a(f"""s_cmp_ge_u32 s2, 256
s_cbranch_scc1 L_end
s_load_dwordx16 s[52:67], s[0:1], 0
s_load_dwordx8 s[68:75], s[0:1], 64
v_lshrrev_b32 v{vTmp}, 6, v0
v_and_b32 v{vLane}, 63, v0
v_readfirstlane_b32 s{sWV}, v{vTmp}
s_mov_b32 s{sLAYER}, 0
s_mov_b32 s{sTO}, {1 << opt['tobits']:#x}""")
vK, vW, vSX, vQ0 = 32, 33, 34, 35
XF, XS, RST = 44, 80, 88
voff(vL16, [(0,6,16)])
def piece(dst):
    a(f"v_and_b32 v{dst}, 0x70, v{vL16}")
    if opt["swz"]:
        a(f"v_lshrrev_b32 v{dst+1}, 3, v{vL16}\nv_and_b32 v{dst+1}, 32, v{dst+1}\nv_xor_b32 v{dst}, v{dst}, v{dst+1}\ns_and_b32 s{sE}, s{sWV}, 1\ns_lshl_b32 s{sE}, s{sE}, 6\nv_xor_b32 v{dst}, s{sE}, v{dst}")
def reset_addr(vd, t):
    soff(sT1, 0, grp=GR, idx=4*736, wv=736)
    a(f"v_add_u32 v{vd}, s{sT1}, v{vL16}")
    soff(sT1, WO_OFF - 46*16, wg=1024, wv=256)
    a(f"v_add_u32 v{t}, s{sT1}, v{vL16}\nv_cmp_gt_u32 vcc, {46*16}, v{vL16}\nv_cndmask_b32 v{vd}, v{t}, v{vd}, vcc")
vRA = 38
def reset3(data, vd, goff, glanes, aoff, alanes):
    soff(sT1, 0, wv=1024); a(f"v_add_u32 v{vd+1}, s{sT1}, v{vL16}")
    soff(sT1, goff, grp=GR, idx=glanes*16); a(f"v_add_u32 v{vd}, s{sT1}, v{vd+1}")
    soff(sT1, aoff - glanes*16, wg=alanes*16); a(f"v_add_u32 v{vd+2}, s{sT1}, v{vd+1}")
    a(f"""v_cmp_gt_u32 vcc, {glanes*16}, v{vd+1}
    v_cndmask_b32 v{vd}, v{vd+2}, v{vd}, vcc
    v_mov_b32 v{vd+2}, {WS_SIZE}
    v_cmp_gt_u32 vcc, {(glanes+alanes)*16}, v{vd+1}
    v_cndmask_b32 v{vd}, v{vd+2}, v{vd}, vcc
    buffer_store_dwordx4 {v4(data)}, v{vd}, {srd(WS_)}, 0 offen sc1""")
def p_wq_addr():
    piece(vW)
    a(f"v_lshrrev_b32 v{vW+1}, 3, v{vLane}\nv_lshl_add_u32 v{vW}, v{vW+1}, 13, v{vW}")
    soff(sT1, 0, slot=128*8192, wv=8*8192, grp=1024, i=128)
def p_wq():
    mk_srd(WQ_, 58, 512*8192)
    if opt["diag"] & 32: a(f"s_mov_b32 s{sT1}, 0x7000000")
    dma(WQ_, vW, sT1, 32*8192, 4, WQ_L)
def p_x_addr():
    voff(vXl, [(0,1,1024), (4,2,16)])
    voff(vSX, [(0,1,1024), (1,3,128), (4,2,32)])
    voff(vXs, [(0,3,8), (5,1,4)])
    soff(sXE, 0, slot=256)
    soff(sXst, 0, w1=1024, i=128, w0=64)
def p_x():
    mk_srd(X_, 52, 2048)
    for j in range(4): a(f"buffer_load_dwordx4 {v4(XF+4*j)}, v{vXl}, {srd(X_)}, s{sXE} offen offset:{64*j}")
    a(f"buffer_load_dwordx4 {v4(XS)}, v{vSX}, {srd(X_)}, 0 offen\nbuffer_load_dwordx4 {v4(XS+4)}, v{vSX}, {srd(X_)}, 0 offen offset:16")
    a(f"buffer_load_dword v{vX1}, v{vXs}, {srd(X_)}, s{sXst} offen")
def p_rst():
    for r in range(4): a(f"v_mov_b32 v{RST+r}, -1")
    if opt["r3"]:
        mk_srd(WS_, 74, WS_SIZE); reset3(RST, vRA, ST1_OFF, 72, WO_OFF, 32); return
    if opt["rloc"]: reset_addr(vRA, vRA+1)
    else: soff(sT1, 0, wg=4*992, wv=992)
    mk_srd(WS_, 74, WS_SIZE)
    if opt["rloc"]: a(f"s_mov_b32 exec_hi, 0x3fffffff\nbuffer_store_dwordx4 {v4(RST)}, v{vRA}, {srd(WS_)}, 0 offen sc1\ns_mov_b64 exec, -1")
    elif not opt["diag"] & 1: a(f"s_mov_b32 exec_hi, 0x3fffffff\nbuffer_store_dwordx4 {v4(RST)}, v{vL16}, {srd(WS_)}, s{sT1} offen sc1\ns_mov_b64 exec, -1")
def p_k_addr():
    voff(vK, [(0,2,1024), (2,1,256), (3,1,64), (4,2,16)])
    soff(sKV, 0, ba=8<<21, grp=1<<21, s=1<<17, wv=1<<13)
def p_wait():
    a("s_waitcnt lgkmcnt(0)")
    if opt["tska"]: a(f"s_memtime s[{sOld}:{sOld+1}]")
def kload_s(t):
    r = []
    for hi in range(2):
        for j in range(4):
            p = f"s_add_u32 s{sT0}, s{sKV}, {t*32768 + hi*4096}\n" if j == 0 else ""
            if opt["win"] and t: p += f"s_waitcnt vmcnt({opt['win']})\n"
            r.append(p + f"buffer_load_dwordx4 {v4(VR+32*(t+1)+16*hi+4*j)}, v{vK}, {srd(K_)}, s{sT0} offen offset:{128*(j>>1)+512*(j&1)}{KVNT}")
    return r
def vload_s(t, lo=0, hi=8):
    r = []
    for i in range(lo, hi):
        p = f"s_add_u32 s{sT0}, s{sKV}, {t*32768 + (i>>2)*4096}\n" if (i % 4 == 0 or i == lo) else ""
        if opt["win"]: p += f"s_waitcnt vmcnt({opt['win']})\n"
        r.append(p + f"buffer_load_dwordx4 {v4(VR+32*(t+1)+4*i)}, v{vL16}, {srd(V_)}, s{sT0} offen offset:{1024*(i&3)}{KVNT}")
    return r
def kload(t):
    for x in kload_s(t): a(x)
def vload(t, lo=0, hi=8):
    for x in vload_s(t, lo, hi): a(x)
def kfix(t, wait, loads=()):
    loads = list(loads)
    if wait is not None: a(f"s_waitcnt vmcnt({wait})")
    if t: ts(3 + t)
    for hi in range(2):
        for hf in range(2):
            A = VR + 32*(t+1) + 16*hi + 8*hf; B = A + 4; dst = aK + 16*(t+4*hi) + 8*hf
            if loads: a(loads.pop(0))
            if not opt["diag"] & 16:
                for r in range(4): a(f"v_mov_b32 v{VR+r}, v{A+r}")
                for r in range(4): dpp("v_mov_b32", VR+r, B+r, None, "row_ror:8", 0xc)
                for r in range(2): dpp("v_mov_b32", B+r, A+r, None, "row_ror:8", 0x3)
            if loads: a(loads.pop(0))
            if not opt["diag"] & 16:
                for r in range(2, 4): dpp("v_mov_b32", B+r, A+r, None, "row_ror:8", 0x3)
                for r in range(4): a(f"v_accvgpr_write_b32 a{dst+r}, v{VR+r}")
                for r in range(4): a(f"v_accvgpr_write_b32 a{dst+4+r}, v{B+r}")
K0 = kload_s(0); p_k = lambda: mk_srd(K_, 54, 0x2000000)
em_ = lambda l: [a(x) for x in l]
if opt["pord"] == 0:
    p_wq_addr(); p_x_addr(); p_k_addr(); p_wait(); p_wq(); p_x(); p_rst(); p_k(); em_(K0); W0 = 8
elif opt["pord"] == 1:
    p_wq_addr(); p_wait(); p_wq(); p_k_addr(); p_k(); em_(K0[:4]); p_x_addr(); p_x(); p_rst(); em_(K0[4:]); W0 = 4
elif opt["pord"] == 2:
    p_k_addr(); p_wait(); p_k(); em_(K0[:4]); p_wq_addr(); p_wq(); p_x_addr(); p_x(); p_rst(); em_(K0[4:]); W0 = 4
elif opt["pord"] == 3:
    p_wq_addr(); p_wait(); p_wq(); p_x_addr(); p_x(); p_k_addr(); p_k(); em_(K0[:4]); p_rst(); em_(K0[4:]); W0 = 4
elif opt["pord"] == 4:
    p_wq_addr(); p_wait(); p_wq(); p_x_addr(); p_x(); p_rst(); p_k_addr(); p_k(); em_(K0); W0 = 8
if opt["tska"]: a(f"s_memtime s[{sWOst}:{sWOst+1}]\ns_waitcnt lgkmcnt(0)\nv_accvgpr_read_b32 v40, a{aTS}\nv_writelane_b32 v40, s{sOld}, 44\nv_writelane_b32 v40, s{sWOst}, 45\nv_accvgpr_write_b32 a{aTS}, v40")
if opt["deep"] in (1, 2, 4): kload(1)
mk_srd(V_, 56, 0x2000000); mk_srd(WO_, 60, 4096*1024); mk_srd(WG_, 64, 512*3584); mk_srd(WU_, 66, 512*3584)
mk_srd(WD_, 68, 1792*1024); mk_srd(OUT_, 70, 2048); mk_srd(DBG_, 72, 256)
voff(vL4, [(0,6,4)]); voff(vC16, [(0,4,16)]); voff(vG16, [(4,2,16)])
voff(vOl, [(0,4,64), (4,2,16)]); voff(vOs, [(4,2,1024), (0,4,4)])
voff(vQs, [(0,1,4096), (4,2,8)]); voff(vQ0, [(0,1,0x20000), (4,2,8)])
voff(vDNs, [(0,1,0x10000), (4,2,16)]); voff(vGUl, [(4,2,2048), (0,4,16)])
voff(vSTl, [(1,3,16), (0,1,8)]); voff(vSTd, [(0,4,16), (5,1,8)])
voff(vHr, [(0,1,128), (4,2,16)], const=H_L)
if opt["swz"]:
    voff(vTR, [(4,2,1024), (2,2,128), (0,2,8)])
    a(f"v_bfe_u32 v{vTmp}, v{vLane}, 3, 2\nv_xor_b32 v{vTmp}, s{sWV}, v{vTmp}\nv_lshl_add_u32 v{vTR}, v{vTmp}, 5, v{vTR}")
else:
    soff(sT0, 0, wv=32); voff(vTR, [(4,2,1024), (2,2,128), (0,2,8)], sadd=sT0)
soff(sT0, H_L, wv=32); voff(vHw, [(5,1,128), (0,4,2)], sadd=sT0)
voff(vOCw, [(4,1,2), (3,1,1)]); a(f"v_xor_b32 v{vOCw}, v{vOCw}, v{vLane}\nv_lshlrev_b32 v{vOCw}, 4, v{vOCw}")
soff(sT0, OC_L, wv=OC_W); a(f"v_add_u32 v{vOCw}, s{sT0}, v{vOCw}")
voff(vOCr, [(4,1,2), (1,1,1)]); a(f"v_xor_b32 v{vOCr}, s{sWV}, v{vOCr}\nv_lshlrev_b32 v{vOCr}, 4, v{vOCr}")
voff(vSX+2, [(4,2,256), (0,2,64), (2,2,4)], const=OC_L); a(f"v_add_u32 v{vOCr}, v{vOCr}, v{vSX+2}")
soff(sT0, ML_L, wv=8); voff(vMLw, [(0,2,32)], sadd=sT0)
soff(sT0, ML_L, wv=32); a(f"v_mov_b32 v{vMLr}, s{sT0}")
soff(sT0, XL_L, wv=64); a(f"v_add_u32 v{vXLw}, s{sT0}, v{vXs}")
a(f"v_mov_b32 v{vTmp}, 0x3f803f80")
for r in range(4): a(f"v_accvgpr_write_b32 a{aONE+r}, v{vTmp}")
vXLr = VR + 128 + 8
if opt["onesrow"]: a(f"v_add_u32 v{vSX+2}, {ONE_L}, v{vL4}\nds_write_b32 v{vSX+2}, v{vTmp}")
for r in range(8): a(f"v_accvgpr_write_b32 a{aWD+r}, 0")
NT = 0
if opt["tlb"]:
    a(f"s_mov_b64 exec, 1\nbuffer_load_dword a{aTS+1}, off, {srd(V_)}, s{sKV}{KVNT}"); NT += 1
    if opt["tlb"] > 1:
        soff(sT0, 0, grp=512*1024, slot=128*1024, wv=8*1024, i=128)
        a(f"buffer_load_dword a{aTS+1}, off, {srd(WO_)}, s{sT0}{KVNT}")
        soff(sT0, 0, i=64*3584, wv=8*3584, slot=1024, grp=128)
        a(f"buffer_load_dword a{aTS+1}, off, {srd(WG_)}, s{sT0}{KVNT}\nbuffer_load_dword a{aTS+1}, off, {srd(WU_)}, s{sT0}{KVNT}")
        soff(sT0, 0, slot=8*65536, grp=65536, wv=8192, i=128)
        a(f"buffer_load_dword a{aTS+1}, off, {srd(WD_)}, s{sT0}{KVNT}"); NT += 4
    exec_all()
soff(sGB, 0, grp=GR)
soff(sFB, 0, slot=8, grp=1)
soff(sOst, O_OFF, True, ba=16384, wv=4096, s=64)
soff(sLst, LSE_OFF, True, ba=256, wv=64, s=4)
soff(sOld, O_OFF, True, w0=16384, slot=4096)
soff(sLld, LSE_OFF, True, w0=256, slot=64)
soff(sWOst, WO_OFF, w0=0x10000, i=8192, w1=4096, grp=512, slot=128)
soff(sDNst, DN_OFF, i=8192, w1=4096, slot=1024, grp=128, w0=64)
soff(sM1, WO_OFF, w1=0x10000, i=8192, w0=4096)
a(f"s_add_u32 s{sM2}, s{sM1}, {DN_OFF - WO_OFF:#x}")
soff(sST2st, ST2_OFF, True, i=32, w0=16, w1=8)
soff(sST1st, ST1_OFF, True, slot=256, i=32, w0=16, w1=8)
if opt["estrep"]: soff(sST2ld, ST2_OFF, True, i=256)
else: soff(sST2ld, ST2_OFF, True)
soff(sGUst, GU_OFF, True, slot=8192, i=1024, wv=256)
soff(sT0, 0, slot=1)
a(f"s_cmp_lt_u32 s{sFB}, 28\ns_cselect_b32 s{sT0}, s{sT0}, 0\ns_lshl_b32 s{sST1ld}, s{sT0}, 8\ns_lshl_b32 s{sT0}, s{sT0}, 13")
soff(sGUld, GU_OFF, True, wv=256)
a(f"s_add_u32 s{sGUld}, s{sGUld}, s{sT0}\ns_add_u32 s{sST1ld}, s{sST1ld}, s{sGB}\ns_add_u32 s{sST1ld}, s{sST1ld}, {ST1_OFF:#x}")
a(f"s_add_u32 s{sT0}, s{sGB}, {X2_OFF:#x}\ns_add_u32 s{sXE}, s{sXE}, s{sT0}\ns_add_u32 s{sXst}, s{sXst}, s{sT0}")
if opt["estrep"]:
    soff(sT0, 0, ih=2048); a(f"s_add_u32 s{sXE}, s{sXE}, s{sT0}")
soff(sQst, 0, slot=256, ih=64, i0=2048, w1=1024, w0=32)
soff(sQld, 0, ba=4096)
soff(sSEL0, Q0_OFF, grp=0x40000)
a(f"s_waitcnt vmcnt({NT + W0 + (8 if opt['deep'] in (1, 2, 4) else 0)})")
ts(1)
K1, K2 = kload_s(1), kload_s(2)
K1[2] = f"s_add_u32 s{sT0}, s{sKV}, 32768\n" + K1[2]
SPR = opt["spr"]
em_(K1[:SPR//2])
S, Qr, t0, t1 = 90, 91, 36, 37
a(f"v_mov_b32 v{S}, 0\nv_mov_b32 v{Qr}, 0")
for i in range(8):
    a(f"""v_lshlrev_b32 v{t0}, 16, v{XS+i}
    v_and_b32 v{t1}, 0xffff0000, v{XS+i}
    v_add_f32 v{S}, v{S}, v{t0}
    v_fmac_f32 v{Qr}, v{t0}, v{t0}
    v_add_f32 v{S}, v{S}, v{t1}
    v_fmac_f32 v{Qr}, v{t1}, v{t1}""")
a(f"v_lshlrev_b32 v{vX0}, 16, v{vX1}\nv_and_b32 v{vX1}, 0xffff0000, v{vX1}")
em_(K1[SPR//2:SPR])
a("s_barrier")
trread(aWQ, vTR, WQ_L, 4)
for n in (2, 4, 8):
    dpp("v_add_f32", S, S, S, f"row_ror:{n}"); dpp("v_add_f32", Qr, Qr, Qr, f"row_ror:{n}")
for x, y in zip(rows_s("v_add_f32", S, t0), rows_s("v_add_f32", Qr, t1)): a(x); a(y)
for x in fin_s(S, Qr, QSCALE): a(x)
a("s_waitcnt lgkmcnt(0)")
def arrive():
    lna = lab("noarr")
    a(f"""s_getreg_b32 s{sT0}, hwreg(HW_REG_XCC_ID)
    s_and_b32 s{sT0}, s{sT0}, 7
    s_mul_i32 s{sFAST}, s{sT0}, 6
    s_cmp_eq_u32 s{sWV}, 0
    s_cbranch_scc0 {lna}
    s_and_b32 s{sT0}, s2, 7
    s_lshl_b32 s{sT0}, s{sT0}, 5
    s_lshl_b64 s[{sE}:{sE+1}], 1, s{sFAST}
    s_add_u32 s{sE+1}, s{sE+1}, 0x10000
    {"" if opt["diag"] & 4 else f"s_atomic_add_x2 s[{sE}:{sE+1}], s[{DBG_}:{DBG_+1}], s{sT0}"}
    {lna}:""")
if opt["lateq"]: arrive()
DE = 60
for j in range(4): mfma(v4(vCSQ), a4(aWQ+4*j), a4(aONE), 0 if j == 0 else v4(vCSQ))
for j in range(4): mfma(v4(DE), a4(aWQ+4*j), v4(XF+4*j), 0 if j == 0 else v4(DE))
for r in range(4): a(f"v_mul_f32 v{DE+4+r}, v{S}, v{vCSQ+r}")
for r in range(4): a(f"v_fmac_f32 v{DE+4+r}, v{Qr}, v{DE+r}")
a(f"v_cvt_pk_bf16_f32 v{DE}, v{DE+4}, v{DE+5}\nv_cvt_pk_bf16_f32 v{DE+1}, v{DE+6}, v{DE+7}\ns_add_u32 s{sT0}, s{sQst}, s{sSEL0}")
NPRE = 2 if opt["opre"] else 0
def opre():
    fl_ = " sc1" if opt["opre"] == 2 else ""
    a(f"buffer_load_dword a{aTS+1}, v{vOs}, {srd(WS_)}, s{sOst} offen{fl_}\nbuffer_load_dword a{aTS+2}, off, {srd(WS_)}, s{sLst}{fl_}")
if opt["lateq"]:
    ts(2)
    CT = 80
    voff(t0, [(0,3,32)])
    cl = f"buffer_load_dwordx2 {v2(CT)}, v{t0}, {srd(DBG_)}, 0 offen sc1"
    em_(K1[SPR:])
    if opt["ilv"]: kfix(0, 8, kload_s(2)); kfix(1, 8, kload_s(3)); a(cl); kfix(2, 9, vload_s(0))
    else: kfix(0, 8); kload(2)
    if opt["ilv"]: pass
    elif opt["cpos"] == 3: kfix(1, 8); kload(3); a(cl); kfix(2, 9); vload(0)
    else: a(cl); kfix(1, 9); kload(3)
    lp, ld = lab("bar"), lab("barok")
    a(f"""s_waitcnt vmcnt(8)
    {lp}:
    v_lshrrev_b32 v{t1}, 16, v{CT+1}
    v_cmp_gt_u32 vcc, 32, v{t1}
    s_cbranch_vccz {ld}
    {cl}
    s_waitcnt vmcnt(0)
    s_sub_u32 s{sTO}, s{sTO}, 1
    s_cbranch_scc0 {lp}
    s_mov_b32 s{sTO}, 0
    {ld}:
    s_add_u32 s{sT1}, s{sGB}, {Q_OFF:#x}
    s_add_u32 s{sQld}, s{sQld}, s{sT1}
    s_add_u32 s{sQst}, s{sQst}, s{sT1}
    s_mov_b32 s{sSEL0}, 0x05040100
    s_mov_b32 s{sSEL1}, 0x07060302
    s_and_b32 s{sT1}, s2, 7
    s_waitcnt lgkmcnt(0)
    v_readlane_b32 s{sT0}, v{CT}, s{sT1}
    v_readlane_b32 s{sT1}, v{CT+1}, s{sT1}
    s_lshl_b64 s[{sE}:{sE+1}], 32, s{sFAST}
    s_add_u32 s{sE+1}, s{sE+1}, 0x200000
    s_xor_b32 s{sT0}, s{sT0}, s{sE}
    s_xor_b32 s{sT1}, s{sT1}, s{sE+1}
    s_or_b32 s{sT0}, s{sT0}, s{sT1}
    s_cmp_eq_u32 s{sT0}, 0
    s_cselect_b32 s{sFAST}, 1, 0""")
    ts_put([(sTO, 46)], vM)
    exec_set(0x00030003, 0x00030003)
    pub(f"buffer_store_dwordx2 {v2(DE)}, v{vQs}, {srd(WS_)}, s{sQst} offen")
    exec_all()
    qn = opt["qneg"]
    if opt["ilv"]: kfix(3, None, vload_s(1))
    elif opt["cpos"] == 3: kfix(3, None); vload(1, 0, 8 - qn)
    else: kfix(2, None); vload(0); kfix(3, 9); vload(1)
    qo = opt["qoff"]
    if opt["opre"] == 3: opre(); NPRE = 0
    vload(2, 0, qo)
    poll([f"buffer_load_dwordx4 {v4(QF+4*j)}, v{vOl}, {srd(WS_)}, s{sQld} offen offset:{1024*j}" for j in range(4)],
         range(QF, QF+16), vM, between=lambda: ((vload(1, 8 - qn, 8), vload(2, 0, 8 - qn)) if qn else (vload(2, qo, 8), vload(3, 0, qo))), wait1=8)
else:
    if opt["q0lds"]:
        assert opt["deep"] == 0
        voff(t0, [(0,1,128), (4,2,8)]); soff(sT1, OC_L, wv=32)
        a(f"v_add_u32 v{t0}, s{sT1}, v{t0}")
        exec_set(0x00030003, 0x00030003)
        a(f"ds_write_b64 v{t0}, {v2(DE)}")
        exec_all()
        voff(vQ0, [(3,1,0x20000), (2,1,1024), (0,2,16)])
        lq = lab("q0")
        a(f"""s_waitcnt lgkmcnt(0)
        s_barrier
        s_cmp_eq_u32 s{sWV}, 0
        s_cbranch_scc0 {lq}
        s_mov_b64 exec, 0xffff
        ds_read_b128 {v4(DE)}, v{vL16} offset:{OC_L}
        s_waitcnt lgkmcnt(0)""")
        if not opt["diag"] & 8: a(f"buffer_store_dwordx4 {v4(DE)}, v{vQ0}, {srd(WS_)}, s{sT0} offen sc1")
        a(f"s_mov_b64 exec, -1\n{lq}:")
        ts(2)
        kload(1)
        a("s_waitcnt vmcnt(8)")
        ts(3)
    else:
        exec_set(0x00030003, 0x00030003)
        if not opt["diag"] & 8: a(f"buffer_store_dwordx2 {v2(DE)}, v{vQ0}, {srd(WS_)}, s{sT0} offen sc1")
        exec_all()
        ts(2)
        if opt["deep"] == 1:
            kload(2); kload(3)
            a("s_waitcnt vmcnt(16)\ns_barrier")
        elif opt["deep"] in (2, 4):
            kload(2)
            a("s_waitcnt vmcnt(8)\ns_barrier")
        else:
            assert SPR in (0, 4, 8)
            em_(K1[SPR:]); em_(K2[:SPR])
            a("s_waitcnt vmcnt(8)\ns_barrier")
            ts(3)
    lna = lab("noarr")
    a(f"""s_getreg_b32 s{sT0}, hwreg(HW_REG_XCC_ID)
    s_and_b32 s{sT0}, s{sT0}, 7
    s_mul_i32 s{sFAST}, s{sT0}, 6
    s_cmp_eq_u32 s{sWV}, 0
    s_cbranch_scc0 {lna}
    s_and_b32 s{sT0}, s2, 7
    s_lshl_b32 s{sT0}, s{sT0}, 5
    s_lshl_b64 s[{sE}:{sE+1}], 1, s{sFAST}
    s_add_u32 s{sE+1}, s{sE+1}, 0x10000
    {"" if opt["diag"] & 4 else f"s_atomic_add_x2 s[{sE}:{sE+1}], s[{DBG_}:{DBG_+1}], s{sT0}"}
    {lna}:""")
    NPRE = 2 if opt["opre"] else 0
    def opre():
        a(f"buffer_load_dword a{aTS+1}, v{vOs}, {srd(WS_)}, s{sOst} offen\nbuffer_load_dword a{aTS+2}, off, {srd(WS_)}, s{sLst}")
    CT = 80
    voff(t0, [(0,3,32)])
    cl = f"buffer_load_dwordx2 {v2(CT)}, v{t0}, {srd(DBG_)}, 0 offen sc1"
    if opt["deep"] == 1:
        kfix(0, None); vload(0); a(cl); kfix(1, None); vload(1); kfix(2, 25); vload(2); w = 16
    elif opt["deep"] == 2:
        kload(3); kfix(0, None); vload(0); kfix(1, None); a(cl); vload(1); kfix(2, 25); vload(2); w = 16
    elif opt["deep"] == 4:
        kload(3); kfix(0, None); vload(0); a(cl); kfix(1, None); kfix(2, 17); vload(1); kfix(3, 17); w = 8
    elif opt["deep"] == 5:
        kfix(0, None); kload(2); kfix(1, 8); kload(3); a(cl); kfix(2, 9); vload(0); w = 8
    elif opt["deep"] == 6:
        kfix(0, None); kload(2); a(cl); kfix(1, 9); kload(3); w = 8
    elif opt["ilv"]:
        kfix(0, 8, kload_s(2)); kfix(1, 8, kload_s(3)); kfix(2, 8, vload_s(0)); a(cl); kfix(3, 9, vload_s(1)); w = 8
    else:
        kfix(0, None); em_(K2[SPR:]); kfix(1, 8); kload(3); kfix(2, 8); vload(0); a(cl); kfix(3, 9); vload(1); w = 8
    lp, ld = lab("bar"), lab("barok")
    a(f"""s_waitcnt vmcnt({w})
    {lp}:
    v_lshrrev_b32 v{t1}, 16, v{CT+1}
    v_cmp_gt_u32 vcc, {0 if opt["diag"] & 4 else 32}, v{t1}
    s_cbranch_vccz {ld}
    {cl}
    s_waitcnt vmcnt(0)
    s_sub_u32 s{sTO}, s{sTO}, 1
    s_cbranch_scc0 {lp}
    s_mov_b32 s{sTO}, 0
    {ld}:""")
    a(f"s_lshl_b32 s{sT0}, s{sQld}, 5\ns_add_u32 s{sT0}, s{sT0}, s{sSEL0}")
    if opt["diag"] & 64: a(f"s_mov_b32 s{sT0}, 0x7000000")
    for j in range(4): a(f"buffer_load_dwordx4 {v4(QF+4*j)}, v{vOl}, {srd(WS_)}, s{sT0} offen offset:{1024*j} sc1")
    if opt["deep"] in (1, 2):
        kfix(3, None); vload(3)
        if opt["opre"]: opre()
    elif opt["deep"] == 5:
        kfix(3, None); vload(1)
    elif opt["deep"] == 6:
        kfix(2, None); vload(0); kfix(3, 8)
    elif opt["deep"]:
        vload(2); vload(3)
        if opt["opre"]: opre()
    else: vload(2)
    a(f"""s_add_u32 s{sT1}, s{sGB}, {Q_OFF:#x}
    s_add_u32 s{sQld}, s{sQld}, s{sT1}
    s_add_u32 s{sQst}, s{sQst}, s{sT1}
    s_mov_b32 s{sSEL0}, 0x05040100
    s_mov_b32 s{sSEL1}, 0x07060302
    s_and_b32 s{sT1}, s2, 7
    s_waitcnt lgkmcnt(0)
    v_readlane_b32 s{sT0}, v{CT}, s{sT1}
    v_readlane_b32 s{sT1}, v{CT+1}, s{sT1}
    s_lshl_b64 s[{sE}:{sE+1}], 32, s{sFAST}
    s_add_u32 s{sE+1}, s{sE+1}, 0x200000
    s_xor_b32 s{sT0}, s{sT0}, s{sE}
    s_xor_b32 s{sT1}, s{sT1}, s{sE+1}
    s_or_b32 s{sT0}, s{sT0}, s{sT1}
    s_cmp_eq_u32 s{sT0}, 0
    s_cselect_b32 s{sFAST}, 1, 0
    s_waitcnt vmcnt({(16 if opt['deep'] in (3, 4) else 8) + (NPRE if opt['deep'] in (1, 2, 3, 4) else 0)})""")
if opt['nv3']: vload(3, 0, opt['nv3'])
ts(7)
ts_put([(TSB+2*k, k) for k in range(1, 8)] + [(sTO, 47 if opt['lateq'] else 46)], vM)
Dt = lambda t: DT + 4*t
qk = [mf(v4(Dt(tau)), a4(aK+16*tau+4*j), v4(QF+4*j), 0 if j == 0 else v4(Dt(tau))) for tau in (0, 2, 1, 3, 4, 6, 5, 7) for j in range(4)]
NSP = 4 if opt["specq"] else 0
def code_warm(back):
    soff(sT0, 0, idx=256, wv=64)
    a(f"s_min_u32 s{sT0}, s{sT0}, L_end-L_layer\ns_getpc_b64 s[{X_+2}:{X_+3}]\nL_pc:")
    if back: a(f"s_sub_u32 s{X_+2}, s{X_+2}, L_pc-L_layer\ns_subb_u32 s{X_+3}, s{X_+3}, 0")
    else: a(f"s_add_u32 s{X_+2}, s{X_+2}, L_layer-L_pc\ns_addc_u32 s{X_+3}, s{X_+3}, 0")
    a(f"s_load_dword s{X_+1}, s[{X_+2}:{X_+3}], s{sT0}")
if opt["cwarm"] == 1: code_warm(False)
for m in qk[:NSP]: a(m)
a("s_branch L_qk")

a("L_layer:")
until(1)
poll([f"buffer_load_dwordx4 {v4(QF+4*j)}, v{vOl}, {srd(WS_)}, s{sQld} offen offset:{1024*j}" for j in range(4)],
     range(QF, QF+16), vM, spec=[(lambda m=m: a(m)) for m in qk[:NSP]], pipe=PIPE, ack=1)
if opt["diag"] & 128:
    for k in range(55): a(f"v_add_f32 v{vM+1}, v{vM+2}, v{vM+2}")
    a(f"v_add_u32 v{vM+1}, {OC_L}, v{vL16}\nds_write_b128 v{vM+1}, {v4(QF)}\ns_waitcnt lgkmcnt(0)\ns_barrier")
    for j in range(4): a(f"ds_read_b128 {v4(QF+4*j)}, v{vM+1}")
    a("s_waitcnt lgkmcnt(0)")
    for m in qk[:NSP]: a(m)
if opt["pre"] & 4:
    a(f"s_cmp_eq_u32 s{sWV}, 3\ns_cselect_b32 exec_lo, 3, 31\ns_mov_b32 exec_hi, 0\nbuffer_load_dword a{aTS+1}, v{vM+3}, {srd(WS_)}, s{sXE} offen sc1\ns_mov_b64 exec, -1")
a("L_qk:")
tsn('qk_start')
ZB = ZA + 4
def xlo(t, X): return [dpp_s("v_add_f32", X+r, Dt(t)+r, Dt(t)+r, "row_ror:8", 0x3) for r in range(4)]
def xhi(t, X): return [dpp_s("v_add_f32", X+r, Dt(t)+r, Dt(t)+r, "row_ror:8", 0xc) for r in range(4)]
def zev(Z): return [dpp_s("v_add_f32", Z+r, XT+r, XT+r, "row_ror:12", 0x5) for r in range(4)]
def zod(Z): return [dpp_s("v_add_f32", Z+r, YT+r, YT+r, "row_ror:4", 0xa) for r in range(4)]
fill = xlo(0, XT) + xhi(2, XT) + zev(ZA) + xlo(1, YT) + xhi(3, YT) + zod(ZA) + \
    [f"v_max3_f32 v{vM}, v{ZA}, v{ZA+1}, v{ZA+2}", f"v_max_f32 v{vM}, v{ZA+3}, v{vM}"] + \
    xlo(4, XT) + xhi(6, XT) + zev(ZB) + xlo(5, YT) + xhi(7, YT) + zod(ZB)
mix(qk[NSP:], fill, 2, 11 - NSP)
vLs, vU = vM + 1, vM + 2
a(f"v_max3_f32 v{vM}, v{ZB}, v{ZB+1}, v{vM}\nv_max3_f32 v{vM}, v{ZB+2}, v{ZB+3}, v{vM}")
dpp("v_max_f32", vM, vM, vM, "row_ror:4"); dpp("v_max_f32", vM, vM, vM, "row_ror:8")
for x in rows_s("v_max_f32", vM, vU): a(x)
P = [XT, YT, QF, QF+4]
for r in range(8): a(f"v_sub_f32 v{ZA+r}, v{ZA+r}, v{vM}")
for r in range(8): a(f"v_exp_f32 v{ZA+r}, v{ZA+r}")
for r in range(4): a(f"v_cvt_pk_bf16_f32 v{P[0]+r}, v{ZA+2*r}, v{ZA+2*r+1}")
tsn('softmax_done')
def late_loads(vA=None, vB=None):
    if vA is None: vA, vB = vU, vU + 1
    a(f"v_and_b32 v{vA}, 0x70, v{vL16}")
    if opt["swz"]:
        a(f"v_lshrrev_b32 v{vB}, 3, v{vL16}\nv_and_b32 v{vB}, 32, v{vB}\nv_xor_b32 v{vA}, v{vA}, v{vB}\ns_and_b32 s{sE}, s{sWV}, 1\ns_lshl_b32 s{sE}, s{sE}, 6\nv_xor_b32 v{vA}, s{sE}, v{vA}")
    a(f"v_lshrrev_b32 v{vB}, 7, v{vL16}\nv_lshl_add_u32 v{vA}, v{vB}, 10, v{vA}")
    soff(sT0, 0, grp=512*1024, slot=128*1024, wv=8*1024, i=128)
    if opt["diag"] & 2: a(f"s_mov_b32 s{sT0}, 0x7000000")
    dma(WO_, vA, sT0, 32*1024, 4, WO_L)
def late_resets():
    R4 = VR + 128
    if opt["r3"]:
        reset3(R4, R4+4, LSTR + GU_OFF, 152, LSTR + WO_OFF, 64); return
    for r in range(4): a(f"v_mov_b32 v{R4+r}, -1")
    if opt["rloc"]:
        reset_addr(R4+4, R4+5)
        a(f"s_mov_b32 s{sT0}, {LSTR:#x}\ns_mov_b32 exec_hi, 0x3fffffff\nbuffer_store_dwordx4 {v4(R4)}, v{R4+4}, {srd(WS_)}, s{sT0} offen sc1\ns_mov_b64 exec, -1")
        return
    soff(sT0, LSTR, wg=4*992, wv=992)
    a(f"s_mov_b32 exec_hi, 0x3fffffff\nbuffer_store_dwordx4 {v4(R4)}, v{vL16}, {srd(WS_)}, s{sT0} offen sc1\ns_mov_b64 exec, -1")
def transpose(t, waits, hooks={}):
    src, dst = VR + 32*(t+1), VR + 32*t
    for p in range(5):
        if p in hooks: hooks[p]()
        if p == 4: break
        if waits[p] is not None: a(f"s_waitcnt vmcnt({waits[p]})")
        for q in range(4):
            a(f"v_perm_b32 v{dst+8*q+p}, v{src+8*p+4+q}, v{src+8*p+q}, s{sSEL0}")
            a(f"v_perm_b32 v{dst+8*q+4+p}, v{src+8*p+4+q}, v{src+8*p+q}, s{sSEL1}")
def pv(t): return [mf(v4(DT+4*e), v4(VR+32*t+4*e), v4(P[t]), 0 if t == 0 else v4(DT+4*e)) for e in range(8)]
FW, vMM, vL, vR, vLSE = QF+8, QF+12, QF+13, QF+14, QF+15
ML = ZA
if opt["deep"] == 5: layer0(lambda lb: (vload(2), transpose(0, [None]*4)))
elif opt["deep"] == 6: layer0(lambda lb: (vload(1), vload(2) if 0 else None, transpose(0, [8, None, None, None])))
elif opt["qneg"]: layer0(lambda lb: (vload(2, 8 - opt["qneg"], 8), vload(3, 0, 8 - opt["qneg"]), transpose(0, [None]*4)))
elif opt["deep"]: layer0(lambda lb: transpose(0, [None]*4))
else: layer0(lambda lb: ((late_loads(vM+3, vM+1) if opt['wopos'] == 0 else None), vload(3, opt['nv3'] + opt['qoff'], 8), (opre() if opt["opre"] in (1, 2) else None), transpose(0, [None]*4)))
rot = lambda tt: [dpp_s("v_mov_b32", P[tt]+r, P[0]+r, None, f"row_ror:{16-4*tt}") for r in range(4)]
rs = rows_s("v_add_f32", vLs, vU)
r1, r2, r3 = rot(1), rot(2), rot(3)
s0 = [f"v_add_f32 v{ZA+2*r}, v{ZA+2*r}, v{ZA+2*r+1}" for r in range(4)] + \
     [f"v_add_f32 v{ZA}, v{ZA}, v{ZA+2}", f"v_add_f32 v{ZA+4}, v{ZA+4}, v{ZA+6}", f"v_add_f32 v{vLs}, v{ZA}, v{ZA+4}", r1[0],
      dpp_s("v_add_f32", vLs, vLs, vLs, "row_ror:4"), r1[1], dpp_s("v_add_f32", vLs, vLs, vLs, "row_ror:8"), rs[0], r1[2], rs[1], rs[2], r1[3]]
mix(pv(0), s0)
tsn('pv0')
if PIPE: a(f"s_cmp_eq_u32 s{sLAYER}, 0\ns_cbranch_scc1 L_nq\ns_waitcnt vmcnt(0)\nL_nq:")
if opt["deep"] == 5: layer0(lambda lb: (vload(3), transpose(1, [16, None, None, None])))
elif opt["deep"] == 6: layer0(lambda lb: (vload(2), transpose(1, [8, None, None, None])))
elif opt["qneg"]: layer0(lambda lb: (vload(3, 8 - opt["qneg"], 8), transpose(1, [16, None, None, None])))
elif opt["wopos"] == 0: layer0(lambda lb: (transpose(1, [None]*4), a("s_waitcnt vmcnt(8)")))
elif opt["wopos"] == 1: layer0(lambda lb: (late_loads(vM+3, ZA+7), transpose(1, [None]*4)))
else: layer0(lambda lb: transpose(1, [None]*4))
p1 = pv(1)
for x in [p1[0], rs[3], r2[0], p1[1], rs[4], rs[5], p1[2], "s_mov_b64 exec, 15", f"ds_write_b64 v{vMLw}, {v2(vM)}", "s_mov_b64 exec, -1",
          p1[3], r2[1], r2[2], p1[4], r2[3], r3[0], p1[5], r3[1], r3[2], p1[6], "s_waitcnt lgkmcnt(0)", "s_barrier",
          f"ds_read_b128 {v4(ML)}, v{vMLr}", f"ds_read_b128 {v4(ML+4)}, v{vMLr} offset:16", p1[7], r3[3]]: a(x)
tsn('pv1')
def wo_tr():
    a(f"s_and_b32 s{sT0}, s{sWV}, 1\ns_lshl_b32 s{sT0}, s{sT0}, 5\nv_xor_b32 v{vU}, s{sT0}, v{vTR}\nv_xor_b32 v{vU+1}, 32, v{vU}")
    trread(aWO, vU, WO_L, 4); trread(aWO+16, vU+1, WO_L, 4)
layer0(lambda lb: ((vload(3) if opt["deep"] == 6 else None), (late_loads() if opt["wopos"] == 2 else None), (wo_tr() if opt["wopos"] == 0 else None),
                   transpose(2, [8 + NPRE + (4 if opt["wopos"] in (1, 2) else 0), None, None, None])))
fac = ["s_waitcnt lgkmcnt(0)", f"v_max3_f32 v{vMM}, v{ML}, v{ML+2}, v{ML+4}", f"v_max_f32 v{vMM}, v{ML+6}, v{vMM}"] + \
      [f"v_sub_f32 v{FW+w}, v{ML+2*w}, v{vMM}" for w in range(4)] + [f"v_exp_f32 v{FW+w}, v{FW+w}" for w in range(4)] + \
      [f"v_mul_f32 v{vL}, v{FW}, v{ML+1}"] + [f"v_fmac_f32 v{vL}, v{FW+w}, v{ML+2*w+1}" for w in range(1, 4)] + \
      [f"v_rcp_f32 v{vR}, v{vL}", f"v_log_f32 v{vLSE}, v{vL}"] + [f"v_mul_f32 v{FW+w}, v{FW+w}, v{vR}" for w in range(4)] + \
      [f"v_add_f32 v{vLSE}, v{vLSE}, v{vMM}"]
mix(pv(2), fac[:12], 2, 2)
tsn('pv2')
def blk3(lb):
    if opt["cwarm"] == 3: code_warm(True)
    lr = late_resets if opt["lrpos"] == 0 else (lambda: None)
    if opt["r3"]:
        assert opt["lrpos"] == 1
        def lr():
            R4 = VR + 128
            for r in range(4): a(f"v_mov_b32 v{R4+r}, -1")
            reset3(R4, R4+4, CS_OFF, 96, DN_OFF, 32)
    n = NPRE
    if opt["wopos"] == 0: transpose(3, [6+n, 4+n, 2+n, n], {4: lr})
    elif opt["wopos"] in (1, 2): transpose(3, [10+n, 8+n, 6+n, 4+n], {4: lr})
    elif opt["wopos"] == 3: transpose(3, [6+n, 4+n, 6+n, 4+n], {2: late_loads, 4: lr})
    else: transpose(3, [6+n, 4+n, 2+n, n], {4: lambda: (late_loads(), lr())})
layer0(blk3)
gath = lambda u: [dpp_s("v_mov_b32", DT+k, DT+8*u+k, None, f"row_ror:{4*u}", 1 << u) for k in range(8)]
mix(pv(3), fac[12:] + gath(1)[:6])
for x in gath(1)[6:] + gath(2) + gath(3): a(x)
tsn('pv_done')
until(0)
a(f"ds_write_b128 v{vOCw}, {v4(DT)}\nds_write_b128 v{vOCw}, {v4(DT+4)} offset:1024\ns_mov_b64 exec, 1")
pub(f"buffer_store_dword v{vLSE}, off, {srd(WS_)}, s{sLst}")
a("s_mov_b64 exec, -1\ns_waitcnt lgkmcnt(0)")
tsn('ocw')
a("s_barrier")
tsn('ocbar')
OV = ZA
for w in range(4): a(f"ds_read2st64_b32 {v2(OV+2*w)}, v{vOCr} offset0:{8*w} offset1:{8*w+4}")
a(f"s_waitcnt lgkmcnt(3)\nv_mul_f32 v{OV}, v{FW}, v{OV}\nv_mul_f32 v{OV+1}, v{FW}, v{OV+1}")
for w in range(1, 4): a(f"s_waitcnt lgkmcnt({3-w})\nv_fmac_f32 v{OV}, v{FW+w}, v{OV+2*w}\nv_fmac_f32 v{OV+1}, v{FW+w}, v{OV+2*w+1}")
a(f"v_cvt_pk_bf16_f32 v{OV}, v{OV}, v{OV+1}")
pub(f"buffer_store_dword v{OV}, v{vOs}, {srd(WS_)}, s{sOst} offen")
tsn('O_pub')
OF, LS, DB, EB = T, T+16, T+20, T+28
def wo_frags(lb):
    a(f"s_and_b32 s{sT0}, s{sWV}, 1\ns_lshl_b32 s{sT0}, s{sT0}, 5\nv_xor_b32 v{EB}, s{sT0}, v{vTR}\nv_xor_b32 v{EB+1}, 32, v{EB}\ns_waitcnt vmcnt(5)")
    tsn('b_wo')
    if opt["bord"] == 0: a("s_waitcnt vmcnt(0)")
    tsn('b_wait')
    a("s_barrier")
    tsn('b_bar')
    trread(aWO, EB, WO_L, 4); trread(aWO+16, EB+1, WO_L, 4)
    a("s_waitcnt lgkmcnt(0)")
    tsn('b_tr')
    a("s_waitcnt vmcnt(0)")
rm = rows_s("v_max_f32", EB+4, EB+5)
ra = rows_s("v_add_f32", EB+4, EB+5)
chain = [f"v_max3_f32 v{EB+4}, v{LS}, v{LS+1}, v{LS+2}", f"v_max_f32 v{EB+4}, v{LS+3}, v{EB+4}"] + rm + \
        [f"v_sub_f32 v{EB+r}, v{LS+r}, v{EB+4}" for r in range(4)] + [f"v_exp_f32 v{EB+r}, v{EB+r}" for r in range(4)]
bm = [mf(v4(DB+4*t), v4(OF+4*j), a4(aWO+16*t+4*j), 0 if j == 0 else v4(DB+4*t)) for j in range(4) for t in range(2)]
oloads = [f"buffer_load_dwordx4 {v4(OF+4*j)}, v{vOl}, {srd(WS_)}, s{sOld} offen offset:{1024*j}" for j in range(4)]
lload = [f"buffer_load_dwordx4 {v4(LS)}, v{vG16}, {srd(WS_)}, s{sLld} offen"]
def b_joint(only0):
    if only0 and opt['bord'] == 2: a('s_waitcnt vmcnt(0)')
    poll([f"buffer_load_dwordx4 {v4(OF+4*j)}, v{vOl}, {srd(WS_)}, s{sOld} offen offset:{1024*j}" for j in range(4)] +
         [f"buffer_load_dwordx4 {v4(LS)}, v{vG16}, {srd(WS_)}, s{sLld} offen"], range(OF, OF+20), EB, **(dict(between=lambda: wo_frags(None)) if only0 else dict(l0=(wo_frags if opt['wopos'] else None), pipe=PIPE, ack=2)))
    tsn('H2_got')
    rm = rows_s("v_max_f32", EB+4, EB+5)
    chain = [f"v_max3_f32 v{EB+4}, v{LS}, v{LS+1}, v{LS+2}", f"v_max_f32 v{EB+4}, v{LS+3}, v{EB+4}"] + rm + \
            [f"v_sub_f32 v{EB+r}, v{LS+r}, v{EB+4}" for r in range(4)] + [f"v_exp_f32 v{EB+r}, v{EB+r}" for r in range(4)]
    bm = [mf(v4(DB+4*t), v4(OF+4*j), a4(aWO+16*t+4*j), 0 if j == 0 else v4(DB+4*t)) for j in range(4) for t in range(2)]
    order = [bm[0], chain[0], chain[1], chain[2], bm[1], bm[2], chain[3], chain[4], chain[5], bm[3], bm[4], chain[6], chain[7], chain[8], bm[5],
             chain[9], chain[10], bm[6], chain[11], chain[12], bm[7], chain[13], chain[14], chain[15]]
    for x in order: a(x)
    ra = rows_s("v_add_f32", EB+4, EB+5)
    a(f"""v_add_f32 v{EB+4}, v{EB}, v{EB+1}
    v_add_f32 v{EB+5}, v{EB+2}, v{EB+3}
    v_add_f32 v{EB+4}, v{EB+4}, v{EB+5}
    {ra[0]}
    s_mov_b32 exec_hi, -1
    v_mul_f32 v{DB}, v{EB}, v{DB}
    {ra[1]}
    v_mul_f32 v{DB+4}, v{EB}, v{DB+4}
    {ra[2]}
    v_fmac_f32 v{DB}, v{EB+1}, v{DB+1}
    {ra[3]}
    v_fmac_f32 v{DB+4}, v{EB+1}, v{DB+5}
    v_fmac_f32 v{DB}, v{EB+2}, v{DB+2}
    {ra[4]}
    v_fmac_f32 v{DB+4}, v{EB+2}, v{DB+6}
    {ra[5]}
    v_fmac_f32 v{DB}, v{EB+3}, v{DB+3}
    v_fmac_f32 v{DB+4}, v{EB+3}, v{DB+7}
    v_rcp_f32 v{EB+4}, v{EB+4}
    v_permlane16_swap_b32 v{DB}, v{DB+4}
    v_add_f32 v{DB}, v{DB}, v{DB+4}
    v_mov_b32 v{DB+4}, v{DB}
    v_permlane32_swap_b32 v{DB}, v{DB+4}
    v_add_f32 v{DB}, v{DB}, v{DB+4}
    s_mov_b32 exec_hi, 0
    v_mul_f32 v{DB}, v{DB}, v{EB+4}
    buffer_store_dword v{DB}, v{vL4}, {srd(WS_)}, s{sWOst} offen sc1
    s_mov_b64 exec, -1""")
if opt["blse"]:
    layer0(lambda lb: (b_joint(True), a('s_branch L_Bdone')))
    poll(lload, range(LS, LS+4), EB+6, ack=64)
    def weights():
        for x in chain: a(x)
        a(f"v_add_f32 v{EB+4}, v{EB}, v{EB+1}\nv_add_f32 v{EB+5}, v{EB+2}, v{EB+3}\nv_add_f32 v{EB+4}, v{EB+4}, v{EB+5}")
        for x in ra: a(x)
        a(f"v_rcp_f32 v{EB+4}, v{EB+4}")
        for r in range(4): a(f"v_mul_f32 v{EB+r}, v{EB+r}, v{EB+4}")
    ns = 4 if opt["blse"] > 1 else 0
    poll(oloads, range(OF, OF+16), EB+6, between=weights, spec=[(lambda m=m: a(m)) for m in bm[:ns]], ack=128)
    tsn('H2_got')
    for x in bm[ns:]: a(x)
    a(f"s_mov_b32 exec_hi, -1\nv_mul_f32 v{DB}, v{EB}, v{DB}\nv_mul_f32 v{DB+4}, v{EB}, v{DB+4}")
    for r in range(1, 4): a(f"v_fmac_f32 v{DB}, v{EB+r}, v{DB+r}\nv_fmac_f32 v{DB+4}, v{EB+r}, v{DB+4+r}")
    a(f"""v_permlane16_swap_b32 v{DB}, v{DB+4}
    v_add_f32 v{DB}, v{DB}, v{DB+4}
    v_mov_b32 v{DB+4}, v{DB}
    v_permlane32_swap_b32 v{DB}, v{DB+4}
    s_mov_b32 exec_hi, 0
    v_add_f32 v{DB}, v{DB}, v{DB+4}
    buffer_store_dword v{DB}, v{vL4}, {srd(WS_)}, s{sWOst} offen sc1
    s_mov_b64 exec, -1""")
    a('L_Bdone:')
else: b_joint(False)
tsn('WO_pub')

def ffn_loads(lb):
    W = T + 36
    n = 6
    if opt["cwarm"] == 2: code_warm(True)
    if opt["onesrow"]:
        a(f"v_and_b32 v{vXLr}, 32, v{vL16}\nv_lshl_add_u32 v{vXLr}, v{vXLr}, 3, v{vHr}")
        soff(X_, CS_OFF, True, slot=4096, i=512, wv=128)
    if opt["lrpos"] == 1: late_resets()
    a(f"""s_cmp_lt_u32 s{sFB}, 28
    s_cbranch_scc0 {lb}""")
    piece(W+1)
    a(f"""v_lshrrev_b32 v{W+2}, 7, v{vL16}
    v_mul_u32_u24 v{W}, 3584, v{W+2}
    v_add_u32 v{W}, v{W}, v{W+1}
    v_lshl_add_u32 v{W+1}, v{W+2}, 10, v{W+1}""")
    soff(sT0, 0, i=64*3584, wv=8*3584, slot=1024, grp=128)
    a(f"s_mov_b32 s{sT1}, s{sT0}")
    dma(WG_, W, sT0, 32*3584, 2, WG_L); dma(WU_, W, sT1, 32*3584, 2, WU_L)
    soff(sT0, 0, slot=8*65536, grp=65536, wv=8192, i=128)
    dma(WD_, W+1, sT0, 32*1024, 2, WD_L)
    if opt["pre"] & 1:
        a(f"v_lshlrev_b32 v{W}, 3, v{vL16}")
        soff(sT0, 0, True, idx=13*128, wv=4*128)
        a(f"s_cmp_eq_u32 s{sWV}, 3\ns_cselect_b32 exec_lo, 1, 15\ns_mov_b32 exec_hi, 0\nbuffer_load_dword v{W+3}, v{W}, {srd(WS_)}, s{sT0} offen sc1\ns_mov_b64 exec, -1")
        n += 1
    a(f"s_waitcnt vmcnt({n})\ns_branch L_acked")
M = T
def reduce32(soffr, slp, first=False):
    if first: layer0(ffn_loads)
    a("s_waitcnt vmcnt(0)")
    if first: a("L_acked:")
    if opt["wbar"] & (1 if first else 2): a("s_barrier")
    if slp: a(f"s_sleep {slp}")
    poll([f"buffer_load_dwordx4 {v4(M+4*u)}, v{vL16}, {srd(WS_)}, s{soffr} offen offset:{1024*u}" for u in range(4)], range(M, M+16), M+16, ack=16)
    if opt["pkadd"]:
        for d, x in ((0, 4), (2, 6), (8, 12), (10, 14), (0, 8), (2, 10)): a(f"v_pk_add_f32 {v2(M+d)}, {v2(M+d)}, {v2(M+x)}")
    else:
        for r in range(4): a(f"v_add_f32 v{M+r}, v{M+r}, v{M+4+r}")
        for r in range(4): a(f"v_add_f32 v{M+8+r}, v{M+8+r}, v{M+12+r}")
        for r in (0, 2, 1, 3): a(f"v_add_f32 v{M+r}, v{M+r}, v{M+8+r}")
    a(f"""v_permlane32_swap_b32 v{M}, v{M+2}
    v_permlane32_swap_b32 v{M+1}, v{M+3}
    v_add_f32 v{M}, v{M}, v{M+2}
    v_add_f32 v{M+1}, v{M+1}, v{M+3}""")
    dpp("v_add_f32", M, M, M, "row_ror:8"); dpp("v_add_f32", M+1, M+1, M+1, "row_ror:8")
    a(f"""v_mov_b32 v{M+2}, v{M}
    v_mov_b32 v{M+3}, v{M+1}
    v_permlane16_swap_b32 v{M}, v{M+2}
    v_permlane16_swap_b32 v{M+1}, v{M+3}
    v_add_f32 v{vX0}, v{vX0}, v{M}
    v_add_f32 v{vX1}, v{vX1}, v{M+1}
    v_add_f32 v{vX0}, v{vX0}, v{M+2}
    v_add_f32 v{vX1}, v{vX1}, v{M+3}
    v_cvt_pk_bf16_f32 v{M}, v{vX0}, v{vX1}""")
def stats_s():
    return [f"v_lshlrev_b32 v{vX0}, 16, v{M}", f"v_and_b32 v{vX1}, 0xffff0000, v{M}", f"v_add_f32 v{M+1}, v{vX0}, v{vX1}",
            f"v_mul_f32 v{M+2}, v{vX0}, v{vX0}", f"v_fmac_f32 v{M+2}, v{vX1}, v{vX1}", f"v_permlane32_swap_b32 v{M+1}, v{M+2}",
            f"v_add_f32 v{M+1}, v{M+1}, v{M+2}", dpp_s("v_add_f32", M+1, M+1, M+1, "quad_perm:[1,0,3,2]"),
            dpp_s("v_add_f32", M+1, M+1, M+1, "quad_perm:[2,3,0,1]"), dpp_s("v_add_f32", M+1, M+1, M+1, "row_ror:4")]
reduce32(sM1, opt["slp1"], True)
tsn('M1_done')
XC, DG, DU = T+4, T+12, T+16
st = stats_s()
a(f"ds_write_b32 v{vXLw}, v{M}")
for x in st[:5]: a(x)
a(f"s_waitcnt lgkmcnt(0)\ns_barrier\ns_cmp_lt_u32 s{sFB}, 28\ns_cbranch_scc0 L_stageD")
vXr = vXLr if opt["onesrow"] else vHr
a(f"ds_read_b128 {v4(XC)}, v{vXr} offset:256\nds_read_b128 {v4(XC+4)}, v{vXr} offset:{256+64}")
def ffn_frags(lb):
    trread(aWG, vTR, WG_L, 2); trread(aWU, vTR, WU_L, 2)
layer0(ffn_frags)
for x in st[5:8]: a(x)
a("s_waitcnt lgkmcnt(0)")
cm = [mf(v4(DG), v4(XC), a4(aWG), 0), mf(v4(DU), v4(XC), a4(aWU), 0), mf(v4(DG), v4(XC+4), a4(aWG+4), v4(DG)), mf(v4(DU), v4(XC+4), a4(aWU+4), v4(DU))]
mix(cm, st[8:], 1)
a("s_mov_b32 exec_lo, 1\ns_mov_b32 exec_hi, 1")
pub(f"buffer_store_dword v{M+1}, v{vXs}, {srd(WS_)}, s{sST1st} offen")
if opt["onesrow"]: a(f"s_mov_b64 exec, 0xffff\nv_mov_b32 v{DU+3}, v{DG+2}\nv_mov_b32 v{DG+2}, v{DU}\nv_mov_b32 v{DG+3}, v{DU+1}")
else: a(f"s_mov_b64 exec, 0xffff\nv_mov_b32 v{DG+2}, v{DU}\nv_mov_b32 v{DG+3}, v{DU+1}")
pub(f"buffer_store_dwordx4 {v4(DG)}, v{vC16}, {srd(WS_)}, s{sGUst} offen")
exec_all()
def cs_pub(lb):
    C = T + 24
    if opt["onesrow"]:
        a(f"v_lshrrev_b32 v{C+8}, 1, v{vC16}\ns_mov_b64 exec, 0xffff")
        pub(f"buffer_store_dwordx2 {v2(DU+2)}, v{C+8}, {srd(WS_)}, s{X_} offen")
        exec_all()
        trread(aWD, vTR, WD_L, 2)
        return
    for j in range(2): mfma(v4(C), a4(aONE), a4(aWG+4*j), 0 if j == 0 else v4(C))
    for j in range(2): mfma(v4(C+4), a4(aONE), a4(aWU+4*j), 0 if j == 0 else v4(C+4))
    soff(sT0, CS_OFF, True, slot=4096, i=512, wv=128)
    a(f"v_lshrrev_b32 v{C+8}, 1, v{vC16}\nv_mov_b32 v{C+1}, v{C+4}\ns_mov_b64 exec, 0xffff")
    pub(f"buffer_store_dwordx2 {v2(C)}, v{C+8}, {srd(WS_)}, s{sT0} offen")
    exec_all()
    trread(aWD, vTR, WD_L, 2)
layer0(cs_pub)
tsn('GU_pub')
a("L_stageD:")
G, SD, DD = T, T+8, T+12
def colsums(lb):
    C = T + 16
    a(f"v_lshrrev_b32 v{C+4}, 1, v{vGUl}\ns_sub_u32 s{sT0}, s{sGUld}, s{sGB}\ns_sub_u32 s{sT0}, s{sT0}, {GU_OFF:#x}\ns_lshr_b32 s{sT0}, s{sT0}, 1\ns_add_u32 s{sT0}, s{sT0}, s{sGB}")
    poll([f"buffer_load_dwordx2 {v2(C+2*u)}, v{C+4}, {srd(WS_)}, s{sT0} offen offset:{512*u}" for u in range(2)], range(C, C+4), C+5)
    a(f"""v_add_f32 v{C}, v{C}, v{C+2}
    v_add_f32 v{C+1}, v{C+1}, v{C+3}
    v_permlane16_swap_b32 v{C+1 if opt["onesrow"] else C}, v{C if opt["onesrow"] else C+1}
    v_add_f32 v{vCS}, v{C}, v{C+1}
    v_mov_b32 v{C}, v{vCS}
    v_permlane32_swap_b32 v{vCS}, v{C}
    v_add_f32 v{vCS}, v{vCS}, v{C}""")
poll([f"buffer_load_dwordx4 {v4(G+4*u)}, v{vGUl}, {srd(WS_)}, s{sGUld} offen offset:{1024*u}" for u in range(2)] +
     [f"buffer_load_dwordx2 {v2(SD)}, v{vSTd}, {srd(WS_)}, s{sST1ld} offen"], range(G, G+10), DD, between=lambda: layer0(colsums), pipe=PIPE, ack=4)
tsn('H4_got')
S2, G2, HF = T+24, T+26, T+32
sd = [dpp_s("v_add_f32", S2, SD, SD, "row_ror:1"), dpp_s("v_add_f32", S2+1, SD+1, SD+1, "row_ror:1")]
for n in (2, 4, 8): sd += [dpp_s("v_add_f32", S2, S2, S2, f"row_ror:{n}"), dpp_s("v_add_f32", S2+1, S2+1, S2+1, f"row_ror:{n}")]
sd += fin_s(S2, S2+1) + [f"v_mul_f32 v{S2}, v{S2}, v{vCS}"]
gd = [f"v_add_f32 v{G2+r}, v{G+r}, v{G+4+r}" for r in range(4)] + \
     [f"v_permlane32_swap_b32 v{G2}, v{G2+1}", f"v_permlane32_swap_b32 v{G2+2}, v{G2+3}", f"v_add_f32 v{G2}, v{G2}, v{G2+1}",
      f"v_add_f32 v{G2+2}, v{G2+2}, v{G2+3}", f"v_permlane16_swap_b32 v{G2}, v{G2+2}", f"v_add_f32 v{G2}, v{G2}, v{G2+2}"]
for x in [sd[0], sd[1], gd[0], sd[2], sd[3], gd[1], sd[4], sd[5], gd[2], sd[6], sd[7], gd[3], sd[8], sd[9], gd[4], sd[10], gd[5], sd[11], gd[6],
          sd[12], gd[7], sd[13], gd[8], sd[14], gd[9], sd[15]]: a(x)
a(f"""v_fmac_f32 v{S2}, v{S2+1}, v{G2}
v_mov_b32 v{G2+1}, v{S2}
v_permlane16_swap_b32 v{S2}, v{G2+1}
v_max_f32 v{S2}, 0, v{S2}
v_mul_f32 v{G2}, v{S2}, v{G2+1}
v_cvt_pk_bf16_f32 v{G2}, v{G2}, v{G2}
ds_write_b16 v{vHw}, v{G2}
s_waitcnt lgkmcnt(0)
s_barrier
ds_read_b128 {v4(HF)}, v{vHr}
ds_read_b128 {v4(HF+4)}, v{vHr} offset:64
s_waitcnt lgkmcnt(1)""")
mfma(v4(DD), a4(aWD), v4(HF), 0)
a("s_waitcnt lgkmcnt(0)")
mfma(v4(DD), a4(aWD+4), v4(HF+4), v4(DD))
a(f"s_bfe_u32 s{sT0}, s2, 0x20006\ns_and_b32 s{sT1}, s2, 7")
if opt["diag"] & 256:
    a(f"v_and_b32 v{T+30}, 32, v{vL16}\nv_lshl_add_u32 v{T+30}, v{T+30}, 1, v{vDNs}\ns_bitcmp1_b32 s{sWV}, 0\ns_cbranch_scc1 L_nost")
    exec_set(0x000f000f, 0x000f000f)
    a(f"buffer_store_dwordx4 {v4(DD)}, v{T+30}, {srd(WS_)}, s{sDNst} offen sc1")
    exec_all()
    a("L_nost:")
else:
    exec_set(0x00030003, 0x00030003)
    a(f"buffer_store_dwordx4 {v4(DD)}, v{vDNs}, {srd(WS_)}, s{sDNst} offen sc1")
    exec_all()
tsn('DN_pub')
lgo, lnm = lab("go"), lab("nomid")
if opt["diag"] & 128:
    a(f"s_cmp_eq_u32 s{sLAYER}, 0\ns_cbranch_scc0 L_normalM")
    a(f"v_lshlrev_b32 v{T+40}, 3, v{vL16}")
    soff(sXE, LSTR + GU_OFF, True, idx=19*128, wv=5*128)
    a(f"s_cmp_eq_u32 s{sWV}, 3\ns_cselect_b32 exec_lo, 15, 31\ns_mov_b32 exec_hi, 0\nbuffer_load_dword a{aTS+1}, v{T+40}, {srd(WS_)}, s{sXE} offen sc1\ns_mov_b64 exec, -1")
    reduce32(sM2, 0)
    a(f"ds_write_b32 v{vXLw}, v{M}")
    for x in stats_s()[:5]: a(x)
    a(f"s_waitcnt lgkmcnt(0)\ns_barrier\nds_read_b128 {v4(T+4)}, v{vHr} offset:256\nds_read_b128 {v4(T+8)}, v{vHr} offset:{256+64}")
    for x in stats_s()[5:8]: a(x)
    a("s_waitcnt lgkmcnt(0)")
    for j in range(4): mfma(v4(T+24+4*(j&1)), a4(aWQ+4*j), v4(T+4+4*(j>>1)), 0 if j < 2 else v4(T+24+4*(j&1)))
    for x in stats_s()[8:]: a(x)
    a(f"s_add_u32 s{WS_}, s{WS_}, {LSTR:#x}\ns_addc_u32 s{WS_+1}, s{WS_+1}, 0\nv_and_b32 v{T+24}, 0x3f803f80, v{T+24}\nv_and_b32 v{T+25}, 0x3f803f80, v{T+28}")
    exec_set(0x00030003, 0x00030003)
    a(f"buffer_store_dwordx2 {v2(T+24)}, v{vQs}, {srd(WS_)}, s{sQst} offen\nbuffer_store_dwordx2 {v2(T+24)}, v{vQs}, {srd(WS_)}, s{sQst} offen")
    exec_all()
    a(f"s_mov_b32 s{sLAYER}, 1")
    ts_put([(TSB+2*k, 8+k) for k in range(12)], T+40)
    a("s_branch L_layer\nL_normalM:")
a(f"""s_mul_i32 s{sT1}, s{sT1}, s{sLAYER}
s_cmp_eq_u32 s{sT1}, 0
s_cbranch_scc0 L_fin
s_cmp_eq_u32 s{sT0}, s{sWV}
s_cbranch_scc0 {lnm}""")
vRX = T + 40
if opt["estrep"]:
    a(f"""v_bfe_u32 v{vRX}, v{vL4}, 5, 2
    v_lshl_add_u32 v{vRX}, v{vRX}, 11, v{vXs}
    v_and_b32 v{vRX+1}, 0x70, v{vL16}
    v_lshlrev_b32 v{vRX+1}, 4, v{vRX+1}
    v_and_b32 v{vRX+2}, 4, v{vXs}
    v_add_u32 v{vRX+1}, v{vRX+1}, v{vRX+2}""")
reduce32(sM2, opt["slp2"])
if opt["estrep"]:
    a(f"s_cmp_eq_u32 s{sLAYER}, 0\ns_cbranch_scc0 L_out")
    pub(f"buffer_store_dword v{M}, v{vRX}, {srd(WS_)}, s{sXst} offen")
    for x in stats_s()[:]: a(x)
    exec_set(0xff, 0xff)
    pub(f"buffer_store_dword v{M+1}, v{vRX+1}, {srd(WS_)}, s{sST2st} offen")
    exec_all()
else:
    exec_set(0xff, 0xff)
    a(f"s_cmp_eq_u32 s{sLAYER}, 0\ns_cbranch_scc0 L_out")
    pub(f"buffer_store_dword v{M}, v{vXs}, {srd(WS_)}, s{sXst} offen")
    exec_all()
    for x in stats_s()[:]: a(x)
    a("s_mov_b32 exec_lo, 1\ns_mov_b32 exec_hi, 1")
    pub(f"buffer_store_dword v{M+1}, v{vXs}, {srd(WS_)}, s{sST2st} offen")
    exec_all()
if opt["mack2"]: a("s_waitcnt vmcnt(0)")
if opt["mack2"] > 1: a(f"s_sleep {opt['mack2'] - 1}")
a("L_midback:")
tsn('M2_done')
a("s_barrier")
def nomid():
    if opt["wbar"] & 2: a("s_waitcnt vmcnt(0)\ns_barrier")
    a(f"s_cmp_eq_u32 s{sLAYER}, 0\ns_cbranch_scc0 L_fin")
    if opt["outpre"]:
        a(f"s_sub_u32 s{sT1}, s{sXst}, s{sGB}\ns_sub_u32 s{sT1}, s{sT1}, {X2_OFF:#x}\nbuffer_load_dword a{aTS+2}, off, {srd(OUT_)}, s{sT1}")
    if opt["pre"] & 2:
        a(f"s_add_u32 s{sT0}, s{sT0}, 1\ns_and_b32 s{sT0}, s{sT0}, 3\ns_cmp_eq_u32 s{sT0}, s{sWV}\ns_cbranch_scc0 L_midback\nv_lshlrev_b32 v{T+40}, 3, v{vL16}")
        if opt["pre"] & 4:
            soff(sT0, LSTR + Q_OFF, True, idx=2*128)
            a(f"s_mov_b64 exec, 3\nbuffer_load_dword v{T+41}, v{T+40}, {srd(WS_)}, s{sT0} offen sc1")
        else:
            soff(sT0, LSTR + GU_OFF, True, idx=19*128)
            a(f"s_mov_b64 exec, 0x7ffff\nbuffer_load_dword v{T+41}, v{T+40}, {srd(WS_)}, s{sT0} offen sc1")
        if opt["estrep"]:
            soff(sT0, X2_OFF, True, idx=256)
            a(f"s_mov_b64 exec, 3\nbuffer_load_dword v{T+42}, v{T+40}, {srd(WS_)}, s{sT0} offen sc1")
        a("s_mov_b64 exec, -1\ns_waitcnt vmcnt(0)")
    a("s_branch L_midback")
deferred.append((lnm, nomid))
XE, SE, XR, DE = T, T+16, T+20, T+24
poll([f"buffer_load_dwordx4 {v4(XE+4*j)}, v{vXl}, {srd(WS_)}, s{sXE} offen offset:{64*j}" for j in range(4)] +
     [f"buffer_load_dwordx2 {v2(SE)}, v{vSTl}, {srd(WS_)}, s{sST2ld} offen", f"buffer_load_dwordx2 {v2(SE+2)}, v{vSTl}, {srd(WS_)}, s{sST2ld} offen offset:128",
      f"buffer_load_dword v{XR}, v{vXs}, {srd(WS_)}, s{sXst} offen"], range(XE, XE+21), DE, pipe=PIPE, ack=8)
tsn('H5b_got')
se = [f"v_add_f32 v{SE+6}, v{SE}, v{SE+2}", f"v_add_f32 v{SE+7}, v{SE+1}, v{SE+3}"]
SE += 6
for n in (2, 4, 8): se += [dpp_s("v_add_f32", SE, SE, SE, f"row_ror:{n}"), dpp_s("v_add_f32", SE+1, SE+1, SE+1, f"row_ror:{n}")]
em = [mf(v4(DE), a4(aWQ+4*j), v4(XE+4*j), 0 if j == 0 else v4(DE)) for j in range(4)]
for x in [se[0], se[1], em[0], se[2], se[3], em[1], se[4], se[5], em[2], se[6], se[7], em[3]]: a(x)
fs = fin_s(SE, SE+1, QSCALE)
for x in fs[:6] + [f"s_add_u32 s{WS_}, s{WS_}, {LSTR:#x}"] + fs[6:] + [f"s_addc_u32 s{WS_+1}, s{WS_+1}, 0"]: a(x)
for r in range(4): a(f"v_mul_f32 v{DE+4+r}, v{SE}, v{vCSQ+r}")
exec_set(0x00030003, 0x00030003)
for r in range(4): a(f"v_fmac_f32 v{DE+4+r}, v{SE+1}, v{DE+r}")
a(f"v_cvt_pk_bf16_f32 v{DE}, v{DE+4}, v{DE+5}\nv_cvt_pk_bf16_f32 v{DE+1}, v{DE+6}, v{DE+7}")
pub(f"buffer_store_dwordx2 {v2(DE)}, v{vQs}, {srd(WS_)}, s{sQst} offen")
exec_all()
if opt["pre"] & 4:
    a(f"v_lshlrev_b32 v{vM+3}, 3, v{vL16}")
    soff(sXE, GU_OFF, True, idx=17*128, wv=5*128)
a(f"s_mov_b32 s{sLAYER}, 1\nv_lshlrev_b32 v{vX0}, 16, v{XR}\nv_and_b32 v{vX1}, 0xffff0000, v{XR}")
ts_put([(TSB+2*k, 8+k) for k in range(12)], DE+8)
a("s_branch L_layer")
n = 0
while n < len(deferred):
    l, fn = deferred[n]; a(f"{l}:"); fn(); n += 1
a("L_out:")
if opt["estrep"]: exec_set(0xff, 0xff)
a(f"""s_sub_u32 s{sT0}, s{sXst}, s{sGB}
s_sub_u32 s{sT0}, s{sT0}, {X2_OFF:#x}
buffer_store_dword v{M}, v{vXs}, {srd(OUT_)}, s{sT0} offen
s_mov_b64 exec, -1""")
if opt["outw"]: a("s_waitcnt vmcnt(0)")
a("L_fin:")
until(2)
if TS:
    ts(11)
    a(f"s_memrealtime s[{sE}:{sE+1}]")
    ts_put([(TSB+2*k, 24+k) for k in range(12)] + [(sE, 43), (sFAST, 40), (sTO, 41)], T+40)
    soff(sT0, TS_OFF - LSTR, wg=1024, wv=256)
    a(f"buffer_store_dword v{T+40}, v{vL4}, {srd(WS_)}, s{sT0} offen")
a("L_end:\ns_endpgm")

import asmlib
asmlib.BRANCH_MARGIN = 0 if opt['nobr'] else 1
body = a.finalize()
kn = opt["name"]
ref = open("cdna_kernels/" + NAME + ".s.ref").read().split("\n")
head = [l for l in ref if l.startswith(";") and "@launch" not in l and "Override launch" not in l and "grid=ceil" not in l][:13]
src = "\n".join(head) + f"""
{"; tsset " + opt["tsset"] + chr(10) + "; opts " + sys.argv[0] + " " + " ".join(x for x in sys.argv[2:] if not x.startswith("ts") and not x.startswith("tobits") and not x.startswith("outw")) + chr(10) if TS else ""}; One persistent launch, one workgroup per CU: K/V stay in registers for both layers, weight tiles in AGPRs.
; @launch grid=(256,1,1) block=(256,1,1) lds={LDS_BYTES + opt['ldspad']}
.amdgcn_target "amdgcn-amd-amdhsa--gfx950"
.text
.globl {kn}
.p2align 8
.type {kn},@function
{kn}:
{body}
.section .rodata,"a"
.p2align 6
.amdhsa_kernel {kn}
  .amdhsa_next_free_vgpr 512
  .amdhsa_next_free_sgpr 102
  .amdhsa_accum_offset 256
  .amdhsa_group_segment_fixed_size 0
  .amdhsa_kernarg_size 96
  .amdhsa_user_sgpr_count 2
  .amdhsa_user_sgpr_kernarg_segment_ptr 1
  .amdhsa_system_sgpr_workgroup_id_x 1
.end_amdhsa_kernel
"""
open(out_path, "w").write(src)
print("nops inserted:", a.nops, "lines:", len(body.split("\n")), file=sys.stderr)
```

```python
import sys, math, struct
from asmlib import Asm

NAME = "interleave_layers__gqa_block_cached__glu_gated_reglu__decode"
opt = dict(ts=0, fast=1, tobits=20, until=0, upos=0, outw=0, cqp=1, rmap=1, tpos=0, cw=0, tin=15,
           tsset="qk_start,softmax_done,pv_done,O_pub,H2_got,WO_pub,M1_done,GU_pub,H4_got,DN_pub,M2_done,Q_pub")
out_path = sys.argv[1]
for x in sys.argv[2:]:
    k, v = x.split("=")
    assert k in opt, k
    opt[k] = v if k == "tsset" else int(v)
TS = opt["ts"]
def f2u(x): return struct.unpack("<I", struct.pack("<f", x))[0]

BLK = 0x20000
GR = 2*BLK
O_OFF, CS_OFF, Q_OFF, ST1_OFF, X_OFF, ST2_OFF, LSE_OFF = 0x0, 0x8000, 0xA000, 0xB000, 0xB400, 0xBC00, 0xBE00
GU_OFF, CQ_OFF = BLK, BLK + 0xB000
WO_OFF, DN_OFF = 0xC000, 8*BLK + 0xC000
LSTR = 0x10000
TS_OFF = 0x600000
WS_SIZE = 0x800000 if TS else 16*BLK
WQ_L, WO_L, WG_L, WU_L, WD_L = 0, 16384, 32768, 40960, 49152
OC_L = 57344; OC_W = 2048
ML_L = OC_L + 4*OC_W
H_L = ML_L + 128
XL_L = H_L + 256
ONE_L = XL_L + 256
X2_L = ONE_L + 256
LDS_BYTES = X2_L + 512
sWV, sGB, sFB, sLAYER, sFAST, sTO = 3, 4, 5, 6, 7, 76
K_, V_, WS_, WQ_, WO_, WG_, WU_, WD_, X_, OUT_, DBG_ = 8, 12, 16, 20, 24, 28, 32, 36, 40, 44, 48
def srd(n): return f"s[{n}:{n+3}]"
(sKV, sQld, sQst, sOst, sLst, sOld, sLld, sWOst, sM1, sM2, sXj, sST1st, sST2ld, sST1ld, sGUst, sGUld, sDNst, sCS, sT2) = range(77, 96)
sT0, sT1, sSEL0, sSEL1 = 96, 97, 98, 99
sE = 100
TSB = 52
vL16, vL4, vOs, vOl, vP16, vC16, vG16, vQs, vDNs, vGUl, vXs = range(0, 11)
vOCw, vOCr, vMLw, vMLr, vHw, vHr, vTR, vXLr, vSTd, vXLw = range(11, 21)
vX0, vX1, vCS = 21, 22, 23
vCSQ = 24
T = 28
QF, DT, vM, XT, YT, ZA = 28, 44, 76, 80, 84, 88
VR = 96
R4 = VR + 128
ZC = R4 + 8
def v4(n): return f"v[{n}:{n+3}]"
def v2(n): return f"v[{n}:{n+1}]"
def a4(n): return f"a[{n}:{n+3}]"
aK, aWQ, aWO, aWG, aWU, aWD, aONE, aDUM, aTS = 0, 128, 144, 176, 184, 192, 200, 204, 205

a = Asm()
def cm(t): a("; " + t)
deferred = []
early = []
uid = [0]
def lab(p):
    uid[0] += 1
    return f"L_{p}_{uid[0]}"
def exec_set(lo, hi):
    if hi == 0: a(f"s_mov_b64 exec, {lo:#x}")
    else: a(f"s_mov_b32 exec_lo, {lo:#x}\ns_mov_b32 exec_hi, {hi:#x}")
def exec_all(): a("s_mov_b64 exec, -1")
def em(l):
    for x in l: a(x)

F = dict(grp=(2,0,3), idx=(2,3,5), i=(2,3,3), slot=(2,6,2), s=(2,3,4), ba=(2,7,1), wg=(2,0,8),
         i0=(2,3,1), ih=(2,4,2), sl0=(2,6,1), wv=(sWV,0,2), w0=(sWV,0,1), w1=(sWV,1,1))
def soff(dst, const, gb=False, **terms):
    first = True
    for name, mul in terms.items():
        src, lo, w = F[name]
        d = dst if first else sE
        if name in ("wg", "wv"): s = f"s{src}"
        else:
            a(f"s_bfe_u32 s{d}, s{src}, {(w << 16) | lo:#x}"); s = f"s{d}"
        if mul == 1 and s == f"s{d}": pass
        elif mul & (mul-1) == 0: a(f"s_lshl_b32 s{d}, {s}, {mul.bit_length()-1}")
        else: a(f"s_mul_i32 s{d}, {s}, {mul}")
        if not first: a(f"s_add_u32 s{dst}, s{dst}, s{sE}")
        first = False
    if first:
        a(f"s_add_u32 s{dst}, s{sGB}, {const:#x}" if gb else f"s_mov_b32 s{dst}, {const:#x}"); return
    if gb: a(f"s_add_u32 s{dst}, s{dst}, s{sGB}")
    if const: a(f"s_add_u32 s{dst}, s{dst}, {const:#x}")
vLane, vTmp = 30, 31
def voff(dst, terms, sadd=None, const=0):
    first = True
    for lo, w, mul in terms:
        if first:
            if lo == 0 and w == 6: src = vLane
            else: a(f"v_bfe_u32 v{dst}, v{vLane}, {lo}, {w}"); src = dst
            if mul != 1 or src != dst: a(f"v_lshlrev_b32 v{dst}, {mul.bit_length()-1}, v{src}")
        else:
            a(f"v_bfe_u32 v{vTmp}, v{vLane}, {lo}, {w}\nv_lshl_add_u32 v{dst}, v{vTmp}, {mul.bit_length()-1}, v{dst}")
        assert mul & (mul-1) == 0
        first = False
    if const: a(f"v_add_u32 v{dst}, {const}, v{dst}")
    if sadd is not None: a(f"v_add_u32 v{dst}, s{sadd}, v{dst}")

def pub(*stores):
    wt = [s + (" sc1" if s.startswith("buffer") else "") for s in stores]
    if not opt["fast"]:
        em(wt); return
    ls, lb = lab("wt"), lab("back")
    a(f"s_cmp_eq_u32 s{sFAST}, 1\ns_cbranch_scc0 {ls}")
    em(stores)
    a(f"{lb}:")
    deferred.append((ls, lambda: a("\n".join(wt) + f"\ns_branch {lb}")))

def only(layer, fn, inline=True):
    ls, lb = lab("l%d" % layer), lab("join")
    hit, miss = ("scc1", "scc0") if layer == 0 else ("scc0", "scc1")
    if inline:
        a(f"s_cmp_eq_u32 s{sLAYER}, 0\ns_cbranch_{miss} {lb}")
        fn(lb)
        a(f"{lb}:")
        return
    a(f"s_cmp_eq_u32 s{sLAYER}, 0\ns_cbranch_{hit} {ls}\n{lb}:")
    (early if opt["tpos"] else deferred).append((ls, lambda: (fn(lb), a(f"s_branch {lb}"))))

def check_ops(regs, tmp):
    r = list(regs)
    def chain(x, t):
        o = [f"v_max3_u32 v{t}, v{x[0]}, v{x[1]}, v{x[2]}"]; x = x[3:]
        while len(x) >= 2: o.append(f"v_max3_u32 v{t}, v{x[0]}, v{x[1]}, v{t}"); x = x[2:]
        if x: o.append(f"v_max_u32 v{t}, v{x[0]}, v{t}")
        return o
    if len(r) == 1: return [f"v_mov_b32 v{tmp}, v{r[0]}"]
    if len(r) == 2: return [f"v_max_u32 v{tmp}, v{r[0]}, v{r[1]}"]
    if len(r) < 8: return chain(r, tmp)
    A, B = r[:len(r)//2], r[len(r)//2:]
    if len(A) % 2 == 0: A, B = A + B[:1], B[1:]
    last = B.pop() if len(B) % 2 == 0 else None
    ca, cb, ops = chain(A, tmp), chain(B, tmp+1), []
    while ca or cb:
        if ca: ops.append(ca.pop(0))
        if cb: ops.append(cb.pop(0))
    ops.append(f"v_max3_u32 v{tmp}, v{tmp}, v{tmp+1}, v{last}" if last is not None else f"v_max_u32 v{tmp}, v{tmp}, v{tmp+1}")
    return ops
def poll(loads, regs, tmp, between=None, spec=(), ack=False, l0=None, wait1=0, issued=False):
    lc, lr, ld, lx, lf = lab("chk"), lab("retry"), lab("got"), lab("giveup"), lab("first")
    loads = [l + " sc1" for l in loads]
    if l0: only(0, lambda lb: (l0[0](), a("s_waitcnt vmcnt(0)"), em(loads), l0[1](), a(f"s_branch {lf}")))
    if ack: a("s_waitcnt vmcnt(0)")
    if not issued: em(loads)
    if between: between()
    a(f"s_waitcnt vmcnt({wait1})\ns_branch {lc}" if wait1 else f"s_branch {lc if issued else lf}")
    a(f"{lr}:\ns_sub_u32 s{sTO}, s{sTO}, 1\ns_cbranch_scc1 {lx}\ns_mov_b64 exec, vcc")
    em(loads)
    a(f"s_mov_b64 exec, -1\n{lf}:\ns_waitcnt vmcnt(0)\n{lc}:")
    deferred.append((lx, lambda: a(f"s_mov_b32 s{sTO}, 0\ns_branch {ld}")))
    o, sp = check_ops(regs, tmp), list(spec)
    while o or sp:
        if sp: a(sp.pop(0))
        for _ in range(2 if sp else len(o)):
            if o: a(o.pop(0))
    a(f"v_cmp_eq_u32 vcc, -1, v{tmp}\ns_cbranch_vccnz {lr}\n{ld}:")

TSSET = opt["tsset"].split(",")
assert len(TSSET) <= 12
def ts(k):
    if TS: a(f"s_memtime s[{TSB+2*k}:{TSB+2*k+1}]")
def tsn(name):
    if name in TSSET: ts(TSSET.index(name))
def ts_put(pairs, tmp):
    if not TS: return
    a(f"s_waitcnt lgkmcnt(0)\nv_accvgpr_read_b32 v{tmp}, a{aTS}")
    for s, l in pairs: a(f"v_writelane_b32 v{tmp}, s{s}, {l}")
    a(f"v_accvgpr_write_b32 a{aTS}, v{tmp}")
def until(pos):
    if opt["until"] and opt["upos"] == pos:
        l = lab("until")
        a(f"v_accvgpr_read_b32 v{R4+30}, a{aTS}\nv_readfirstlane_b32 s54, v{R4+30}\n{l}:\ns_memrealtime s[52:53]\ns_waitcnt lgkmcnt(0)\ns_sub_u32 s52, s52, s54\ns_cmp_lt_u32 s52, {opt['until']}\ns_cbranch_scc1 {l}")

def mk_srd(d, lo, size):
    a(f"s_mov_b32 s{d}, s{lo}\ns_and_b32 s{d+1}, s{lo+1}, 0xffff\ns_mov_b32 s{d+2}, {size:#x}\ns_mov_b32 s{d+3}, 0x20000")
def mf(d, A, B, c): return f"v_mfma_f32_16x16x32_bf16 {d}, {A}, {B}, {c}"
def dp(op, d, s0, s1, ctrl, bank=0xf):
    if s1 is None: return f"{op}_dpp v{d}, v{s0} {ctrl} row_mask:0xf bank_mask:{bank:#x}"
    return f"{op}_dpp v{d}, v{s0}, v{s1} {ctrl} row_mask:0xf bank_mask:{bank:#x}"
def rows(op, r, t):
    return [f"v_mov_b32 v{t}, v{r}", f"v_permlane16_swap_b32 v{r}, v{t}", f"{op} v{r}, v{r}, v{t}",
            f"v_mov_b32 v{t}, v{r}", f"v_permlane32_swap_b32 v{r}, v{t}", f"{op} v{r}, v{r}, v{t}"]
def mix(main, fill, per=2, start=0):
    fill = list(fill)
    for n, m in enumerate(main):
        a(m)
        if n >= start:
            for _ in range(per):
                if fill: a(fill.pop(0))
    em(fill)
def dma(srdn, voff_, sbase, step, n, ldsbase):
    for i in range(n):
        a(f"s_lshl_b32 s{sE}, s{sWV}, 10\ns_add_u32 m0, s{sE}, {ldsbase + i*4096}")
        if i: a(f"s_add_u32 s{sbase}, s{sbase}, {step}")
        a(f"buffer_load_dwordx4 v{voff_}, {srd(srdn)}, s{sbase} offen nt lds")
def piece(dst, t):
    a(f"""v_lshrrev_b32 v{t}, 3, v{vL16}
    v_and_b32 v{t}, 32, v{t}
    v_xor_b32 v{dst}, v{vP16}, v{t}
    s_and_b32 s{sE}, s{sWV}, 1
    s_lshl_b32 s{sE}, s{sE}, 6
    v_xor_b32 v{dst}, s{sE}, v{dst}
    v_lshrrev_b32 v{t}, 7, v{vL16}""")
def trread(areg, vaddr, ldsoff, ksteps):
    for j in range(ksteps):
        for u in range(2):
            a(f"ds_read_b64_tr_b16 a[{areg+4*j+2*u}:{areg+4*j+2*u+1}], v{vaddr} offset:{ldsoff + (32*j+4*u)*128}")
def fin(S, Q, scale=1.0):
    r = [f"v_mul_f32 v{S}, {f2u(-1/512):#x}, v{S}", f"v_mul_f32 v{Q}, {f2u(1/512):#x}, v{Q}",
         f"v_fma_f32 v{Q}, -v{S}, v{S}, v{Q}", f"v_max_f32 v{Q}, 0, v{Q}", f"v_add_f32 v{Q}, {f2u(1e-5):#x}, v{Q}",
         f"v_rsq_f32 v{Q}, v{Q}"]
    if scale != 1.0: r.append(f"v_mul_f32 v{Q}, {f2u(scale):#x}, v{Q}")
    return r
QSCALE = math.log2(math.e) / math.sqrt(128.0)

cm("---- set-up: first loads ----")
if TS or opt["until"]:
    a(f"s_memtime s[52:53]\ns_memrealtime s[54:55]\ns_waitcnt lgkmcnt(0)\nv_mov_b32 v40, 0")
    if TS: a("v_writelane_b32 v40, s52, 0\nv_writelane_b32 v40, s54, 42")
    else: a("v_mov_b32 v40, s54")
    a(f"v_accvgpr_write_b32 a{aTS}, v40")
a(f"""s_cmp_ge_u32 s2, 256
s_cbranch_scc1 L_end
s_load_dwordx16 s[52:67], s[0:1], 0
s_load_dwordx8 s[68:75], s[0:1], 64
v_lshrrev_b32 v{vTmp}, 6, v0
v_and_b32 v{vLane}, 63, v0
v_readfirstlane_b32 s{sWV}, v{vTmp}
s_mov_b32 s{sLAYER}, 0
s_mov_b32 s{sTO}, {1 << opt['tobits']:#x}""")
vK, vW, vSX, vXl = 32, 33, 34, 35
XF, XS, RST = 44, 80, 88
voff(vL16, [(0,6,16)])
a(f"v_and_b32 v{vP16}, 0x70, v{vL16}")
piece(vW, vSX)
a(f"v_lshl_add_u32 v{vW}, v{vSX}, 13, v{vW}")
soff(sT1, 0, slot=128*8192, wv=8*8192, grp=1024, i=128)
voff(vXl, [(0,1,1024), (4,2,16)])
voff(vSX, [(0,1,1024), (1,3,128), (4,2,32)])
voff(vXs, [(0,3,8), (5,1,4)])
soff(sT2, 0, slot=256)
soff(sXj, 0, w1=1024, i=128, w0=64)
voff(vK, [(0,2,1024), (2,1,256), (3,1,64), (4,2,16)])
soff(sKV, 0, ba=8<<21, grp=1<<21, s=1<<17, wv=1<<13)
a("s_waitcnt lgkmcnt(0)")
mk_srd(WQ_, 58, 512*8192)
dma(WQ_, vW, sT1, 32*8192, 4, WQ_L)
mk_srd(X_, 52, 2048)
for j in range(4): a(f"buffer_load_dwordx4 {v4(XF+4*j)}, v{vXl}, {srd(X_)}, s{sT2} offen offset:{64*j}")
a(f"buffer_load_dwordx4 {v4(XS)}, v{vSX}, {srd(X_)}, 0 offen\nbuffer_load_dwordx4 {v4(XS+4)}, v{vSX}, {srd(X_)}, 0 offen offset:16")
a(f"buffer_load_dword v{vX1}, v{vXs}, {srd(X_)}, s{sXj} offen")
cm("sentinels of the first layer's hand-off slots: 1 KiB per wave")
for r in range(4): a(f"v_mov_b32 v{RST+r}, -1")
def rst_off(dst, base):
    m = opt["rmap"]
    if m == 0: soff(dst, base, grp=2*BLK, w0=BLK, idx=2048, w1=1024)
    elif m == 1: soff(dst, base, s=BLK, grp=8192, ba=4096, wv=1024)
    elif m == 2: soff(dst, base, s=BLK, wv=16384, ba=8192, grp=1024)
    elif m == 3: soff(dst, base, wv=4*BLK, slot=BLK, grp=8192, i=1024)
rst_off(sT1, 0)
mk_srd(WS_, 74, WS_SIZE)
a(f"buffer_store_dwordx4 {v4(RST)}, v{vL16}, {srd(WS_)}, s{sT1} offen sc1")
mk_srd(K_, 54, 0x2000000)
def kload(t):
    r = []
    for hi in range(2):
        for j in range(4):
            p = f"s_add_u32 s{sT0}, s{sKV}, {t*32768 + hi*4096}\n" if j == 0 else ""
            r.append(p + f"buffer_load_dwordx4 {v4(VR+32*(t+1)+16*hi+4*j)}, v{vK}, {srd(K_)}, s{sT0} offen offset:{128*(j>>1)+512*(j&1)} nt")
    return r
def vload(t):
    r = []
    for i in range(8):
        p = f"s_add_u32 s{sT0}, s{sKV}, {t*32768 + (i>>2)*4096}\n" if i % 4 == 0 else ""
        r.append(p + f"buffer_load_dwordx4 {v4(VR+32*(t+1)+4*i)}, v{vL16}, {srd(V_)}, s{sT0} offen offset:{1024*(i&3)} nt")
    return r
def kfix(t, wait, loads):
    loads = list(loads)
    cm(f"K group {t} -> AGPRs")
    if wait is not None: a(f"s_waitcnt vmcnt({wait})")
    if t: ts(3 + t)
    for hi in range(2):
        for hf in range(2):
            A = VR + 32*(t+1) + 16*hi + 8*hf; B = A + 4; dst = aK + 16*(t+4*hi) + 8*hf
            a(loads.pop(0))
            for r in range(4): a(f"v_mov_b32 v{VR+r}, v{A+r}")
            for r in range(4): a(dp("v_mov_b32", VR+r, B+r, None, "row_ror:8", 0xc))
            for r in range(2): a(dp("v_mov_b32", B+r, A+r, None, "row_ror:8", 0x3))
            a(loads.pop(0))
            for r in range(2, 4): a(dp("v_mov_b32", B+r, A+r, None, "row_ror:8", 0x3))
            for r in range(4): a(f"v_accvgpr_write_b32 a{dst+r}, v{VR+r}")
            for r in range(4): a(f"v_accvgpr_write_b32 a{dst+4+r}, v{B+r}")
em(kload(0))
cm("---- set-up: remaining descriptors, lane patterns, offsets (under the first loads) ----")
mk_srd(V_, 56, 0x2000000); mk_srd(WO_, 60, 4096*1024); mk_srd(WG_, 64, 512*3584); mk_srd(WU_, 66, 512*3584)
mk_srd(WD_, 68, 1792*1024); mk_srd(OUT_, 70, 2048); mk_srd(DBG_, 72, 256)
t0, t1 = 36, 37
voff(vL4, [(0,6,4)]); voff(vC16, [(0,4,16)]); voff(vG16, [(4,2,16)])
voff(vOl, [(0,4,64), (4,2,16)]); voff(vOs, [(4,2,1024), (0,4,4)])
voff(vQs, [(0,1,BLK), (4,2,8)])
voff(vDNs, [(0,1,4*BLK), (4,2,16)]); voff(vGUl, [(4,2,2048), (0,4,16)])
voff(vSTd, [(0,4,16), (5,1,8)])
voff(vHr, [(0,1,128), (4,2,16)], const=H_L)
a(f"v_and_b32 v{vXLr}, 32, v{vL16}\nv_lshl_add_u32 v{vXLr}, v{vXLr}, 3, v{vHr}")
voff(vTR, [(4,2,1024), (2,2,128), (0,2,8)])
a(f"v_bfe_u32 v{vTmp}, v{vLane}, 3, 2\nv_xor_b32 v{vTmp}, s{sWV}, v{vTmp}\nv_lshl_add_u32 v{vTR}, v{vTmp}, 5, v{vTR}")
soff(sT0, H_L, wv=32); voff(vHw, [(5,1,128), (0,4,2)], sadd=sT0)
voff(vOCw, [(4,1,2), (3,1,1)]); a(f"v_xor_b32 v{vOCw}, v{vOCw}, v{vLane}\nv_lshlrev_b32 v{vOCw}, 4, v{vOCw}")
soff(sT0, OC_L, wv=OC_W); a(f"v_add_u32 v{vOCw}, s{sT0}, v{vOCw}")
voff(vOCr, [(4,1,2), (1,1,1)]); a(f"v_xor_b32 v{vOCr}, s{sWV}, v{vOCr}\nv_lshlrev_b32 v{vOCr}, 4, v{vOCr}")
voff(t0, [(4,2,256), (0,2,64), (2,2,4)], const=OC_L); a(f"v_add_u32 v{vOCr}, v{vOCr}, v{t0}")
soff(sT0, ML_L, wv=8); voff(vMLw, [(0,2,32)], sadd=sT0)
soff(sT0, ML_L, wv=32); a(f"v_mov_b32 v{vMLr}, s{sT0}")
soff(sT0, XL_L, wv=64); a(f"v_add_u32 v{vXLw}, s{sT0}, v{vXs}")
a(f"v_mov_b32 v{vTmp}, 0x3f803f80")
for r in range(4): a(f"v_accvgpr_write_b32 a{aONE+r}, v{vTmp}")
a(f"v_add_u32 v{t0}, {ONE_L}, v{vL4}\nds_write_b32 v{t0}, v{vTmp}")
for r in range(8): a(f"v_accvgpr_write_b32 a{aWD+r}, 0")
soff(sGB, 0, grp=GR)
soff(sFB, 0, slot=8, grp=1)
soff(sOst, O_OFF, True, ba=16384, wv=4096, s=64)
soff(sLst, LSE_OFF, True, ba=256, wv=64, s=4)
soff(sOld, O_OFF, True, w0=16384, slot=4096)
soff(sLld, LSE_OFF, True, w0=256, slot=64)
soff(sWOst, WO_OFF, w0=4*BLK, ih=BLK, i0=8192, w1=4096, grp=512, slot=128)
soff(sDNst, DN_OFF, ih=BLK, i0=8192, w1=4096, slot=1024, grp=128, w0=64)
soff(sM1, WO_OFF, w1=4*BLK, ih=BLK, i0=8192, w0=4096)
a(f"s_add_u32 s{sM2}, s{sM1}, {DN_OFF - WO_OFF:#x}")
soff(sST1st, ST1_OFF, True, slot=256, i=32, w0=16, w1=8)
soff(sST2ld, ST2_OFF, True, ba=8)
soff(sGUst, GU_OFF, True, slot=8192, i=1024, wv=256)
soff(sCS, CS_OFF, True, sl0=4096, ba=BLK, i=512, wv=128)
cm("workgroups past the 28 hidden blocks follow block 0 of their group with zero weights, to stay in step")
soff(sT0, 0, slot=1)
a(f"s_cmp_lt_u32 s{sFB}, 28\ns_cselect_b32 s{sT0}, s{sT0}, 0\ns_lshl_b32 s{sST1ld}, s{sT0}, 8\ns_lshl_b32 s{sT0}, s{sT0}, 13")
soff(sGUld, GU_OFF, True, wv=256)
a(f"s_add_u32 s{sGUld}, s{sGUld}, s{sT0}\ns_add_u32 s{sST1ld}, s{sST1ld}, s{sGB}\ns_add_u32 s{sST1ld}, s{sST1ld}, {ST1_OFF:#x}")
soff(sQst, Q_OFF, True, slot=256, ih=64, i0=2048, w1=1024, w0=32)
soff(sQld, Q_OFF, True, ba=BLK)
a(f"s_mov_b32 s{sSEL0}, 0x05040100\ns_mov_b32 s{sSEL1}, 0x07060302")
cm("---- first layer's query partials: layer norm of the input, 128 x 64 tile of Wq ----")
a("s_waitcnt vmcnt(8)")
ts(1)
K1 = kload(1)
em(K1[:2])
S, Qr = 90, 91
a(f"v_mov_b32 v{S}, 0\nv_mov_b32 v{Qr}, 0")
for i in range(8):
    a(f"""v_lshlrev_b32 v{t0}, 16, v{XS+i}
    v_and_b32 v{t1}, 0xffff0000, v{XS+i}
    v_add_f32 v{S}, v{S}, v{t0}
    v_fmac_f32 v{Qr}, v{t0}, v{t0}
    v_add_f32 v{S}, v{S}, v{t1}
    v_fmac_f32 v{Qr}, v{t1}, v{t1}""")
a(f"v_lshlrev_b32 v{vX0}, 16, v{vX1}\nv_and_b32 v{vX1}, 0xffff0000, v{vX1}")
em(K1[2:4])
a("s_barrier")
trread(aWQ, vTR, WQ_L, 4)
for n in (2, 4, 8): a(dp("v_add_f32", S, S, S, f"row_ror:{n}")); a(dp("v_add_f32", Qr, Qr, Qr, f"row_ror:{n}"))
for x, y in zip(rows("v_add_f32", S, t0), rows("v_add_f32", Qr, t1)): a(x); a(y)
em(fin(S, Qr, QSCALE) + [f"v_mul_f32 v{S}, v{S}, v{Qr}"])
a("s_waitcnt lgkmcnt(0)")
cm("arrival (all four waves' sentinels are acknowledged): count in bits 48.., one 6-bit field per XCC id")
lna = lab("noarr")
a(f"""s_getreg_b32 s{sT0}, hwreg(HW_REG_XCC_ID)
s_and_b32 s{sT0}, s{sT0}, 7
s_mul_i32 s{sFAST}, s{sT0}, 6
s_cmp_eq_u32 s{sWV}, 0
s_cbranch_scc0 {lna}
s_and_b32 s{sT0}, s2, 7
s_lshl_b32 s{sT0}, s{sT0}, 5
s_lshl_b64 s[{sE}:{sE+1}], 1, s{sFAST}
s_add_u32 s{sE+1}, s{sE+1}, 0x10000
s_atomic_add_x2 s[{sE}:{sE+1}], s[{DBG_}:{DBG_+1}], s{sT0}
{lna}:""")
DE = 60
for j in range(4): a(mf(v4(vCSQ), a4(aWQ+4*j), a4(aONE), 0 if j == 0 else v4(vCSQ)))
for j in range(4): a(mf(v4(DE), a4(aWQ+4*j), v4(XF+4*j), 0 if j == 0 else v4(DE)))
for r in range(4): a(f"v_mul_f32 v{DE+4+r}, v{S}, v{vCSQ+r}")
for r in range(4): a(f"v_fmac_f32 v{DE+4+r}, v{Qr}, v{DE+r}")
a(f"""v_cvt_pk_bf16_f32 v{DE}, v{DE+4}, v{DE+5}
v_cvt_pk_bf16_f32 v{DE+1}, v{DE+6}, v{DE+7}
v_cvt_pk_bf16_f32 v{vCSQ}, v{vCSQ}, v{vCSQ+1}
v_cvt_pk_bf16_f32 v{vCSQ+1}, v{vCSQ+2}, v{vCSQ+3}""")
ts(2)
CT = 80
voff(t0, [(0,3,32)])
cl = f"buffer_load_dwordx2 {v2(CT)}, v{t0}, {srd(DBG_)}, 0 offen sc1"
em(K1[4:])
kfix(0, 8, kload(2)); kfix(1, 8, kload(3)); a(cl); kfix(2, 9, vload(0))
cm("every workgroup has arrived: hand-offs may start; plain stores inside a group only if it sits on one XCC")
lp, ld = lab("bar"), lab("barok")
a(f"""s_waitcnt vmcnt(8)
{lp}:
v_lshrrev_b32 v{t1}, 16, v{CT+1}
v_cmp_gt_u32 vcc, 32, v{t1}
s_cbranch_vccz {ld}
{cl}
s_waitcnt vmcnt(0)
s_sub_u32 s{sTO}, s{sTO}, 1
s_cbranch_scc0 {lp}
s_mov_b32 s{sTO}, 0
{ld}:
s_and_b32 s{sT1}, s2, 7
s_waitcnt lgkmcnt(0)
v_readlane_b32 s{sT0}, v{CT}, s{sT1}
v_readlane_b32 s{sT1}, v{CT+1}, s{sT1}
s_lshl_b64 s[{sE}:{sE+1}], 32, s{sFAST}
s_add_u32 s{sE+1}, s{sE+1}, 0x200000
s_xor_b32 s{sT0}, s{sT0}, s{sE}
s_xor_b32 s{sT1}, s{sT1}, s{sE+1}
s_or_b32 s{sT0}, s{sT0}, s{sT1}
s_cmp_eq_u32 s{sT0}, 0
s_cselect_b32 s{sFAST}, 1, 0""")
ts_put([(sTO, 46)], vM)
exec_set(0x00030003, 0x00030003)
pub(f"buffer_store_dwordx2 {v2(DE)}, v{vQs}, {srd(WS_)}, s{sQst} offen")
exec_all()
def cq_pub():
    cm("column sums of this Wq tile, laid out like a query")
    a(f"s_add_u32 s{sT2}, s{sQst}, {CQ_OFF - Q_OFF:#x}")
    exec_set(0x10001, 0x10001)
    pub(f"buffer_store_dwordx2 {v2(vCSQ)}, v{vQs}, {srd(WS_)}, s{sT2} offen")
    exec_all()
if opt["cqp"] == 0: cq_pub()
if opt["cw"]:
    cm("ask for the code of the coming stages: one or two 64-byte lines per wave")
    soff(sT0, 0, idx=256, wv=64)
    a(f"s_getpc_b64 s[{X_+2}:{X_+3}]\nL_pc:\ns_add_u32 s{X_+2}, s{X_+2}, L_tblk-L_pc\ns_addc_u32 s{X_+3}, s{X_+3}, 0\ns_load_dword s{X_+1}, s[{X_+2}:{X_+3}], s{sT0}")
    if opt["cw"] > 1: a(f"s_add_u32 s{sT0}, s{sT0}, 8192\ns_min_u32 s{sT0}, s{sT0}, L_end-L_tblk\ns_load_dword s{X_}, s[{X_+2}:{X_+3}], s{sT0}")
kfix(3, None, vload(1))
qloads = [f"buffer_load_dwordx4 {v4(QF+4*j)}, v{vOl}, {srd(WS_)}, s{sQld} offen offset:{1024*j}" for j in range(4)]
poll(qloads, range(QF, QF+16), vM, between=lambda: em(vload(2)), wait1=8)
ts(7)
ts_put([(TSB+2*k, k) for k in range(1, 8)] + [(sTO, 47)], vM)
vMu, vA = vM + 2, vM + 3
cm("these queries are normalised already: sums that make the deferred scale 1")
a(f"v_mov_b32 v{vMu}, 0\nv_mov_b32 v{vA}, {f2u((QSCALE*QSCALE - 1e-5)*64):#x}")
Dt = lambda t: DT + 4*t
qk = [mf(v4(Dt(tau)), a4(aK+16*tau+4*j), v4(QF+4*j), 0 if j == 0 else v4(Dt(tau))) for tau in (0, 2, 1, 3, 4, 6, 5, 7) for j in range(4)]
em(qk[:4])
a("s_branch L_qk")
a("L_tblk:")
MARK = len(a.lines)

a("L_layer:")
until(1)
cm("---- attention over this workgroup's 512 keys; K, V in registers ----")
poll(qloads + [f"buffer_load_dwordx2 {v2(vMu)}, v{vP16}, {srd(WS_)}, s{sST2ld} offen"], list(range(QF, QF+16)) + [vMu, vA], vM, spec=qk[:4], ack=True)
a("L_qk:")
tsn('qk_start')
ZB = ZA + 4
def fold(Z):
    xlo = lambda t, X: [dp("v_add_f32", X+r, Dt(t)+r, Dt(t)+r, "row_ror:8", 0x3) for r in range(4)]
    xhi = lambda t, X: [dp("v_add_f32", X+r, Dt(t)+r, Dt(t)+r, "row_ror:8", 0xc) for r in range(4)]
    zev = lambda z: [dp("v_add_f32", z+r, XT+r, XT+r, "row_ror:12", 0x5) for r in range(4)]
    zod = lambda z: [dp("v_add_f32", z+r, YT+r, YT+r, "row_ror:4", 0xa) for r in range(4)]
    return (xlo(0, XT) + xhi(2, XT) + zev(Z) + xlo(1, YT) + xhi(3, YT) + zod(Z),
            xlo(4, XT) + xhi(6, XT) + zev(Z+4) + xlo(5, YT) + xhi(7, YT) + zod(Z+4))
lnst = []
for c in ("quad_perm:[1,0,3,2]", "quad_perm:[2,3,0,1]", "row_ror:4"): lnst += [dp("v_add_f32", vMu, vMu, vMu, c), dp("v_add_f32", vA, vA, vA, c)]
lnst += fin(vMu, vA, QSCALE)
fa, fb = fold(ZA)
mix(qk[4:11], lnst[:12], 2, 1)
mix(qk[11:], fa + [lnst[12], "s_nop 0"] + fb)
cm("deferred layer norm: scores = rstd * (K.q_raw - mean * K.colsum)")
only(1, lambda lb: em([f"v_fmac_f32 v{ZA+r}, v{vMu}, v{ZC+r}" for r in range(8)]))
vLs, vU = vM + 1, vM + 2
a(f"""v_max3_f32 v{vM}, v{ZA}, v{ZA+1}, v{ZA+2}
v_max3_f32 v{vLs}, v{ZB}, v{ZB+1}, v{ZB+2}
v_max3_f32 v{vM}, v{ZA+3}, v{ZB+3}, v{vM}
v_max_f32 v{vM}, v{vLs}, v{vM}""")
a(dp("v_max_f32", vM, vM, vM, "row_ror:4")); a(dp("v_max_f32", vM, vM, vM, "row_ror:8"))
em(rows("v_max_f32", vM, vU))
P = [XT, YT, QF, QF+4]
a(f"v_mul_f32 v{vM}, v{vM}, v{vA}")
for r in range(8): a(f"v_fma_f32 v{ZA+r}, v{ZA+r}, v{vA}, -v{vM}")
for r in range(8): a(f"v_exp_f32 v{ZA+r}, v{ZA+r}")
for r in range(4): a(f"v_cvt_pk_bf16_f32 v{P[0]+r}, v{ZA+2*r}, v{ZA+2*r+1}")
tsn('softmax_done')
def transpose(t, waits):
    cm(f"V group {t}: pair up keys for the MFMA")
    src, dst = VR + 32*(t+1), VR + 32*t
    for p in range(4):
        if waits[p] is not None: a(f"s_waitcnt vmcnt({waits[p]})")
        for q in range(4):
            a(f"v_perm_b32 v{dst+8*q+p}, v{src+8*p+4+q}, v{src+8*p+q}, s{sSEL0}")
            a(f"v_perm_b32 v{dst+8*q+4+p}, v{src+8*p+4+q}, v{src+8*p+q}, s{sSEL1}")
def wo_dma():
    piece(vU, vU+1)
    a(f"v_lshl_add_u32 v{vU}, v{vU+1}, 10, v{vU}")
    soff(sT0, 0, grp=512*1024, slot=128*1024, wv=8*1024, i=128)
    dma(WO_, vU, sT0, 32*1024, 4, WO_L)
def pv(t): return [mf(v4(DT+4*e), v4(VR+32*t+4*e), v4(P[t]), 0 if t == 0 else v4(DT+4*e)) for e in range(8)]
FW, vMM, vL, vR, vLSE = QF+8, QF+12, QF+13, QF+14, QF+15
ML = ZA
only(0, lambda lb: (em(vload(3)), transpose(0, [None]*4)), bool(opt['tin'] & 1))
rot = lambda tt: [dp("v_mov_b32", P[tt]+r, P[0]+r, None, f"row_ror:{16-4*tt}") for r in range(4)]
rs = rows("v_add_f32", vLs, vU)
r1, r2, r3 = rot(1), rot(2), rot(3)
s0 = [f"v_add_f32 v{ZA+2*r}, v{ZA+2*r}, v{ZA+2*r+1}" for r in range(4)] + \
     [f"v_add_f32 v{ZA}, v{ZA}, v{ZA+2}", f"v_add_f32 v{ZA+4}, v{ZA+4}, v{ZA+6}", f"v_add_f32 v{vLs}, v{ZA}, v{ZA+4}", r1[0],
      dp("v_add_f32", vLs, vLs, vLs, "row_ror:4"), r1[1], dp("v_add_f32", vLs, vLs, vLs, "row_ror:8"), rs[0], r1[2], rs[1], rs[2], r1[3]]
mix(pv(0), s0)
tsn('pv0')
only(0, lambda lb: transpose(1, [None]*4), bool(opt['tin'] & 2))
p1 = pv(1)
em([p1[0], rs[3], r2[0], p1[1], rs[4], rs[5], p1[2], "s_mov_b64 exec, 15", f"ds_write_b64 v{vMLw}, {v2(vM)}", "s_mov_b64 exec, -1",
    p1[3], r2[1], r2[2], p1[4], r2[3], r3[0], p1[5], r3[1], r3[2], p1[6], "s_waitcnt lgkmcnt(0)", "s_barrier",
    f"ds_read_b128 {v4(ML)}, v{vMLr}", f"ds_read_b128 {v4(ML+4)}, v{vMLr} offset:16", p1[7], r3[3]])
tsn('pv1')
only(0, lambda lb: (wo_dma(), transpose(2, [12, None, None, None])), bool(opt['tin'] & 4))
fac = ["s_waitcnt lgkmcnt(0)", f"v_max3_f32 v{vMM}, v{ML}, v{ML+2}, v{ML+4}", f"v_max_f32 v{vMM}, v{ML+6}, v{vMM}"] + \
      [f"v_sub_f32 v{FW+w}, v{ML+2*w}, v{vMM}" for w in range(4)] + [f"v_exp_f32 v{FW+w}, v{FW+w}" for w in range(4)] + \
      [f"v_mul_f32 v{vL}, v{FW}, v{ML+1}"] + [f"v_fmac_f32 v{vL}, v{FW+w}, v{ML+2*w+1}" for w in range(1, 4)] + \
      [f"v_rcp_f32 v{vR}, v{vL}", f"v_log_f32 v{vLSE}, v{vL}"] + [f"v_mul_f32 v{FW+w}, v{FW+w}, v{vR}" for w in range(4)] + \
      [f"v_add_f32 v{vLSE}, v{vLSE}, v{vMM}"]
mix(pv(2), fac[:12], 2, 2)
tsn('pv2')
only(0, lambda lb: (transpose(3, [10, 8, 6, 4]), cq_pub() if opt['cqp'] == 2 else None), bool(opt['tin'] & 8))
gath = lambda u: [dp("v_mov_b32", DT+k, DT+8*u+k, None, f"row_ror:{4*u}", 1 << u) for k in range(8)]
mix(pv(3), fac[12:] + gath(1)[:6])
em(gath(1)[6:] + gath(2) + gath(3))
tsn('pv_done')
until(0)
cm("combine the four waves, publish the normalised partial output and its log-sum-exp")
a(f"ds_write_b128 v{vOCw}, {v4(DT)}\nds_write_b128 v{vOCw}, {v4(DT+4)} offset:1024\ns_mov_b64 exec, 1")
pub(f"buffer_store_dword v{vLSE}, off, {srd(WS_)}, s{sLst}")
a("s_mov_b64 exec, -1\ns_waitcnt lgkmcnt(0)\ns_barrier")
OV = ZA
for w in range(4): a(f"ds_read2st64_b32 {v2(OV+2*w)}, v{vOCr} offset0:{8*w} offset1:{8*w+4}")
a(f"s_waitcnt lgkmcnt(3)\nv_mul_f32 v{OV}, v{FW}, v{OV}\nv_mul_f32 v{OV+1}, v{FW}, v{OV+1}")
for w in range(1, 4): a(f"s_waitcnt lgkmcnt({3-w})\nv_fmac_f32 v{OV}, v{FW+w}, v{OV+2*w}\nv_fmac_f32 v{OV+1}, v{FW+w}, v{OV+2*w+1}")
a(f"v_cvt_pk_bf16_f32 v{OV}, v{OV}, v{OV+1}")
pub(f"buffer_store_dword v{OV}, v{vOs}, {srd(WS_)}, s{sOst} offen")
tsn('O_pub')
cm("---- output projection: 16 key splits of one head as MFMA rows, weighted by their softmax share ----")
OF, LS, DB, EB = T, T+16, T+20, T+28
def wo_frags():
    a(f"s_and_b32 s{sT0}, s{sWV}, 1\ns_lshl_b32 s{sT0}, s{sT0}, 5\nv_xor_b32 v{EB}, s{sT0}, v{vTR}\nv_xor_b32 v{EB+1}, 32, v{EB}\ns_barrier")
    trread(aWO, EB, WO_L, 4); trread(aWO+16, EB+1, WO_L, 4)
    a("s_waitcnt lgkmcnt(0)")
poll([f"buffer_load_dwordx4 {v4(OF+4*j)}, v{vOl}, {srd(WS_)}, s{sOld} offen offset:{1024*j}" for j in range(4)] +
     [f"buffer_load_dwordx4 {v4(LS)}, v{vG16}, {srd(WS_)}, s{sLld} offen"], range(OF, OF+20), EB, l0=((cq_pub if opt['cqp'] == 1 else lambda: None), wo_frags), ack=True)
tsn('H2_got')
ch = [f"v_max3_f32 v{EB+4}, v{LS}, v{LS+1}, v{LS+2}", f"v_max_f32 v{EB+4}, v{LS+3}, v{EB+4}"] + rows("v_max_f32", EB+4, EB+5) + \
     [f"v_sub_f32 v{EB+r}, v{LS+r}, v{EB+4}" for r in range(4)] + [f"v_exp_f32 v{EB+r}, v{EB+r}" for r in range(4)]
bm = [mf(v4(DB+4*t), v4(OF+4*j), a4(aWO+16*t+4*j), 0 if j == 0 else v4(DB+4*t)) for j in range(4) for t in range(2)]
em([bm[0], ch[0], ch[1], ch[2], bm[1], bm[2], ch[3], ch[4], ch[5], bm[3], bm[4], ch[6], ch[7], ch[8], bm[5],
    ch[9], ch[10], bm[6], ch[11], ch[12], bm[7], ch[13], ch[14], ch[15]])
ra = rows("v_add_f32", EB+4, EB+5)
a(f"""v_add_f32 v{EB+4}, v{EB}, v{EB+1}
v_add_f32 v{EB+5}, v{EB+2}, v{EB+3}
v_add_f32 v{EB+4}, v{EB+4}, v{EB+5}
{ra[0]}
v_mul_f32 v{DB}, v{EB}, v{DB}
v_mul_f32 v{DB+4}, v{EB}, v{DB+4}
{ra[1]}
v_fmac_f32 v{DB}, v{EB+1}, v{DB+1}
{ra[2]}
v_fmac_f32 v{DB+4}, v{EB+1}, v{DB+5}
{ra[3]}
v_fmac_f32 v{DB}, v{EB+2}, v{DB+2}
v_fmac_f32 v{DB+4}, v{EB+2}, v{DB+6}
{ra[4]}
v_fmac_f32 v{DB}, v{EB+3}, v{DB+3}
v_fmac_f32 v{DB+4}, v{EB+3}, v{DB+7}
{ra[5]}
v_rcp_f32 v{EB+4}, v{EB+4}
v_permlane16_swap_b32 v{DB}, v{DB+4}
v_add_f32 v{DB}, v{DB}, v{DB+4}
v_mov_b32 v{DB+4}, v{DB}
v_permlane32_swap_b32 v{DB}, v{DB+4}
v_add_f32 v{DB}, v{DB}, v{DB+4}
s_mov_b32 exec_hi, 0
v_mul_f32 v{DB}, v{DB}, v{EB+4}
buffer_store_dword v{DB}, v{vL4}, {srd(WS_)}, s{sWOst} offen sc1
s_mov_b64 exec, -1""")
tsn('WO_pub')

def pretouch(vt, base, parts):
    cm("bring the next hand-off lines into this die's L2")
    lx = lab("pt")
    a(f"v_lshlrev_b32 v{vt}, 3, v{vL16}\ns_mov_b32 exec_hi, 0")
    for w, (off, n, terms) in enumerate(parts):
        if w:
            a(f"s_cmp_eq_u32 s{sWV}, {w-1}\ns_cbranch_scc1 {lx}")
        soff(sT0, base + off, True, **terms)
        a(f"s_mov_b32 exec_lo, {(1 << n) - 1:#x}")
    a(f"{lx}:\nbuffer_load_dword a{aDUM}, v{vt}, {srd(WS_)}, s{sT0} offen sc1\ns_mov_b64 exec, -1")
def first_window(lb):
    cm("first layer, while the projection partials travel: second layer's sentinels, FFN tiles, K . colsum(Wq)")
    W = T + 36
    for r in range(4): a(f"v_mov_b32 v{R4+r}, -1")
    rst_off(sT0, LSTR)
    a(f"buffer_store_dwordx4 {v4(R4)}, v{vL16}, {srd(WS_)}, s{sT0} offen sc1")
    cq = [f"buffer_load_dwordx4 {v4(QF+4*j)}, v{vOl}, {srd(WS_)}, s{sT2} offen offset:{1024*j}" for j in range(4)]
    a(f"s_add_u32 s{sT2}, s{sGB}, {CQ_OFF:#x}")
    em([l + " sc1" for l in cq])
    ln, lj = lab("noffn"), lab("ffnj")
    a(f"s_cmp_lt_u32 s{sFB}, 28\ns_cbranch_scc0 {ln}")
    piece(W+1, W+2)
    a(f"v_mul_u32_u24 v{W}, 3584, v{W+2}\nv_add_u32 v{W}, v{W}, v{W+1}\nv_lshl_add_u32 v{W+1}, v{W+2}, 10, v{W+1}")
    soff(sT0, 0, i=64*3584, wv=8*3584, slot=1024, grp=128)
    a(f"s_mov_b32 s{sT1}, s{sT0}")
    dma(WG_, W, sT0, 32*3584, 2, WG_L); dma(WU_, W, sT1, 32*3584, 2, WU_L)
    soff(sT0, 0, slot=8*65536, grp=65536, wv=8192, i=128)
    dma(WD_, W+1, sT0, 32*1024, 2, WD_L)
    pretouch(W, 0, [(GU_OFF, 4, dict(idx=1024)), (GU_OFF + 512, 4, dict(idx=1024)), (CS_OFF, 4, dict(s=512, ba=BLK)), (ST1_OFF, 1, dict(idx=128))])
    a(f"s_waitcnt vmcnt(7)\n{lj}:")
    deferred.append((ln, lambda: a(f"s_waitcnt vmcnt(0)\ns_branch {lj}")))
    poll(cq, range(QF, QF+16), vM, issued=True)
    za, zb = fold(ZC)
    mix(qk, za + ["s_nop 0", "s_nop 0"] + zb, 2, 11)
    a("s_branch L_acked")
M = T
def lines(soffr, base=0): return [f"buffer_load_dwordx4 {v4(M+base+4*u)}, v{vL16}, {srd(WS_)}, s{soffr} offen offset:{1024*u}" for u in range(4)]
def reduce32(jobs):
    for b, x0, x1 in jobs:
        for d, x in ((0, 4), (2, 6), (8, 12), (10, 14), (0, 8), (2, 10)): a(f"v_pk_add_f32 {v2(M+b+d)}, {v2(M+b+d)}, {v2(M+b+x)}")
    steps = [lambda m, x0, x1: [f"v_permlane32_swap_b32 v{m}, v{m+2}", f"v_permlane32_swap_b32 v{m+1}, v{m+3}"],
             lambda m, x0, x1: [f"v_add_f32 v{m}, v{m}, v{m+2}", f"v_add_f32 v{m+1}, v{m+1}, v{m+3}"],
             lambda m, x0, x1: [dp("v_add_f32", m, m, m, "row_ror:8"), dp("v_add_f32", m+1, m+1, m+1, "row_ror:8")],
             lambda m, x0, x1: [f"v_mov_b32 v{m+2}, v{m}", f"v_mov_b32 v{m+3}, v{m+1}"],
             lambda m, x0, x1: [f"v_permlane16_swap_b32 v{m}, v{m+2}", f"v_permlane16_swap_b32 v{m+1}, v{m+3}"],
             lambda m, x0, x1: [f"v_add_f32 v{x0}, v{x0}, v{m}", f"v_add_f32 v{x1}, v{x1}, v{m+1}"],
             lambda m, x0, x1: [f"v_add_f32 v{x0}, v{x0}, v{m+2}", f"v_add_f32 v{x1}, v{x1}, v{m+3}"],
             lambda m, x0, x1: [f"v_cvt_pk_bf16_f32 v{m}, v{x0}, v{x1}"]]
    for st_ in steps:
        for b, x0, x1 in jobs: em(st_(M+b, x0, x1))
def sums(s, q):
    return [f"v_permlane32_swap_b32 v{s}, v{q}", f"v_add_f32 v{s}, v{s}, v{q}", dp("v_add_f32", s, s, s, "quad_perm:[1,0,3,2]"),
            dp("v_add_f32", s, s, s, "quad_perm:[2,3,0,1]"), dp("v_add_f32", s, s, s, "row_ror:4")]
cm("---- residual update over all 32 projection partials; gate / up partial products of 64 input columns ----")
only(0, first_window)
XR = T + 20
a(f"s_add_u32 s{sT0}, s{sXj}, s{sGB}\ns_add_u32 s{sT0}, s{sT0}, {X_OFF:#x}")
poll([f"buffer_load_dword v{XR}, v{vXs}, {srd(WS_)}, s{sT0} offen"], [XR], XR+1)
a(f"v_lshlrev_b32 v{vX0}, 16, v{XR}\nv_and_b32 v{vX1}, 0xffff0000, v{XR}")
cm("first poll only after this workgroup's own write-through stores have landed: early reads slow the writers down")
a("L_acked:\ns_barrier")
poll(lines(sM1), range(M, M+16), M+16)
reduce32([(0, vX0, vX1)])
tsn('M1_done')
XC, DG, DU = T+4, T+12, T+16
a(f"""ds_write_b32 v{vXLw}, v{M}
v_lshlrev_b32 v{vX0}, 16, v{M}
v_and_b32 v{vX1}, 0xffff0000, v{M}
v_add_f32 v{M+1}, v{vX0}, v{vX1}
v_mul_f32 v{M+2}, v{vX0}, v{vX0}
v_fmac_f32 v{M+2}, v{vX1}, v{vX1}
s_waitcnt lgkmcnt(0)
s_barrier
s_cmp_lt_u32 s{sFB}, 28
s_cbranch_scc0 L_stageD
ds_read_b128 {v4(XC)}, v{vXLr} offset:256
ds_read_b128 {v4(XC+4)}, v{vXLr} offset:{256+64}""")
only(0, lambda lb: (trread(aWG, vTR, WG_L, 2), trread(aWU, vTR, WU_L, 2)))
st = sums(M+1, M+2)
em(st[:3])
a("s_waitcnt lgkmcnt(0)")
mix([mf(v4(DG), v4(XC), a4(aWG), 0), mf(v4(DU), v4(XC), a4(aWU), 0), mf(v4(DG), v4(XC+4), a4(aWG+4), v4(DG)), mf(v4(DU), v4(XC+4), a4(aWU+4), v4(DU))], st[3:], 1)
a("s_mov_b32 exec_lo, 1\ns_mov_b32 exec_hi, 1")
pub(f"buffer_store_dword v{M+1}, v{vXs}, {srd(WS_)}, s{sST1st} offen")
a(f"s_mov_b64 exec, 0xffff\nv_mov_b32 v{DU+3}, v{DG+2}\nv_mov_b32 v{DG+2}, v{DU}\nv_mov_b32 v{DG+3}, v{DU+1}")
pub(f"buffer_store_dwordx4 {v4(DG)}, v{vC16}, {srd(WS_)}, s{sGUst} offen")
exec_all()
def cs_pub(lb):
    cm("rows 2 and 3 of the products were fed with ones: (up, gate) column sums; block 0 also publishes the residual")
    a(f"v_lshrrev_b32 v{T+32}, 1, v{vC16}\ns_mov_b64 exec, 0xffff")
    pub(f"buffer_store_dwordx2 {v2(DU+2)}, v{T+32}, {srd(WS_)}, s{sCS} offen")
    exec_all()
    trread(aWD, vTR, WD_L, 2)
    a(f"s_cmp_lt_u32 s{sFB}, 8\ns_cbranch_scc0 {lb}\ns_add_u32 s{sT0}, s{sXj}, s{sGB}\ns_add_u32 s{sT0}, s{sT0}, {X_OFF:#x}")
    exec_set(0xff, 0xff)
    pub(f"buffer_store_dword v{M}, v{vXs}, {srd(WS_)}, s{sT0} offen")
    exec_all()
only(0, cs_pub)
tsn('GU_pub')
cm("---- layer norm on the summed products, gate, down projection of 64 hidden columns ----")
a("L_stageD:")
G, SD, DD = T, T+8, T+12
def colsums(lb):
    C = T + 16
    soff(sT0, 0, sl0=4096, ba=BLK)
    a(f"s_cmp_lt_u32 s{sFB}, 28\ns_cselect_b32 s{sT0}, s{sT0}, 0")
    soff(sT1, CS_OFF, True, wv=128)
    a(f"s_add_u32 s{sT0}, s{sT0}, s{sT1}\nv_lshrrev_b32 v{C+4}, 1, v{vGUl}")
    poll([f"buffer_load_dwordx2 {v2(C+2*u)}, v{C+4}, {srd(WS_)}, s{sT0} offen offset:{512*u}" for u in range(2)], range(C, C+4), C+5)
    a(f"""v_add_f32 v{C}, v{C}, v{C+2}
    v_add_f32 v{C+1}, v{C+1}, v{C+3}
    v_permlane16_swap_b32 v{C+1}, v{C}
    v_add_f32 v{vCS}, v{C}, v{C+1}
    v_mov_b32 v{C}, v{vCS}
    v_permlane32_swap_b32 v{vCS}, v{C}
    v_add_f32 v{vCS}, v{vCS}, v{C}""")
poll([f"buffer_load_dwordx4 {v4(G+4*u)}, v{vGUl}, {srd(WS_)}, s{sGUld} offen offset:{1024*u}" for u in range(2)] +
     [f"buffer_load_dwordx2 {v2(SD)}, v{vSTd}, {srd(WS_)}, s{sST1ld} offen"], range(G, G+10), DD, between=lambda: only(0, colsums))
tsn('H4_got')
HF = T + 16
sd = []
for n in (1, 2, 4, 8): sd += [dp("v_add_f32", SD, SD, SD, f"row_ror:{n}"), dp("v_add_f32", SD+1, SD+1, SD+1, f"row_ror:{n}")]
sd += fin(SD, SD+1)
gd = [f"v_add_f32 v{G+r}, v{G+r}, v{G+4+r}" for r in range(4)] + \
     [f"v_permlane32_swap_b32 v{G}, v{G+1}", f"v_permlane32_swap_b32 v{G+2}, v{G+3}", f"v_add_f32 v{G}, v{G}, v{G+1}",
      f"v_add_f32 v{G+2}, v{G+2}, v{G+3}", f"v_permlane16_swap_b32 v{G}, v{G+2}", f"v_add_f32 v{G}, v{G}, v{G+2}"]
em([sd[0], sd[1], gd[0], sd[2], sd[3], gd[1], sd[4], sd[5], gd[2], sd[6], sd[7], gd[3], sd[8], sd[9], gd[4], sd[10], gd[5], sd[11], gd[6],
    gd[7], sd[12], sd[13], gd[8], gd[9]])
a(f"""v_fmac_f32 v{G}, v{SD}, v{vCS}
v_mul_f32 v{G}, v{G}, v{SD+1}
v_mov_b32 v{G+1}, v{G}
v_permlane16_swap_b32 v{G}, v{G+1}
v_max_f32 v{G}, 0, v{G}
v_mul_f32 v{G}, v{G}, v{G+1}
v_cvt_pk_bf16_f32 v{G}, v{G}, v{G}
ds_write_b16 v{vHw}, v{G}
s_waitcnt lgkmcnt(0)
s_barrier
ds_read_b128 {v4(HF)}, v{vHr}
ds_read_b128 {v4(HF+4)}, v{vHr} offset:64
s_waitcnt lgkmcnt(1)
{mf(v4(DD), a4(aWD), v4(HF), 0)}
s_waitcnt lgkmcnt(0)
{mf(v4(DD), a4(aWD+4), v4(HF+4), v4(DD))}
s_bfe_u32 s{sT0}, s2, 0x20006
s_and_b32 s{sT1}, s2, 7""")
exec_set(0x00030003, 0x00030003)
a(f"buffer_store_dwordx4 {v4(DD)}, v{vDNs}, {srd(WS_)}, s{sDNst} offen sc1")
exec_all()
tsn('DN_pub')
a(f"s_cmp_eq_u32 s{sLAYER}, 0\ns_cbranch_scc1 L_next")
cm("---- last layer: group 0 finishes the output, one wave per 32 columns ----")
a(f"""s_cmp_eq_u32 s{sT1}, 0
s_cbranch_scc0 L_fin
s_waitcnt vmcnt(0)
s_barrier
s_cmp_eq_u32 s{sT0}, s{sWV}
s_cbranch_scc0 L_fin""")
poll(lines(sM2), range(M, M+16), M+16)
reduce32([(0, vX0, vX1)])
exec_set(0xff, 0xff)
a(f"buffer_store_dword v{M}, v{vXs}, {srd(OUT_)}, s{sXj} offen")
if TS or opt["until"]: a("s_mov_b64 exec, -1\n" + ("s_waitcnt vmcnt(0)\n" if opt["outw"] else "") + "s_branch L_fin")
else: a("s_endpgm")
cm("---- first layer: residual update of 128 columns, raw query partials for the next layer ----")
a("L_next:")
XA, vXw, vXr, DE = T+32, T+40, T+41, T+44
pretouch(vXw, LSTR, [(O_OFF, 8, dict(idx=1024)), (GU_OFF, 8, dict(idx=1024)), (Q_OFF, 2, dict(s=256, ba=BLK)), (ST1_OFF, 1, dict(idx=128))])
soff(sT0, DN_OFF, w1=4*BLK, slot=BLK, w0=2*4096)
a(f"s_add_u32 s{sT1}, s{sT0}, 4096")
soff(sT2, X_OFF, True, w1=1024, slot=256, w0=128)
soff(sCS, X2_L, wv=128)
a(f"""v_add_u32 v{vXw}, s{sCS}, v{vXs}
v_and_b32 v{vXr}, 16, v{vL16}
v_lshl_add_u32 v{vXr}, v{vXr}, 4, v{vG16}
v_add_u32 v{vXr}, {X2_L}, v{vXr}""")
soff(sCS, ST2_OFF, True, slot=32, w0=16, w1=8)
poll([f"buffer_load_dword v{XA}, v{vXs}, {srd(WS_)}, s{sT2} offen", f"buffer_load_dword v{XA+1}, v{vXs}, {srd(WS_)}, s{sT2} offen offset:64"],
     range(XA, XA+2), XA+4)
a(f"""v_lshlrev_b32 v{XA+2}, 16, v{XA+1}
v_and_b32 v{XA+3}, 0xffff0000, v{XA+1}
v_and_b32 v{XA+1}, 0xffff0000, v{XA}
v_lshlrev_b32 v{XA}, 16, v{XA}
s_barrier""")
poll(lines(sT0) + lines(sT1, 16), range(M, M+32), XA+4)
reduce32([(0, XA, XA+1), (16, XA+2, XA+3)])
tsn('M2_done')
a(f"""ds_write2_b32 v{vXw}, v{M}, v{M+16} offset0:0 offset1:16
v_lshlrev_b32 v{XA}, 16, v{M}
v_and_b32 v{XA+1}, 0xffff0000, v{M}
v_lshlrev_b32 v{XA+2}, 16, v{M+16}
v_and_b32 v{XA+3}, 0xffff0000, v{M+16}
s_add_u32 s{WS_}, s{WS_}, {LSTR:#x}
s_addc_u32 s{WS_+1}, s{WS_+1}, 0
s_waitcnt lgkmcnt(0)
s_barrier""")
XE = T + 48
for j in range(4): a(f"ds_read_b128 {v4(XE+4*j)}, v{vXr} offset:{64*j}")
a(f"""v_add_f32 v{M+1}, v{XA}, v{XA+1}
v_mul_f32 v{M+2}, v{XA}, v{XA}
v_add_f32 v{M+3}, v{XA+2}, v{XA+3}
v_fmac_f32 v{M+2}, v{XA+1}, v{XA+1}
v_add_f32 v{M+1}, v{M+1}, v{M+3}
v_fmac_f32 v{M+2}, v{XA+2}, v{XA+2}
v_fmac_f32 v{M+2}, v{XA+3}, v{XA+3}""")
st = sums(M+1, M+2)
for j in range(4):
    a(f"s_waitcnt lgkmcnt({3-j})")
    a(mf(v4(DE), a4(aWQ+4*j), v4(XE+4*j), 0 if j == 0 else v4(DE)))
    a(st[j])
a(st[4])
lst = lab("nost")
a(f"s_bfe_u32 s{sT0}, s2, 0x30003\ns_cmp_eq_u32 s{sT0}, 0\ns_cbranch_scc0 {lst}\ns_mov_b32 exec_lo, 1\ns_mov_b32 exec_hi, 1")
pub(f"buffer_store_dword v{M+1}, v{vXs}, {srd(WS_)}, s{sCS} offen")
a(f"{lst}:")
exec_set(0x00030003, 0x00030003)
a(f"v_cvt_pk_bf16_f32 v{DE}, v{DE}, v{DE+1}\nv_cvt_pk_bf16_f32 v{DE+1}, v{DE+2}, v{DE+3}")
pub(f"buffer_store_dwordx2 {v2(DE)}, v{vQs}, {srd(WS_)}, s{sQst} offen")
lnx = lab("nox")
a(f"s_mov_b32 s{sLAYER}, 1\ns_cmp_eq_u32 s{sT0}, 1\ns_cbranch_scc0 {lnx}")
exec_set(0xff, 0xff)
pub(f"buffer_store_dword v{M}, v{vXs}, {srd(WS_)}, s{sT2} offen", f"buffer_store_dword v{M+16}, v{vXs}, {srd(WS_)}, s{sT2} offen offset:64")
a(f"{lnx}:")
exec_all()
tsn('Q_pub')
ts_put([(TSB+2*k, 8+k) for k in range(12)], T+40)
a("s_branch L_layer")
tail = a.lines[MARK:]; del a.lines[MARK:]
for l, fn in early: a(f"{l}:"); fn()
a.lines += tail
n = 0
while n < len(deferred):
    l, fn = deferred[n]; a(f"{l}:"); fn(); n += 1
a("L_fin:")
until(2)
if TS:
    ts(11)
    a(f"s_memrealtime s[{sE}:{sE+1}]")
    ts_put([(TSB+2*k, 24+k) for k in range(12)] + [(sE, 43), (sFAST, 40), (sTO, 41)], T+40)
    soff(sT0, TS_OFF - LSTR, wg=1024, wv=256)
    a(f"buffer_store_dword v{T+40}, v{vL4}, {srd(WS_)}, s{sT0} offen")
a("L_end:\ns_endpgm")

body = a.finalize()
kn = NAME + "_kernel"
ref = open("cdna_kernels/" + NAME + ".s.ref").read().split("\n")
head = [l for l in ref if l.startswith(";") and "@launch" not in l and "Override launch" not in l and "grid=ceil" not in l][:13]
diag = ("; tsset " + opt["tsset"] + "\n; opts " + " ".join([sys.argv[0]] + [x for x in sys.argv[2:] if not x.startswith(("ts", "tobits", "outw"))]) + "\n") if TS else ""
doc = """; One persistent launch, one workgroup of four 512-register waves per CU.
;  - hand-offs between workgroups go through d_ws slots that this launch first fills with an all-ones sentinel; a counter in
;    d_debug (first layer's slots) or the data flow itself (second layer's) orders those writes before any use. Readers spin,
"""
src = "\n".join(head) + f"""
{diag}{doc}; @launch grid=(256,1,1) block=(256,1,1) lds={LDS_BYTES}
.amdgcn_target "amdgcn-amd-amdhsa--gfx950"
.text
.globl {kn}
.p2align 8
.type {kn},@function
{kn}:
{body}
.section .rodata,"a"
.p2align 6
.amdhsa_kernel {kn}
  .amdhsa_next_free_vgpr 512
  .amdhsa_next_free_sgpr 102
  .amdhsa_accum_offset 256
  .amdhsa_group_segment_fixed_size 0
  .amdhsa_kernarg_size 96
  .amdhsa_user_sgpr_count 2
  .amdhsa_user_sgpr_kernarg_segment_ptr 1
  .amdhsa_system_sgpr_workgroup_id_x 1
.end_amdhsa_kernel
"""
open(out_path, "w").write(src)
print("nops inserted:", a.nops, "lines:", len(body.split("\n")), file=sys.stderr)
```

```python
import sys, math, struct
from asmlib import Asm

NAME = "interleave_layers__gqa_block_cached__glu_gated_reglu__decode"
opt = dict(ts=0, fast=1, tobits=20, until=0, upos=0, outw=0, cqp=1, rmap=1, tpos=0, cw=0, tin=15, zov=1, pt2=0, m01=1, nobr=1,
           tsset="qk_start,softmax_done,pv_done,O_pub,H2_got,WO_pub,M1_done,GU_pub,H4_got,DN_pub,M2_done,Q_pub")
out_path = sys.argv[1]
for x in sys.argv[2:]:
    k, v = x.split("=")
    assert k in opt, k
    opt[k] = v if k == "tsset" else int(v)
TS = opt["ts"]
def f2u(x): return struct.unpack("<I", struct.pack("<f", x))[0]

BLK = 0x20000
GR = 2*BLK
O_OFF, CS_OFF, Q_OFF, ST1_OFF, X_OFF, ST2_OFF, LSE_OFF = 0x0, 0x8000, 0xA000, 0xB000, 0xB400, 0xBC00, 0xBE00
GU_OFF, CQ_OFF = BLK, BLK + 0xB000
WO_OFF, DN_OFF = 0xC000, 8*BLK + 0xC000
LSTR = 0x10000
TS_OFF = 0x600000
WS_SIZE = 0x800000 if TS else 16*BLK
WQ_L, WO_L, WG_L, WU_L, WD_L = 0, 16384, 32768, 40960, 49152
OC_L = 57344; OC_W = 2048
ML_L = OC_L + 4*OC_W
H_L = ML_L + 128
XL_L = H_L + 256
ONE_L = XL_L + 256
X2_L = ONE_L + 256
LDS_BYTES = X2_L + 512
sWV, sGB, sFB, sLAYER, sFAST, sTO = 3, 4, 5, 6, 7, 76
K_, V_, WS_, WQ_, WO_, WG_, WU_, WD_, X_, OUT_, DBG_ = 8, 12, 16, 20, 24, 28, 32, 36, 40, 44, 48
def srd(n): return f"s[{n}:{n+3}]"
(sKV, sQld, sQst, sOst, sLst, sOld, sLld, sWOst, sM1, sM2, sXj, sST1st, sST2ld, sST1ld, sGUst, sGUld, sDNst, sCS, sT2) = range(77, 96)
sT0, sT1, sSEL0, sSEL1 = 96, 97, 98, 99
sE = 100
TSB = 52
vL16, vL4, vOs, vOl, vP16, vC16, vG16, vQs, vDNs, vGUl, vXs = range(0, 11)
vOCw, vOCr, vMLw, vMLr, vHw, vHr, vTR, vXLr, vSTd, vXLw = range(11, 21)
vX0, vX1, vCS = 21, 22, 23
vCSQ = 24
T = 28
QF, DT, vM, XT, YT, ZA = 28, 44, 76, 80, 84, 88
VR = 96
R4 = VR + 128
ZC = R4 + 8
def v4(n): return f"v[{n}:{n+3}]"
def v2(n): return f"v[{n}:{n+1}]"
def a4(n): return f"a[{n}:{n+3}]"
aK, aWQ, aWO, aWG, aWU, aWD, aONE, aDUM, aTS = 0, 128, 144, 176, 184, 192, 200, 204, 205

a = Asm()
def cm(t): a("; " + t)
deferred = []
early = []
uid = [0]
def lab(p):
    uid[0] += 1
    return f"L_{p}_{uid[0]}"
def exec_set(lo, hi):
    if hi == 0: a(f"s_mov_b64 exec, {lo:#x}")
    else: a(f"s_mov_b32 exec_lo, {lo:#x}\ns_mov_b32 exec_hi, {hi:#x}")
def exec_all(): a("s_mov_b64 exec, -1")
def em(l):
    for x in l: a(x)

F = dict(grp=(2,0,3), idx=(2,3,5), i=(2,3,3), slot=(2,6,2), s=(2,3,4), ba=(2,7,1), wg=(2,0,8),
         i0=(2,3,1), ih=(2,4,2), sl0=(2,6,1), wv=(sWV,0,2), w0=(sWV,0,1), w1=(sWV,1,1))
def soff(dst, const, gb=False, **terms):
    first = True
    for name, mul in terms.items():
        src, lo, w = F[name]
        d = dst if first else sE
        if name in ("wg", "wv"): s = f"s{src}"
        else:
            a(f"s_bfe_u32 s{d}, s{src}, {(w << 16) | lo:#x}"); s = f"s{d}"
        if mul == 1 and s == f"s{d}": pass
        elif mul & (mul-1) == 0: a(f"s_lshl_b32 s{d}, {s}, {mul.bit_length()-1}")
        else: a(f"s_mul_i32 s{d}, {s}, {mul}")
        if not first: a(f"s_add_u32 s{dst}, s{dst}, s{sE}")
        first = False
    if first:
        a(f"s_add_u32 s{dst}, s{sGB}, {const:#x}" if gb else f"s_mov_b32 s{dst}, {const:#x}"); return
    if gb: a(f"s_add_u32 s{dst}, s{dst}, s{sGB}")
    if const: a(f"s_add_u32 s{dst}, s{dst}, {const:#x}")
vLane, vTmp = 30, 31
def voff(dst, terms, sadd=None, const=0):
    first = True
    for lo, w, mul in terms:
        if first:
            if lo == 0 and w == 6: src = vLane
            else: a(f"v_bfe_u32 v{dst}, v{vLane}, {lo}, {w}"); src = dst
            if mul != 1 or src != dst: a(f"v_lshlrev_b32 v{dst}, {mul.bit_length()-1}, v{src}")
        else:
            a(f"v_bfe_u32 v{vTmp}, v{vLane}, {lo}, {w}\nv_lshl_add_u32 v{dst}, v{vTmp}, {mul.bit_length()-1}, v{dst}")
        assert mul & (mul-1) == 0
        first = False
    if const: a(f"v_add_u32 v{dst}, {const}, v{dst}")
    if sadd is not None: a(f"v_add_u32 v{dst}, s{sadd}, v{dst}")

def pub(*stores):
    wt = [s + (" sc1" if s.startswith("buffer") else "") for s in stores]
    if not opt["fast"]:
        em(wt); return
    ls, lb = lab("wt"), lab("back")
    a(f"s_cmp_eq_u32 s{sFAST}, 1\ns_cbranch_scc0 {ls}")
    em(stores)
    a(f"{lb}:")
    deferred.append((ls, lambda: a("\n".join(wt) + f"\ns_branch {lb}")))

def only(layer, fn, inline=True):
    ls, lb = lab("l%d" % layer), lab("join")
    hit, miss = ("scc1", "scc0") if layer == 0 else ("scc0", "scc1")
    if inline:
        a(f"s_cmp_eq_u32 s{sLAYER}, 0\ns_cbranch_{miss} {lb}")
        fn(lb)
        a(f"{lb}:")
        return
    a(f"s_cmp_eq_u32 s{sLAYER}, 0\ns_cbranch_{hit} {ls}\n{lb}:")
    (early if opt["tpos"] else deferred).append((ls, lambda: (fn(lb), a(f"s_branch {lb}"))))

def check_ops(regs, tmp):
    r = list(regs)
    def chain(x, t):
        o = [f"v_max3_u32 v{t}, v{x[0]}, v{x[1]}, v{x[2]}"]; x = x[3:]
        while len(x) >= 2: o.append(f"v_max3_u32 v{t}, v{x[0]}, v{x[1]}, v{t}"); x = x[2:]
        if x: o.append(f"v_max_u32 v{t}, v{x[0]}, v{t}")
        return o
    if len(r) == 1: return [f"v_mov_b32 v{tmp}, v{r[0]}"]
    if len(r) == 2: return [f"v_max_u32 v{tmp}, v{r[0]}, v{r[1]}"]
    if len(r) < 8: return chain(r, tmp)
    A, B = r[:len(r)//2], r[len(r)//2:]
    if len(A) % 2 == 0: A, B = A + B[:1], B[1:]
    last = B.pop() if len(B) % 2 == 0 else None
    ca, cb, ops = chain(A, tmp), chain(B, tmp+1), []
    while ca or cb:
        if ca: ops.append(ca.pop(0))
        if cb: ops.append(cb.pop(0))
    ops.append(f"v_max3_u32 v{tmp}, v{tmp}, v{tmp+1}, v{last}" if last is not None else f"v_max_u32 v{tmp}, v{tmp}, v{tmp+1}")
    return ops
def poll(loads, regs, tmp, between=None, spec=(), ack=False, l0=None, wait1=0, issued=False, first=None):
    lc, lr, ld, lx, lf = lab("chk"), lab("retry"), lab("got"), lab("giveup"), lab("first")
    loads = [l + " sc1" for l in loads]
    if first: lf = first
    if l0: only(0, lambda lb: (l0[0](), a("s_waitcnt vmcnt(0)"), em(loads), l0[1](), a(f"s_branch {lf}")))
    if ack: a("s_waitcnt vmcnt(0)")
    if not issued: em(loads)
    if between: between()
    a(f"s_waitcnt vmcnt({wait1})\ns_branch {lc}" if wait1 else f"s_branch {lc if issued else lf}")
    a(f"{lr}:\ns_sub_u32 s{sTO}, s{sTO}, 1\ns_cbranch_scc1 {lx}\ns_mov_b64 exec, vcc")
    em(loads)
    a(f"s_mov_b64 exec, -1\n{lf}:\ns_waitcnt vmcnt(0)\n{lc}:")
    deferred.append((lx, lambda: a(f"s_mov_b32 s{sTO}, 0\ns_branch {ld}")))
    o, sp = check_ops(regs, tmp), list(spec)
    while o or sp:
        if sp: a(sp.pop(0))
        for _ in range(2 if sp else len(o)):
            if o: a(o.pop(0))
    a(f"v_cmp_eq_u32 vcc, -1, v{tmp}\ns_cbranch_vccnz {lr}\n{ld}:")

TSSET = opt["tsset"].split(",")
assert len(TSSET) <= 12
def ts(k):
    if TS: a(f"s_memtime s[{TSB+2*k}:{TSB+2*k+1}]")
def tsn(name):
    if name in TSSET: ts(TSSET.index(name))
def ts_put(pairs, tmp):
    if not TS: return
    a(f"s_waitcnt lgkmcnt(0)\nv_accvgpr_read_b32 v{tmp}, a{aTS}")
    for s, l in pairs: a(f"v_writelane_b32 v{tmp}, s{s}, {l}")
    a(f"v_accvgpr_write_b32 a{aTS}, v{tmp}")
def until(pos):
    if opt["until"] and opt["upos"] == pos:
        l = lab("until")
        a(f"v_accvgpr_read_b32 v{R4+30}, a{aTS}\nv_readfirstlane_b32 s54, v{R4+30}\n{l}:\ns_memrealtime s[52:53]\ns_waitcnt lgkmcnt(0)\ns_sub_u32 s52, s52, s54\ns_cmp_lt_u32 s52, {opt['until']}\ns_cbranch_scc1 {l}")

def mk_srd(d, lo, size):
    a(f"s_mov_b32 s{d}, s{lo}\ns_and_b32 s{d+1}, s{lo+1}, 0xffff\ns_mov_b32 s{d+2}, {size:#x}\ns_mov_b32 s{d+3}, 0x20000")
def mf(d, A, B, c): return f"v_mfma_f32_16x16x32_bf16 {d}, {A}, {B}, {c}"
def dp(op, d, s0, s1, ctrl, bank=0xf):
    if s1 is None: return f"{op}_dpp v{d}, v{s0} {ctrl} row_mask:0xf bank_mask:{bank:#x}"
    return f"{op}_dpp v{d}, v{s0}, v{s1} {ctrl} row_mask:0xf bank_mask:{bank:#x}"
def rows(op, r, t):
    return [f"v_mov_b32 v{t}, v{r}", f"v_permlane16_swap_b32 v{r}, v{t}", f"{op} v{r}, v{r}, v{t}",
            f"v_mov_b32 v{t}, v{r}", f"v_permlane32_swap_b32 v{r}, v{t}", f"{op} v{r}, v{r}, v{t}"]
def mix(main, fill, per=2, start=0):
    fill = list(fill)
    for n, m in enumerate(main):
        a(m)
        if n >= start:
            for _ in range(per):
                if fill: a(fill.pop(0))
    em(fill)
def dma(srdn, voff_, sbase, step, n, ldsbase):
    for i in range(n):
        a(f"s_lshl_b32 s{sE}, s{sWV}, 10\ns_add_u32 m0, s{sE}, {ldsbase + i*4096}")
        if i: a(f"s_add_u32 s{sbase}, s{sbase}, {step}")
        a(f"buffer_load_dwordx4 v{voff_}, {srd(srdn)}, s{sbase} offen nt lds")
def piece(dst, t):
    a(f"""v_lshrrev_b32 v{t}, 3, v{vL16}
    v_and_b32 v{t}, 32, v{t}
    v_xor_b32 v{dst}, v{vP16}, v{t}
    s_and_b32 s{sE}, s{sWV}, 1
    s_lshl_b32 s{sE}, s{sE}, 6
    v_xor_b32 v{dst}, s{sE}, v{dst}
    v_lshrrev_b32 v{t}, 7, v{vL16}""")
def trread(areg, vaddr, ldsoff, ksteps):
    for j in range(ksteps):
        for u in range(2):
            a(f"ds_read_b64_tr_b16 a[{areg+4*j+2*u}:{areg+4*j+2*u+1}], v{vaddr} offset:{ldsoff + (32*j+4*u)*128}")
def fin(S, Q, scale=1.0):
    r = [f"v_mul_f32 v{S}, {f2u(-1/512):#x}, v{S}", f"v_mul_f32 v{Q}, {f2u(1/512):#x}, v{Q}",
         f"v_fma_f32 v{Q}, -v{S}, v{S}, v{Q}", f"v_max_f32 v{Q}, 0, v{Q}", f"v_add_f32 v{Q}, {f2u(1e-5):#x}, v{Q}",
         f"v_rsq_f32 v{Q}, v{Q}"]
    if scale != 1.0: r.append(f"v_mul_f32 v{Q}, {f2u(scale):#x}, v{Q}")
    return r
QSCALE = math.log2(math.e) / math.sqrt(128.0)

cm("---- set-up: first loads ----")
if TS or opt["until"]:
    a(f"s_memtime s[52:53]\ns_memrealtime s[54:55]\ns_waitcnt lgkmcnt(0)\nv_mov_b32 v40, 0")
    if TS: a("v_writelane_b32 v40, s52, 0\nv_writelane_b32 v40, s54, 42")
    else: a("v_mov_b32 v40, s54")
    a(f"v_accvgpr_write_b32 a{aTS}, v40")
a(f"""s_cmp_ge_u32 s2, 256
s_cbranch_scc1 L_end
s_load_dwordx16 s[52:67], s[0:1], 0
s_load_dwordx8 s[68:75], s[0:1], 64
v_lshrrev_b32 v{vTmp}, 6, v0
v_and_b32 v{vLane}, 63, v0
v_readfirstlane_b32 s{sWV}, v{vTmp}
s_mov_b32 s{sLAYER}, 0
s_mov_b32 s{sTO}, {1 << opt['tobits']:#x}""")
vK, vW, vSX, vXl = 32, 33, 34, 35
XF, XS, RST = 44, 80, 88
voff(vL16, [(0,6,16)])
a(f"v_and_b32 v{vP16}, 0x70, v{vL16}")
piece(vW, vSX)
a(f"v_lshl_add_u32 v{vW}, v{vSX}, 13, v{vW}")
soff(sT1, 0, slot=128*8192, wv=8*8192, grp=1024, i=128)
voff(vXl, [(0,1,1024), (4,2,16)])
voff(vSX, [(0,1,1024), (1,3,128), (4,2,32)])
voff(vXs, [(0,3,8), (5,1,4)])
soff(sT2, 0, slot=256)
soff(sXj, 0, w1=1024, i=128, w0=64)
voff(vK, [(0,2,1024), (2,1,256), (3,1,64), (4,2,16)])
soff(sKV, 0, ba=8<<21, grp=1<<21, s=1<<17, wv=1<<13)
a("s_waitcnt lgkmcnt(0)")
mk_srd(WQ_, 58, 512*8192)
dma(WQ_, vW, sT1, 32*8192, 4, WQ_L)
mk_srd(X_, 52, 2048)
for j in range(4): a(f"buffer_load_dwordx4 {v4(XF+4*j)}, v{vXl}, {srd(X_)}, s{sT2} offen offset:{64*j}")
a(f"buffer_load_dwordx4 {v4(XS)}, v{vSX}, {srd(X_)}, 0 offen\nbuffer_load_dwordx4 {v4(XS+4)}, v{vSX}, {srd(X_)}, 0 offen offset:16")
a(f"buffer_load_dword v{vX1}, v{vXs}, {srd(X_)}, s{sXj} offen")
cm("sentinels of the first layer's hand-off slots: 1 KiB per wave")
for r in range(4): a(f"v_mov_b32 v{RST+r}, -1")
def rst_off(dst, base):
    m = opt["rmap"]
    if m == 0: soff(dst, base, grp=2*BLK, w0=BLK, idx=2048, w1=1024)
    elif m == 1: soff(dst, base, s=BLK, grp=8192, ba=4096, wv=1024)
    elif m == 2: soff(dst, base, s=BLK, wv=16384, ba=8192, grp=1024)
    elif m == 3: soff(dst, base, wv=4*BLK, slot=BLK, grp=8192, i=1024)
rst_off(sT1, 0)
mk_srd(WS_, 74, WS_SIZE)
a(f"buffer_store_dwordx4 {v4(RST)}, v{vL16}, {srd(WS_)}, s{sT1} offen sc1")
cm("the 32 workgroups without a hidden block write their share of the second layer's sentinels now as well: nothing later orders them")
a(f"""s_and_b32 s{sT0}, s2, 0xc4
s_cmp_eq_u32 s{sT0}, 0xc4
s_cbranch_scc0 L_rst
s_add_u32 s{sT1}, s{sT1}, {LSTR:#x}
buffer_store_dwordx4 {v4(RST)}, v{vL16}, {srd(WS_)}, s{sT1} offen sc1
L_rst:""")
mk_srd(K_, 54, 0x2000000)
def kload(t):
    r = []
    for hi in range(2):
        for j in range(4):
            p = f"s_add_u32 s{sT0}, s{sKV}, {t*32768 + hi*4096}\n" if j == 0 else ""
            r.append(p + f"buffer_load_dwordx4 {v4(VR+32*(t+1)+16*hi+4*j)}, v{vK}, {srd(K_)}, s{sT0} offen offset:{128*(j>>1)+512*(j&1)} nt")
    return r
def vload(t):
    r = []
    for i in range(8):
        p = f"s_add_u32 s{sT0}, s{sKV}, {t*32768 + (i>>2)*4096}\n" if i % 4 == 0 else ""
        r.append(p + f"buffer_load_dwordx4 {v4(VR+32*(t+1)+4*i)}, v{vL16}, {srd(V_)}, s{sT0} offen offset:{1024*(i&3)} nt")
    return r
def kfix(t, wait, loads):
    loads = list(loads)
    cm(f"K group {t} -> AGPRs")
    if wait is not None: a(f"s_waitcnt vmcnt({wait})")
    if t: ts(3 + t)
    for hi in range(2):
        for hf in range(2):
            A = VR + 32*(t+1) + 16*hi + 8*hf; B = A + 4; dst = aK + 16*(t+4*hi) + 8*hf
            a(loads.pop(0))
            for r in range(4): a(f"v_mov_b32 v{VR+r}, v{A+r}")
            for r in range(4): a(dp("v_mov_b32", VR+r, B+r, None, "row_ror:8", 0xc))
            for r in range(2): a(dp("v_mov_b32", B+r, A+r, None, "row_ror:8", 0x3))
            a(loads.pop(0))
            for r in range(2, 4): a(dp("v_mov_b32", B+r, A+r, None, "row_ror:8", 0x3))
            for r in range(4): a(f"v_accvgpr_write_b32 a{dst+r}, v{VR+r}")
            for r in range(4): a(f"v_accvgpr_write_b32 a{dst+4+r}, v{B+r}")
em(kload(0))
cm("---- set-up: remaining descriptors, lane patterns, offsets (under the first loads) ----")
mk_srd(V_, 56, 0x2000000); mk_srd(WO_, 60, 4096*1024); mk_srd(WG_, 64, 512*3584); mk_srd(WU_, 66, 512*3584)
mk_srd(WD_, 68, 1792*1024); mk_srd(OUT_, 70, 2048); mk_srd(DBG_, 72, 256)
t0, t1 = 36, 37
voff(vL4, [(0,6,4)]); voff(vC16, [(0,4,16)]); voff(vG16, [(4,2,16)])
voff(vOl, [(0,4,64), (4,2,16)]); voff(vOs, [(4,2,1024), (0,4,4)])
voff(vQs, [(0,1,BLK), (4,2,8)])
voff(vDNs, [(0,1,4*BLK), (4,2,16)]); voff(vGUl, [(4,2,2048), (0,4,16)])
voff(vSTd, [(0,4,16), (5,1,8)])
voff(vHr, [(0,1,128), (4,2,16)], const=H_L)
a(f"v_and_b32 v{vXLr}, 32, v{vL16}\nv_lshl_add_u32 v{vXLr}, v{vXLr}, 3, v{vHr}")
voff(vTR, [(4,2,1024), (2,2,128), (0,2,8)])
a(f"v_bfe_u32 v{vTmp}, v{vLane}, 3, 2\nv_xor_b32 v{vTmp}, s{sWV}, v{vTmp}\nv_lshl_add_u32 v{vTR}, v{vTmp}, 5, v{vTR}")
soff(sT0, H_L, wv=32); voff(vHw, [(5,1,128), (0,4,2)], sadd=sT0)
voff(vOCw, [(4,1,2), (3,1,1)]); a(f"v_xor_b32 v{vOCw}, v{vOCw}, v{vLane}\nv_lshlrev_b32 v{vOCw}, 4, v{vOCw}")
soff(sT0, OC_L, wv=OC_W); a(f"v_add_u32 v{vOCw}, s{sT0}, v{vOCw}")
voff(vOCr, [(4,1,2), (1,1,1)]); a(f"v_xor_b32 v{vOCr}, s{sWV}, v{vOCr}\nv_lshlrev_b32 v{vOCr}, 4, v{vOCr}")
voff(t0, [(4,2,256), (0,2,64), (2,2,4)], const=OC_L); a(f"v_add_u32 v{vOCr}, v{vOCr}, v{t0}")
soff(sT0, ML_L, wv=8); voff(vMLw, [(0,2,32)], sadd=sT0)
soff(sT0, ML_L, wv=32); a(f"v_mov_b32 v{vMLr}, s{sT0}")
soff(sT0, XL_L, wv=64); a(f"v_add_u32 v{vXLw}, s{sT0}, v{vXs}")
a(f"v_mov_b32 v{vTmp}, 0x3f803f80")
for r in range(4): a(f"v_accvgpr_write_b32 a{aONE+r}, v{vTmp}")
a(f"v_add_u32 v{t0}, {ONE_L}, v{vL4}\nds_write_b32 v{t0}, v{vTmp}")
for r in range(8): a(f"v_accvgpr_write_b32 a{aWD+r}, 0")
soff(sGB, 0, grp=GR)
soff(sFB, 0, slot=8, grp=1)
soff(sOst, O_OFF, True, ba=16384, wv=4096, s=64)
soff(sLst, LSE_OFF, True, ba=256, wv=64, s=4)
soff(sOld, O_OFF, True, w0=16384, slot=4096)
soff(sLld, LSE_OFF, True, w0=256, slot=64)
soff(sWOst, WO_OFF, w0=4*BLK, ih=BLK, i0=8192, w1=4096, grp=512, slot=128)
soff(sDNst, DN_OFF, ih=BLK, i0=8192, w1=4096, slot=1024, grp=128, w0=64)
soff(sM1, WO_OFF, w1=4*BLK, ih=BLK, i0=8192, w0=4096)
a(f"s_add_u32 s{sM2}, s{sM1}, {DN_OFF - WO_OFF:#x}")
soff(sST1st, ST1_OFF, True, slot=256, i=32, w0=16, w1=8)
soff(sST2ld, ST2_OFF, True, ba=8)
soff(sGUst, GU_OFF, True, slot=8192, i=1024, wv=256)
soff(sCS, CS_OFF, True, sl0=4096, ba=BLK, i=512, wv=128)
cm("workgroups past the 28 hidden blocks follow block 0 of their group with zero weights, to stay in step")
soff(sT0, 0, slot=1)
a(f"s_cmp_lt_u32 s{sFB}, 28\ns_cselect_b32 s{sT0}, s{sT0}, 0\ns_lshl_b32 s{sST1ld}, s{sT0}, 8\ns_lshl_b32 s{sT0}, s{sT0}, 13")
soff(sGUld, GU_OFF, True, wv=256)
a(f"s_add_u32 s{sGUld}, s{sGUld}, s{sT0}\ns_add_u32 s{sST1ld}, s{sST1ld}, s{sGB}\ns_add_u32 s{sST1ld}, s{sST1ld}, {ST1_OFF:#x}")
soff(sQst, Q_OFF, True, slot=256, ih=64, i0=2048, w1=1024, w0=32)
soff(sQld, Q_OFF, True, ba=BLK)
a(f"s_mov_b32 s{sSEL0}, 0x05040100\ns_mov_b32 s{sSEL1}, 0x07060302")
cm("---- first layer's query partials: layer norm of the input, 128 x 64 tile of Wq ----")
a("s_waitcnt vmcnt(8)")
ts(1)
K1 = kload(1)
em(K1[:2])
S, Qr = 90, 91
a(f"v_mov_b32 v{S}, 0\nv_mov_b32 v{Qr}, 0")
for i in range(8):
    a(f"""v_lshlrev_b32 v{t0}, 16, v{XS+i}
    v_and_b32 v{t1}, 0xffff0000, v{XS+i}
    v_add_f32 v{S}, v{S}, v{t0}
    v_fmac_f32 v{Qr}, v{t0}, v{t0}
    v_add_f32 v{S}, v{S}, v{t1}
    v_fmac_f32 v{Qr}, v{t1}, v{t1}""")
a(f"v_lshlrev_b32 v{vX0}, 16, v{vX1}\nv_and_b32 v{vX1}, 0xffff0000, v{vX1}")
em(K1[2:4])
a("s_barrier")
trread(aWQ, vTR, WQ_L, 4)
for n in (2, 4, 8): a(dp("v_add_f32", S, S, S, f"row_ror:{n}")); a(dp("v_add_f32", Qr, Qr, Qr, f"row_ror:{n}"))
for x, y in zip(rows("v_add_f32", S, t0), rows("v_add_f32", Qr, t1)): a(x); a(y)
em(fin(S, Qr, QSCALE) + [f"v_mul_f32 v{S}, v{S}, v{Qr}"])
a("s_waitcnt lgkmcnt(0)")
cm("arrival (all four waves' sentinels are acknowledged): count in bits 48.., one 6-bit field per XCC id")
lna = lab("noarr")
a(f"""s_getreg_b32 s{sT0}, hwreg(HW_REG_XCC_ID)
s_and_b32 s{sT0}, s{sT0}, 7
s_mul_i32 s{sFAST}, s{sT0}, 6
s_cmp_eq_u32 s{sWV}, 0
s_cbranch_scc0 {lna}
s_and_b32 s{sT0}, s2, 7
s_lshl_b32 s{sT0}, s{sT0}, 5
s_lshl_b64 s[{sE}:{sE+1}], 1, s{sFAST}
s_add_u32 s{sE+1}, s{sE+1}, 0x10000
s_atomic_add_x2 s[{sE}:{sE+1}], s[{DBG_}:{DBG_+1}], s{sT0}
{lna}:""")
DE = 60
for j in range(4): a(mf(v4(vCSQ), a4(aWQ+4*j), a4(aONE), 0 if j == 0 else v4(vCSQ)))
for j in range(4): a(mf(v4(DE), a4(aWQ+4*j), v4(XF+4*j), 0 if j == 0 else v4(DE)))
for r in range(4): a(f"v_mul_f32 v{DE+4+r}, v{S}, v{vCSQ+r}")
for r in range(4): a(f"v_fmac_f32 v{DE+4+r}, v{Qr}, v{DE+r}")
a(f"""v_cvt_pk_bf16_f32 v{DE}, v{DE+4}, v{DE+5}
v_cvt_pk_bf16_f32 v{DE+1}, v{DE+6}, v{DE+7}
v_cvt_pk_bf16_f32 v{vCSQ}, v{vCSQ}, v{vCSQ+1}
v_cvt_pk_bf16_f32 v{vCSQ+1}, v{vCSQ+2}, v{vCSQ+3}""")
ts(2)
CT = 80
voff(t0, [(0,3,32)])
cl = f"buffer_load_dwordx2 {v2(CT)}, v{t0}, {srd(DBG_)}, 0 offen sc1"
em(K1[4:])
kfix(0, 8, kload(2)); kfix(1, 8, kload(3)); a(cl); kfix(2, 9, vload(0))
cm("every workgroup has arrived: hand-offs may start; plain stores inside a group only if it sits on one XCC")
lp, ld = lab("bar"), lab("barok")
a(f"""s_waitcnt vmcnt(8)
{lp}:
v_lshrrev_b32 v{t1}, 16, v{CT+1}
v_cmp_gt_u32 vcc, 32, v{t1}
s_cbranch_vccz {ld}
{cl}
s_waitcnt vmcnt(0)
s_sub_u32 s{sTO}, s{sTO}, 1
s_cbranch_scc0 {lp}
s_mov_b32 s{sTO}, 0
{ld}:
s_and_b32 s{sT1}, s2, 7
s_waitcnt lgkmcnt(0)
v_readlane_b32 s{sT0}, v{CT}, s{sT1}
v_readlane_b32 s{sT1}, v{CT+1}, s{sT1}
s_lshl_b64 s[{sE}:{sE+1}], 32, s{sFAST}
s_add_u32 s{sE+1}, s{sE+1}, 0x200000
s_xor_b32 s{sT0}, s{sT0}, s{sE}
s_xor_b32 s{sT1}, s{sT1}, s{sE+1}
s_or_b32 s{sT0}, s{sT0}, s{sT1}
s_cmp_eq_u32 s{sT0}, 0
s_cselect_b32 s{sFAST}, 1, 0""")
ts_put([(sTO, 46)], vM)
exec_set(0x00030003, 0x00030003)
pub(f"buffer_store_dwordx2 {v2(DE)}, v{vQs}, {srd(WS_)}, s{sQst} offen")
exec_all()
def cq_pub():
    cm("column sums of this Wq tile, laid out like a query")
    a(f"s_add_u32 s{sT2}, s{sQst}, {CQ_OFF - Q_OFF:#x}")
    exec_set(0x10001, 0x10001)
    pub(f"buffer_store_dwordx2 {v2(vCSQ)}, v{vQs}, {srd(WS_)}, s{sT2} offen")
    exec_all()
if opt["cqp"] == 0: cq_pub()
if opt["cw"]:
    cm("ask for the code of the coming stages: one or two 64-byte lines per wave")
    soff(sT0, 0, idx=256, wv=64)
    a(f"s_getpc_b64 s[{X_+2}:{X_+3}]\nL_pc:\ns_add_u32 s{X_+2}, s{X_+2}, L_tblk-L_pc\ns_addc_u32 s{X_+3}, s{X_+3}, 0\ns_load_dword s{X_+1}, s[{X_+2}:{X_+3}], s{sT0}")
    if opt["cw"] > 1: a(f"s_add_u32 s{sT0}, s{sT0}, 8192\ns_min_u32 s{sT0}, s{sT0}, L_end-L_tblk\ns_load_dword s{X_}, s[{X_+2}:{X_+3}], s{sT0}")
kfix(3, None, vload(1))
qloads = [f"buffer_load_dwordx4 {v4(QF+4*j)}, v{vOl}, {srd(WS_)}, s{sQld} offen offset:{1024*j}" for j in range(4)]
poll(qloads, range(QF, QF+16), vM, between=lambda: em(vload(2)), wait1=8)
ts(7)
ts_put([(TSB+2*k, k) for k in range(1, 8)] + [(sTO, 47)], vM)
vMu, vA = vM + 2, vM + 3
cm("these queries are normalised already: sums that make the deferred scale 1")
a(f"v_mov_b32 v{vMu}, 0\nv_mov_b32 v{vA}, {f2u((QSCALE*QSCALE - 1e-5)*64):#x}")
Dt = lambda t: DT + 4*t
qk_on = lambda B: [mf(v4(Dt(tau)), a4(aK+16*tau+4*j), v4(B+4*j), 0 if j == 0 else v4(Dt(tau))) for tau in (0, 2, 1, 3, 4, 6, 5, 7) for j in range(4)]
qk = qk_on(QF)
em(qk[:4])
a("s_branch L_qk")
a("L_tblk:")
MARK = len(a.lines)

a("L_layer:")
until(1)
cm("---- attention over this workgroup's 512 keys; K, V in registers ----")
poll(qloads + [f"buffer_load_dwordx2 {v2(vMu)}, v{vP16}, {srd(WS_)}, s{sST2ld} offen"], list(range(QF, QF+16)) + [vMu, vA], vM, spec=qk[:4], ack=True)
a("L_qk:")
tsn('qk_start')
ZB = ZA + 4
def fold(Z):
    xlo = lambda t, X: [dp("v_add_f32", X+r, Dt(t)+r, Dt(t)+r, "row_ror:8", 0x3) for r in range(4)]
    xhi = lambda t, X: [dp("v_add_f32", X+r, Dt(t)+r, Dt(t)+r, "row_ror:8", 0xc) for r in range(4)]
    zev = lambda z: [dp("v_add_f32", z+r, XT+r, XT+r, "row_ror:12", 0x5) for r in range(4)]
    zod = lambda z: [dp("v_add_f32", z+r, YT+r, YT+r, "row_ror:4", 0xa) for r in range(4)]
    return (xlo(0, XT) + xhi(2, XT) + zev(Z) + xlo(1, YT) + xhi(3, YT) + zod(Z),
            xlo(4, XT) + xhi(6, XT) + zev(Z+4) + xlo(5, YT) + xhi(7, YT) + zod(Z+4))
lnst = []
for c in ("quad_perm:[1,0,3,2]", "quad_perm:[2,3,0,1]", "row_ror:4"): lnst += [dp("v_add_f32", vMu, vMu, vMu, c), dp("v_add_f32", vA, vA, vA, c)]
lnst += fin(vMu, vA, QSCALE)
fa, fb = fold(ZA)
mix(qk[4:11], lnst[:12], 2, 1)
mix(qk[11:], fa + [lnst[12], "s_nop 0"] + fb)
cm("deferred layer norm: scores = rstd * (K.q_raw - mean * K.colsum)")
only(1, lambda lb: em([f"v_fmac_f32 v{ZA+r}, v{vMu}, v{ZC+r}" for r in range(8)]))
vLs, vU = vM + 1, vM + 2
a(f"""v_max3_f32 v{vM}, v{ZA}, v{ZA+1}, v{ZA+2}
v_max3_f32 v{vLs}, v{ZB}, v{ZB+1}, v{ZB+2}
v_max3_f32 v{vM}, v{ZA+3}, v{ZB+3}, v{vM}
v_max_f32 v{vM}, v{vLs}, v{vM}""")
a(dp("v_max_f32", vM, vM, vM, "row_ror:4")); a(dp("v_max_f32", vM, vM, vM, "row_ror:8"))
em(rows("v_max_f32", vM, vU))
P = [XT, YT, QF, QF+4]
a(f"v_mul_f32 v{vM}, v{vM}, v{vA}")
for r in range(8): a(f"v_fma_f32 v{ZA+r}, v{ZA+r}, v{vA}, -v{vM}")
for r in range(8): a(f"v_exp_f32 v{ZA+r}, v{ZA+r}")
for r in range(4): a(f"v_cvt_pk_bf16_f32 v{P[0]+r}, v{ZA+2*r}, v{ZA+2*r+1}")
tsn('softmax_done')
def transpose(t, waits):
    cm(f"V group {t}: pair up keys for the MFMA")
    src, dst = VR + 32*(t+1), VR + 32*t
    for p in range(4):
        if waits[p] is not None: a(f"s_waitcnt vmcnt({waits[p]})")
        for q in range(4):
            a(f"v_perm_b32 v{dst+8*q+p}, v{src+8*p+4+q}, v{src+8*p+q}, s{sSEL0}")
            a(f"v_perm_b32 v{dst+8*q+4+p}, v{src+8*p+4+q}, v{src+8*p+q}, s{sSEL1}")
def wo_dma():
    piece(vU, vU+1)
    a(f"v_lshl_add_u32 v{vU}, v{vU+1}, 10, v{vU}")
    soff(sT0, 0, grp=512*1024, slot=128*1024, wv=8*1024, i=128)
    dma(WO_, vU, sT0, 32*1024, 4, WO_L)
def pv(t): return [mf(v4(DT+4*e), v4(VR+32*t+4*e), v4(P[t]), 0 if t == 0 else v4(DT+4*e)) for e in range(8)]
FW, vMM, vL, vR, vLSE = QF+8, QF+12, QF+13, QF+14, QF+15
ML = ZA
only(0, lambda lb: (em(vload(3)), transpose(0, [None]*4), transpose(1, [None]*4) if opt['m01'] else None), bool(opt['tin'] & 1))
rot = lambda tt: [dp("v_mov_b32", P[tt]+r, P[0]+r, None, f"row_ror:{16-4*tt}") for r in range(4)]
rs = rows("v_add_f32", vLs, vU)
r1, r2, r3 = rot(1), rot(2), rot(3)
s0 = [f"v_add_f32 v{ZA+2*r}, v{ZA+2*r}, v{ZA+2*r+1}" for r in range(4)] + \
     [f"v_add_f32 v{ZA}, v{ZA}, v{ZA+2}", f"v_add_f32 v{ZA+4}, v{ZA+4}, v{ZA+6}", f"v_add_f32 v{vLs}, v{ZA}, v{ZA+4}", r1[0],
      dp("v_add_f32", vLs, vLs, vLs, "row_ror:4"), r1[1], dp("v_add_f32", vLs, vLs, vLs, "row_ror:8"), rs[0], r1[2], rs[1], rs[2], r1[3]]
mix(pv(0), s0)
tsn('pv0')
if not opt['m01']: only(0, lambda lb: transpose(1, [None]*4), bool(opt['tin'] & 2))
p1 = pv(1)
em([p1[0], rs[3], r2[0], p1[1], rs[4], rs[5], p1[2], "s_mov_b64 exec, 15", f"ds_write_b64 v{vMLw}, {v2(vM)}", "s_mov_b64 exec, -1",
    p1[3], r2[1], r2[2], p1[4], r2[3], r3[0], p1[5], r3[1], r3[2], p1[6], "s_waitcnt lgkmcnt(0)", "s_barrier",
    f"ds_read_b128 {v4(ML)}, v{vMLr}", f"ds_read_b128 {v4(ML+4)}, v{vMLr} offset:16", p1[7], r3[3]])
tsn('pv1')
only(0, lambda lb: (wo_dma(), transpose(2, [12, None, None, None])), bool(opt['tin'] & 4))
fac = ["s_waitcnt lgkmcnt(0)", f"v_max3_f32 v{vMM}, v{ML}, v{ML+2}, v{ML+4}", f"v_max_f32 v{vMM}, v{ML+6}, v{vMM}"] + \
      [f"v_sub_f32 v{FW+w}, v{ML+2*w}, v{vMM}" for w in range(4)] + [f"v_exp_f32 v{FW+w}, v{FW+w}" for w in range(4)] + \
      [f"v_mul_f32 v{vL}, v{FW}, v{ML+1}"] + [f"v_fmac_f32 v{vL}, v{FW+w}, v{ML+2*w+1}" for w in range(1, 4)] + \
      [f"v_rcp_f32 v{vR}, v{vL}", f"v_log_f32 v{vLSE}, v{vL}"] + [f"v_mul_f32 v{FW+w}, v{FW+w}, v{vR}" for w in range(4)] + \
      [f"v_add_f32 v{vLSE}, v{vLSE}, v{vMM}"]
mix(pv(2), fac[:12], 2, 2)
tsn('pv2')
only(0, lambda lb: (transpose(3, [10, 8, 6, 4]), cq_pub() if opt['cqp'] == 2 else None), bool(opt['tin'] & 8))
gath = lambda u: [dp("v_mov_b32", DT+k, DT+8*u+k, None, f"row_ror:{4*u}", 1 << u) for k in range(8)]
mix(pv(3), fac[12:] + gath(1)[:6])
em(gath(1)[6:] + gath(2) + gath(3))
tsn('pv_done')
until(0)
cm("combine the four waves, publish the normalised partial output and its log-sum-exp")
a(f"ds_write_b128 v{vOCw}, {v4(DT)}\nds_write_b128 v{vOCw}, {v4(DT+4)} offset:1024\ns_mov_b64 exec, 1")
pub(f"buffer_store_dword v{vLSE}, off, {srd(WS_)}, s{sLst}")
a("s_mov_b64 exec, -1\ns_waitcnt lgkmcnt(0)\ns_barrier")
OV = ZA
for w in range(4): a(f"ds_read2st64_b32 {v2(OV+2*w)}, v{vOCr} offset0:{8*w} offset1:{8*w+4}")
a(f"s_waitcnt lgkmcnt(3)\nv_mul_f32 v{OV}, v{FW}, v{OV}\nv_mul_f32 v{OV+1}, v{FW}, v{OV+1}")
for w in range(1, 4): a(f"s_waitcnt lgkmcnt({3-w})\nv_fmac_f32 v{OV}, v{FW+w}, v{OV+2*w}\nv_fmac_f32 v{OV+1}, v{FW+w}, v{OV+2*w+1}")
a(f"v_cvt_pk_bf16_f32 v{OV}, v{OV}, v{OV+1}")
pub(f"buffer_store_dword v{OV}, v{vOs}, {srd(WS_)}, s{sOst} offen")
tsn('O_pub')
cm("---- output projection: 16 key splits of one head as MFMA rows, weighted by their softmax share ----")
OF, LS, DB, EB = T, T+16, T+20, T+28
def wo_frags():
    a(f"s_and_b32 s{sT0}, s{sWV}, 1\ns_lshl_b32 s{sT0}, s{sT0}, 5\nv_xor_b32 v{EB}, s{sT0}, v{vTR}\nv_xor_b32 v{EB+1}, 32, v{EB}\ns_barrier")
    trread(aWO, EB, WO_L, 4); trread(aWO+16, EB+1, WO_L, 4)
    a("s_waitcnt lgkmcnt(0)")
poll([f"buffer_load_dwordx4 {v4(OF+4*j)}, v{vOl}, {srd(WS_)}, s{sOld} offen offset:{1024*j}" for j in range(4)] +
     [f"buffer_load_dwordx4 {v4(LS)}, v{vG16}, {srd(WS_)}, s{sLld} offen"], range(OF, OF+20), EB, l0=((cq_pub if opt['cqp'] == 1 else lambda: None), wo_frags), ack=True)
tsn('H2_got')
ch = [f"v_max3_f32 v{EB+4}, v{LS}, v{LS+1}, v{LS+2}", f"v_max_f32 v{EB+4}, v{LS+3}, v{EB+4}"] + rows("v_max_f32", EB+4, EB+5) + \
     [f"v_sub_f32 v{EB+r}, v{LS+r}, v{EB+4}" for r in range(4)] + [f"v_exp_f32 v{EB+r}, v{EB+r}" for r in range(4)]
bm = [mf(v4(DB+4*t), v4(OF+4*j), a4(aWO+16*t+4*j), 0 if j == 0 else v4(DB+4*t)) for j in range(4) for t in range(2)]
em([bm[0], ch[0], ch[1], ch[2], bm[1], bm[2], ch[3], ch[4], ch[5], bm[3], bm[4], ch[6], ch[7], ch[8], bm[5],
    ch[9], ch[10], bm[6], ch[11], ch[12], bm[7], ch[13], ch[14], ch[15]])
ra = rows("v_add_f32", EB+4, EB+5)
a(f"""v_add_f32 v{EB+4}, v{EB}, v{EB+1}
v_add_f32 v{EB+5}, v{EB+2}, v{EB+3}
v_add_f32 v{EB+4}, v{EB+4}, v{EB+5}
{ra[0]}
v_mul_f32 v{DB}, v{EB}, v{DB}
v_mul_f32 v{DB+4}, v{EB}, v{DB+4}
{ra[1]}
v_fmac_f32 v{DB}, v{EB+1}, v{DB+1}
{ra[2]}
v_fmac_f32 v{DB+4}, v{EB+1}, v{DB+5}
{ra[3]}
v_fmac_f32 v{DB}, v{EB+2}, v{DB+2}
v_fmac_f32 v{DB+4}, v{EB+2}, v{DB+6}
{ra[4]}
v_fmac_f32 v{DB}, v{EB+3}, v{DB+3}
v_fmac_f32 v{DB+4}, v{EB+3}, v{DB+7}
{ra[5]}
v_rcp_f32 v{EB+4}, v{EB+4}
v_permlane16_swap_b32 v{DB}, v{DB+4}
v_add_f32 v{DB}, v{DB}, v{DB+4}
v_mov_b32 v{DB+4}, v{DB}
v_permlane32_swap_b32 v{DB}, v{DB+4}
v_add_f32 v{DB}, v{DB}, v{DB+4}
s_mov_b32 exec_hi, 0
v_mul_f32 v{DB}, v{DB}, v{EB+4}
buffer_store_dword v{DB}, v{vL4}, {srd(WS_)}, s{sWOst} offen sc1
s_mov_b64 exec, -1""")
tsn('WO_pub')

def pretouch(vt, base, parts, sT0=sT0):
    cm("bring the next hand-off lines into this die's L2")
    lx = lab("pt")
    a(f"v_lshlrev_b32 v{vt}, 3, v{vL16}\ns_mov_b32 exec_hi, 0")
    for w, (off, n, terms) in enumerate(parts):
        if w:
            a(f"s_cmp_eq_u32 s{sWV}, {w-1}\ns_cbranch_scc1 {lx}")
        soff(sT0, base + off, True, **terms)
        a(f"s_mov_b32 exec_lo, {(1 << n) - 1:#x}")
    a(f"{lx}:\nbuffer_load_dword a{aDUM}, v{vt}, {srd(WS_)}, s{sT0} offen sc1\ns_mov_b64 exec, -1")
def first_window(lb):
    cm("first layer, while the projection partials travel: second layer's sentinels, FFN tiles, K . colsum(Wq)")
    W = T + 36
    CF = R4 + 16 if opt["zov"] else QF
    cq = [f"buffer_load_dwordx4 {v4(CF+4*j)}, v{vOl}, {srd(WS_)}, s{sT2} offen offset:{1024*j}" for j in range(4)]
    a(f"s_add_u32 s{sT2}, s{sGB}, {CQ_OFF:#x}")
    em([l + " sc1" for l in cq])
    ln, lj = lab("noffn"), lab("ffnj")
    a(f"s_cmp_lt_u32 s{sFB}, 28\ns_cbranch_scc0 {ln}")
    cm("acknowledged before this wave publishes its gate / up partials, which every use of those slots depends on")
    for r in range(4): a(f"v_mov_b32 v{R4+r}, -1")
    rst_off(sT0, LSTR)
    a(f"buffer_store_dwordx4 {v4(R4)}, v{vL16}, {srd(WS_)}, s{sT0} offen sc1")
    piece(W+1, W+2)
    a(f"v_mul_u32_u24 v{W}, 3584, v{W+2}\nv_add_u32 v{W}, v{W}, v{W+1}\nv_lshl_add_u32 v{W+1}, v{W+2}, 10, v{W+1}")
    soff(sT0, 0, i=64*3584, wv=8*3584, slot=1024, grp=128)
    a(f"s_mov_b32 s{sT1}, s{sT0}")
    dma(WG_, W, sT0, 32*3584, 2, WG_L); dma(WU_, W, sT1, 32*3584, 2, WU_L)
    soff(sT0, 0, slot=8*65536, grp=65536, wv=8192, i=128)
    dma(WD_, W+1, sT0, 32*1024, 2, WD_L)
    pretouch(W, 0, [(GU_OFF, 4, dict(idx=1024)), (GU_OFF + 512, 4, dict(idx=1024)), (CS_OFF, 4, dict(s=512, ba=BLK)), (ST1_OFF, 1, dict(idx=128))])
    a(f"s_waitcnt vmcnt(7)\n{lj}:")
    deferred.append((ln, lambda: a(f"s_waitcnt vmcnt(0)\ns_branch {lj}")))
    poll(cq, range(CF, CF+16), vM, issued=True)
    za, zb = fold(ZC)
    if opt["zov"]:
        a("s_barrier")
        em([l + " sc1" for l in lines(sM1)])
    mix(qk_on(CF), za + ["s_nop 0", "s_nop 0"] + zb, 2, 11)
    a("s_branch L_m1wait" if opt["zov"] else "s_branch L_acked")
M = T
def lines(soffr, base=0): return [f"buffer_load_dwordx4 {v4(M+base+4*u)}, v{vL16}, {srd(WS_)}, s{soffr} offen offset:{1024*u}" for u in range(4)]
def reduce32(jobs):
    for b, x0, x1 in jobs:
        for d, x in ((0, 4), (2, 6), (8, 12), (10, 14), (0, 8), (2, 10)): a(f"v_pk_add_f32 {v2(M+b+d)}, {v2(M+b+d)}, {v2(M+b+x)}")
    steps = [lambda m, x0, x1: [f"v_permlane32_swap_b32 v{m}, v{m+2}", f"v_permlane32_swap_b32 v{m+1}, v{m+3}"],
             lambda m, x0, x1: [f"v_add_f32 v{m}, v{m}, v{m+2}", f"v_add_f32 v{m+1}, v{m+1}, v{m+3}"],
             lambda m, x0, x1: [dp("v_add_f32", m, m, m, "row_ror:8"), dp("v_add_f32", m+1, m+1, m+1, "row_ror:8")],
             lambda m, x0, x1: [f"v_mov_b32 v{m+2}, v{m}", f"v_mov_b32 v{m+3}, v{m+1}"],
             lambda m, x0, x1: [f"v_permlane16_swap_b32 v{m}, v{m+2}", f"v_permlane16_swap_b32 v{m+1}, v{m+3}"],
             lambda m, x0, x1: [f"v_add_f32 v{x0}, v{x0}, v{m}", f"v_add_f32 v{x1}, v{x1}, v{m+1}"],
             lambda m, x0, x1: [f"v_add_f32 v{x0}, v{x0}, v{m+2}", f"v_add_f32 v{x1}, v{x1}, v{m+3}"],
             lambda m, x0, x1: [f"v_cvt_pk_bf16_f32 v{m}, v{x0}, v{x1}"]]
    for st_ in steps:
        for b, x0, x1 in jobs: em(st_(M+b, x0, x1))
def sums(s, q):
    return [f"v_permlane32_swap_b32 v{s}, v{q}", f"v_add_f32 v{s}, v{s}, v{q}", dp("v_add_f32", s, s, s, "quad_perm:[1,0,3,2]"),
            dp("v_add_f32", s, s, s, "quad_perm:[2,3,0,1]"), dp("v_add_f32", s, s, s, "row_ror:4")]
cm("---- residual update over all 32 projection partials; gate / up partial products of 64 input columns ----")
only(0, first_window)
XR = T + 20
a(f"s_add_u32 s{sT0}, s{sXj}, s{sGB}\ns_add_u32 s{sT0}, s{sT0}, {X_OFF:#x}")
poll([f"buffer_load_dword v{XR}, v{vXs}, {srd(WS_)}, s{sT0} offen"], [XR], XR+1)
a(f"v_lshlrev_b32 v{vX0}, 16, v{XR}\nv_and_b32 v{vX1}, 0xffff0000, v{XR}")
cm("first poll only after this workgroup's own write-through stores have landed: early reads slow the writers down")
a("L_acked:\ns_barrier")
poll(lines(sM1), range(M, M+16), M+16, first="L_m1wait")
reduce32([(0, vX0, vX1)])
tsn('M1_done')
XC, DG, DU = T+4, T+12, T+16
a(f"""ds_write_b32 v{vXLw}, v{M}
v_lshlrev_b32 v{vX0}, 16, v{M}
v_and_b32 v{vX1}, 0xffff0000, v{M}
v_add_f32 v{M+1}, v{vX0}, v{vX1}
v_mul_f32 v{M+2}, v{vX0}, v{vX0}
v_fmac_f32 v{M+2}, v{vX1}, v{vX1}
s_waitcnt lgkmcnt(0)
s_barrier
s_cmp_lt_u32 s{sFB}, 28
s_cbranch_scc0 L_stageD
ds_read_b128 {v4(XC)}, v{vXLr} offset:256
ds_read_b128 {v4(XC+4)}, v{vXLr} offset:{256+64}""")
only(0, lambda lb: (trread(aWG, vTR, WG_L, 2), trread(aWU, vTR, WU_L, 2)))
st = sums(M+1, M+2)
em(st[:3])
a("s_waitcnt lgkmcnt(0)")
mix([mf(v4(DG), v4(XC), a4(aWG), 0), mf(v4(DU), v4(XC), a4(aWU), 0), mf(v4(DG), v4(XC+4), a4(aWG+4), v4(DG)), mf(v4(DU), v4(XC+4), a4(aWU+4), v4(DU))], st[3:], 1)
a("s_mov_b32 exec_lo, 1\ns_mov_b32 exec_hi, 1")
pub(f"buffer_store_dword v{M+1}, v{vXs}, {srd(WS_)}, s{sST1st} offen")
a(f"s_mov_b64 exec, 0xffff\nv_mov_b32 v{DU+3}, v{DG+2}\nv_mov_b32 v{DG+2}, v{DU}\nv_mov_b32 v{DG+3}, v{DU+1}")
pub(f"buffer_store_dwordx4 {v4(DG)}, v{vC16}, {srd(WS_)}, s{sGUst} offen")
exec_all()
def cs_pub(lb):
    cm("rows 2 and 3 of the products were fed with ones: (up, gate) column sums; block 0 also publishes the residual")
    a(f"v_lshrrev_b32 v{T+32}, 1, v{vC16}\ns_mov_b64 exec, 0xffff")
    pub(f"buffer_store_dwordx2 {v2(DU+2)}, v{T+32}, {srd(WS_)}, s{sCS} offen")
    exec_all()
    trread(aWD, vTR, WD_L, 2)
    a(f"s_cmp_lt_u32 s{sFB}, 8\ns_cbranch_scc0 {lb}\ns_add_u32 s{sT0}, s{sXj}, s{sGB}\ns_add_u32 s{sT0}, s{sT0}, {X_OFF:#x}")
    exec_set(0xff, 0xff)
    pub(f"buffer_store_dword v{M}, v{vXs}, {srd(WS_)}, s{sT0} offen")
    exec_all()
only(0, cs_pub)
tsn('GU_pub')
cm("---- layer norm on the summed products, gate, down projection of 64 hidden columns ----")
a("L_stageD:")
G, SD, DD = T, T+8, T+12
def colsums(lb):
    C = T + 16
    soff(sT0, 0, sl0=4096, ba=BLK)
    a(f"s_cmp_lt_u32 s{sFB}, 28\ns_cselect_b32 s{sT0}, s{sT0}, 0")
    soff(sT1, CS_OFF, True, wv=128)
    a(f"s_add_u32 s{sT0}, s{sT0}, s{sT1}\nv_lshrrev_b32 v{C+4}, 1, v{vGUl}")
    poll([f"buffer_load_dwordx2 {v2(C+2*u)}, v{C+4}, {srd(WS_)}, s{sT0} offen offset:{512*u}" for u in range(2)], range(C, C+4), C+5)
    a(f"""v_add_f32 v{C}, v{C}, v{C+2}
    v_add_f32 v{C+1}, v{C+1}, v{C+3}
    v_permlane16_swap_b32 v{C+1}, v{C}
    v_add_f32 v{vCS}, v{C}, v{C+1}
    v_mov_b32 v{C}, v{vCS}
    v_permlane32_swap_b32 v{vCS}, v{C}
    v_add_f32 v{vCS}, v{vCS}, v{C}""")
poll([f"buffer_load_dwordx4 {v4(G+4*u)}, v{vGUl}, {srd(WS_)}, s{sGUld} offen offset:{1024*u}" for u in range(2)] +
     [f"buffer_load_dwordx2 {v2(SD)}, v{vSTd}, {srd(WS_)}, s{sST1ld} offen"], range(G, G+10), DD, between=lambda: only(0, colsums))
tsn('H4_got')
HF = T + 16
sd = []
for n in (1, 2, 4, 8): sd += [dp("v_add_f32", SD, SD, SD, f"row_ror:{n}"), dp("v_add_f32", SD+1, SD+1, SD+1, f"row_ror:{n}")]
sd += fin(SD, SD+1)
gd = [f"v_add_f32 v{G+r}, v{G+r}, v{G+4+r}" for r in range(4)] + \
     [f"v_permlane32_swap_b32 v{G}, v{G+1}", f"v_permlane32_swap_b32 v{G+2}, v{G+3}", f"v_add_f32 v{G}, v{G}, v{G+1}",
      f"v_add_f32 v{G+2}, v{G+2}, v{G+3}", f"v_permlane16_swap_b32 v{G}, v{G+2}", f"v_add_f32 v{G}, v{G}, v{G+2}"]
em([sd[0], sd[1], gd[0], sd[2], sd[3], gd[1], sd[4], sd[5], gd[2], sd[6], sd[7], gd[3], sd[8], sd[9], gd[4], sd[10], gd[5], sd[11], gd[6],
    gd[7], sd[12], sd[13], gd[8], gd[9]])
a(f"""v_fmac_f32 v{G}, v{SD}, v{vCS}
v_mul_f32 v{G}, v{G}, v{SD+1}
v_mov_b32 v{G+1}, v{G}
v_permlane16_swap_b32 v{G}, v{G+1}
v_max_f32 v{G}, 0, v{G}
v_mul_f32 v{G}, v{G}, v{G+1}
v_cvt_pk_bf16_f32 v{G}, v{G}, v{G}
ds_write_b16 v{vHw}, v{G}
s_waitcnt lgkmcnt(0)
s_barrier
ds_read_b128 {v4(HF)}, v{vHr}
ds_read_b128 {v4(HF+4)}, v{vHr} offset:64
s_waitcnt lgkmcnt(1)
{mf(v4(DD), a4(aWD), v4(HF), 0)}
s_waitcnt lgkmcnt(0)
{mf(v4(DD), a4(aWD+4), v4(HF+4), v4(DD))}
s_bfe_u32 s{sT0}, s2, 0x20006
s_and_b32 s{sT1}, s2, 7""")
exec_set(0x00030003, 0x00030003)
a(f"buffer_store_dwordx4 {v4(DD)}, v{vDNs}, {srd(WS_)}, s{sDNst} offen sc1")
exec_all()
tsn('DN_pub')
a(f"s_cmp_eq_u32 s{sLAYER}, 0\ns_cbranch_scc1 L_next")
cm("---- last layer: group 0 finishes the output, one wave per 32 columns ----")
a(f"""s_cmp_eq_u32 s{sT1}, 0
s_cbranch_scc0 L_fin
s_waitcnt vmcnt(0)
s_barrier
s_cmp_eq_u32 s{sT0}, s{sWV}
s_cbranch_scc0 L_fin""")
poll(lines(sM2), range(M, M+16), M+16)
reduce32([(0, vX0, vX1)])
exec_set(0xff, 0xff)
a(f"buffer_store_dword v{M}, v{vXs}, {srd(OUT_)}, s{sXj} offen")
if TS or opt["until"]: a("s_mov_b64 exec, -1\n" + ("s_waitcnt vmcnt(0)\n" if opt["outw"] else "") + "s_branch L_fin")
else: a("s_endpgm")
cm("---- first layer: residual update of 128 columns, raw query partials for the next layer ----")
a("L_next:")
XA, vXw, vXr, DE = T+32, T+40, T+41, T+44
PT1 = [(O_OFF, 8, dict(idx=1024)), (GU_OFF, 8, dict(idx=1024)), (Q_OFF, 2, dict(s=256, ba=BLK)), (ST1_OFF, 1, dict(idx=128))]
if opt["pt2"] == 0: pretouch(vXw, LSTR, PT1)
soff(sT0, DN_OFF, w1=4*BLK, slot=BLK, w0=2*4096)
a(f"s_add_u32 s{sT1}, s{sT0}, 4096")
soff(sT2, X_OFF, True, w1=1024, slot=256, w0=128)
soff(sCS, X2_L, wv=128)
a(f"""v_add_u32 v{vXw}, s{sCS}, v{vXs}
v_and_b32 v{vXr}, 16, v{vL16}
v_lshl_add_u32 v{vXr}, v{vXr}, 4, v{vG16}
v_add_u32 v{vXr}, {X2_L}, v{vXr}""")
soff(sCS, ST2_OFF, True, slot=32, w0=16, w1=8)
poll([f"buffer_load_dword v{XA}, v{vXs}, {srd(WS_)}, s{sT2} offen", f"buffer_load_dword v{XA+1}, v{vXs}, {srd(WS_)}, s{sT2} offen offset:64"],
     range(XA, XA+2), XA+4)
a(f"""v_lshlrev_b32 v{XA+2}, 16, v{XA+1}
v_and_b32 v{XA+3}, 0xffff0000, v{XA+1}
v_and_b32 v{XA+1}, 0xffff0000, v{XA}
v_lshlrev_b32 v{XA}, 16, v{XA}
s_barrier""")
poll(lines(sT0) + lines(sT1, 16), range(M, M+32), XA+4, **(dict(between=lambda: pretouch(XA+6, LSTR, PT1, X_), wait1=1) if opt["pt2"] == 1 else {}))
reduce32([(0, XA, XA+1), (16, XA+2, XA+3)])
tsn('M2_done')
a(f"""ds_write2_b32 v{vXw}, v{M}, v{M+16} offset0:0 offset1:16
v_lshlrev_b32 v{XA}, 16, v{M}
v_and_b32 v{XA+1}, 0xffff0000, v{M}
v_lshlrev_b32 v{XA+2}, 16, v{M+16}
v_and_b32 v{XA+3}, 0xffff0000, v{M+16}
s_add_u32 s{WS_}, s{WS_}, {LSTR:#x}
s_addc_u32 s{WS_+1}, s{WS_+1}, 0
s_waitcnt lgkmcnt(0)
s_barrier""")
XE = T + 48
for j in range(4): a(f"ds_read_b128 {v4(XE+4*j)}, v{vXr} offset:{64*j}")
a(f"""v_add_f32 v{M+1}, v{XA}, v{XA+1}
v_mul_f32 v{M+2}, v{XA}, v{XA}
v_add_f32 v{M+3}, v{XA+2}, v{XA+3}
v_fmac_f32 v{M+2}, v{XA+1}, v{XA+1}
v_add_f32 v{M+1}, v{M+1}, v{M+3}
v_fmac_f32 v{M+2}, v{XA+2}, v{XA+2}
v_fmac_f32 v{M+2}, v{XA+3}, v{XA+3}""")
st = sums(M+1, M+2)
for j in range(4):
    a(f"s_waitcnt lgkmcnt({3-j})")
    a(mf(v4(DE), a4(aWQ+4*j), v4(XE+4*j), 0 if j == 0 else v4(DE)))
    a(st[j])
a(st[4])
lst = lab("nost")
a(f"s_bfe_u32 s{sT0}, s2, 0x30003\ns_cmp_eq_u32 s{sT0}, 0\ns_cbranch_scc0 {lst}\ns_mov_b32 exec_lo, 1\ns_mov_b32 exec_hi, 1")
pub(f"buffer_store_dword v{M+1}, v{vXs}, {srd(WS_)}, s{sCS} offen")
a(f"{lst}:")
exec_set(0x00030003, 0x00030003)
a(f"v_cvt_pk_bf16_f32 v{DE}, v{DE}, v{DE+1}\nv_cvt_pk_bf16_f32 v{DE+1}, v{DE+2}, v{DE+3}")
pub(f"buffer_store_dwordx2 {v2(DE)}, v{vQs}, {srd(WS_)}, s{sQst} offen")
lnx = lab("nox")
a(f"s_mov_b32 s{sLAYER}, 1\ns_cmp_eq_u32 s{sT0}, 1\ns_cbranch_scc0 {lnx}")
exec_set(0xff, 0xff)
pub(f"buffer_store_dword v{M}, v{vXs}, {srd(WS_)}, s{sT2} offen", f"buffer_store_dword v{M+16}, v{vXs}, {srd(WS_)}, s{sT2} offen offset:64")
a(f"{lnx}:")
exec_all()
tsn('Q_pub')
ts_put([(TSB+2*k, 8+k) for k in range(12)], T+40)
a("s_branch L_layer")
tail = a.lines[MARK:]; del a.lines[MARK:]
for l, fn in early: a(f"{l}:"); fn()
a.lines += tail
n = 0
while n < len(deferred):
    l, fn = deferred[n]; a(f"{l}:"); fn(); n += 1
a("L_fin:")
until(2)
if TS:
    ts(11)
    a(f"s_memrealtime s[{sE}:{sE+1}]")
    ts_put([(TSB+2*k, 24+k) for k in range(12)] + [(sE, 43), (sFAST, 40), (sTO, 41)], T+40)
    soff(sT0, TS_OFF - LSTR, wg=1024, wv=256)
    a(f"buffer_store_dword v{T+40}, v{vL4}, {srd(WS_)}, s{sT0} offen")
a("L_end:\ns_endpgm")

import asmlib
asmlib.BRANCH_MARGIN = 0 if opt['nobr'] else 1
body = a.finalize()
kn = NAME + "_kernel"
ref = open("cdna_kernels/" + NAME + ".s.ref").read().split("\n")
head = [l for l in ref if l.startswith(";") and "@launch" not in l and "Override launch" not in l and "grid=ceil" not in l][:13]
diag = ("; tsset " + opt["tsset"] + "\n; opts " + " ".join([sys.argv[0]] + [x for x in sys.argv[2:] if not x.startswith(("ts", "tobits", "outw"))]) + "\n") if TS else ""
doc = """; One persistent launch, one workgroup of four 512-register waves per CU.
;  - hand-offs between workgroups go through d_ws slots that this launch first fills with an all-ones sentinel; a counter in
;    d_debug (first layer's slots) or the data flow itself (second layer's) orders those writes before any use. Readers spin,
"""
src = "\n".join(head) + f"""
{diag}{doc}; @launch grid=(256,1,1) block=(256,1,1) lds={LDS_BYTES}
.amdgcn_target "amdgcn-amd-amdhsa--gfx950"
.text
.globl {kn}
.p2align 8
.type {kn},@function
{kn}:
{body}
.section .rodata,"a"
.p2align 6
.amdhsa_kernel {kn}
  .amdhsa_next_free_vgpr 512
  .amdhsa_next_free_sgpr 102
  .amdhsa_accum_offset 256
  .amdhsa_group_segment_fixed_size 0
  .amdhsa_kernarg_size 96
  .amdhsa_user_sgpr_count 2
  .amdhsa_user_sgpr_kernarg_segment_ptr 1
  .amdhsa_system_sgpr_workgroup_id_x 1
.end_amdhsa_kernel
"""
open(out_path, "w").write(src)
print("nops inserted:", a.nops, "lines:", len(body.split("\n")), file=sys.stderr)
```

```python
import sys, math, struct
from asmlib import Asm

NAME = "interleave_layers__gqa_block_cached__glu_gated_reglu__decode"
opt = dict(ts=0, fast=1, tobits=20, until=0, upos=0, outw=0, cqp=1, rmap=1, tpos=0, cw=0, tin=15, zov=1, pt2=0, m01=1, kvp=0, wp=0, nobr=1,
           tsset="qk_start,softmax_done,pv_done,O_pub,H2_got,WO_pub,M1_done,GU_pub,H4_got,DN_pub,M2_done,Q_pub")
out_path = sys.argv[1]
for x in sys.argv[2:]:
    k, v = x.split("=")
    assert k in opt, k
    opt[k] = v if k == "tsset" else int(v)
TS = opt["ts"]
KVP = [" nt", "", " sc1 nt", " sc0 sc1 nt"][opt["kvp"]]; WP = [" nt", ""][opt["wp"]]
def f2u(x): return struct.unpack("<I", struct.pack("<f", x))[0]

BLK = 0x20000
GR = 2*BLK
O_OFF, CS_OFF, Q_OFF, ST1_OFF, X_OFF, ST2_OFF, LSE_OFF = 0x0, 0x8000, 0xA000, 0xB000, 0xB400, 0xBC00, 0xBE00
GU_OFF, CQ_OFF = BLK, BLK + 0xB000
WO_OFF, DN_OFF = 0xC000, 8*BLK + 0xC000
LSTR = 0x10000
TS_OFF = 0x600000
WS_SIZE = 0x800000 if TS else 16*BLK
WQ_L, WO_L, WG_L, WU_L, WD_L = 0, 16384, 32768, 40960, 49152
OC_L = 57344; OC_W = 2048
ML_L = OC_L + 4*OC_W
H_L = ML_L + 128
XL_L = H_L + 256
ONE_L = XL_L + 256
X2_L = ONE_L + 256
LDS_BYTES = X2_L + 512
sWV, sGB, sFB, sLAYER, sFAST, sTO = 3, 4, 5, 6, 7, 76
K_, V_, WS_, WQ_, WO_, WG_, WU_, WD_, X_, OUT_, DBG_ = 8, 12, 16, 20, 24, 28, 32, 36, 40, 44, 48
def srd(n): return f"s[{n}:{n+3}]"
(sKV, sQld, sQst, sOst, sLst, sOld, sLld, sWOst, sM1, sM2, sXj, sST1st, sST2ld, sST1ld, sGUst, sGUld, sDNst, sCS, sT2) = range(77, 96)
sT0, sT1, sSEL0, sSEL1 = 96, 97, 98, 99
sE = 100
TSB = 52
vL16, vL4, vOs, vOl, vP16, vC16, vG16, vQs, vDNs, vGUl, vXs = range(0, 11)
vOCw, vOCr, vMLw, vMLr, vHw, vHr, vTR, vXLr, vSTd, vXLw = range(11, 21)
vX0, vX1, vCS = 21, 22, 23
vCSQ = 24
T = 28
QF, DT, vM, XT, YT, ZA = 28, 44, 76, 80, 84, 88
VR = 96
R4 = VR + 128
ZC = R4 + 8
def v4(n): return f"v[{n}:{n+3}]"
def v2(n): return f"v[{n}:{n+1}]"
def a4(n): return f"a[{n}:{n+3}]"
aK, aWQ, aWO, aWG, aWU, aWD, aONE, aDUM, aTS = 0, 128, 144, 176, 184, 192, 200, 204, 205

a = Asm()
def cm(t): a("; " + t)
deferred = []
early = []
uid = [0]
def lab(p):
    uid[0] += 1
    return f"L_{p}_{uid[0]}"
def exec_set(lo, hi):
    if hi == 0: a(f"s_mov_b64 exec, {lo:#x}")
    else: a(f"s_mov_b32 exec_lo, {lo:#x}\ns_mov_b32 exec_hi, {hi:#x}")
def exec_all(): a("s_mov_b64 exec, -1")
def em(l):
    for x in l: a(x)

F = dict(grp=(2,0,3), idx=(2,3,5), i=(2,3,3), slot=(2,6,2), s=(2,3,4), ba=(2,7,1), wg=(2,0,8),
         i0=(2,3,1), ih=(2,4,2), sl0=(2,6,1), wv=(sWV,0,2), w0=(sWV,0,1), w1=(sWV,1,1))
def soff(dst, const, gb=False, **terms):
    first = True
    for name, mul in terms.items():
        src, lo, w = F[name]
        d = dst if first else sE
        if name in ("wg", "wv"): s = f"s{src}"
        else:
            a(f"s_bfe_u32 s{d}, s{src}, {(w << 16) | lo:#x}"); s = f"s{d}"
        if mul == 1 and s == f"s{d}": pass
        elif mul & (mul-1) == 0: a(f"s_lshl_b32 s{d}, {s}, {mul.bit_length()-1}")
        else: a(f"s_mul_i32 s{d}, {s}, {mul}")
        if not first: a(f"s_add_u32 s{dst}, s{dst}, s{sE}")
        first = False
    if first:
        a(f"s_add_u32 s{dst}, s{sGB}, {const:#x}" if gb else f"s_mov_b32 s{dst}, {const:#x}"); return
    if gb: a(f"s_add_u32 s{dst}, s{dst}, s{sGB}")
    if const: a(f"s_add_u32 s{dst}, s{dst}, {const:#x}")
vLane, vTmp = 30, 31
def voff(dst, terms, sadd=None, const=0):
    first = True
    for lo, w, mul in terms:
        if first:
            if lo == 0 and w == 6: src = vLane
            else: a(f"v_bfe_u32 v{dst}, v{vLane}, {lo}, {w}"); src = dst
            if mul != 1 or src != dst: a(f"v_lshlrev_b32 v{dst}, {mul.bit_length()-1}, v{src}")
        else:
            a(f"v_bfe_u32 v{vTmp}, v{vLane}, {lo}, {w}\nv_lshl_add_u32 v{dst}, v{vTmp}, {mul.bit_length()-1}, v{dst}")
        assert mul & (mul-1) == 0
        first = False
    if const: a(f"v_add_u32 v{dst}, {const}, v{dst}")
    if sadd is not None: a(f"v_add_u32 v{dst}, s{sadd}, v{dst}")

def pub(*stores):
    wt = [s + (" sc1" if s.startswith("buffer") else "") for s in stores]
    if not opt["fast"]:
        em(wt); return
    ls, lb = lab("wt"), lab("back")
    a(f"s_cmp_eq_u32 s{sFAST}, 1\ns_cbranch_scc0 {ls}")
    em(stores)
    a(f"{lb}:")
    deferred.append((ls, lambda: a("\n".join(wt) + f"\ns_branch {lb}")))

def only(layer, fn, inline=True):
    ls, lb = lab("l%d" % layer), lab("join")
    hit, miss = ("scc1", "scc0") if layer == 0 else ("scc0", "scc1")
    if inline:
        a(f"s_cmp_eq_u32 s{sLAYER}, 0\ns_cbranch_{miss} {lb}")
        fn(lb)
        a(f"{lb}:")
        return
    a(f"s_cmp_eq_u32 s{sLAYER}, 0\ns_cbranch_{hit} {ls}\n{lb}:")
    (early if opt["tpos"] else deferred).append((ls, lambda: (fn(lb), a(f"s_branch {lb}"))))

def check_ops(regs, tmp):
    r = list(regs)
    def chain(x, t):
        o = [f"v_max3_u32 v{t}, v{x[0]}, v{x[1]}, v{x[2]}"]; x = x[3:]
        while len(x) >= 2: o.append(f"v_max3_u32 v{t}, v{x[0]}, v{x[1]}, v{t}"); x = x[2:]
        if x: o.append(f"v_max_u32 v{t}, v{x[0]}, v{t}")
        return o
    if len(r) == 1: return [f"v_mov_b32 v{tmp}, v{r[0]}"]
    if len(r) == 2: return [f"v_max_u32 v{tmp}, v{r[0]}, v{r[1]}"]
    if len(r) < 8: return chain(r, tmp)
    A, B = r[:len(r)//2], r[len(r)//2:]
    if len(A) % 2 == 0: A, B = A + B[:1], B[1:]
    last = B.pop() if len(B) % 2 == 0 else None
    ca, cb, ops = chain(A, tmp), chain(B, tmp+1), []
    while ca or cb:
        if ca: ops.append(ca.pop(0))
        if cb: ops.append(cb.pop(0))
    ops.append(f"v_max3_u32 v{tmp}, v{tmp}, v{tmp+1}, v{last}" if last is not None else f"v_max_u32 v{tmp}, v{tmp}, v{tmp+1}")
    return ops
def poll(loads, regs, tmp, between=None, spec=(), ack=False, l0=None, wait1=0, issued=False, first=None):
    lc, lr, ld, lx, lf = lab("chk"), lab("retry"), lab("got"), lab("giveup"), lab("first")
    loads = [l + " sc1" for l in loads]
    if first: lf = first
    if l0: only(0, lambda lb: (l0[0](), a("s_waitcnt vmcnt(0)"), em(loads), l0[1](), a(f"s_branch {lf}")))
    if ack: a("s_waitcnt vmcnt(0)")
    if not issued: em(loads)
    if between: between()
    a(f"s_waitcnt vmcnt({wait1})\ns_branch {lc}" if wait1 else f"s_branch {lc if issued else lf}")
    a(f"{lr}:\ns_sub_u32 s{sTO}, s{sTO}, 1\ns_cbranch_scc1 {lx}\ns_mov_b64 exec, vcc")
    em(loads)
    a(f"s_mov_b64 exec, -1\n{lf}:\ns_waitcnt vmcnt(0)\n{lc}:")
    deferred.append((lx, lambda: a(f"s_mov_b32 s{sTO}, 0\ns_branch {ld}")))
    o, sp = check_ops(regs, tmp), list(spec)
    while o or sp:
        if sp: a(sp.pop(0))
        for _ in range(2 if sp else len(o)):
            if o: a(o.pop(0))
    a(f"v_cmp_eq_u32 vcc, -1, v{tmp}\ns_cbranch_vccnz {lr}\n{ld}:")

TSSET = opt["tsset"].split(",")
assert len(TSSET) <= 12
def ts(k):
    if TS: a(f"s_memtime s[{TSB+2*k}:{TSB+2*k+1}]")
def tsn(name):
    if name in TSSET: ts(TSSET.index(name))
def ts_put(pairs, tmp):
    if not TS: return
    a(f"s_waitcnt lgkmcnt(0)\nv_accvgpr_read_b32 v{tmp}, a{aTS}")
    for s, l in pairs: a(f"v_writelane_b32 v{tmp}, s{s}, {l}")
    a(f"v_accvgpr_write_b32 a{aTS}, v{tmp}")
def until(pos):
    if opt["until"] and opt["upos"] == pos:
        l = lab("until")
        a(f"v_accvgpr_read_b32 v{R4+30}, a{aTS}\nv_readfirstlane_b32 s54, v{R4+30}\n{l}:\ns_memrealtime s[52:53]\ns_waitcnt lgkmcnt(0)\ns_sub_u32 s52, s52, s54\ns_cmp_lt_u32 s52, {opt['until']}\ns_cbranch_scc1 {l}")

def mk_srd(d, lo, size):
    a(f"s_mov_b32 s{d}, s{lo}\ns_and_b32 s{d+1}, s{lo+1}, 0xffff\ns_mov_b32 s{d+2}, {size:#x}\ns_mov_b32 s{d+3}, 0x20000")
def mf(d, A, B, c): return f"v_mfma_f32_16x16x32_bf16 {d}, {A}, {B}, {c}"
def dp(op, d, s0, s1, ctrl, bank=0xf):
    if s1 is None: return f"{op}_dpp v{d}, v{s0} {ctrl} row_mask:0xf bank_mask:{bank:#x}"
    return f"{op}_dpp v{d}, v{s0}, v{s1} {ctrl} row_mask:0xf bank_mask:{bank:#x}"
def rows(op, r, t):
    return [f"v_mov_b32 v{t}, v{r}", f"v_permlane16_swap_b32 v{r}, v{t}", f"{op} v{r}, v{r}, v{t}",
            f"v_mov_b32 v{t}, v{r}", f"v_permlane32_swap_b32 v{r}, v{t}", f"{op} v{r}, v{r}, v{t}"]
def mix(main, fill, per=2, start=0):
    fill = list(fill)
    for n, m in enumerate(main):
        a(m)
        if n >= start:
            for _ in range(per):
                if fill: a(fill.pop(0))
    em(fill)
def dma(srdn, voff_, sbase, step, n, ldsbase):
    for i in range(n):
        a(f"s_lshl_b32 s{sE}, s{sWV}, 10\ns_add_u32 m0, s{sE}, {ldsbase + i*4096}")
        if i: a(f"s_add_u32 s{sbase}, s{sbase}, {step}")
        a(f"buffer_load_dwordx4 v{voff_}, {srd(srdn)}, s{sbase} offen{WP} lds")
def piece(dst, t):
    a(f"""v_lshrrev_b32 v{t}, 3, v{vL16}
    v_and_b32 v{t}, 32, v{t}
    v_xor_b32 v{dst}, v{vP16}, v{t}
    s_and_b32 s{sE}, s{sWV}, 1
    s_lshl_b32 s{sE}, s{sE}, 6
    v_xor_b32 v{dst}, s{sE}, v{dst}
    v_lshrrev_b32 v{t}, 7, v{vL16}""")
def trread(areg, vaddr, ldsoff, ksteps):
    for j in range(ksteps):
        for u in range(2):
            a(f"ds_read_b64_tr_b16 a[{areg+4*j+2*u}:{areg+4*j+2*u+1}], v{vaddr} offset:{ldsoff + (32*j+4*u)*128}")
def fin(S, Q, scale=1.0):
    r = [f"v_mul_f32 v{S}, {f2u(-1/512):#x}, v{S}", f"v_mul_f32 v{Q}, {f2u(1/512):#x}, v{Q}",
         f"v_fma_f32 v{Q}, -v{S}, v{S}, v{Q}", f"v_max_f32 v{Q}, 0, v{Q}", f"v_add_f32 v{Q}, {f2u(1e-5):#x}, v{Q}",
         f"v_rsq_f32 v{Q}, v{Q}"]
    if scale != 1.0: r.append(f"v_mul_f32 v{Q}, {f2u(scale):#x}, v{Q}")
    return r
QSCALE = math.log2(math.e) / math.sqrt(128.0)

cm("---- set-up: first loads ----")
if TS or opt["until"]:
    a(f"s_memtime s[52:53]\ns_memrealtime s[54:55]\ns_waitcnt lgkmcnt(0)\nv_mov_b32 v40, 0")
    if TS: a("v_writelane_b32 v40, s52, 0\nv_writelane_b32 v40, s54, 42")
    else: a("v_mov_b32 v40, s54")
    a(f"v_accvgpr_write_b32 a{aTS}, v40")
a(f"""s_cmp_ge_u32 s2, 256
s_cbranch_scc1 L_end
s_load_dwordx16 s[52:67], s[0:1], 0
s_load_dwordx8 s[68:75], s[0:1], 64
v_lshrrev_b32 v{vTmp}, 6, v0
v_and_b32 v{vLane}, 63, v0
v_readfirstlane_b32 s{sWV}, v{vTmp}
s_mov_b32 s{sLAYER}, 0
s_mov_b32 s{sTO}, {1 << opt['tobits']:#x}""")
vK, vW, vSX, vXl = 32, 33, 34, 35
XF, XS, RST = 44, 80, 88
voff(vL16, [(0,6,16)])
a(f"v_and_b32 v{vP16}, 0x70, v{vL16}")
piece(vW, vSX)
a(f"v_lshl_add_u32 v{vW}, v{vSX}, 13, v{vW}")
soff(sT1, 0, slot=128*8192, wv=8*8192, grp=1024, i=128)
voff(vXl, [(0,1,1024), (4,2,16)])
voff(vSX, [(0,1,1024), (1,3,128), (4,2,32)])
voff(vXs, [(0,3,8), (5,1,4)])
soff(sT2, 0, slot=256)
soff(sXj, 0, w1=1024, i=128, w0=64)
voff(vK, [(0,2,1024), (2,1,256), (3,1,64), (4,2,16)])
soff(sKV, 0, ba=8<<21, grp=1<<21, s=1<<17, wv=1<<13)
a("s_waitcnt lgkmcnt(0)")
mk_srd(WQ_, 58, 512*8192)
dma(WQ_, vW, sT1, 32*8192, 4, WQ_L)
mk_srd(X_, 52, 2048)
for j in range(4): a(f"buffer_load_dwordx4 {v4(XF+4*j)}, v{vXl}, {srd(X_)}, s{sT2} offen offset:{64*j}")
a(f"buffer_load_dwordx4 {v4(XS)}, v{vSX}, {srd(X_)}, 0 offen\nbuffer_load_dwordx4 {v4(XS+4)}, v{vSX}, {srd(X_)}, 0 offen offset:16")
a(f"buffer_load_dword v{vX1}, v{vXs}, {srd(X_)}, s{sXj} offen")
cm("sentinels of the first layer's hand-off slots: 1 KiB per wave")
for r in range(4): a(f"v_mov_b32 v{RST+r}, -1")
def rst_off(dst, base):
    m = opt["rmap"]
    if m == 0: soff(dst, base, grp=2*BLK, w0=BLK, idx=2048, w1=1024)
    elif m == 1: soff(dst, base, s=BLK, grp=8192, ba=4096, wv=1024)
    elif m == 2: soff(dst, base, s=BLK, wv=16384, ba=8192, grp=1024)
    elif m == 3: soff(dst, base, wv=4*BLK, slot=BLK, grp=8192, i=1024)
rst_off(sT1, 0)
mk_srd(WS_, 74, WS_SIZE)
a(f"buffer_store_dwordx4 {v4(RST)}, v{vL16}, {srd(WS_)}, s{sT1} offen sc1")
cm("the 32 workgroups without a hidden block write their share of the second layer's sentinels now as well: nothing later orders them")
a(f"""s_and_b32 s{sT0}, s2, 0xc4
s_cmp_eq_u32 s{sT0}, 0xc4
s_cbranch_scc0 L_rst
s_add_u32 s{sT1}, s{sT1}, {LSTR:#x}
buffer_store_dwordx4 {v4(RST)}, v{vL16}, {srd(WS_)}, s{sT1} offen sc1
L_rst:""")
mk_srd(K_, 54, 0x2000000)
def kload(t):
    r = []
    for hi in range(2):
        for j in range(4):
            p = f"s_add_u32 s{sT0}, s{sKV}, {t*32768 + hi*4096}\n" if j == 0 else ""
            r.append(p + f"buffer_load_dwordx4 {v4(VR+32*(t+1)+16*hi+4*j)}, v{vK}, {srd(K_)}, s{sT0} offen offset:{128*(j>>1)+512*(j&1)}{KVP}")
    return r
def vload(t):
    r = []
    for i in range(8):
        p = f"s_add_u32 s{sT0}, s{sKV}, {t*32768 + (i>>2)*4096}\n" if i % 4 == 0 else ""
        r.append(p + f"buffer_load_dwordx4 {v4(VR+32*(t+1)+4*i)}, v{vL16}, {srd(V_)}, s{sT0} offen offset:{1024*(i&3)}{KVP}")
    return r
def kfix(t, wait, loads):
    loads = list(loads)
    cm(f"K group {t} -> AGPRs")
    if wait is not None: a(f"s_waitcnt vmcnt({wait})")
    if t: ts(3 + t)
    for hi in range(2):
        for hf in range(2):
            A = VR + 32*(t+1) + 16*hi + 8*hf; B = A + 4; dst = aK + 16*(t+4*hi) + 8*hf
            a(loads.pop(0))
            for r in range(4): a(f"v_mov_b32 v{VR+r}, v{A+r}")
            for r in range(4): a(dp("v_mov_b32", VR+r, B+r, None, "row_ror:8", 0xc))
            for r in range(2): a(dp("v_mov_b32", B+r, A+r, None, "row_ror:8", 0x3))
            a(loads.pop(0))
            for r in range(2, 4): a(dp("v_mov_b32", B+r, A+r, None, "row_ror:8", 0x3))
            for r in range(4): a(f"v_accvgpr_write_b32 a{dst+r}, v{VR+r}")
            for r in range(4): a(f"v_accvgpr_write_b32 a{dst+4+r}, v{B+r}")
em(kload(0))
cm("---- set-up: remaining descriptors, lane patterns, offsets (under the first loads) ----")
mk_srd(V_, 56, 0x2000000); mk_srd(WO_, 60, 4096*1024); mk_srd(WG_, 64, 512*3584); mk_srd(WU_, 66, 512*3584)
mk_srd(WD_, 68, 1792*1024); mk_srd(OUT_, 70, 2048); mk_srd(DBG_, 72, 256)
t0, t1 = 36, 37
voff(vL4, [(0,6,4)]); voff(vC16, [(0,4,16)]); voff(vG16, [(4,2,16)])
voff(vOl, [(0,4,64), (4,2,16)]); voff(vOs, [(4,2,1024), (0,4,4)])
voff(vQs, [(0,1,BLK), (4,2,8)])
voff(vDNs, [(0,1,4*BLK), (4,2,16)]); voff(vGUl, [(4,2,2048), (0,4,16)])
voff(vSTd, [(0,4,16), (5,1,8)])
voff(vHr, [(0,1,128), (4,2,16)], const=H_L)
a(f"v_and_b32 v{vXLr}, 32, v{vL16}\nv_lshl_add_u32 v{vXLr}, v{vXLr}, 3, v{vHr}")
voff(vTR, [(4,2,1024), (2,2,128), (0,2,8)])
a(f"v_bfe_u32 v{vTmp}, v{vLane}, 3, 2\nv_xor_b32 v{vTmp}, s{sWV}, v{vTmp}\nv_lshl_add_u32 v{vTR}, v{vTmp}, 5, v{vTR}")
soff(sT0, H_L, wv=32); voff(vHw, [(5,1,128), (0,4,2)], sadd=sT0)
voff(vOCw, [(4,1,2), (3,1,1)]); a(f"v_xor_b32 v{vOCw}, v{vOCw}, v{vLane}\nv_lshlrev_b32 v{vOCw}, 4, v{vOCw}")
soff(sT0, OC_L, wv=OC_W); a(f"v_add_u32 v{vOCw}, s{sT0}, v{vOCw}")
voff(vOCr, [(4,1,2), (1,1,1)]); a(f"v_xor_b32 v{vOCr}, s{sWV}, v{vOCr}\nv_lshlrev_b32 v{vOCr}, 4, v{vOCr}")
voff(t0, [(4,2,256), (0,2,64), (2,2,4)], const=OC_L); a(f"v_add_u32 v{vOCr}, v{vOCr}, v{t0}")
soff(sT0, ML_L, wv=8); voff(vMLw, [(0,2,32)], sadd=sT0)
soff(sT0, ML_L, wv=32); a(f"v_mov_b32 v{vMLr}, s{sT0}")
soff(sT0, XL_L, wv=64); a(f"v_add_u32 v{vXLw}, s{sT0}, v{vXs}")
a(f"v_mov_b32 v{vTmp}, 0x3f803f80")
for r in range(4): a(f"v_accvgpr_write_b32 a{aONE+r}, v{vTmp}")
a(f"v_add_u32 v{t0}, {ONE_L}, v{vL4}\nds_write_b32 v{t0}, v{vTmp}")
for r in range(8): a(f"v_accvgpr_write_b32 a{aWD+r}, 0")
soff(sGB, 0, grp=GR)
soff(sFB, 0, slot=8, grp=1)
soff(sOst, O_OFF, True, ba=16384, wv=4096, s=64)
soff(sLst, LSE_OFF, True, ba=256, wv=64, s=4)
soff(sOld, O_OFF, True, w0=16384, slot=4096)
soff(sLld, LSE_OFF, True, w0=256, slot=64)
soff(sWOst, WO_OFF, w0=4*BLK, ih=BLK, i0=8192, w1=4096, grp=512, slot=128)
soff(sDNst, DN_OFF, ih=BLK, i0=8192, w1=4096, slot=1024, grp=128, w0=64)
soff(sM1, WO_OFF, w1=4*BLK, ih=BLK, i0=8192, w0=4096)
a(f"s_add_u32 s{sM2}, s{sM1}, {DN_OFF - WO_OFF:#x}")
soff(sST1st, ST1_OFF, True, slot=256, i=32, w0=16, w1=8)
soff(sST2ld, ST2_OFF, True, ba=8)
soff(sGUst, GU_OFF, True, slot=8192, i=1024, wv=256)
soff(sCS, CS_OFF, True, sl0=4096, ba=BLK, i=512, wv=128)
cm("workgroups past the 28 hidden blocks follow block 0 of their group with zero weights, to stay in step")
soff(sT0, 0, slot=1)
a(f"s_cmp_lt_u32 s{sFB}, 28\ns_cselect_b32 s{sT0}, s{sT0}, 0\ns_lshl_b32 s{sST1ld}, s{sT0}, 8\ns_lshl_b32 s{sT0}, s{sT0}, 13")
soff(sGUld, GU_OFF, True, wv=256)
a(f"s_add_u32 s{sGUld}, s{sGUld}, s{sT0}\ns_add_u32 s{sST1ld}, s{sST1ld}, s{sGB}\ns_add_u32 s{sST1ld}, s{sST1ld}, {ST1_OFF:#x}")
soff(sQst, Q_OFF, True, slot=256, ih=64, i0=2048, w1=1024, w0=32)
soff(sQld, Q_OFF, True, ba=BLK)
a(f"s_mov_b32 s{sSEL0}, 0x05040100\ns_mov_b32 s{sSEL1}, 0x07060302")
cm("---- first layer's query partials: layer norm of the input, 128 x 64 tile of Wq ----")
a("s_waitcnt vmcnt(8)")
ts(1)
K1 = kload(1)
em(K1[:2])
S, Qr = 90, 91
a(f"v_mov_b32 v{S}, 0\nv_mov_b32 v{Qr}, 0")
for i in range(8):
    a(f"""v_lshlrev_b32 v{t0}, 16, v{XS+i}
    v_and_b32 v{t1}, 0xffff0000, v{XS+i}
    v_add_f32 v{S}, v{S}, v{t0}
    v_fmac_f32 v{Qr}, v{t0}, v{t0}
    v_add_f32 v{S}, v{S}, v{t1}
    v_fmac_f32 v{Qr}, v{t1}, v{t1}""")
a(f"v_lshlrev_b32 v{vX0}, 16, v{vX1}\nv_and_b32 v{vX1}, 0xffff0000, v{vX1}")
em(K1[2:4])
a("s_barrier")
trread(aWQ, vTR, WQ_L, 4)
for n in (2, 4, 8): a(dp("v_add_f32", S, S, S, f"row_ror:{n}")); a(dp("v_add_f32", Qr, Qr, Qr, f"row_ror:{n}"))
for x, y in zip(rows("v_add_f32", S, t0), rows("v_add_f32", Qr, t1)): a(x); a(y)
em(fin(S, Qr, QSCALE) + [f"v_mul_f32 v{S}, v{S}, v{Qr}"])
a("s_waitcnt lgkmcnt(0)")
cm("arrival (all four waves' sentinels are acknowledged): count in bits 48.., one 6-bit field per XCC id")
lna = lab("noarr")
a(f"""s_getreg_b32 s{sT0}, hwreg(HW_REG_XCC_ID)
s_and_b32 s{sT0}, s{sT0}, 7
s_mul_i32 s{sFAST}, s{sT0}, 6
s_cmp_eq_u32 s{sWV}, 0
s_cbranch_scc0 {lna}
s_and_b32 s{sT0}, s2, 7
s_lshl_b32 s{sT0}, s{sT0}, 5
s_lshl_b64 s[{sE}:{sE+1}], 1, s{sFAST}
s_add_u32 s{sE+1}, s{sE+1}, 0x10000
s_atomic_add_x2 s[{sE}:{sE+1}], s[{DBG_}:{DBG_+1}], s{sT0}
{lna}:""")
DE = 60
for j in range(4): a(mf(v4(vCSQ), a4(aWQ+4*j), a4(aONE), 0 if j == 0 else v4(vCSQ)))
for j in range(4): a(mf(v4(DE), a4(aWQ+4*j), v4(XF+4*j), 0 if j == 0 else v4(DE)))
for r in range(4): a(f"v_mul_f32 v{DE+4+r}, v{S}, v{vCSQ+r}")
for r in range(4): a(f"v_fmac_f32 v{DE+4+r}, v{Qr}, v{DE+r}")
a(f"""v_cvt_pk_bf16_f32 v{DE}, v{DE+4}, v{DE+5}
v_cvt_pk_bf16_f32 v{DE+1}, v{DE+6}, v{DE+7}
v_cvt_pk_bf16_f32 v{vCSQ}, v{vCSQ}, v{vCSQ+1}
v_cvt_pk_bf16_f32 v{vCSQ+1}, v{vCSQ+2}, v{vCSQ+3}""")
ts(2)
CT = 80
voff(t0, [(0,3,32)])
cl = f"buffer_load_dwordx2 {v2(CT)}, v{t0}, {srd(DBG_)}, 0 offen sc1"
em(K1[4:])
kfix(0, 8, kload(2)); kfix(1, 8, kload(3)); a(cl); kfix(2, 9, vload(0))
cm("every workgroup has arrived: hand-offs may start; plain stores inside a group only if it sits on one XCC")
lp, ld = lab("bar"), lab("barok")
a(f"""s_waitcnt vmcnt(8)
{lp}:
v_lshrrev_b32 v{t1}, 16, v{CT+1}
v_cmp_gt_u32 vcc, 32, v{t1}
s_cbranch_vccz {ld}
{cl}
s_waitcnt vmcnt(0)
s_sub_u32 s{sTO}, s{sTO}, 1
s_cbranch_scc0 {lp}
s_mov_b32 s{sTO}, 0
{ld}:
s_and_b32 s{sT1}, s2, 7
s_waitcnt lgkmcnt(0)
v_readlane_b32 s{sT0}, v{CT}, s{sT1}
v_readlane_b32 s{sT1}, v{CT+1}, s{sT1}
s_lshl_b64 s[{sE}:{sE+1}], 32, s{sFAST}
s_add_u32 s{sE+1}, s{sE+1}, 0x200000
s_xor_b32 s{sT0}, s{sT0}, s{sE}
s_xor_b32 s{sT1}, s{sT1}, s{sE+1}
s_or_b32 s{sT0}, s{sT0}, s{sT1}
s_cmp_eq_u32 s{sT0}, 0
s_cselect_b32 s{sFAST}, 1, 0""")
ts_put([(sTO, 46)], vM)
exec_set(0x00030003, 0x00030003)
pub(f"buffer_store_dwordx2 {v2(DE)}, v{vQs}, {srd(WS_)}, s{sQst} offen")
exec_all()
def cq_pub():
    cm("column sums of this Wq tile, laid out like a query")
    a(f"s_add_u32 s{sT2}, s{sQst}, {CQ_OFF - Q_OFF:#x}")
    exec_set(0x10001, 0x10001)
    pub(f"buffer_store_dwordx2 {v2(vCSQ)}, v{vQs}, {srd(WS_)}, s{sT2} offen")
    exec_all()
if opt["cqp"] == 0: cq_pub()
if opt["cw"]:
    cm("ask for the code of the coming stages: one or two 64-byte lines per wave")
    soff(sT0, 0, idx=256, wv=64)
    a(f"s_getpc_b64 s[{X_+2}:{X_+3}]\nL_pc:\ns_add_u32 s{X_+2}, s{X_+2}, L_tblk-L_pc\ns_addc_u32 s{X_+3}, s{X_+3}, 0\ns_load_dword s{X_+1}, s[{X_+2}:{X_+3}], s{sT0}")
    if opt["cw"] > 1: a(f"s_add_u32 s{sT0}, s{sT0}, 8192\ns_min_u32 s{sT0}, s{sT0}, L_end-L_tblk\ns_load_dword s{X_}, s[{X_+2}:{X_+3}], s{sT0}")
kfix(3, None, vload(1))
qloads = [f"buffer_load_dwordx4 {v4(QF+4*j)}, v{vOl}, {srd(WS_)}, s{sQld} offen offset:{1024*j}" for j in range(4)]
poll(qloads, range(QF, QF+16), vM, between=lambda: em(vload(2)), wait1=8)
ts(7)
ts_put([(TSB+2*k, k) for k in range(1, 8)] + [(sTO, 47)], vM)
vMu, vA = vM + 2, vM + 3
cm("these queries are normalised already: sums that make the deferred scale 1")
a(f"v_mov_b32 v{vMu}, 0\nv_mov_b32 v{vA}, {f2u((QSCALE*QSCALE - 1e-5)*64):#x}")
Dt = lambda t: DT + 4*t
qk_on = lambda B: [mf(v4(Dt(tau)), a4(aK+16*tau+4*j), v4(B+4*j), 0 if j == 0 else v4(Dt(tau))) for tau in (0, 2, 1, 3, 4, 6, 5, 7) for j in range(4)]
qk = qk_on(QF)
em(qk[:4])
a("s_branch L_qk")
a("L_tblk:")
MARK = len(a.lines)

a("L_layer:")
until(1)
cm("---- attention over this workgroup's 512 keys; K, V in registers ----")
poll(qloads + [f"buffer_load_dwordx2 {v2(vMu)}, v{vP16}, {srd(WS_)}, s{sST2ld} offen"], list(range(QF, QF+16)) + [vMu, vA], vM, spec=qk[:4], ack=True)
a("L_qk:")
tsn('qk_start')
ZB = ZA + 4
def fold(Z):
    xlo = lambda t, X: [dp("v_add_f32", X+r, Dt(t)+r, Dt(t)+r, "row_ror:8", 0x3) for r in range(4)]
    xhi = lambda t, X: [dp("v_add_f32", X+r, Dt(t)+r, Dt(t)+r, "row_ror:8", 0xc) for r in range(4)]
    zev = lambda z: [dp("v_add_f32", z+r, XT+r, XT+r, "row_ror:12", 0x5) for r in range(4)]
    zod = lambda z: [dp("v_add_f32", z+r, YT+r, YT+r, "row_ror:4", 0xa) for r in range(4)]
    return (xlo(0, XT) + xhi(2, XT) + zev(Z) + xlo(1, YT) + xhi(3, YT) + zod(Z),
            xlo(4, XT) + xhi(6, XT) + zev(Z+4) + xlo(5, YT) + xhi(7, YT) + zod(Z+4))
lnst = []
for c in ("quad_perm:[1,0,3,2]", "quad_perm:[2,3,0,1]", "row_ror:4"): lnst += [dp("v_add_f32", vMu, vMu, vMu, c), dp("v_add_f32", vA, vA, vA, c)]
lnst += fin(vMu, vA, QSCALE)
fa, fb = fold(ZA)
mix(qk[4:11], lnst[:12], 2, 1)
mix(qk[11:], fa + [lnst[12], "s_nop 0"] + fb)
cm("deferred layer norm: scores = rstd * (K.q_raw - mean * K.colsum)")
only(1, lambda lb: em([f"v_fmac_f32 v{ZA+r}, v{vMu}, v{ZC+r}" for r in range(8)]))
vLs, vU = vM + 1, vM + 2
a(f"""v_max3_f32 v{vM}, v{ZA}, v{ZA+1}, v{ZA+2}
v_max3_f32 v{vLs}, v{ZB}, v{ZB+1}, v{ZB+2}
v_max3_f32 v{vM}, v{ZA+3}, v{ZB+3}, v{vM}
v_max_f32 v{vM}, v{vLs}, v{vM}""")
a(dp("v_max_f32", vM, vM, vM, "row_ror:4")); a(dp("v_max_f32", vM, vM, vM, "row_ror:8"))
em(rows("v_max_f32", vM, vU))
P = [XT, YT, QF, QF+4]
a(f"v_mul_f32 v{vM}, v{vM}, v{vA}")
for r in range(8): a(f"v_fma_f32 v{ZA+r}, v{ZA+r}, v{vA}, -v{vM}")
for r in range(8): a(f"v_exp_f32 v{ZA+r}, v{ZA+r}")
for r in range(4): a(f"v_cvt_pk_bf16_f32 v{P[0]+r}, v{ZA+2*r}, v{ZA+2*r+1}")
tsn('softmax_done')
def transpose(t, waits):
    cm(f"V group {t}: pair up keys for the MFMA")
    src, dst = VR + 32*(t+1), VR + 32*t
    for p in range(4):
        if waits[p] is not None: a(f"s_waitcnt vmcnt({waits[p]})")
        for q in range(4):
            a(f"v_perm_b32 v{dst+8*q+p}, v{src+8*p+4+q}, v{src+8*p+q}, s{sSEL0}")
            a(f"v_perm_b32 v{dst+8*q+4+p}, v{src+8*p+4+q}, v{src+8*p+q}, s{sSEL1}")
def wo_dma():
    piece(vU, vU+1)
    a(f"v_lshl_add_u32 v{vU}, v{vU+1}, 10, v{vU}")
    soff(sT0, 0, grp=512*1024, slot=128*1024, wv=8*1024, i=128)
    dma(WO_, vU, sT0, 32*1024, 4, WO_L)
def pv(t): return [mf(v4(DT+4*e), v4(VR+32*t+4*e), v4(P[t]), 0 if t == 0 else v4(DT+4*e)) for e in range(8)]
FW, vMM, vL, vR, vLSE = QF+8, QF+12, QF+13, QF+14, QF+15
ML = ZA
only(0, lambda lb: (em(vload(3)), transpose(0, [None]*4), transpose(1, [None]*4) if opt['m01'] else None), bool(opt['tin'] & 1))
rot = lambda tt: [dp("v_mov_b32", P[tt]+r, P[0]+r, None, f"row_ror:{16-4*tt}") for r in range(4)]
rs = rows("v_add_f32", vLs, vU)
r1, r2, r3 = rot(1), rot(2), rot(3)
s0 = [f"v_add_f32 v{ZA+2*r}, v{ZA+2*r}, v{ZA+2*r+1}" for r in range(4)] + \
     [f"v_add_f32 v{ZA}, v{ZA}, v{ZA+2}", f"v_add_f32 v{ZA+4}, v{ZA+4}, v{ZA+6}", f"v_add_f32 v{vLs}, v{ZA}, v{ZA+4}", r1[0],
      dp("v_add_f32", vLs, vLs, vLs, "row_ror:4"), r1[1], dp("v_add_f32", vLs, vLs, vLs, "row_ror:8"), rs[0], r1[2], rs[1], rs[2], r1[3]]
mix(pv(0), s0)
tsn('pv0')
if not opt['m01']: only(0, lambda lb: transpose(1, [None]*4), bool(opt['tin'] & 2))
p1 = pv(1)
em([p1[0], rs[3], r2[0], p1[1], rs[4], rs[5], p1[2], "s_mov_b64 exec, 15", f"ds_write_b64 v{vMLw}, {v2(vM)}", "s_mov_b64 exec, -1",
    p1[3], r2[1], r2[2], p1[4], r2[3], r3[0], p1[5], r3[1], r3[2], p1[6], "s_waitcnt lgkmcnt(0)", "s_barrier",
    f"ds_read_b128 {v4(ML)}, v{vMLr}", f"ds_read_b128 {v4(ML+4)}, v{vMLr} offset:16", p1[7], r3[3]])
tsn('pv1')
only(0, lambda lb: (wo_dma(), transpose(2, [12, None, None, None])), bool(opt['tin'] & 4))
fac = ["s_waitcnt lgkmcnt(0)", f"v_max3_f32 v{vMM}, v{ML}, v{ML+2}, v{ML+4}", f"v_max_f32 v{vMM}, v{ML+6}, v{vMM}"] + \
      [f"v_sub_f32 v{FW+w}, v{ML+2*w}, v{vMM}" for w in range(4)] + [f"v_exp_f32 v{FW+w}, v{FW+w}" for w in range(4)] + \
      [f"v_mul_f32 v{vL}, v{FW}, v{ML+1}"] + [f"v_fmac_f32 v{vL}, v{FW+w}, v{ML+2*w+1}" for w in range(1, 4)] + \
      [f"v_rcp_f32 v{vR}, v{vL}", f"v_log_f32 v{vLSE}, v{vL}"] + [f"v_mul_f32 v{FW+w}, v{FW+w}, v{vR}" for w in range(4)] + \
      [f"v_add_f32 v{vLSE}, v{vLSE}, v{vMM}"]
mix(pv(2), fac[:12], 2, 2)
tsn('pv2')
only(0, lambda lb: (transpose(3, [10, 8, 6, 4]), cq_pub() if opt['cqp'] == 2 else None), bool(opt['tin'] & 8))
gath = lambda u: [dp("v_mov_b32", DT+k, DT+8*u+k, None, f"row_ror:{4*u}", 1 << u) for k in range(8)]
mix(pv(3), fac[12:] + gath(1)[:6])
em(gath(1)[6:] + gath(2) + gath(3))
tsn('pv_done')
until(0)
cm("combine the four waves, publish the normalised partial output and its log-sum-exp")
a(f"ds_write_b128 v{vOCw}, {v4(DT)}\nds_write_b128 v{vOCw}, {v4(DT+4)} offset:1024\ns_mov_b64 exec, 1")
pub(f"buffer_store_dword v{vLSE}, off, {srd(WS_)}, s{sLst}")
a("s_mov_b64 exec, -1\ns_waitcnt lgkmcnt(0)\ns_barrier")
OV = ZA
for w in range(4): a(f"ds_read2st64_b32 {v2(OV+2*w)}, v{vOCr} offset0:{8*w} offset1:{8*w+4}")
a(f"s_waitcnt lgkmcnt(3)\nv_mul_f32 v{OV}, v{FW}, v{OV}\nv_mul_f32 v{OV+1}, v{FW}, v{OV+1}")
for w in range(1, 4): a(f"s_waitcnt lgkmcnt({3-w})\nv_fmac_f32 v{OV}, v{FW+w}, v{OV+2*w}\nv_fmac_f32 v{OV+1}, v{FW+w}, v{OV+2*w+1}")
a(f"v_cvt_pk_bf16_f32 v{OV}, v{OV}, v{OV+1}")
pub(f"buffer_store_dword v{OV}, v{vOs}, {srd(WS_)}, s{sOst} offen")
tsn('O_pub')
cm("---- output projection: 16 key splits of one head as MFMA rows, weighted by their softmax share ----")
OF, LS, DB, EB = T, T+16, T+20, T+28
def wo_frags():
    a(f"s_and_b32 s{sT0}, s{sWV}, 1\ns_lshl_b32 s{sT0}, s{sT0}, 5\nv_xor_b32 v{EB}, s{sT0}, v{vTR}\nv_xor_b32 v{EB+1}, 32, v{EB}\ns_barrier")
    trread(aWO, EB, WO_L, 4); trread(aWO+16, EB+1, WO_L, 4)
    a("s_waitcnt lgkmcnt(0)")
poll([f"buffer_load_dwordx4 {v4(OF+4*j)}, v{vOl}, {srd(WS_)}, s{sOld} offen offset:{1024*j}" for j in range(4)] +
     [f"buffer_load_dwordx4 {v4(LS)}, v{vG16}, {srd(WS_)}, s{sLld} offen"], range(OF, OF+20), EB, l0=((cq_pub if opt['cqp'] == 1 else lambda: None), wo_frags), ack=True)
tsn('H2_got')
ch = [f"v_max3_f32 v{EB+4}, v{LS}, v{LS+1}, v{LS+2}", f"v_max_f32 v{EB+4}, v{LS+3}, v{EB+4}"] + rows("v_max_f32", EB+4, EB+5) + \
     [f"v_sub_f32 v{EB+r}, v{LS+r}, v{EB+4}" for r in range(4)] + [f"v_exp_f32 v{EB+r}, v{EB+r}" for r in range(4)]
bm = [mf(v4(DB+4*t), v4(OF+4*j), a4(aWO+16*t+4*j), 0 if j == 0 else v4(DB+4*t)) for j in range(4) for t in range(2)]
em([bm[0], ch[0], ch[1], ch[2], bm[1], bm[2], ch[3], ch[4], ch[5], bm[3], bm[4], ch[6], ch[7], ch[8], bm[5],
    ch[9], ch[10], bm[6], ch[11], ch[12], bm[7], ch[13], ch[14], ch[15]])
ra = rows("v_add_f32", EB+4, EB+5)
a(f"""v_add_f32 v{EB+4}, v{EB}, v{EB+1}
v_add_f32 v{EB+5}, v{EB+2}, v{EB+3}
v_add_f32 v{EB+4}, v{EB+4}, v{EB+5}
{ra[0]}
v_mul_f32 v{DB}, v{EB}, v{DB}
v_mul_f32 v{DB+4}, v{EB}, v{DB+4}
{ra[1]}
v_fmac_f32 v{DB}, v{EB+1}, v{DB+1}
{ra[2]}
v_fmac_f32 v{DB+4}, v{EB+1}, v{DB+5}
{ra[3]}
v_fmac_f32 v{DB}, v{EB+2}, v{DB+2}
v_fmac_f32 v{DB+4}, v{EB+2}, v{DB+6}
{ra[4]}
v_fmac_f32 v{DB}, v{EB+3}, v{DB+3}
v_fmac_f32 v{DB+4}, v{EB+3}, v{DB+7}
{ra[5]}
v_rcp_f32 v{EB+4}, v{EB+4}
v_permlane16_swap_b32 v{DB}, v{DB+4}
v_add_f32 v{DB}, v{DB}, v{DB+4}
v_mov_b32 v{DB+4}, v{DB}
v_permlane32_swap_b32 v{DB}, v{DB+4}
v_add_f32 v{DB}, v{DB}, v{DB+4}
s_mov_b32 exec_hi, 0
v_mul_f32 v{DB}, v{DB}, v{EB+4}
buffer_store_dword v{DB}, v{vL4}, {srd(WS_)}, s{sWOst} offen sc1
s_mov_b64 exec, -1""")
tsn('WO_pub')

def pretouch(vt, base, parts, sT0=sT0):
    cm("bring the next hand-off lines into this die's L2")
    lx = lab("pt")
    a(f"v_lshlrev_b32 v{vt}, 3, v{vL16}\ns_mov_b32 exec_hi, 0")
    for w, (off, n, terms) in enumerate(parts):
        if w:
            a(f"s_cmp_eq_u32 s{sWV}, {w-1}\ns_cbranch_scc1 {lx}")
        soff(sT0, base + off, True, **terms)
        a(f"s_mov_b32 exec_lo, {(1 << n) - 1:#x}")
    a(f"{lx}:\nbuffer_load_dword a{aDUM}, v{vt}, {srd(WS_)}, s{sT0} offen sc1\ns_mov_b64 exec, -1")
def first_window(lb):
    cm("first layer, while the projection partials travel: second layer's sentinels, FFN tiles, K . colsum(Wq)")
    W = T + 36
    CF = R4 + 16 if opt["zov"] else QF
    cq = [f"buffer_load_dwordx4 {v4(CF+4*j)}, v{vOl}, {srd(WS_)}, s{sT2} offen offset:{1024*j}" for j in range(4)]
    a(f"s_add_u32 s{sT2}, s{sGB}, {CQ_OFF:#x}")
    em([l + " sc1" for l in cq])
    ln, lj = lab("noffn"), lab("ffnj")
    a(f"s_cmp_lt_u32 s{sFB}, 28\ns_cbranch_scc0 {ln}")
    cm("acknowledged before this wave publishes its gate / up partials, which every use of those slots depends on")
    for r in range(4): a(f"v_mov_b32 v{R4+r}, -1")
    rst_off(sT0, LSTR)
    a(f"buffer_store_dwordx4 {v4(R4)}, v{vL16}, {srd(WS_)}, s{sT0} offen sc1")
    piece(W+1, W+2)
    a(f"v_mul_u32_u24 v{W}, 3584, v{W+2}\nv_add_u32 v{W}, v{W}, v{W+1}\nv_lshl_add_u32 v{W+1}, v{W+2}, 10, v{W+1}")
    soff(sT0, 0, i=64*3584, wv=8*3584, slot=1024, grp=128)
    a(f"s_mov_b32 s{sT1}, s{sT0}")
    dma(WG_, W, sT0, 32*3584, 2, WG_L); dma(WU_, W, sT1, 32*3584, 2, WU_L)
    soff(sT0, 0, slot=8*65536, grp=65536, wv=8192, i=128)
    dma(WD_, W+1, sT0, 32*1024, 2, WD_L)
    pretouch(W, 0, [(GU_OFF, 4, dict(idx=1024)), (GU_OFF + 512, 4, dict(idx=1024)), (CS_OFF, 4, dict(s=512, ba=BLK)), (ST1_OFF, 1, dict(idx=128))])
    a(f"s_waitcnt vmcnt(7)\n{lj}:")
    deferred.append((ln, lambda: a(f"s_waitcnt vmcnt(0)\ns_branch {lj}")))
    poll(cq, range(CF, CF+16), vM, issued=True)
    za, zb = fold(ZC)
    if opt["zov"]:
        a("s_barrier")
        em([l + " sc1" for l in lines(sM1)])
    mix(qk_on(CF), za + ["s_nop 0", "s_nop 0"] + zb, 2, 11)
    a("s_branch L_m1wait" if opt["zov"] else "s_branch L_acked")
M = T
def lines(soffr, base=0): return [f"buffer_load_dwordx4 {v4(M+base+4*u)}, v{vL16}, {srd(WS_)}, s{soffr} offen offset:{1024*u}" for u in range(4)]
def reduce32(jobs):
    for b, x0, x1 in jobs:
        for d, x in ((0, 4), (2, 6), (8, 12), (10, 14), (0, 8), (2, 10)): a(f"v_pk_add_f32 {v2(M+b+d)}, {v2(M+b+d)}, {v2(M+b+x)}")
    steps = [lambda m, x0, x1: [f"v_permlane32_swap_b32 v{m}, v{m+2}", f"v_permlane32_swap_b32 v{m+1}, v{m+3}"],
             lambda m, x0, x1: [f"v_add_f32 v{m}, v{m}, v{m+2}", f"v_add_f32 v{m+1}, v{m+1}, v{m+3}"],
             lambda m, x0, x1: [dp("v_add_f32", m, m, m, "row_ror:8"), dp("v_add_f32", m+1, m+1, m+1, "row_ror:8")],
             lambda m, x0, x1: [f"v_mov_b32 v{m+2}, v{m}", f"v_mov_b32 v{m+3}, v{m+1}"],
             lambda m, x0, x1: [f"v_permlane16_swap_b32 v{m}, v{m+2}", f"v_permlane16_swap_b32 v{m+1}, v{m+3}"],
             lambda m, x0, x1: [f"v_add_f32 v{x0}, v{x0}, v{m}", f"v_add_f32 v{x1}, v{x1}, v{m+1}"],
             lambda m, x0, x1: [f"v_add_f32 v{x0}, v{x0}, v{m+2}", f"v_add_f32 v{x1}, v{x1}, v{m+3}"],
             lambda m, x0, x1: [f"v_cvt_pk_bf16_f32 v{m}, v{x0}, v{x1}"]]
    for st_ in steps:
        for b, x0, x1 in jobs: em(st_(M+b, x0, x1))
def sums(s, q):
    return [f"v_permlane32_swap_b32 v{s}, v{q}", f"v_add_f32 v{s}, v{s}, v{q}", dp("v_add_f32", s, s, s, "quad_perm:[1,0,3,2]"),
            dp("v_add_f32", s, s, s, "quad_perm:[2,3,0,1]"), dp("v_add_f32", s, s, s, "row_ror:4")]
cm("---- residual update over all 32 projection partials; gate / up partial products of 64 input columns ----")
only(0, first_window)
XR = T + 20
a(f"s_add_u32 s{sT0}, s{sXj}, s{sGB}\ns_add_u32 s{sT0}, s{sT0}, {X_OFF:#x}")
poll([f"buffer_load_dword v{XR}, v{vXs}, {srd(WS_)}, s{sT0} offen"], [XR], XR+1)
a(f"v_lshlrev_b32 v{vX0}, 16, v{XR}\nv_and_b32 v{vX1}, 0xffff0000, v{XR}")
cm("first poll only after this workgroup's own write-through stores have landed: early reads slow the writers down")
a("L_acked:\ns_barrier")
poll(lines(sM1), range(M, M+16), M+16, first="L_m1wait")
reduce32([(0, vX0, vX1)])
tsn('M1_done')
XC, DG, DU = T+4, T+12, T+16
a(f"""ds_write_b32 v{vXLw}, v{M}
v_lshlrev_b32 v{vX0}, 16, v{M}
v_and_b32 v{vX1}, 0xffff0000, v{M}
v_add_f32 v{M+1}, v{vX0}, v{vX1}
v_mul_f32 v{M+2}, v{vX0}, v{vX0}
v_fmac_f32 v{M+2}, v{vX1}, v{vX1}
s_waitcnt lgkmcnt(0)
s_barrier
s_cmp_lt_u32 s{sFB}, 28
s_cbranch_scc0 L_stageD
ds_read_b128 {v4(XC)}, v{vXLr} offset:256
ds_read_b128 {v4(XC+4)}, v{vXLr} offset:{256+64}""")
only(0, lambda lb: (trread(aWG, vTR, WG_L, 2), trread(aWU, vTR, WU_L, 2)))
st = sums(M+1, M+2)
em(st[:3])
a("s_waitcnt lgkmcnt(0)")
mix([mf(v4(DG), v4(XC), a4(aWG), 0), mf(v4(DU), v4(XC), a4(aWU), 0), mf(v4(DG), v4(XC+4), a4(aWG+4), v4(DG)), mf(v4(DU), v4(XC+4), a4(aWU+4), v4(DU))], st[3:], 1)
a("s_mov_b32 exec_lo, 1\ns_mov_b32 exec_hi, 1")
pub(f"buffer_store_dword v{M+1}, v{vXs}, {srd(WS_)}, s{sST1st} offen")
a(f"s_mov_b64 exec, 0xffff\nv_mov_b32 v{DU+3}, v{DG+2}\nv_mov_b32 v{DG+2}, v{DU}\nv_mov_b32 v{DG+3}, v{DU+1}")
pub(f"buffer_store_dwordx4 {v4(DG)}, v{vC16}, {srd(WS_)}, s{sGUst} offen")
exec_all()
def cs_pub(lb):
    cm("rows 2 and 3 of the products were fed with ones: (up, gate) column sums; block 0 also publishes the residual")
    a(f"v_lshrrev_b32 v{T+32}, 1, v{vC16}\ns_mov_b64 exec, 0xffff")
    pub(f"buffer_store_dwordx2 {v2(DU+2)}, v{T+32}, {srd(WS_)}, s{sCS} offen")
    exec_all()
    trread(aWD, vTR, WD_L, 2)
    a(f"s_cmp_lt_u32 s{sFB}, 8\ns_cbranch_scc0 {lb}\ns_add_u32 s{sT0}, s{sXj}, s{sGB}\ns_add_u32 s{sT0}, s{sT0}, {X_OFF:#x}")
    exec_set(0xff, 0xff)
    pub(f"buffer_store_dword v{M}, v{vXs}, {srd(WS_)}, s{sT0} offen")
    exec_all()
only(0, cs_pub)
tsn('GU_pub')
cm("---- layer norm on the summed products, gate, down projection of 64 hidden columns ----")
a("L_stageD:")
G, SD, DD = T, T+8, T+12
def colsums(lb):
    C = T + 16
    soff(sT0, 0, sl0=4096, ba=BLK)
    a(f"s_cmp_lt_u32 s{sFB}, 28\ns_cselect_b32 s{sT0}, s{sT0}, 0")
    soff(sT1, CS_OFF, True, wv=128)
    a(f"s_add_u32 s{sT0}, s{sT0}, s{sT1}\nv_lshrrev_b32 v{C+4}, 1, v{vGUl}")
    poll([f"buffer_load_dwordx2 {v2(C+2*u)}, v{C+4}, {srd(WS_)}, s{sT0} offen offset:{512*u}" for u in range(2)], range(C, C+4), C+5)
    a(f"""v_add_f32 v{C}, v{C}, v{C+2}
    v_add_f32 v{C+1}, v{C+1}, v{C+3}
    v_permlane16_swap_b32 v{C+1}, v{C}
    v_add_f32 v{vCS}, v{C}, v{C+1}
    v_mov_b32 v{C}, v{vCS}
    v_permlane32_swap_b32 v{vCS}, v{C}
    v_add_f32 v{vCS}, v{vCS}, v{C}""")
poll([f"buffer_load_dwordx4 {v4(G+4*u)}, v{vGUl}, {srd(WS_)}, s{sGUld} offen offset:{1024*u}" for u in range(2)] +
     [f"buffer_load_dwordx2 {v2(SD)}, v{vSTd}, {srd(WS_)}, s{sST1ld} offen"], range(G, G+10), DD, between=lambda: only(0, colsums))
tsn('H4_got')
HF = T + 16
sd = []
for n in (1, 2, 4, 8): sd += [dp("v_add_f32", SD, SD, SD, f"row_ror:{n}"), dp("v_add_f32", SD+1, SD+1, SD+1, f"row_ror:{n}")]
sd += fin(SD, SD+1)
gd = [f"v_add_f32 v{G+r}, v{G+r}, v{G+4+r}" for r in range(4)] + \
     [f"v_permlane32_swap_b32 v{G}, v{G+1}", f"v_permlane32_swap_b32 v{G+2}, v{G+3}", f"v_add_f32 v{G}, v{G}, v{G+1}",
      f"v_add_f32 v{G+2}, v{G+2}, v{G+3}", f"v_permlane16_swap_b32 v{G}, v{G+2}", f"v_add_f32 v{G}, v{G}, v{G+2}"]
em([sd[0], sd[1], gd[0], sd[2], sd[3], gd[1], sd[4], sd[5], gd[2], sd[6], sd[7], gd[3], sd[8], sd[9], gd[4], sd[10], gd[5], sd[11], gd[6],
    gd[7], sd[12], sd[13], gd[8], gd[9]])
a(f"""v_fmac_f32 v{G}, v{SD}, v{vCS}
v_mul_f32 v{G}, v{G}, v{SD+1}
v_mov_b32 v{G+1}, v{G}
v_permlane16_swap_b32 v{G}, v{G+1}
v_max_f32 v{G}, 0, v{G}
v_mul_f32 v{G}, v{G}, v{G+1}
v_cvt_pk_bf16_f32 v{G}, v{G}, v{G}
ds_write_b16 v{vHw}, v{G}
s_waitcnt lgkmcnt(0)
s_barrier
ds_read_b128 {v4(HF)}, v{vHr}
ds_read_b128 {v4(HF+4)}, v{vHr} offset:64
s_waitcnt lgkmcnt(1)
{mf(v4(DD), a4(aWD), v4(HF), 0)}
s_waitcnt lgkmcnt(0)
{mf(v4(DD), a4(aWD+4), v4(HF+4), v4(DD))}
s_bfe_u32 s{sT0}, s2, 0x20006
s_and_b32 s{sT1}, s2, 7""")
exec_set(0x00030003, 0x00030003)
a(f"buffer_store_dwordx4 {v4(DD)}, v{vDNs}, {srd(WS_)}, s{sDNst} offen sc1")
exec_all()
tsn('DN_pub')
a(f"s_cmp_eq_u32 s{sLAYER}, 0\ns_cbranch_scc1 L_next")
cm("---- last layer: group 0 finishes the output, one wave per 32 columns ----")
a(f"""s_cmp_eq_u32 s{sT1}, 0
s_cbranch_scc0 L_fin
s_waitcnt vmcnt(0)
s_barrier
s_cmp_eq_u32 s{sT0}, s{sWV}
s_cbranch_scc0 L_fin""")
poll(lines(sM2), range(M, M+16), M+16)
reduce32([(0, vX0, vX1)])
exec_set(0xff, 0xff)
a(f"buffer_store_dword v{M}, v{vXs}, {srd(OUT_)}, s{sXj} offen")
if TS or opt["until"]: a("s_mov_b64 exec, -1\n" + ("s_waitcnt vmcnt(0)\n" if opt["outw"] else "") + "s_branch L_fin")
else: a("s_endpgm")
cm("---- first layer: residual update of 128 columns, raw query partials for the next layer ----")
a("L_next:")
XA, vXw, vXr, DE = T+32, T+40, T+41, T+44
PT1 = [(O_OFF, 8, dict(idx=1024)), (GU_OFF, 8, dict(idx=1024)), (Q_OFF, 2, dict(s=256, ba=BLK)), (ST1_OFF, 1, dict(idx=128))]
if opt["pt2"] == 0: pretouch(vXw, LSTR, PT1)
soff(sT0, DN_OFF, w1=4*BLK, slot=BLK, w0=2*4096)
a(f"s_add_u32 s{sT1}, s{sT0}, 4096")
soff(sT2, X_OFF, True, w1=1024, slot=256, w0=128)
soff(sCS, X2_L, wv=128)
a(f"""v_add_u32 v{vXw}, s{sCS}, v{vXs}
v_and_b32 v{vXr}, 16, v{vL16}
v_lshl_add_u32 v{vXr}, v{vXr}, 4, v{vG16}
v_add_u32 v{vXr}, {X2_L}, v{vXr}""")
soff(sCS, ST2_OFF, True, slot=32, w0=16, w1=8)
poll([f"buffer_load_dword v{XA}, v{vXs}, {srd(WS_)}, s{sT2} offen", f"buffer_load_dword v{XA+1}, v{vXs}, {srd(WS_)}, s{sT2} offen offset:64"],
     range(XA, XA+2), XA+4)
a(f"""v_lshlrev_b32 v{XA+2}, 16, v{XA+1}
v_and_b32 v{XA+3}, 0xffff0000, v{XA+1}
v_and_b32 v{XA+1}, 0xffff0000, v{XA}
v_lshlrev_b32 v{XA}, 16, v{XA}
s_barrier""")
poll(lines(sT0) + lines(sT1, 16), range(M, M+32), XA+4, **(dict(between=lambda: pretouch(XA+6, LSTR, PT1, X_), wait1=1) if opt["pt2"] == 1 else {}))
reduce32([(0, XA, XA+1), (16, XA+2, XA+3)])
tsn('M2_done')
a(f"""ds_write2_b32 v{vXw}, v{M}, v{M+16} offset0:0 offset1:16
v_lshlrev_b32 v{XA}, 16, v{M}
v_and_b32 v{XA+1}, 0xffff0000, v{M}
v_lshlrev_b32 v{XA+2}, 16, v{M+16}
v_and_b32 v{XA+3}, 0xffff0000, v{M+16}
s_add_u32 s{WS_}, s{WS_}, {LSTR:#x}
s_addc_u32 s{WS_+1}, s{WS_+1}, 0
s_waitcnt lgkmcnt(0)
s_barrier""")
XE = T + 48
for j in range(4): a(f"ds_read_b128 {v4(XE+4*j)}, v{vXr} offset:{64*j}")
a(f"""v_add_f32 v{M+1}, v{XA}, v{XA+1}
v_mul_f32 v{M+2}, v{XA}, v{XA}
v_add_f32 v{M+3}, v{XA+2}, v{XA+3}
v_fmac_f32 v{M+2}, v{XA+1}, v{XA+1}
v_add_f32 v{M+1}, v{M+1}, v{M+3}
v_fmac_f32 v{M+2}, v{XA+2}, v{XA+2}
v_fmac_f32 v{M+2}, v{XA+3}, v{XA+3}""")
st = sums(M+1, M+2)
for j in range(4):
    a(f"s_waitcnt lgkmcnt({3-j})")
    a(mf(v4(DE), a4(aWQ+4*j), v4(XE+4*j), 0 if j == 0 else v4(DE)))
    a(st[j])
a(st[4])
lst = lab("nost")
a(f"s_bfe_u32 s{sT0}, s2, 0x30003\ns_cmp_eq_u32 s{sT0}, 0\ns_cbranch_scc0 {lst}\ns_mov_b32 exec_lo, 1\ns_mov_b32 exec_hi, 1")
pub(f"buffer_store_dword v{M+1}, v{vXs}, {srd(WS_)}, s{sCS} offen")
a(f"{lst}:")
exec_set(0x00030003, 0x00030003)
a(f"v_cvt_pk_bf16_f32 v{DE}, v{DE}, v{DE+1}\nv_cvt_pk_bf16_f32 v{DE+1}, v{DE+2}, v{DE+3}")
pub(f"buffer_store_dwordx2 {v2(DE)}, v{vQs}, {srd(WS_)}, s{sQst} offen")
lnx = lab("nox")
a(f"s_mov_b32 s{sLAYER}, 1\ns_cmp_eq_u32 s{sT0}, 1\ns_cbranch_scc0 {lnx}")
exec_set(0xff, 0xff)
pub(f"buffer_store_dword v{M}, v{vXs}, {srd(WS_)}, s{sT2} offen", f"buffer_store_dword v{M+16}, v{vXs}, {srd(WS_)}, s{sT2} offen offset:64")
a(f"{lnx}:")
exec_all()
tsn('Q_pub')
ts_put([(TSB+2*k, 8+k) for k in range(12)], T+40)
a("s_branch L_layer")
tail = a.lines[MARK:]; del a.lines[MARK:]
for l, fn in early: a(f"{l}:"); fn()
a.lines += tail
n = 0
while n < len(deferred):
    l, fn = deferred[n]; a(f"{l}:"); fn(); n += 1
a("L_fin:")
until(2)
if TS:
    ts(11)
    a(f"s_memrealtime s[{sE}:{sE+1}]")
    ts_put([(TSB+2*k, 24+k) for k in range(12)] + [(sE, 43), (sFAST, 40), (sTO, 41)], T+40)
    soff(sT0, TS_OFF - LSTR, wg=1024, wv=256)
    a(f"buffer_store_dword v{T+40}, v{vL4}, {srd(WS_)}, s{sT0} offen")
a("L_end:\ns_endpgm")

import asmlib
asmlib.BRANCH_MARGIN = 0 if opt['nobr'] else 1
body = a.finalize()
kn = NAME + "_kernel"
ref = open("cdna_kernels/" + NAME + ".s.ref").read().split("\n")
head = [l for l in ref if l.startswith(";") and "@launch" not in l and "Override launch" not in l and "grid=ceil" not in l][:13]
diag = ("; tsset " + opt["tsset"] + "\n; opts " + " ".join([sys.argv[0]] + [x for x in sys.argv[2:] if not x.startswith(("ts", "tobits", "outw"))]) + "\n") if TS else ""
doc = """; One persistent launch, one workgroup of four 512-register waves per CU.
;  - hand-offs between workgroups go through d_ws slots that this launch first fills with an all-ones sentinel; a counter in
;    d_debug (first layer's slots) or the data flow itself (second layer's) orders those writes before any use. Readers spin,
"""
src = "\n".join(head) + f"""
{diag}{doc}; @launch grid=(256,1,1) block=(256,1,1) lds={LDS_BYTES}
.amdgcn_target "amdgcn-amd-amdhsa--gfx950"
.text
.globl {kn}
.p2align 8
.type {kn},@function
{kn}:
{body}
.section .rodata,"a"
.p2align 6
.amdhsa_kernel {kn}
  .amdhsa_next_free_vgpr 512
  .amdhsa_next_free_sgpr 102
  .amdhsa_accum_offset 256
  .amdhsa_group_segment_fixed_size 0
  .amdhsa_kernarg_size 96
  .amdhsa_user_sgpr_count 2
  .amdhsa_user_sgpr_kernarg_segment_ptr 1
  .amdhsa_system_sgpr_workgroup_id_x 1
.end_amdhsa_kernel
"""
open(out_path, "w").write(src)
print("nops inserted:", a.nops, "lines:", len(body.split("\n")), file=sys.stderr)
```

```python
import sys, math, struct
from asmlib import Asm

NAME = "interleave_layers__gqa_block_cached__glu_gated_reglu__decode"
opt = dict(ts=0, fast=1, tobits=20, until=0, upos=0, outw=0, cqp=0, fw=2, rmap=1, tpos=0, cw=0, tin=15, zov=1, pt2=0, m01=1, pad=0, pad2=0, csm=1, ackm=7, kvp=0, wp=0, nobr=1,
           tsset="qk_start,softmax_done,pv_done,O_pub,H2_got,WO_pub,M1_done,GU_pub,H4_got,DN_pub,M2_done,Q_pub")
out_path = sys.argv[1]
for x in sys.argv[2:]:
    k, v = x.split("=")
    assert k in opt, k
    opt[k] = v if k == "tsset" else int(v)
TS = opt["ts"]
KVP = [" nt", "", " sc1 nt", " sc0 sc1 nt"][opt["kvp"]]; WP = [" nt", ""][opt["wp"]]
def f2u(x): return struct.unpack("<I", struct.pack("<f", x))[0]

BLK = 0x20000
GR = 2*BLK
O_OFF, CS_OFF, Q_OFF, ST1_OFF, X_OFF, ST2_OFF, LSE_OFF = 0x0, 0x8000, 0xA000, 0xB000, 0xB400, 0xBC00, 0xBE00
GU_OFF, CQ_OFF = BLK, BLK + 0xB000
WO_OFF, DN_OFF = 0xC000, 8*BLK + 0xC000
LSTR = 0x10000
TS_OFF = 0x600000
WS_SIZE = 0x800000 if TS else 16*BLK
WQ_L, WO_L, WG_L, WU_L, WD_L = 0, 16384, 32768, 40960, 49152
OC_L = 57344; OC_W = 2048
ML_L = OC_L + 4*OC_W
H_L = ML_L + 128
XL_L = H_L + 256
ONE_L = XL_L + 256
X2_L = ONE_L + 256
LDS_BYTES = X2_L + 512
sWV, sGB, sFB, sLAYER, sFAST, sTO = 3, 4, 5, 6, 7, 76
K_, V_, WS_, WQ_, WO_, WG_, WU_, WD_, X_, OUT_, DBG_ = 8, 12, 16, 20, 24, 28, 32, 36, 40, 44, 48
def srd(n): return f"s[{n}:{n+3}]"
(sKV, sQld, sQst, sOst, sLst, sOld, sLld, sWOst, sM1, sM2, sXj, sST1st, sST2ld, sST1ld, sGUst, sGUld, sDNst, sCS, sT2) = range(77, 96)
sT0, sT1, sSEL0, sSEL1 = 96, 97, 98, 99
sE = 100
TSB = 52
vL16, vL4, vOs, vOl, vP16, vC16, vG16, vQs, vDNs, vGUl, vXs = range(0, 11)
vOCw, vOCr, vMLw, vMLr, vHw, vHr, vTR, vXLr, vSTd, vXLw = range(11, 21)
vX0, vX1, vCS = 21, 22, 23
vCSQ = 24
T = 28
QF, DT, vM, XT, YT, ZA = 28, 44, 76, 80, 84, 88
VR = 96
R4 = VR + 128
ZC = R4 + 8
def v4(n): return f"v[{n}:{n+3}]"
def v2(n): return f"v[{n}:{n+1}]"
def a4(n): return f"a[{n}:{n+3}]"
aK, aWQ, aWO, aWG, aWU, aWD, aONE, aDUM, aTS = 0, 128, 144, 176, 184, 192, 200, 204, 205

a = Asm()
def cm(t): a("; " + t)
deferred = []
early = []
uid = [0]
def lab(p):
    uid[0] += 1
    return f"L_{p}_{uid[0]}"
def exec_set(lo, hi):
    if hi == 0: a(f"s_mov_b64 exec, {lo:#x}")
    else: a(f"s_mov_b32 exec_lo, {lo:#x}\ns_mov_b32 exec_hi, {hi:#x}")
def exec_all(): a("s_mov_b64 exec, -1")
def em(l):
    for x in l: a(x)

F = dict(grp=(2,0,3), idx=(2,3,5), i=(2,3,3), slot=(2,6,2), s=(2,3,4), ba=(2,7,1), wg=(2,0,8),
         i0=(2,3,1), ih=(2,4,2), sl0=(2,6,1), wv=(sWV,0,2), w0=(sWV,0,1), w1=(sWV,1,1))
def soff(dst, const, gb=False, **terms):
    first = True
    for name, mul in terms.items():
        src, lo, w = F[name]
        d = dst if first else sE
        if name in ("wg", "wv"): s = f"s{src}"
        else:
            a(f"s_bfe_u32 s{d}, s{src}, {(w << 16) | lo:#x}"); s = f"s{d}"
        if mul == 1 and s == f"s{d}": pass
        elif mul & (mul-1) == 0: a(f"s_lshl_b32 s{d}, {s}, {mul.bit_length()-1}")
        else: a(f"s_mul_i32 s{d}, {s}, {mul}")
        if not first: a(f"s_add_u32 s{dst}, s{dst}, s{sE}")
        first = False
    if first:
        a(f"s_add_u32 s{dst}, s{sGB}, {const:#x}" if gb else f"s_mov_b32 s{dst}, {const:#x}"); return
    if gb: a(f"s_add_u32 s{dst}, s{dst}, s{sGB}")
    if const: a(f"s_add_u32 s{dst}, s{dst}, {const:#x}")
vLane, vTmp = 30, 31
def voff(dst, terms, sadd=None, const=0):
    first = True
    for lo, w, mul in terms:
        if first:
            if lo == 0 and w == 6: src = vLane
            else: a(f"v_bfe_u32 v{dst}, v{vLane}, {lo}, {w}"); src = dst
            if mul != 1 or src != dst: a(f"v_lshlrev_b32 v{dst}, {mul.bit_length()-1}, v{src}")
        else:
            a(f"v_bfe_u32 v{vTmp}, v{vLane}, {lo}, {w}\nv_lshl_add_u32 v{dst}, v{vTmp}, {mul.bit_length()-1}, v{dst}")
        assert mul & (mul-1) == 0
        first = False
    if const: a(f"v_add_u32 v{dst}, {const}, v{dst}")
    if sadd is not None: a(f"v_add_u32 v{dst}, s{sadd}, v{dst}")

def pub(*stores):
    wt = [s + (" sc1" if s.startswith("buffer") else "") for s in stores]
    if not opt["fast"]:
        em(wt); return
    ls, lb = lab("wt"), lab("back")
    a(f"s_cmp_eq_u32 s{sFAST}, 1\ns_cbranch_scc0 {ls}")
    em(stores)
    a(f"{lb}:")
    deferred.append((ls, lambda: a("\n".join(wt) + f"\ns_branch {lb}")))

def only(layer, fn, inline=True):
    ls, lb = lab("l%d" % layer), lab("join")
    hit, miss = ("scc1", "scc0") if layer == 0 else ("scc0", "scc1")
    if inline:
        a(f"s_cmp_eq_u32 s{sLAYER}, 0\ns_cbranch_{miss} {lb}")
        fn(lb)
        a(f"{lb}:")
        return
    a(f"s_cmp_eq_u32 s{sLAYER}, 0\ns_cbranch_{hit} {ls}\n{lb}:")
    (early if opt["tpos"] else deferred).append((ls, lambda: (fn(lb), a(f"s_branch {lb}"))))

def check_ops(regs, tmp):
    r = list(regs)
    def chain(x, t):
        o = [f"v_max3_u32 v{t}, v{x[0]}, v{x[1]}, v{x[2]}"]; x = x[3:]
        while len(x) >= 2: o.append(f"v_max3_u32 v{t}, v{x[0]}, v{x[1]}, v{t}"); x = x[2:]
        if x: o.append(f"v_max_u32 v{t}, v{x[0]}, v{t}")
        return o
    if len(r) == 1: return [f"v_mov_b32 v{tmp}, v{r[0]}"]
    if len(r) == 2: return [f"v_max_u32 v{tmp}, v{r[0]}, v{r[1]}"]
    if len(r) < 8: return chain(r, tmp)
    A, B = r[:len(r)//2], r[len(r)//2:]
    if len(A) % 2 == 0: A, B = A + B[:1], B[1:]
    last = B.pop() if len(B) % 2 == 0 else None
    ca, cb, ops = chain(A, tmp), chain(B, tmp+1), []
    while ca or cb:
        if ca: ops.append(ca.pop(0))
        if cb: ops.append(cb.pop(0))
    ops.append(f"v_max3_u32 v{tmp}, v{tmp}, v{tmp+1}, v{last}" if last is not None else f"v_max_u32 v{tmp}, v{tmp}, v{tmp+1}")
    return ops
def poll(loads, regs, tmp, between=None, spec=(), ack=False, l0=None, wait1=0, issued=False, first=None, got=None):
    lc, lr, ld, lx, lf = lab("chk"), lab("retry"), lab("got"), lab("giveup"), lab("first")
    loads = [l + " sc1" for l in loads]
    if first: lf = first
    if got: ld = got
    if l0: only(0, lambda lb: (l0[0](), a("s_waitcnt vmcnt(0)"), em(loads), l0[1](), a(f"s_branch {lf}")))
    if ack: a("s_waitcnt vmcnt(0)")
    if not issued: em(loads)
    if between: between()
    a(f"s_waitcnt vmcnt({wait1})\ns_branch {lc}" if wait1 else f"s_branch {lc if issued else lf}")
    a(f"{lr}:\ns_sub_u32 s{sTO}, s{sTO}, 1\ns_cbranch_scc1 {lx}\ns_mov_b64 exec, vcc")
    em(loads)
    a(f"s_mov_b64 exec, -1\n{lf}:\ns_waitcnt vmcnt(0)\n{lc}:")
    deferred.append((lx, lambda: a(f"s_mov_b32 s{sTO}, 0\ns_branch {ld}")))
    o, sp = check_ops(regs, tmp), list(spec)
    while o or sp:
        if sp: a(sp.pop(0))
        for _ in range(2 if sp else len(o)):
            if o: a(o.pop(0))
    a(f"v_cmp_eq_u32 vcc, -1, v{tmp}\ns_cbranch_vccnz {lr}\n{ld}:")

TSSET = opt["tsset"].split(",")
assert len(TSSET) <= 12
def ts(k):
    if TS: a(f"s_memtime s[{TSB+2*k}:{TSB+2*k+1}]")
def tsn(name):
    if name in TSSET: ts(TSSET.index(name))
def ts_put(pairs, tmp):
    if not TS: return
    a(f"s_waitcnt lgkmcnt(0)\nv_accvgpr_read_b32 v{tmp}, a{aTS}")
    for s, l in pairs: a(f"v_writelane_b32 v{tmp}, s{s}, {l}")
    a(f"v_accvgpr_write_b32 a{aTS}, v{tmp}")
def until(pos):
    if opt["until"] and opt["upos"] == pos:
        l = lab("until")
        a(f"v_accvgpr_read_b32 v{R4+30}, a{aTS}\nv_readfirstlane_b32 s54, v{R4+30}\n{l}:\ns_memrealtime s[52:53]\ns_waitcnt lgkmcnt(0)\ns_sub_u32 s52, s52, s54\ns_cmp_lt_u32 s52, {opt['until']}\ns_cbranch_scc1 {l}")

def mk_srd(d, lo, size):
    a(f"s_mov_b32 s{d}, s{lo}\ns_and_b32 s{d+1}, s{lo+1}, 0xffff\ns_mov_b32 s{d+2}, {size:#x}\ns_mov_b32 s{d+3}, 0x20000")
def mf(d, A, B, c): return f"v_mfma_f32_16x16x32_bf16 {d}, {A}, {B}, {c}"
def dp(op, d, s0, s1, ctrl, bank=0xf):
    if s1 is None: return f"{op}_dpp v{d}, v{s0} {ctrl} row_mask:0xf bank_mask:{bank:#x}"
    return f"{op}_dpp v{d}, v{s0}, v{s1} {ctrl} row_mask:0xf bank_mask:{bank:#x}"
def rows(op, r, t):
    return [f"v_mov_b32 v{t}, v{r}", f"v_permlane16_swap_b32 v{r}, v{t}", f"{op} v{r}, v{r}, v{t}",
            f"v_mov_b32 v{t}, v{r}", f"v_permlane32_swap_b32 v{r}, v{t}", f"{op} v{r}, v{r}, v{t}"]
def mix(main, fill, per=2, start=0):
    fill = list(fill)
    for n, m in enumerate(main):
        a(m)
        if n >= start:
            for _ in range(per):
                if fill: a(fill.pop(0))
    em(fill)
def dma(srdn, voff_, sbase, step, n, ldsbase):
    for i in range(n):
        a(f"s_lshl_b32 s{sE}, s{sWV}, 10\ns_add_u32 m0, s{sE}, {ldsbase + i*4096}")
        if i: a(f"s_add_u32 s{sbase}, s{sbase}, {step}")
        a(f"buffer_load_dwordx4 v{voff_}, {srd(srdn)}, s{sbase} offen{WP} lds")
def piece(dst, t):
    a(f"""v_lshrrev_b32 v{t}, 3, v{vL16}
    v_and_b32 v{t}, 32, v{t}
    v_xor_b32 v{dst}, v{vP16}, v{t}
    s_and_b32 s{sE}, s{sWV}, 1
    s_lshl_b32 s{sE}, s{sE}, 6
    v_xor_b32 v{dst}, s{sE}, v{dst}
    v_lshrrev_b32 v{t}, 7, v{vL16}""")
def trread(areg, vaddr, ldsoff, ksteps):
    for j in range(ksteps):
        for u in range(2):
            a(f"ds_read_b64_tr_b16 a[{areg+4*j+2*u}:{areg+4*j+2*u+1}], v{vaddr} offset:{ldsoff + (32*j+4*u)*128}")
def fin(S, Q, scale=1.0):
    r = [f"v_mul_f32 v{S}, {f2u(-1/512):#x}, v{S}", f"v_mul_f32 v{Q}, {f2u(1/512):#x}, v{Q}",
         f"v_fma_f32 v{Q}, -v{S}, v{S}, v{Q}", f"v_max_f32 v{Q}, 0, v{Q}", f"v_add_f32 v{Q}, {f2u(1e-5):#x}, v{Q}",
         f"v_rsq_f32 v{Q}, v{Q}"]
    if scale != 1.0: r.append(f"v_mul_f32 v{Q}, {f2u(scale):#x}, v{Q}")
    return r
QSCALE = math.log2(math.e) / math.sqrt(128.0)

cm("---- set-up: first loads ----")
if TS or opt["until"]:
    a(f"s_memtime s[52:53]\ns_memrealtime s[54:55]\ns_waitcnt lgkmcnt(0)\nv_mov_b32 v40, 0")
    if TS: a("v_writelane_b32 v40, s52, 0\nv_writelane_b32 v40, s54, 42")
    else: a("v_mov_b32 v40, s54")
    a(f"v_accvgpr_write_b32 a{aTS}, v40")
a(f"""s_cmp_ge_u32 s2, 256
s_cbranch_scc1 L_end
s_load_dwordx16 s[52:67], s[0:1], 0
s_load_dwordx8 s[68:75], s[0:1], 64
v_lshrrev_b32 v{vTmp}, 6, v0
v_and_b32 v{vLane}, 63, v0
v_readfirstlane_b32 s{sWV}, v{vTmp}
s_mov_b32 s{sLAYER}, 0
s_mov_b32 s{sTO}, {1 << opt['tobits']:#x}""")
vK, vW, vSX, vXl = 32, 33, 34, 35
XF, XS, RST = 44, 80, 88
voff(vL16, [(0,6,16)])
a(f"v_and_b32 v{vP16}, 0x70, v{vL16}")
piece(vW, vSX)
a(f"v_lshl_add_u32 v{vW}, v{vSX}, 13, v{vW}")
soff(sT1, 0, slot=128*8192, wv=8*8192, grp=1024, i=128)
voff(vXl, [(0,1,1024), (4,2,16)])
voff(vSX, [(0,1,1024), (1,3,128), (4,2,32)])
voff(vXs, [(0,3,8), (5,1,4)])
soff(sT2, 0, slot=256)
soff(sXj, 0, w1=1024, i=128, w0=64)
voff(vK, [(0,2,1024), (2,1,256), (3,1,64), (4,2,16)])
soff(sKV, 0, ba=8<<21, grp=1<<21, s=1<<17, wv=1<<13)
a("s_waitcnt lgkmcnt(0)")
mk_srd(WQ_, 58, 512*8192)
dma(WQ_, vW, sT1, 32*8192, 4, WQ_L)
mk_srd(X_, 52, 2048)
for j in range(4): a(f"buffer_load_dwordx4 {v4(XF+4*j)}, v{vXl}, {srd(X_)}, s{sT2} offen offset:{64*j}")
a(f"buffer_load_dwordx4 {v4(XS)}, v{vSX}, {srd(X_)}, 0 offen\nbuffer_load_dwordx4 {v4(XS+4)}, v{vSX}, {srd(X_)}, 0 offen offset:16")
a(f"buffer_load_dword v{vX1}, v{vXs}, {srd(X_)}, s{sXj} offen")
cm("sentinels of the first layer's hand-off slots: 1 KiB per wave")
for r in range(4): a(f"v_mov_b32 v{RST+r}, -1")
def rst_off(dst, base):
    m = opt["rmap"]
    if m == 0: soff(dst, base, grp=2*BLK, w0=BLK, idx=2048, w1=1024)
    elif m == 1: soff(dst, base, s=BLK, grp=8192, ba=4096, wv=1024)
    elif m == 2: soff(dst, base, s=BLK, wv=16384, ba=8192, grp=1024)
    elif m == 3: soff(dst, base, wv=4*BLK, slot=BLK, grp=8192, i=1024)
rst_off(sT1, 0)
mk_srd(WS_, 74, WS_SIZE)
a(f"buffer_store_dwordx4 {v4(RST)}, v{vL16}, {srd(WS_)}, s{sT1} offen sc1")
cm("the 32 workgroups without a hidden block write their share of the second layer's sentinels now as well: nothing later orders them")
a(f"""s_and_b32 s{sT0}, s2, 0xc4
s_cmp_eq_u32 s{sT0}, 0xc4
s_cbranch_scc0 L_rst
s_add_u32 s{sT1}, s{sT1}, {LSTR:#x}
buffer_store_dwordx4 {v4(RST)}, v{vL16}, {srd(WS_)}, s{sT1} offen sc1
L_rst:""")
mk_srd(K_, 54, 0x2000000)
def kload(t):
    r = []
    for hi in range(2):
        for j in range(4):
            p = f"s_add_u32 s{sT0}, s{sKV}, {t*32768 + hi*4096}\n" if j == 0 else ""
            r.append(p + f"buffer_load_dwordx4 {v4(VR+32*(t+1)+16*hi+4*j)}, v{vK}, {srd(K_)}, s{sT0} offen offset:{128*(j>>1)+512*(j&1)}{KVP}")
    return r
def vload(t):
    r = []
    for i in range(8):
        p = f"s_add_u32 s{sT0}, s{sKV}, {t*32768 + (i>>2)*4096}\n" if i % 4 == 0 else ""
        r.append(p + f"buffer_load_dwordx4 {v4(VR+32*(t+1)+4*i)}, v{vL16}, {srd(V_)}, s{sT0} offen offset:{1024*(i&3)}{KVP}")
    return r
def kfix(t, wait, loads):
    loads = list(loads)
    cm(f"K group {t} -> AGPRs")
    if wait is not None: a(f"s_waitcnt vmcnt({wait})")
    if t: ts(3 + t)
    for hi in range(2):
        for hf in range(2):
            A = VR + 32*(t+1) + 16*hi + 8*hf; B = A + 4; dst = aK + 16*(t+4*hi) + 8*hf
            a(loads.pop(0))
            for r in range(4): a(f"v_mov_b32 v{VR+r}, v{A+r}")
            for r in range(4): a(dp("v_mov_b32", VR+r, B+r, None, "row_ror:8", 0xc))
            for r in range(2): a(dp("v_mov_b32", B+r, A+r, None, "row_ror:8", 0x3))
            a(loads.pop(0))
            for r in range(2, 4): a(dp("v_mov_b32", B+r, A+r, None, "row_ror:8", 0x3))
            for r in range(4): a(f"v_accvgpr_write_b32 a{dst+r}, v{VR+r}")
            for r in range(4): a(f"v_accvgpr_write_b32 a{dst+4+r}, v{B+r}")
em(kload(0))
cm("---- set-up: remaining descriptors, lane patterns, offsets (under the first loads) ----")
mk_srd(V_, 56, 0x2000000); mk_srd(WO_, 60, 4096*1024); mk_srd(WG_, 64, 512*3584); mk_srd(WU_, 66, 512*3584)
mk_srd(WD_, 68, 1792*1024); mk_srd(OUT_, 70, 2048); mk_srd(DBG_, 72, 256)
t0, t1 = 36, 37
voff(vL4, [(0,6,4)]); voff(vC16, [(0,4,16)]); voff(vG16, [(4,2,16)])
voff(vOl, [(0,4,64), (4,2,16)]); voff(vOs, [(4,2,1024), (0,4,4)])
voff(vQs, [(0,1,BLK), (4,2,8)])
voff(vDNs, [(0,1,4*BLK), (4,2,16)]); voff(vGUl, [(4,2,2048), (0,4,16)])
voff(vSTd, [(0,4,16), (5,1,8)])
voff(vHr, [(0,1,128), (4,2,16)], const=H_L)
a(f"v_and_b32 v{vXLr}, 32, v{vL16}\nv_lshl_add_u32 v{vXLr}, v{vXLr}, 3, v{vHr}")
voff(vTR, [(4,2,1024), (2,2,128), (0,2,8)])
a(f"v_bfe_u32 v{vTmp}, v{vLane}, 3, 2\nv_xor_b32 v{vTmp}, s{sWV}, v{vTmp}\nv_lshl_add_u32 v{vTR}, v{vTmp}, 5, v{vTR}")
soff(sT0, H_L, wv=32); voff(vHw, [(5,1,128), (0,4,2)], sadd=sT0)
voff(vOCw, [(4,1,2), (3,1,1)]); a(f"v_xor_b32 v{vOCw}, v{vOCw}, v{vLane}\nv_lshlrev_b32 v{vOCw}, 4, v{vOCw}")
soff(sT0, OC_L, wv=OC_W); a(f"v_add_u32 v{vOCw}, s{sT0}, v{vOCw}")
voff(vOCr, [(4,1,2), (1,1,1)]); a(f"v_xor_b32 v{vOCr}, s{sWV}, v{vOCr}\nv_lshlrev_b32 v{vOCr}, 4, v{vOCr}")
voff(t0, [(4,2,256), (0,2,64), (2,2,4)], const=OC_L); a(f"v_add_u32 v{vOCr}, v{vOCr}, v{t0}")
soff(sT0, ML_L, wv=8); voff(vMLw, [(0,2,32)], sadd=sT0)
soff(sT0, ML_L, wv=32); a(f"v_mov_b32 v{vMLr}, s{sT0}")
soff(sT0, XL_L, wv=64); a(f"v_add_u32 v{vXLw}, s{sT0}, v{vXs}")
a(f"v_mov_b32 v{vTmp}, 0x3f803f80")
for r in range(4): a(f"v_accvgpr_write_b32 a{aONE+r}, v{vTmp}")
a(f"v_add_u32 v{t0}, {ONE_L}, v{vL4}\nds_write_b32 v{t0}, v{vTmp}")
for r in range(8): a(f"v_accvgpr_write_b32 a{aWD+r}, 0")
soff(sGB, 0, grp=GR)
soff(sFB, 0, slot=8, grp=1)
soff(sOst, O_OFF, True, ba=16384, wv=4096, s=64)
soff(sLst, LSE_OFF, True, ba=256, wv=64, s=4)
soff(sOld, O_OFF, True, w0=16384, slot=4096)
soff(sLld, LSE_OFF, True, w0=256, slot=64)
soff(sWOst, WO_OFF, w0=4*BLK, ih=BLK, i0=8192, w1=4096, grp=512, slot=128)
soff(sDNst, DN_OFF, ih=BLK, i0=8192, w1=4096, slot=1024, grp=128, w0=64)
soff(sM1, WO_OFF, w1=4*BLK, ih=BLK, i0=8192, w0=4096)
a(f"s_add_u32 s{sM2}, s{sM1}, {DN_OFF - WO_OFF:#x}")
soff(sST1st, ST1_OFF, True, slot=256, i=32, w0=16, w1=8)
soff(sST2ld, ST2_OFF, True, ba=8)
soff(sGUst, GU_OFF, True, slot=8192, i=1024, wv=256)
soff(sCS, CS_OFF, True, sl0=4096, ba=BLK, i=512, wv=128)
cm("workgroups past the 28 hidden blocks follow block 0 of their group with zero weights, to stay in step")
soff(sT0, 0, slot=1)
a(f"s_cmp_lt_u32 s{sFB}, 28\ns_cselect_b32 s{sT0}, s{sT0}, 0\ns_lshl_b32 s{sST1ld}, s{sT0}, 8\ns_lshl_b32 s{sT0}, s{sT0}, 13")
soff(sGUld, GU_OFF, True, wv=256)
a(f"s_add_u32 s{sGUld}, s{sGUld}, s{sT0}\ns_add_u32 s{sST1ld}, s{sST1ld}, s{sGB}\ns_add_u32 s{sST1ld}, s{sST1ld}, {ST1_OFF:#x}")
soff(sQst, Q_OFF, True, slot=256, ih=64, i0=2048, w1=1024, w0=32)
soff(sQld, Q_OFF, True, ba=BLK)
a(f"s_mov_b32 s{sSEL0}, 0x05040100\ns_mov_b32 s{sSEL1}, 0x07060302")
cm("---- first layer's query partials: layer norm of the input, 128 x 64 tile of Wq ----")
a("s_waitcnt vmcnt(8)")
ts(1)
K1 = kload(1)
em(K1[:2])
S, Qr = 90, 91
a(f"v_mov_b32 v{S}, 0\nv_mov_b32 v{Qr}, 0")
for i in range(8):
    a(f"""v_lshlrev_b32 v{t0}, 16, v{XS+i}
    v_and_b32 v{t1}, 0xffff0000, v{XS+i}
    v_add_f32 v{S}, v{S}, v{t0}
    v_fmac_f32 v{Qr}, v{t0}, v{t0}
    v_add_f32 v{S}, v{S}, v{t1}
    v_fmac_f32 v{Qr}, v{t1}, v{t1}""")
a(f"v_lshlrev_b32 v{vX0}, 16, v{vX1}\nv_and_b32 v{vX1}, 0xffff0000, v{vX1}")
em(K1[2:4])
a("s_barrier")
trread(aWQ, vTR, WQ_L, 4)
for n in (2, 4, 8): a(dp("v_add_f32", S, S, S, f"row_ror:{n}")); a(dp("v_add_f32", Qr, Qr, Qr, f"row_ror:{n}"))
for x, y in zip(rows("v_add_f32", S, t0), rows("v_add_f32", Qr, t1)): a(x); a(y)
em(fin(S, Qr, QSCALE) + [f"v_mul_f32 v{S}, v{S}, v{Qr}"])
a("s_waitcnt lgkmcnt(0)")
cm("arrival (all four waves' sentinels are acknowledged): count in bits 48.., one 6-bit field per XCC id")
lna = lab("noarr")
a(f"""s_getreg_b32 s{sT0}, hwreg(HW_REG_XCC_ID)
s_and_b32 s{sT0}, s{sT0}, 7
s_mul_i32 s{sFAST}, s{sT0}, 6
s_cmp_eq_u32 s{sWV}, 0
s_cbranch_scc0 {lna}
s_and_b32 s{sT0}, s2, 7
s_lshl_b32 s{sT0}, s{sT0}, 5
s_lshl_b64 s[{sE}:{sE+1}], 1, s{sFAST}
s_add_u32 s{sE+1}, s{sE+1}, 0x10000
s_atomic_add_x2 s[{sE}:{sE+1}], s[{DBG_}:{DBG_+1}], s{sT0}
{lna}:""")
DE = 60
for j in range(4): a(mf(v4(vCSQ), a4(aWQ+4*j), a4(aONE), 0 if j == 0 else v4(vCSQ)))
for j in range(4): a(mf(v4(DE), a4(aWQ+4*j), v4(XF+4*j), 0 if j == 0 else v4(DE)))
for r in range(4): a(f"v_mul_f32 v{DE+4+r}, v{S}, v{vCSQ+r}")
for r in range(4): a(f"v_fmac_f32 v{DE+4+r}, v{Qr}, v{DE+r}")
a(f"""v_cvt_pk_bf16_f32 v{DE}, v{DE+4}, v{DE+5}
v_cvt_pk_bf16_f32 v{DE+1}, v{DE+6}, v{DE+7}
v_cvt_pk_bf16_f32 v{vCSQ}, v{vCSQ}, v{vCSQ+1}
v_cvt_pk_bf16_f32 v{vCSQ+1}, v{vCSQ+2}, v{vCSQ+3}""")
ts(2)
CT = 80
voff(t0, [(0,3,32)])
cl = f"buffer_load_dwordx2 {v2(CT)}, v{t0}, {srd(DBG_)}, 0 offen sc1"
em(K1[4:])
kfix(0, 8, kload(2)); kfix(1, 8, kload(3)); a(cl); kfix(2, 9, vload(0))
cm("every workgroup has arrived: hand-offs may start; plain stores inside a group only if it sits on one XCC")
lp, ld = lab("bar"), lab("barok")
a(f"""s_waitcnt vmcnt(8)
{lp}:
v_lshrrev_b32 v{t1}, 16, v{CT+1}
v_cmp_gt_u32 vcc, 32, v{t1}
s_cbranch_vccz {ld}
{cl}
s_waitcnt vmcnt(0)
s_sub_u32 s{sTO}, s{sTO}, 1
s_cbranch_scc0 {lp}
s_mov_b32 s{sTO}, 0
{ld}:
s_and_b32 s{sT1}, s2, 7
s_waitcnt lgkmcnt(0)
v_readlane_b32 s{sT0}, v{CT}, s{sT1}
v_readlane_b32 s{sT1}, v{CT+1}, s{sT1}
s_lshl_b64 s[{sE}:{sE+1}], 32, s{sFAST}
s_add_u32 s{sE+1}, s{sE+1}, 0x200000
s_xor_b32 s{sT0}, s{sT0}, s{sE}
s_xor_b32 s{sT1}, s{sT1}, s{sE+1}
s_or_b32 s{sT0}, s{sT0}, s{sT1}
s_cmp_eq_u32 s{sT0}, 0
s_cselect_b32 s{sFAST}, 1, 0""")
ts_put([(sTO, 46)], vM)
exec_set(0x00030003, 0x00030003)
pub(f"buffer_store_dwordx2 {v2(DE)}, v{vQs}, {srd(WS_)}, s{sQst} offen")
exec_all()
def cq_pub():
    cm("column sums of this Wq tile, laid out like a query")
    a(f"s_add_u32 s{sT2}, s{sQst}, {CQ_OFF - Q_OFF:#x}")
    exec_set(0x10001, 0x10001)
    pub(f"buffer_store_dwordx2 {v2(vCSQ)}, v{vQs}, {srd(WS_)}, s{sT2} offen")
    exec_all()
if opt["cqp"] == 0: cq_pub()
WA = vCSQ + 2
sG, sD = X_+2, X_+3
def ffn_addr():
    cm("addresses for the window behind the first output projection")
    piece(WA+1, t1)
    a(f"v_mul_u32_u24 v{WA}, 3584, v{t1}\nv_add_u32 v{WA}, v{WA}, v{WA+1}\nv_lshl_add_u32 v{WA+1}, v{t1}, 10, v{WA+1}")
    soff(sG, 0, i=64*3584, wv=8*3584, slot=1024, grp=128)
    soff(sD, 0, slot=8*65536, grp=65536, wv=8192, i=128)
    soff(X_+1, 0, sl0=4096, ba=BLK)
    a(f"s_cmp_lt_u32 s{sFB}, 28\ns_cselect_b32 s{X_+1}, s{X_+1}, 0")
    soff(sT1, CS_OFF, True, wv=128)
    a(f"s_add_u32 s{X_+1}, s{X_+1}, s{sT1}\ns_add_u32 s{sT2}, s{sGB}, {CQ_OFF:#x}")
    rst_off(X_, LSTR)
ffn_addr()
if opt["cw"]:
    cm("ask for the code of the coming stages: one or two 64-byte lines per wave")
    soff(sT0, 0, idx=256, wv=64)
    a(f"s_getpc_b64 s[{X_+2}:{X_+3}]\nL_pc:\ns_add_u32 s{X_+2}, s{X_+2}, L_tblk-L_pc\ns_addc_u32 s{X_+3}, s{X_+3}, 0\ns_load_dword s{X_+1}, s[{X_+2}:{X_+3}], s{sT0}")
    if opt["cw"] > 1: a(f"s_add_u32 s{sT0}, s{sT0}, 8192\ns_min_u32 s{sT0}, s{sT0}, L_end-L_tblk\ns_load_dword s{X_}, s[{X_+2}:{X_+3}], s{sT0}")
kfix(3, None, vload(1))
qloads = [f"buffer_load_dwordx4 {v4(QF+4*j)}, v{vOl}, {srd(WS_)}, s{sQld} offen offset:{1024*j}" for j in range(4)]
poll(qloads, range(QF, QF+16), vM, between=lambda: em(vload(2)), wait1=8)
ts(7)
ts_put([(TSB+2*k, k) for k in range(1, 8)] + [(sTO, 47)], vM)
vMu, vA = vM + 2, vM + 3
cm("these queries are normalised already: sums that make the deferred scale 1")
a(f"v_mov_b32 v{vMu}, 0\nv_mov_b32 v{vA}, {f2u((QSCALE*QSCALE - 1e-5)*64):#x}")
Dt = lambda t: DT + 4*t
qk_on = lambda B: [mf(v4(Dt(tau)), a4(aK+16*tau+4*j), v4(B+4*j), 0 if j == 0 else v4(Dt(tau))) for tau in (0, 2, 1, 3, 4, 6, 5, 7) for j in range(4)]
qk = qk_on(QF)
em(qk[:4])
a("s_branch L_qk")
a("L_tblk:")
for _ in range(opt["pad"]): a("s_nop 0")
MARK = len(a.lines)

a("L_layer:")
until(1)
cm("---- attention over this workgroup's 512 keys; K, V in registers ----")
poll(qloads + [f"buffer_load_dwordx2 {v2(vMu)}, v{vP16}, {srd(WS_)}, s{sST2ld} offen"], list(range(QF, QF+16)) + [vMu, vA], vM, spec=qk[:4], ack=bool(opt['ackm'] & 1))
a("L_qk:")
tsn('qk_start')
ZB = ZA + 4
def fold(Z):
    xlo = lambda t, X: [dp("v_add_f32", X+r, Dt(t)+r, Dt(t)+r, "row_ror:8", 0x3) for r in range(4)]
    xhi = lambda t, X: [dp("v_add_f32", X+r, Dt(t)+r, Dt(t)+r, "row_ror:8", 0xc) for r in range(4)]
    zev = lambda z: [dp("v_add_f32", z+r, XT+r, XT+r, "row_ror:12", 0x5) for r in range(4)]
    zod = lambda z: [dp("v_add_f32", z+r, YT+r, YT+r, "row_ror:4", 0xa) for r in range(4)]
    return (xlo(0, XT) + xhi(2, XT) + zev(Z) + xlo(1, YT) + xhi(3, YT) + zod(Z),
            xlo(4, XT) + xhi(6, XT) + zev(Z+4) + xlo(5, YT) + xhi(7, YT) + zod(Z+4))
lnst = []
for c in ("quad_perm:[1,0,3,2]", "quad_perm:[2,3,0,1]", "row_ror:4"): lnst += [dp("v_add_f32", vMu, vMu, vMu, c), dp("v_add_f32", vA, vA, vA, c)]
lnst += fin(vMu, vA, QSCALE)
fa, fb = fold(ZA)
mix(qk[4:11], lnst[:12], 2, 1)
mix(qk[11:], fa + [lnst[12], "s_nop 0"] + fb)
cm("deferred layer norm: scores = rstd * (K.q_raw - mean * K.colsum)")
only(1, lambda lb: em([f"v_fmac_f32 v{ZA+r}, v{vMu}, v{ZC+r}" for r in range(8)]))
vLs, vU = vM + 1, vM + 2
a(f"""v_max3_f32 v{vM}, v{ZA}, v{ZA+1}, v{ZA+2}
v_max3_f32 v{vLs}, v{ZB}, v{ZB+1}, v{ZB+2}
v_max3_f32 v{vM}, v{ZA+3}, v{ZB+3}, v{vM}
v_max_f32 v{vM}, v{vLs}, v{vM}""")
a(dp("v_max_f32", vM, vM, vM, "row_ror:4")); a(dp("v_max_f32", vM, vM, vM, "row_ror:8"))
em(rows("v_max_f32", vM, vU))
P = [XT, YT, QF, QF+4]
a(f"v_mul_f32 v{vM}, v{vM}, v{vA}")
for r in range(8): a(f"v_fma_f32 v{ZA+r}, v{ZA+r}, v{vA}, -v{vM}")
for r in range(8): a(f"v_exp_f32 v{ZA+r}, v{ZA+r}")
for r in range(4): a(f"v_cvt_pk_bf16_f32 v{P[0]+r}, v{ZA+2*r}, v{ZA+2*r+1}")
tsn('softmax_done')
def transpose(t, waits):
    cm(f"V group {t}: pair up keys for the MFMA")
    src, dst = VR + 32*(t+1), VR + 32*t
    for p in range(4):
        if waits[p] is not None: a(f"s_waitcnt vmcnt({waits[p]})")
        for q in range(4):
            a(f"v_perm_b32 v{dst+8*q+p}, v{src+8*p+4+q}, v{src+8*p+q}, s{sSEL0}")
            a(f"v_perm_b32 v{dst+8*q+4+p}, v{src+8*p+4+q}, v{src+8*p+q}, s{sSEL1}")
def wo_dma():
    piece(vU, vU+1)
    a(f"v_lshl_add_u32 v{vU}, v{vU+1}, 10, v{vU}")
    soff(sT0, 0, grp=512*1024, slot=128*1024, wv=8*1024, i=128)
    dma(WO_, vU, sT0, 32*1024, 4, WO_L)
def pv(t): return [mf(v4(DT+4*e), v4(VR+32*t+4*e), v4(P[t]), 0 if t == 0 else v4(DT+4*e)) for e in range(8)]
FW, vMM, vL, vR, vLSE = QF+8, QF+12, QF+13, QF+14, QF+15
ML = ZA
only(0, lambda lb: (em(vload(3)), transpose(0, [None]*4), transpose(1, [None]*4) if opt['m01'] else None), bool(opt['tin'] & 1))
rot = lambda tt: [dp("v_mov_b32", P[tt]+r, P[0]+r, None, f"row_ror:{16-4*tt}") for r in range(4)]
rs = rows("v_add_f32", vLs, vU)
r1, r2, r3 = rot(1), rot(2), rot(3)
s0 = [f"v_add_f32 v{ZA+2*r}, v{ZA+2*r}, v{ZA+2*r+1}" for r in range(4)] + \
     [f"v_add_f32 v{ZA}, v{ZA}, v{ZA+2}", f"v_add_f32 v{ZA+4}, v{ZA+4}, v{ZA+6}", f"v_add_f32 v{vLs}, v{ZA}, v{ZA+4}", r1[0],
      dp("v_add_f32", vLs, vLs, vLs, "row_ror:4"), r1[1], dp("v_add_f32", vLs, vLs, vLs, "row_ror:8"), rs[0], r1[2], rs[1], rs[2], r1[3]]
mix(pv(0), s0)
tsn('pv0')
if not opt['m01']: only(0, lambda lb: transpose(1, [None]*4), bool(opt['tin'] & 2))
p1 = pv(1)
em([p1[0], rs[3], r2[0], p1[1], rs[4], rs[5], p1[2], "s_mov_b64 exec, 15", f"ds_write_b64 v{vMLw}, {v2(vM)}", "s_mov_b64 exec, -1",
    p1[3], r2[1], r2[2], p1[4], r2[3], r3[0], p1[5], r3[1], r3[2], p1[6], "s_waitcnt lgkmcnt(0)", "s_barrier",
    f"ds_read_b128 {v4(ML)}, v{vMLr}", f"ds_read_b128 {v4(ML+4)}, v{vMLr} offset:16", p1[7], r3[3]])
tsn('pv1')
only(0, lambda lb: (wo_dma(), transpose(2, [12, None, None, None])), bool(opt['tin'] & 4))
fac = ["s_waitcnt lgkmcnt(0)", f"v_max3_f32 v{vMM}, v{ML}, v{ML+2}, v{ML+4}", f"v_max_f32 v{vMM}, v{ML+6}, v{vMM}"] + \
      [f"v_sub_f32 v{FW+w}, v{ML+2*w}, v{vMM}" for w in range(4)] + [f"v_exp_f32 v{FW+w}, v{FW+w}" for w in range(4)] + \
      [f"v_mul_f32 v{vL}, v{FW}, v{ML+1}"] + [f"v_fmac_f32 v{vL}, v{FW+w}, v{ML+2*w+1}" for w in range(1, 4)] + \
      [f"v_rcp_f32 v{vR}, v{vL}", f"v_log_f32 v{vLSE}, v{vL}"] + [f"v_mul_f32 v{FW+w}, v{FW+w}, v{vR}" for w in range(4)] + \
      [f"v_add_f32 v{vLSE}, v{vLSE}, v{vMM}"]
mix(pv(2), fac[:12], 2, 2)
tsn('pv2')
only(0, lambda lb: (transpose(3, [10, 8, 6, 4]), cq_pub() if opt['cqp'] == 2 else None), bool(opt['tin'] & 8))
gath = lambda u: [dp("v_mov_b32", DT+k, DT+8*u+k, None, f"row_ror:{4*u}", 1 << u) for k in range(8)]
mix(pv(3), fac[12:] + gath(1)[:6])
em(gath(1)[6:] + gath(2) + gath(3))
tsn('pv_done')
until(0)
cm("combine the four waves, publish the normalised partial output and its log-sum-exp")
a(f"ds_write_b128 v{vOCw}, {v4(DT)}\nds_write_b128 v{vOCw}, {v4(DT+4)} offset:1024\ns_mov_b64 exec, 1")
pub(f"buffer_store_dword v{vLSE}, off, {srd(WS_)}, s{sLst}")
a("s_mov_b64 exec, -1\ns_waitcnt lgkmcnt(0)\ns_barrier")
OV = ZA
for w in range(4): a(f"ds_read2st64_b32 {v2(OV+2*w)}, v{vOCr} offset0:{8*w} offset1:{8*w+4}")
a(f"s_waitcnt lgkmcnt(3)\nv_mul_f32 v{OV}, v{FW}, v{OV}\nv_mul_f32 v{OV+1}, v{FW}, v{OV+1}")
for w in range(1, 4): a(f"s_waitcnt lgkmcnt({3-w})\nv_fmac_f32 v{OV}, v{FW+w}, v{OV+2*w}\nv_fmac_f32 v{OV+1}, v{FW+w}, v{OV+2*w+1}")
a(f"v_cvt_pk_bf16_f32 v{OV}, v{OV}, v{OV+1}")
pub(f"buffer_store_dword v{OV}, v{vOs}, {srd(WS_)}, s{sOst} offen")
tsn('O_pub')
def pretouch(vt, base, parts, sT0=sT0):
    cm("bring the next hand-off lines into this die's L2")
    lx = lab("pt")
    a(f"v_lshlrev_b32 v{vt}, 3, v{vL16}\ns_mov_b32 exec_hi, 0")
    for w, (off, n, terms) in enumerate(parts):
        if w:
            a(f"s_cmp_eq_u32 s{sWV}, {w-1}\ns_cbranch_scc1 {lx}")
        soff(sT0, base + off, True, **terms)
        a(f"s_mov_b32 exec_lo, {(1 << n) - 1:#x}")
    a(f"{lx}:\nbuffer_load_dword a{aDUM}, v{vt}, {srd(WS_)}, s{sT0} offen sc1\ns_mov_b64 exec, -1")
CF = R4 + 16
cq = [f"buffer_load_dwordx4 {v4(CF+4*j)}, v{vOl}, {srd(WS_)}, s{sT2} offen offset:{1024*j}" for j in range(4)]
cm("---- output projection: 16 key splits of one head as MFMA rows, weighted by their softmax share ----")
OF, LS, DB, EB = T, T+16, T+20, T+28
def wo_frags():
    a(f"s_and_b32 s{sT0}, s{sWV}, 1\ns_lshl_b32 s{sT0}, s{sT0}, 5\nv_xor_b32 v{EB}, s{sT0}, v{vTR}\nv_xor_b32 v{EB+1}, 32, v{EB}\ns_barrier")
    trread(aWO, EB, WO_L, 4); trread(aWO+16, EB+1, WO_L, 4)
    a("s_waitcnt lgkmcnt(0)")
poll([f"buffer_load_dwordx4 {v4(OF+4*j)}, v{vOl}, {srd(WS_)}, s{sOld} offen offset:{1024*j}" for j in range(4)] +
     [f"buffer_load_dwordx4 {v4(LS)}, v{vG16}, {srd(WS_)}, s{sLld} offen"], range(OF, OF+20), EB, l0=(lambda: ((cq_pub() if opt['cqp'] == 1 else None), None), lambda: ((em([l + ' sc1' for l in cq]) if opt['fw'] == 1 else None), wo_frags())), ack=bool(opt['ackm'] & 2))
tsn('H2_got')
ch = [f"v_max3_f32 v{EB+4}, v{LS}, v{LS+1}, v{LS+2}", f"v_max_f32 v{EB+4}, v{LS+3}, v{EB+4}"] + rows("v_max_f32", EB+4, EB+5) + \
     [f"v_sub_f32 v{EB+r}, v{LS+r}, v{EB+4}" for r in range(4)] + [f"v_exp_f32 v{EB+r}, v{EB+r}" for r in range(4)]
bm = [mf(v4(DB+4*t), v4(OF+4*j), a4(aWO+16*t+4*j), 0 if j == 0 else v4(DB+4*t)) for j in range(4) for t in range(2)]
em([bm[0], ch[0], ch[1], ch[2], bm[1], bm[2], ch[3], ch[4], ch[5], bm[3], bm[4], ch[6], ch[7], ch[8], bm[5],
    ch[9], ch[10], bm[6], ch[11], ch[12], bm[7], ch[13], ch[14], ch[15]])
ra = rows("v_add_f32", EB+4, EB+5)
a(f"""v_add_f32 v{EB+4}, v{EB}, v{EB+1}
v_add_f32 v{EB+5}, v{EB+2}, v{EB+3}
v_add_f32 v{EB+4}, v{EB+4}, v{EB+5}
{ra[0]}
v_mul_f32 v{DB}, v{EB}, v{DB}
v_mul_f32 v{DB+4}, v{EB}, v{DB+4}
{ra[1]}
v_fmac_f32 v{DB}, v{EB+1}, v{DB+1}
{ra[2]}
v_fmac_f32 v{DB+4}, v{EB+1}, v{DB+5}
{ra[3]}
v_fmac_f32 v{DB}, v{EB+2}, v{DB+2}
v_fmac_f32 v{DB+4}, v{EB+2}, v{DB+6}
{ra[4]}
v_fmac_f32 v{DB}, v{EB+3}, v{DB+3}
v_fmac_f32 v{DB+4}, v{EB+3}, v{DB+7}
{ra[5]}
v_rcp_f32 v{EB+4}, v{EB+4}
v_permlane16_swap_b32 v{DB}, v{DB+4}
v_add_f32 v{DB}, v{DB}, v{DB+4}
v_mov_b32 v{DB+4}, v{DB}
v_permlane32_swap_b32 v{DB}, v{DB+4}
v_add_f32 v{DB}, v{DB}, v{DB+4}
s_mov_b32 exec_hi, 0
v_mul_f32 v{DB}, v{DB}, v{EB+4}
buffer_store_dword v{DB}, v{vL4}, {srd(WS_)}, s{sWOst} offen sc1
s_mov_b64 exec, -1""")
tsn('WO_pub')

def first_window(lb):
    cm("first layer, while the projection partials travel: FFN tiles, second layer's sentinels, K . colsum(Wq)")
    def rst():
        cm("acknowledged before this wave publishes its gate / up partials, which every use of those slots depends on")
        for r in range(4): a(f"v_mov_b32 v{R4+r}, -1")
        a(f"buffer_store_dwordx4 {v4(R4)}, v{vL16}, {srd(WS_)}, s{X_} offen sc1")
    if opt["fw"] != 1: em([l + " sc1" for l in cq])
    ln, lj = lab("noffn"), lab("ffnj")
    a(f"s_cmp_lt_u32 s{sFB}, 28\ns_cbranch_scc0 {ln}\ns_mov_b32 s{sT1}, s{sG}")
    if not opt["fw"]: rst()
    dma(WG_, WA, sG, 32*3584, 2, WG_L); dma(WU_, WA, sT1, 32*3584, 2, WU_L)
    dma(WD_, WA+1, sD, 32*1024, 2, WD_L)
    if opt["fw"]: rst()
    pretouch(WA, 0, [(GU_OFF, 4, dict(idx=1024)), (GU_OFF + 512, 4, dict(idx=1024)), (CS_OFF, 4, dict(s=512, ba=BLK)), (ST1_OFF, 1, dict(idx=128))])
    a(f"s_waitcnt vmcnt({8 if opt['fw'] else 7})\n{lj}:")
    deferred.append((ln, lambda: a(f"s_waitcnt vmcnt(0)\ns_branch {lj}")))
    poll(cq, range(CF, CF+16), vM, issued=True)
    za, zb = fold(ZC)
    zq, zf = qk_on(CF), za + ["s_nop 0", "s_nop 0"] + zb
    n0 = opt["zov"] - 1
    if opt["zov"]:
        k = max(0, n0 - 11) * 2
        mix(zq[:n0], zf[:k], 2, 11)
        a("s_barrier")
        em([l + " sc1" for l in lines(sM1)])
        mix(zq[n0:], zf[k:], 2, max(0, 11 - n0))
    else: mix(zq, zf, 2, 11)
    a("s_branch L_m1wait" if opt["zov"] else "s_branch L_acked")
M = T
def lines(soffr, base=0): return [f"buffer_load_dwordx4 {v4(M+base+4*u)}, v{vL16}, {srd(WS_)}, s{soffr} offen offset:{1024*u}" for u in range(4)]
def reduce32(jobs):
    for b, x0, x1 in jobs:
        for d, x in ((0, 4), (2, 6), (8, 12), (10, 14), (0, 8), (2, 10)): a(f"v_pk_add_f32 {v2(M+b+d)}, {v2(M+b+d)}, {v2(M+b+x)}")
    steps = [lambda m, x0, x1: [f"v_permlane32_swap_b32 v{m}, v{m+2}", f"v_permlane32_swap_b32 v{m+1}, v{m+3}"],
             lambda m, x0, x1: [f"v_add_f32 v{m}, v{m}, v{m+2}", f"v_add_f32 v{m+1}, v{m+1}, v{m+3}"],
             lambda m, x0, x1: [dp("v_add_f32", m, m, m, "row_ror:8"), dp("v_add_f32", m+1, m+1, m+1, "row_ror:8")],
             lambda m, x0, x1: [f"v_mov_b32 v{m+2}, v{m}", f"v_mov_b32 v{m+3}, v{m+1}"],
             lambda m, x0, x1: [f"v_permlane16_swap_b32 v{m}, v{m+2}", f"v_permlane16_swap_b32 v{m+1}, v{m+3}"],
             lambda m, x0, x1: [f"v_add_f32 v{x0}, v{x0}, v{m}", f"v_add_f32 v{x1}, v{x1}, v{m+1}"],
             lambda m, x0, x1: [f"v_add_f32 v{x0}, v{x0}, v{m+2}", f"v_add_f32 v{x1}, v{x1}, v{m+3}"],
             lambda m, x0, x1: [f"v_cvt_pk_bf16_f32 v{m}, v{x0}, v{x1}"]]
    for st_ in steps:
        for b, x0, x1 in jobs: em(st_(M+b, x0, x1))
def sums(s, q):
    return [f"v_permlane32_swap_b32 v{s}, v{q}", f"v_add_f32 v{s}, v{s}, v{q}", dp("v_add_f32", s, s, s, "quad_perm:[1,0,3,2]"),
            dp("v_add_f32", s, s, s, "quad_perm:[2,3,0,1]"), dp("v_add_f32", s, s, s, "row_ror:4")]
cm("---- residual update over all 32 projection partials; gate / up partial products of 64 input columns ----")
only(0, first_window)
XR = T + 20
a(f"s_add_u32 s{sT0}, s{sXj}, s{sGB}\ns_add_u32 s{sT0}, s{sT0}, {X_OFF:#x}")
poll([f"buffer_load_dword v{XR}, v{vXs}, {srd(WS_)}, s{sT0} offen"], [XR], XR+1)
a(f"v_lshlrev_b32 v{vX0}, 16, v{XR}\nv_and_b32 v{vX1}, 0xffff0000, v{XR}")
cm("first poll only after this workgroup's own write-through stores have landed: early reads slow the writers down")
a("L_acked:\ns_barrier")
poll(lines(sM1), range(M, M+16), M+16, first="L_m1wait")
reduce32([(0, vX0, vX1)])
tsn('M1_done')
XC, DG, DU = T+4, T+12, T+16
a(f"""ds_write_b32 v{vXLw}, v{M}
v_lshlrev_b32 v{vX0}, 16, v{M}
v_and_b32 v{vX1}, 0xffff0000, v{M}
v_add_f32 v{M+1}, v{vX0}, v{vX1}
v_mul_f32 v{M+2}, v{vX0}, v{vX0}
v_fmac_f32 v{M+2}, v{vX1}, v{vX1}
s_waitcnt lgkmcnt(0)
s_barrier
s_cmp_lt_u32 s{sFB}, 28
s_cbranch_scc0 L_stageD
ds_read_b128 {v4(XC)}, v{vXLr} offset:256
ds_read_b128 {v4(XC+4)}, v{vXLr} offset:{256+64}""")
only(0, lambda lb: (trread(aWG, vTR, WG_L, 2), trread(aWU, vTR, WU_L, 2)))
st = sums(M+1, M+2)
em(st[:3])
a("s_waitcnt lgkmcnt(0)")
mix([mf(v4(DG), v4(XC), a4(aWG), 0), mf(v4(DU), v4(XC), a4(aWU), 0), mf(v4(DG), v4(XC+4), a4(aWG+4), v4(DG)), mf(v4(DU), v4(XC+4), a4(aWU+4), v4(DU))], st[3:], 1)
a("s_mov_b32 exec_lo, 1\ns_mov_b32 exec_hi, 1")
pub(f"buffer_store_dword v{M+1}, v{vXs}, {srd(WS_)}, s{sST1st} offen")
a(f"s_mov_b64 exec, 0xffff\nv_mov_b32 v{DU+3}, v{DG+2}\nv_mov_b32 v{DG+2}, v{DU}\nv_mov_b32 v{DG+3}, v{DU+1}")
pub(f"buffer_store_dwordx4 {v4(DG)}, v{vC16}, {srd(WS_)}, s{sGUst} offen")
exec_all()
def cs_pub(lb):
    cm("rows 2 and 3 of the products were fed with ones: (up, gate) column sums; block 0 also publishes the residual")
    a(f"v_lshrrev_b32 v{T+32}, 1, v{vC16}\ns_mov_b64 exec, 0xffff")
    pub(f"buffer_store_dwordx2 {v2(DU+2)}, v{T+32}, {srd(WS_)}, s{sCS} offen")
    exec_all()
    trread(aWD, vTR, WD_L, 2)
    a(f"s_cmp_lt_u32 s{sFB}, 8\ns_cbranch_scc0 {lb}\ns_add_u32 s{sT0}, s{sXj}, s{sGB}\ns_add_u32 s{sT0}, s{sT0}, {X_OFF:#x}")
    exec_set(0xff, 0xff)
    pub(f"buffer_store_dword v{M}, v{vXs}, {srd(WS_)}, s{sT0} offen")
    exec_all()
only(0, cs_pub)
tsn('GU_pub')
cm("---- layer norm on the summed products, gate, down projection of 64 hidden columns ----")
a("L_stageD:")
G, SD, DD = T, T+8, T+12
dloads = [f"buffer_load_dwordx4 {v4(G+4*u)}, v{vGUl}, {srd(WS_)}, s{sGUld} offen offset:{1024*u}" for u in range(2)] + \
         [f"buffer_load_dwordx2 {v2(SD)}, v{vSTd}, {srd(WS_)}, s{sST1ld} offen"]
def colsums(lb):
    C = T + 16
    cl_ = [f"buffer_load_dwordx2 {v2(C+2*u)}, v{C+4}, {srd(WS_)}, s{X_+1} offen offset:{512*u}" for u in range(2)]
    a(f"v_lshrrev_b32 v{C+4}, 1, v{vGUl}")
    if opt["csm"]: poll(dloads + cl_, list(range(G, G+10)) + list(range(C, C+4)), DD, ack=bool(opt['ackm'] & 8))
    else: poll(cl_, range(C, C+4), C+5)
    a(f"""v_add_f32 v{C}, v{C}, v{C+2}
    v_add_f32 v{C+1}, v{C+1}, v{C+3}
    v_permlane16_swap_b32 v{C+1}, v{C}
    v_add_f32 v{vCS}, v{C}, v{C+1}
    v_mov_b32 v{C}, v{vCS}
    v_permlane32_swap_b32 v{vCS}, v{C}
    v_add_f32 v{vCS}, v{vCS}, v{C}""")
    if opt["csm"]: a("s_branch L_dgot")
if opt["csm"]:
    only(0, colsums)
    poll(dloads, range(G, G+10), DD, got="L_dgot", ack=bool(opt["ackm"] & 4))
else: poll(dloads, range(G, G+10), DD, between=lambda: only(0, colsums))
tsn('H4_got')
HF = T + 16
sd = []
for n in (1, 2, 4, 8): sd += [dp("v_add_f32", SD, SD, SD, f"row_ror:{n}"), dp("v_add_f32", SD+1, SD+1, SD+1, f"row_ror:{n}")]
sd += fin(SD, SD+1)
gd = [f"v_add_f32 v{G+r}, v{G+r}, v{G+4+r}" for r in range(4)] + \
     [f"v_permlane32_swap_b32 v{G}, v{G+1}", f"v_permlane32_swap_b32 v{G+2}, v{G+3}", f"v_add_f32 v{G}, v{G}, v{G+1}",
      f"v_add_f32 v{G+2}, v{G+2}, v{G+3}", f"v_permlane16_swap_b32 v{G}, v{G+2}", f"v_add_f32 v{G}, v{G}, v{G+2}"]
em([sd[0], sd[1], gd[0], sd[2], sd[3], gd[1], sd[4], sd[5], gd[2], sd[6], sd[7], gd[3], sd[8], sd[9], gd[4], sd[10], gd[5], sd[11], gd[6],
    gd[7], sd[12], sd[13], gd[8], gd[9]])
a(f"""v_fmac_f32 v{G}, v{SD}, v{vCS}
v_mul_f32 v{G}, v{G}, v{SD+1}
v_mov_b32 v{G+1}, v{G}
v_permlane16_swap_b32 v{G}, v{G+1}
v_max_f32 v{G}, 0, v{G}
v_mul_f32 v{G}, v{G}, v{G+1}
v_cvt_pk_bf16_f32 v{G}, v{G}, v{G}
ds_write_b16 v{vHw}, v{G}
s_waitcnt lgkmcnt(0)
s_barrier
ds_read_b128 {v4(HF)}, v{vHr}
ds_read_b128 {v4(HF+4)}, v{vHr} offset:64
s_waitcnt lgkmcnt(1)
{mf(v4(DD), a4(aWD), v4(HF), 0)}
s_waitcnt lgkmcnt(0)
{mf(v4(DD), a4(aWD+4), v4(HF+4), v4(DD))}
s_bfe_u32 s{sT0}, s2, 0x20006
s_and_b32 s{sT1}, s2, 7""")
exec_set(0x00030003, 0x00030003)
a(f"buffer_store_dwordx4 {v4(DD)}, v{vDNs}, {srd(WS_)}, s{sDNst} offen sc1")
exec_all()
tsn('DN_pub')
a(f"s_cmp_eq_u32 s{sLAYER}, 0\ns_cbranch_scc1 L_next")
cm("---- last layer: group 0 finishes the output, one wave per 32 columns ----")
a(f"""s_cmp_eq_u32 s{sT1}, 0
s_cbranch_scc0 L_fin
s_waitcnt vmcnt(0)
s_barrier
s_cmp_eq_u32 s{sT0}, s{sWV}
s_cbranch_scc0 L_fin""")
poll(lines(sM2), range(M, M+16), M+16)
reduce32([(0, vX0, vX1)])
exec_set(0xff, 0xff)
a(f"buffer_store_dword v{M}, v{vXs}, {srd(OUT_)}, s{sXj} offen")
if TS or opt["until"]: a("s_mov_b64 exec, -1\n" + ("s_waitcnt vmcnt(0)\n" if opt["outw"] else "") + "s_branch L_fin")
else: a("s_endpgm")
cm("---- first layer: residual update of 128 columns, raw query partials for the next layer ----")
for _ in range(opt["pad2"]): a("s_nop 0")
a("L_next:")
XA, vXw, vXr, DE = T+32, T+40, T+41, T+44
PT1 = [(O_OFF, 8, dict(idx=1024)), (GU_OFF, 8, dict(idx=1024)), (Q_OFF, 2, dict(s=256, ba=BLK)), (ST1_OFF, 1, dict(idx=128))]
if opt["pt2"] == 0: pretouch(vXw, LSTR, PT1)
soff(sT0, DN_OFF, w1=4*BLK, slot=BLK, w0=2*4096)
a(f"s_add_u32 s{sT1}, s{sT0}, 4096")
soff(sT2, X_OFF, True, w1=1024, slot=256, w0=128)
soff(sCS, X2_L, wv=128)
a(f"""v_add_u32 v{vXw}, s{sCS}, v{vXs}
v_and_b32 v{vXr}, 16, v{vL16}
v_lshl_add_u32 v{vXr}, v{vXr}, 4, v{vG16}
v_add_u32 v{vXr}, {X2_L}, v{vXr}""")
soff(sCS, ST2_OFF, True, slot=32, w0=16, w1=8)
poll([f"buffer_load_dword v{XA}, v{vXs}, {srd(WS_)}, s{sT2} offen", f"buffer_load_dword v{XA+1}, v{vXs}, {srd(WS_)}, s{sT2} offen offset:64"],
     range(XA, XA+2), XA+4)
a(f"""v_lshlrev_b32 v{XA+2}, 16, v{XA+1}
v_and_b32 v{XA+3}, 0xffff0000, v{XA+1}
v_and_b32 v{XA+1}, 0xffff0000, v{XA}
v_lshlrev_b32 v{XA}, 16, v{XA}
s_barrier""")
poll(lines(sT0) + lines(sT1, 16), range(M, M+32), XA+4, **(dict(between=lambda: pretouch(XA+6, LSTR, PT1, X_), wait1=1) if opt["pt2"] == 1 else {}))
reduce32([(0, XA, XA+1), (16, XA+2, XA+3)])
tsn('M2_done')
a(f"""ds_write2_b32 v{vXw}, v{M}, v{M+16} offset0:0 offset1:16
v_lshlrev_b32 v{XA}, 16, v{M}
v_and_b32 v{XA+1}, 0xffff0000, v{M}
v_lshlrev_b32 v{XA+2}, 16, v{M+16}
v_and_b32 v{XA+3}, 0xffff0000, v{M+16}
s_add_u32 s{WS_}, s{WS_}, {LSTR:#x}
s_addc_u32 s{WS_+1}, s{WS_+1}, 0
s_waitcnt lgkmcnt(0)
s_barrier""")
XE = T + 48
for j in range(4): a(f"ds_read_b128 {v4(XE+4*j)}, v{vXr} offset:{64*j}")
a(f"""v_add_f32 v{M+1}, v{XA}, v{XA+1}
v_mul_f32 v{M+2}, v{XA}, v{XA}
v_add_f32 v{M+3}, v{XA+2}, v{XA+3}
v_fmac_f32 v{M+2}, v{XA+1}, v{XA+1}
v_add_f32 v{M+1}, v{M+1}, v{M+3}
v_fmac_f32 v{M+2}, v{XA+2}, v{XA+2}
v_fmac_f32 v{M+2}, v{XA+3}, v{XA+3}""")
st = sums(M+1, M+2)
for j in range(4):
    a(f"s_waitcnt lgkmcnt({3-j})")
    a(mf(v4(DE), a4(aWQ+4*j), v4(XE+4*j), 0 if j == 0 else v4(DE)))
    a(st[j])
a(st[4])
lst = lab("nost")
a(f"s_bfe_u32 s{sT0}, s2, 0x30003\ns_cmp_eq_u32 s{sT0}, 0\ns_cbranch_scc0 {lst}\ns_mov_b32 exec_lo, 1\ns_mov_b32 exec_hi, 1")
pub(f"buffer_store_dword v{M+1}, v{vXs}, {srd(WS_)}, s{sCS} offen")
a(f"{lst}:")
exec_set(0x00030003, 0x00030003)
a(f"v_cvt_pk_bf16_f32 v{DE}, v{DE}, v{DE+1}\nv_cvt_pk_bf16_f32 v{DE+1}, v{DE+2}, v{DE+3}")
pub(f"buffer_store_dwordx2 {v2(DE)}, v{vQs}, {srd(WS_)}, s{sQst} offen")
lnx = lab("nox")
a(f"s_mov_b32 s{sLAYER}, 1\ns_cmp_eq_u32 s{sT0}, 1\ns_cbranch_scc0 {lnx}")
exec_set(0xff, 0xff)
pub(f"buffer_store_dword v{M}, v{vXs}, {srd(WS_)}, s{sT2} offen", f"buffer_store_dword v{M+16}, v{vXs}, {srd(WS_)}, s{sT2} offen offset:64")
a(f"{lnx}:")
exec_all()
tsn('Q_pub')
ts_put([(TSB+2*k, 8+k) for k in range(12)], T+40)
a("s_branch L_layer")
tail = a.lines[MARK:]; del a.lines[MARK:]
for l, fn in early: a(f"{l}:"); fn()
a.lines += tail
n = 0
while n < len(deferred):
    l, fn = deferred[n]; a(f"{l}:"); fn(); n += 1
a("L_fin:")
until(2)
if TS:
    ts(11)
    a(f"s_memrealtime s[{sE}:{sE+1}]")
    ts_put([(TSB+2*k, 24+k) for k in range(12)] + [(sE, 43), (sFAST, 40), (sTO, 41)], T+40)
    soff(sT0, TS_OFF - LSTR, wg=1024, wv=256)
    a(f"buffer_store_dword v{T+40}, v{vL4}, {srd(WS_)}, s{sT0} offen")
a("L_end:\ns_endpgm")

import asmlib
asmlib.BRANCH_MARGIN = 0 if opt['nobr'] else 1
body = a.finalize()
kn = NAME + "_kernel"
ref = open("cdna_kernels/" + NAME + ".s.ref").read().split("\n")
head = [l for l in ref if l.startswith(";") and "@launch" not in l and "Override launch" not in l and "grid=ceil" not in l][:13]
diag = ("; tsset " + opt["tsset"] + "\n; opts " + " ".join([sys.argv[0]] + [x for x in sys.argv[2:] if not x.startswith(("ts", "tobits", "outw"))]) + "\n") if TS else ""
doc = """; One persistent launch, one workgroup of four 512-register waves per CU.
;  - hand-offs between workgroups go through d_ws slots that this launch first fills with an all-ones sentinel; a counter in
;    d_debug (first layer's slots) or the data flow itself (second layer's) orders those writes before any use. Readers spin,
"""
src = "\n".join(head) + f"""
{diag}{doc}; @launch grid=(256,1,1) block=(256,1,1) lds={LDS_BYTES}
.amdgcn_target "amdgcn-amd-amdhsa--gfx950"
.text
.globl {kn}
.p2align 8
.type {kn},@function
{kn}:
{body}
.section .rodata,"a"
.p2align 6
.amdhsa_kernel {kn}
  .amdhsa_next_free_vgpr 512
  .amdhsa_next_free_sgpr 102
  .amdhsa_accum_offset 256
  .amdhsa_group_segment_fixed_size 0
  .amdhsa_kernarg_size 96
  .amdhsa_user_sgpr_count 2
  .amdhsa_user_sgpr_kernarg_segment_ptr 1
  .amdhsa_system_sgpr_workgroup_id_x 1
.end_amdhsa_kernel
"""
open(out_path, "w").write(src)
print("nops inserted:", a.nops, "lines:", len(body.split("\n")), file=sys.stderr)
```

```python
import sys, math, struct
from asmlib import Asm

NAME = "interleave_layers__gqa_block_cached__glu_gated_reglu__decode"
opt = dict(ts=0, fast=1, tobits=20, until=0, upos=0, outw=0, cqp=0, fw=2, rmap=1, tpos=0, cw=0, tin=15, zov=1, pt2=0, m01=1, tw=1, dbgto=0, jit=0, chalf=0, rnt=0, pad=0, pad2=0, csm=1, ackm=7, kvp=0, wp=0, nobr=1,
           tsset="qk_start,softmax_done,pv_done,O_pub,H2_got,WO_pub,M1_done,GU_pub,H4_got,DN_pub,M2_done,Q_pub")
out_path = sys.argv[1]
for x in sys.argv[2:]:
    k, v = x.split("=")
    assert k in opt, k
    opt[k] = v if k == "tsset" else int(v)
TS = opt["ts"]
KVP = [" nt", "", " sc1 nt", " sc0 sc1 nt"][opt["kvp"]]; WP = [" nt", ""][opt["wp"]]
def f2u(x): return struct.unpack("<I", struct.pack("<f", x))[0]

BLK = 0x20000
GR = 2*BLK
O_OFF, CS_OFF, Q_OFF, ST1_OFF, X_OFF, ST2_OFF, LSE_OFF = 0x0, 0x8000, 0xA000, 0xB000, 0xB400, 0xBC00, 0xBE00
GU_OFF, CQ_OFF = BLK, BLK + 0xB000
WO_OFF, DN_OFF = 0xC000, 8*BLK + 0xC000
LSTR = 0x10000
TS_OFF = 0x600000
WS_SIZE = 0x800000 if TS else 16*BLK
WQ_L, WO_L, WG_L, WU_L, WD_L = 0, 16384, 32768, 40960, 49152
OC_L = 57344; OC_W = 2048
ML_L = OC_L + 4*OC_W
H_L = ML_L + 128
XL_L = H_L + 256
ONE_L = XL_L + 256
X2_L = ONE_L + 256
LDS_BYTES = X2_L + 512
sWV, sGB, sFB, sLAYER, sFAST, sTO = 3, 4, 5, 6, 7, 76
K_, V_, WS_, WQ_, WO_, WG_, WU_, WD_, X_, OUT_, DBG_ = 8, 12, 16, 20, 24, 28, 32, 36, 40, 44, 48
def srd(n): return f"s[{n}:{n+3}]"
(sKV, sQld, sQst, sOst, sLst, sOld, sLld, sWOst, sM1, sM2, sXj, sST1st, sST2ld, sST1ld, sGUst, sGUld, sDNst, sCS, sT2) = range(77, 96)
sT0, sT1, sSEL0, sSEL1 = 96, 97, 98, 99
sE = 100
TSB = 52
vL16, vL4, vOs, vOl, vP16, vC16, vG16, vQs, vDNs, vGUl, vXs = range(0, 11)
vOCw, vOCr, vMLw, vMLr, vHw, vHr, vTR, vXLr, vSTd, vXLw = range(11, 21)
vX0, vX1, vCS = 21, 22, 23
vCSQ = 24
T = 28
QF, DT, vM, XT, YT, ZA = 28, 44, 76, 80, 84, 88
VR = 96
R4 = VR + 128
ZC = R4 + 8
def v4(n): return f"v[{n}:{n+3}]"
def v2(n): return f"v[{n}:{n+1}]"
def a4(n): return f"a[{n}:{n+3}]"
aK, aWQ, aWO, aWG, aWU, aWD, aONE, aDUM, aTS = 0, 128, 144, 176, 184, 192, 200, 204, 205

a = Asm()
def cm(t): a("; " + t)
deferred = []
early = []
uid = [0]
def lab(p):
    uid[0] += 1
    return f"L_{p}_{uid[0]}"
def exec_set(lo, hi):
    if hi == 0: a(f"s_mov_b64 exec, {lo:#x}")
    else: a(f"s_mov_b32 exec_lo, {lo:#x}\ns_mov_b32 exec_hi, {hi:#x}")
def exec_all(): a("s_mov_b64 exec, -1")
def em(l):
    for x in l: a(x)

F = dict(grp=(2,0,3), idx=(2,3,5), i=(2,3,3), slot=(2,6,2), s=(2,3,4), ba=(2,7,1), wg=(2,0,8),
         i0=(2,3,1), ih=(2,4,2), sl0=(2,6,1), wv=(sWV,0,2), w0=(sWV,0,1), w1=(sWV,1,1))
def soff(dst, const, gb=False, **terms):
    first = True
    for name, mul in terms.items():
        src, lo, w = F[name]
        d = dst if first else sE
        if name in ("wg", "wv"): s = f"s{src}"
        else:
            a(f"s_bfe_u32 s{d}, s{src}, {(w << 16) | lo:#x}"); s = f"s{d}"
        if mul == 1 and s == f"s{d}": pass
        elif mul & (mul-1) == 0: a(f"s_lshl_b32 s{d}, {s}, {mul.bit_length()-1}")
        else: a(f"s_mul_i32 s{d}, {s}, {mul}")
        if not first: a(f"s_add_u32 s{dst}, s{dst}, s{sE}")
        first = False
    if first:
        a(f"s_add_u32 s{dst}, s{sGB}, {const:#x}" if gb else f"s_mov_b32 s{dst}, {const:#x}"); return
    if gb: a(f"s_add_u32 s{dst}, s{dst}, s{sGB}")
    if const: a(f"s_add_u32 s{dst}, s{dst}, {const:#x}")
vLane, vTmp = 30, 31
def voff(dst, terms, sadd=None, const=0):
    first = True
    for lo, w, mul in terms:
        if first:
            if lo == 0 and w == 6: src = vLane
            else: a(f"v_bfe_u32 v{dst}, v{vLane}, {lo}, {w}"); src = dst
            if mul != 1 or src != dst: a(f"v_lshlrev_b32 v{dst}, {mul.bit_length()-1}, v{src}")
        else:
            a(f"v_bfe_u32 v{vTmp}, v{vLane}, {lo}, {w}\nv_lshl_add_u32 v{dst}, v{vTmp}, {mul.bit_length()-1}, v{dst}")
        assert mul & (mul-1) == 0
        first = False
    if const: a(f"v_add_u32 v{dst}, {const}, v{dst}")
    if sadd is not None: a(f"v_add_u32 v{dst}, s{sadd}, v{dst}")

def pub(*stores):
    wt = [s + (" sc1" if s.startswith("buffer") else "") for s in stores]
    if not opt["fast"]:
        em(wt); return
    ls, lb = lab("wt"), lab("back")
    a(f"s_cmp_eq_u32 s{sFAST}, 1\ns_cbranch_scc0 {ls}")
    em(stores)
    a(f"{lb}:")
    deferred.append((ls, lambda: a("\n".join(wt) + f"\ns_branch {lb}")))

def only(layer, fn, inline=True):
    ls, lb = lab("l%d" % layer), lab("join")
    hit, miss = ("scc1", "scc0") if layer == 0 else ("scc0", "scc1")
    if inline:
        a(f"s_cmp_eq_u32 s{sLAYER}, 0\ns_cbranch_{miss} {lb}")
        fn(lb)
        a(f"{lb}:")
        return
    a(f"s_cmp_eq_u32 s{sLAYER}, 0\ns_cbranch_{hit} {ls}\n{lb}:")
    (early if opt["tpos"] else deferred).append((ls, lambda: (fn(lb), a(f"s_branch {lb}"))))

def check_ops(regs, tmp):
    r = list(regs)
    def chain(x, t):
        o = [f"v_max3_u32 v{t}, v{x[0]}, v{x[1]}, v{x[2]}"]; x = x[3:]
        while len(x) >= 2: o.append(f"v_max3_u32 v{t}, v{x[0]}, v{x[1]}, v{t}"); x = x[2:]
        if x: o.append(f"v_max_u32 v{t}, v{x[0]}, v{t}")
        return o
    if len(r) == 1: return [f"v_mov_b32 v{tmp}, v{r[0]}"]
    if len(r) == 2: return [f"v_max_u32 v{tmp}, v{r[0]}, v{r[1]}"]
    if len(r) < 8: return chain(r, tmp)
    A, B = r[:len(r)//2], r[len(r)//2:]
    if len(A) % 2 == 0: A, B = A + B[:1], B[1:]
    last = B.pop() if len(B) % 2 == 0 else None
    ca, cb, ops = chain(A, tmp), chain(B, tmp+1), []
    while ca or cb:
        if ca: ops.append(ca.pop(0))
        if cb: ops.append(cb.pop(0))
    ops.append(f"v_max3_u32 v{tmp}, v{tmp}, v{tmp+1}, v{last}" if last is not None else f"v_max_u32 v{tmp}, v{tmp}, v{tmp+1}")
    return ops
def poll(loads, regs, tmp, between=None, spec=(), ack=False, l0=None, wait1=0, issued=False, first=None, got=None):
    lc, lr, ld, lx, lf = lab("chk"), lab("retry"), lab("got"), lab("giveup"), lab("first")
    loads = [l + " sc1" for l in loads]
    if first: lf = first
    if got: ld = got
    if l0: only(0, lambda lb: (l0[0](), a("s_waitcnt vmcnt(0)"), em(loads), l0[1](), a(f"s_branch {lf}")))
    if ack: a("s_waitcnt vmcnt(0)")
    if not issued: em(loads)
    if between: between()
    a(f"s_waitcnt vmcnt({wait1})\ns_branch {lc}" if wait1 else f"s_branch {lc if issued else lf}")
    a(f"{lr}:\ns_sub_u32 s{sTO}, s{sTO}, 1\ns_cbranch_scc1 {lx}\ns_mov_b64 exec, vcc")
    em(loads)
    a(f"s_mov_b64 exec, -1\n{lf}:\ns_waitcnt vmcnt(0)\n{lc}:")
    deferred.append((lx, lambda: a(f"s_mov_b32 s{sTO}, 0\ns_branch {ld}")))
    o, sp = check_ops(regs, tmp), list(spec)
    while o or sp:
        if sp: a(sp.pop(0))
        for _ in range(2 if sp else len(o)):
            if o: a(o.pop(0))
    a(f"v_cmp_eq_u32 vcc, -1, v{tmp}\ns_cbranch_vccnz {lr}\n{ld}:")

TSSET = opt["tsset"].split(",")
assert len(TSSET) <= 12
def ts(k):
    if TS: a(f"s_memtime s[{TSB+2*k}:{TSB+2*k+1}]")
def tsn(name):
    if name in TSSET: ts(TSSET.index(name))
def ts_put(pairs, tmp):
    if not TS: return
    a(f"s_waitcnt lgkmcnt(0)\nv_accvgpr_read_b32 v{tmp}, a{aTS}")
    for s, l in pairs: a(f"v_writelane_b32 v{tmp}, s{s}, {l}")
    a(f"v_accvgpr_write_b32 a{aTS}, v{tmp}")
def until(pos):
    if opt["until"] and opt["upos"] == pos:
        l = lab("until")
        a(f"v_accvgpr_read_b32 v{R4+30}, a{aTS}\nv_readfirstlane_b32 s54, v{R4+30}\n{l}:\ns_memrealtime s[52:53]\ns_waitcnt lgkmcnt(0)\ns_sub_u32 s52, s52, s54\ns_cmp_lt_u32 s52, {opt['until']}\ns_cbranch_scc1 {l}")

jn = [0]
def jitter():
    if not opt["jit"]: return
    jn[0] += 1
    l, le = lab("jit"), lab("jite")
    k = (opt["jit"] * 2654435761 + jn[0] * 40503 * 65537) & 0x7fffffff | 1
    a(f"""s_lshl_b32 s74, s2, 2
    s_add_u32 s74, s74, s{sWV}
    s_add_u32 s74, s74, {jn[0]}
    s_mul_i32 s74, s74, {k}
    s_lshr_b32 s74, s74, 20
    s_and_b32 s75, s74, 7
    s_cmp_eq_u32 s75, 0
    s_cbranch_scc0 {le}
    s_lshr_b32 s74, s74, 3
    {l}:
    s_sleep 1
    s_sub_u32 s74, s74, 1
    s_cbranch_scc0 {l}
    {le}:""")
def mk_srd(d, lo, size):
    a(f"s_mov_b32 s{d}, s{lo}\ns_and_b32 s{d+1}, s{lo+1}, 0xffff\ns_mov_b32 s{d+2}, {size:#x}\ns_mov_b32 s{d+3}, 0x20000")
def mf(d, A, B, c): return f"v_mfma_f32_16x16x32_bf16 {d}, {A}, {B}, {c}"
def dp(op, d, s0, s1, ctrl, bank=0xf):
    if s1 is None: return f"{op}_dpp v{d}, v{s0} {ctrl} row_mask:0xf bank_mask:{bank:#x}"
    return f"{op}_dpp v{d}, v{s0}, v{s1} {ctrl} row_mask:0xf bank_mask:{bank:#x}"
def rows(op, r, t):
    return [f"v_mov_b32 v{t}, v{r}", f"v_permlane16_swap_b32 v{r}, v{t}", f"{op} v{r}, v{r}, v{t}",
            f"v_mov_b32 v{t}, v{r}", f"v_permlane32_swap_b32 v{r}, v{t}", f"{op} v{r}, v{r}, v{t}"]
def mix(main, fill, per=2, start=0):
    fill = list(fill)
    for n, m in enumerate(main):
        a(m)
        if n >= start:
            for _ in range(per):
                if fill: a(fill.pop(0))
    em(fill)
def dma(srdn, voff_, sbase, step, n, ldsbase):
    for i in range(n):
        a(f"s_lshl_b32 s{sE}, s{sWV}, 10\ns_add_u32 m0, s{sE}, {ldsbase + i*4096}")
        if i: a(f"s_add_u32 s{sbase}, s{sbase}, {step}")
        a(f"buffer_load_dwordx4 v{voff_}, {srd(srdn)}, s{sbase} offen{WP} lds")
def piece(dst, t):
    a(f"""v_lshrrev_b32 v{t}, 3, v{vL16}
    v_and_b32 v{t}, 32, v{t}
    v_xor_b32 v{dst}, v{vP16}, v{t}
    s_and_b32 s{sE}, s{sWV}, 1
    s_lshl_b32 s{sE}, s{sE}, 6
    v_xor_b32 v{dst}, s{sE}, v{dst}
    v_lshrrev_b32 v{t}, 7, v{vL16}""")
def trread(areg, vaddr, ldsoff, ksteps):
    for j in range(ksteps):
        for u in range(2):
            a(f"ds_read_b64_tr_b16 a[{areg+4*j+2*u}:{areg+4*j+2*u+1}], v{vaddr} offset:{ldsoff + (32*j+4*u)*128}")
def fin(S, Q, scale=1.0):
    r = [f"v_mul_f32 v{S}, {f2u(-1/512):#x}, v{S}", f"v_mul_f32 v{Q}, {f2u(1/512):#x}, v{Q}",
         f"v_fma_f32 v{Q}, -v{S}, v{S}, v{Q}", f"v_max_f32 v{Q}, 0, v{Q}", f"v_add_f32 v{Q}, {f2u(1e-5):#x}, v{Q}",
         f"v_rsq_f32 v{Q}, v{Q}"]
    if scale != 1.0: r.append(f"v_mul_f32 v{Q}, {f2u(scale):#x}, v{Q}")
    return r
QSCALE = math.log2(math.e) / math.sqrt(128.0)

cm("---- set-up: first loads ----")
if TS or opt["until"]:
    a(f"s_memtime s[52:53]\ns_memrealtime s[54:55]\ns_waitcnt lgkmcnt(0)\nv_mov_b32 v40, 0")
    if TS: a("v_writelane_b32 v40, s52, 0\nv_writelane_b32 v40, s54, 42")
    else: a("v_mov_b32 v40, s54")
    a(f"v_accvgpr_write_b32 a{aTS}, v40")
a(f"""s_cmp_ge_u32 s2, 256
s_cbranch_scc1 L_end
s_load_dwordx16 s[52:67], s[0:1], 0
s_load_dwordx8 s[68:75], s[0:1], 64
v_lshrrev_b32 v{vTmp}, 6, v0
v_and_b32 v{vLane}, 63, v0
v_readfirstlane_b32 s{sWV}, v{vTmp}
s_mov_b32 s{sLAYER}, 0
s_mov_b32 s{sTO}, {1 << opt['tobits']:#x}""")
vK, vW, vSX, vXl = 32, 33, 34, 35
XF, XS, RST = 44, 80, 88
voff(vL16, [(0,6,16)])
a(f"v_and_b32 v{vP16}, 0x70, v{vL16}")
piece(vW, vSX)
a(f"v_lshl_add_u32 v{vW}, v{vSX}, 13, v{vW}")
soff(sT1, 0, slot=128*8192, wv=8*8192, grp=1024, i=128)
voff(vXl, [(0,1,1024), (4,2,16)])
voff(vSX, [(0,1,1024), (1,3,128), (4,2,32)])
voff(vXs, [(0,3,8), (5,1,4)])
soff(sT2, 0, slot=256)
soff(sXj, 0, w1=1024, i=128, w0=64)
voff(vK, [(0,2,1024), (2,1,256), (3,1,64), (4,2,16)])
soff(sKV, 0, ba=8<<21, grp=1<<21, s=1<<17, wv=1<<13)
a("s_waitcnt lgkmcnt(0)")
mk_srd(WQ_, 58, 512*8192)
dma(WQ_, vW, sT1, 32*8192, 4, WQ_L)
mk_srd(X_, 52, 2048)
for j in range(4): a(f"buffer_load_dwordx4 {v4(XF+4*j)}, v{vXl}, {srd(X_)}, s{sT2} offen offset:{64*j}")
a(f"buffer_load_dwordx4 {v4(XS)}, v{vSX}, {srd(X_)}, 0 offen\nbuffer_load_dwordx4 {v4(XS+4)}, v{vSX}, {srd(X_)}, 0 offen offset:16")
a(f"buffer_load_dword v{vX1}, v{vXs}, {srd(X_)}, s{sXj} offen")
cm("sentinels of the first layer's hand-off slots: 1 KiB per wave")
for r in range(4): a(f"v_mov_b32 v{RST+r}, -1")
def rst_off(dst, base):
    m = opt["rmap"]
    if m == 0: soff(dst, base, grp=2*BLK, w0=BLK, idx=2048, w1=1024)
    elif m == 1: soff(dst, base, s=BLK, grp=8192, ba=4096, wv=1024)
    elif m == 2: soff(dst, base, s=BLK, wv=16384, ba=8192, grp=1024)
    elif m == 3: soff(dst, base, wv=4*BLK, slot=BLK, grp=8192, i=1024)
rst_off(sT1, 0)
mk_srd(WS_, 74, WS_SIZE)
jitter()
a(f"buffer_store_dwordx4 {v4(RST)}, v{vL16}, {srd(WS_)}, s{sT1} offen sc1{' nt' if opt['rnt'] & 1 else ''}")
cm("the 32 workgroups without a hidden block write their share of the second layer's sentinels now as well: nothing later orders them")
a(f"""s_and_b32 s{sT0}, s2, 0xc4
s_cmp_eq_u32 s{sT0}, 0xc4
s_cbranch_scc0 L_rst
s_add_u32 s{sT1}, s{sT1}, {LSTR:#x}
buffer_store_dwordx4 {v4(RST)}, v{vL16}, {srd(WS_)}, s{sT1} offen sc1
L_rst:""")
mk_srd(K_, 54, 0x2000000)
def kload(t):
    r = []
    for hi in range(2):
        for j in range(4):
            p = f"s_add_u32 s{sT0}, s{sKV}, {t*32768 + hi*4096}\n" if j == 0 else ""
            r.append(p + f"buffer_load_dwordx4 {v4(VR+32*(t+1)+16*hi+4*j)}, v{vK}, {srd(K_)}, s{sT0} offen offset:{128*(j>>1)+512*(j&1)}{KVP}")
    return r
def vload(t):
    r = []
    for i in range(8):
        p = f"s_add_u32 s{sT0}, s{sKV}, {t*32768 + (i>>2)*4096}\n" if i % 4 == 0 else ""
        r.append(p + f"buffer_load_dwordx4 {v4(VR+32*(t+1)+4*i)}, v{vL16}, {srd(V_)}, s{sT0} offen offset:{1024*(i&3)}{KVP}")
    return r
def kfix(t, wait, loads, his=(0, 1)):
    loads = list(loads)
    cm(f"K group {t} -> AGPRs")
    if wait is not None: a(f"s_waitcnt vmcnt({wait})")
    if t and 0 in his: ts(3 + t)
    for hi in his:
        for hf in range(2):
            A = VR + 32*(t+1) + 16*hi + 8*hf; B = A + 4; dst = aK + 16*(t+4*hi) + 8*hf
            a(loads.pop(0))
            for r in range(4): a(f"v_mov_b32 v{VR+r}, v{A+r}")
            for r in range(4): a(dp("v_mov_b32", VR+r, B+r, None, "row_ror:8", 0xc))
            for r in range(2): a(dp("v_mov_b32", B+r, A+r, None, "row_ror:8", 0x3))
            a(loads.pop(0))
            for r in range(2, 4): a(dp("v_mov_b32", B+r, A+r, None, "row_ror:8", 0x3))
            for r in range(4): a(f"v_accvgpr_write_b32 a{dst+r}, v{VR+r}")
            for r in range(4): a(f"v_accvgpr_write_b32 a{dst+4+r}, v{B+r}")
em(kload(0))
cm("---- set-up: remaining descriptors, lane patterns, offsets (under the first loads) ----")
mk_srd(V_, 56, 0x2000000); mk_srd(WO_, 60, 4096*1024); mk_srd(WG_, 64, 512*3584); mk_srd(WU_, 66, 512*3584)
mk_srd(WD_, 68, 1792*1024); mk_srd(OUT_, 70, 2048); mk_srd(DBG_, 72, 256)
t0, t1 = 36, 37
voff(vL4, [(0,6,4)]); voff(vC16, [(0,4,16)]); voff(vG16, [(4,2,16)])
voff(vOl, [(0,4,64), (4,2,16)]); voff(vOs, [(4,2,1024), (0,4,4)])
voff(vQs, [(0,1,BLK), (4,2,8)])
voff(vDNs, [(0,1,4*BLK), (4,2,16)]); voff(vGUl, [(4,2,2048), (0,4,16)])
voff(vSTd, [(0,4,16), (5,1,8)])
voff(vHr, [(0,1,128), (4,2,16)], const=H_L)
a(f"v_and_b32 v{vXLr}, 32, v{vL16}\nv_lshl_add_u32 v{vXLr}, v{vXLr}, 3, v{vHr}")
voff(vTR, [(4,2,1024), (2,2,128), (0,2,8)])
a(f"v_bfe_u32 v{vTmp}, v{vLane}, 3, 2\nv_xor_b32 v{vTmp}, s{sWV}, v{vTmp}\nv_lshl_add_u32 v{vTR}, v{vTmp}, 5, v{vTR}")
soff(sT0, H_L, wv=32); voff(vHw, [(5,1,128), (0,4,2)], sadd=sT0)
voff(vOCw, [(4,1,2), (3,1,1)]); a(f"v_xor_b32 v{vOCw}, v{vOCw}, v{vLane}\nv_lshlrev_b32 v{vOCw}, 4, v{vOCw}")
soff(sT0, OC_L, wv=OC_W); a(f"v_add_u32 v{vOCw}, s{sT0}, v{vOCw}")
voff(vOCr, [(4,1,2), (1,1,1)]); a(f"v_xor_b32 v{vOCr}, s{sWV}, v{vOCr}\nv_lshlrev_b32 v{vOCr}, 4, v{vOCr}")
voff(t0, [(4,2,256), (0,2,64), (2,2,4)], const=OC_L); a(f"v_add_u32 v{vOCr}, v{vOCr}, v{t0}")
soff(sT0, ML_L, wv=8); voff(vMLw, [(0,2,32)], sadd=sT0)
soff(sT0, ML_L, wv=32); a(f"v_mov_b32 v{vMLr}, s{sT0}")
soff(sT0, XL_L, wv=64); a(f"v_add_u32 v{vXLw}, s{sT0}, v{vXs}")
a(f"v_mov_b32 v{vTmp}, 0x3f803f80")
for r in range(4): a(f"v_accvgpr_write_b32 a{aONE+r}, v{vTmp}")
a(f"v_add_u32 v{t0}, {ONE_L}, v{vL4}\nds_write_b32 v{t0}, v{vTmp}")
for r in range(8): a(f"v_accvgpr_write_b32 a{aWD+r}, 0")
soff(sGB, 0, grp=GR)
soff(sFB, 0, slot=8, grp=1)
soff(sOst, O_OFF, True, ba=16384, wv=4096, s=64)
soff(sLst, LSE_OFF, True, ba=256, wv=64, s=4)
soff(sOld, O_OFF, True, w0=16384, slot=4096)
soff(sLld, LSE_OFF, True, w0=256, slot=64)
soff(sWOst, WO_OFF, w0=4*BLK, ih=BLK, i0=8192, w1=4096, grp=512, slot=128)
soff(sDNst, DN_OFF, ih=BLK, i0=8192, w1=4096, slot=1024, grp=128, w0=64)
soff(sM1, WO_OFF, w1=4*BLK, ih=BLK, i0=8192, w0=4096)
a(f"s_add_u32 s{sM2}, s{sM1}, {DN_OFF - WO_OFF:#x}")
soff(sST1st, ST1_OFF, True, slot=256, i=32, w0=16, w1=8)
soff(sST2ld, ST2_OFF, True, ba=8)
soff(sGUst, GU_OFF, True, slot=8192, i=1024, wv=256)
soff(sCS, CS_OFF, True, sl0=4096, ba=BLK, i=512, wv=128)
cm("workgroups past the 28 hidden blocks follow block 0 of their group with zero weights, to stay in step")
soff(sT0, 0, slot=1)
a(f"s_cmp_lt_u32 s{sFB}, 28\ns_cselect_b32 s{sT0}, s{sT0}, 0\ns_lshl_b32 s{sST1ld}, s{sT0}, 8\ns_lshl_b32 s{sT0}, s{sT0}, 13")
soff(sGUld, GU_OFF, True, wv=256)
a(f"s_add_u32 s{sGUld}, s{sGUld}, s{sT0}\ns_add_u32 s{sST1ld}, s{sST1ld}, s{sGB}\ns_add_u32 s{sST1ld}, s{sST1ld}, {ST1_OFF:#x}")
soff(sQst, Q_OFF, True, slot=256, ih=64, i0=2048, w1=1024, w0=32)
soff(sQld, Q_OFF, True, ba=BLK)
a(f"s_mov_b32 s{sSEL0}, 0x05040100\ns_mov_b32 s{sSEL1}, 0x07060302")
cm("---- first layer's query partials: layer norm of the input, 128 x 64 tile of Wq ----")
a("s_waitcnt vmcnt(8)")
ts(1)
K1 = kload(1)
em(K1[:2])
S, Qr = 90, 91
a(f"v_mov_b32 v{S}, 0\nv_mov_b32 v{Qr}, 0")
for i in range(8):
    a(f"""v_lshlrev_b32 v{t0}, 16, v{XS+i}
    v_and_b32 v{t1}, 0xffff0000, v{XS+i}
    v_add_f32 v{S}, v{S}, v{t0}
    v_fmac_f32 v{Qr}, v{t0}, v{t0}
    v_add_f32 v{S}, v{S}, v{t1}
    v_fmac_f32 v{Qr}, v{t1}, v{t1}""")
a(f"v_lshlrev_b32 v{vX0}, 16, v{vX1}\nv_and_b32 v{vX1}, 0xffff0000, v{vX1}")
em(K1[2:4])
a("s_barrier")
trread(aWQ, vTR, WQ_L, 4)
for n in (2, 4, 8): a(dp("v_add_f32", S, S, S, f"row_ror:{n}")); a(dp("v_add_f32", Qr, Qr, Qr, f"row_ror:{n}"))
for x, y in zip(rows("v_add_f32", S, t0), rows("v_add_f32", Qr, t1)): a(x); a(y)
em(fin(S, Qr, QSCALE) + [f"v_mul_f32 v{S}, v{S}, v{Qr}"])
a("s_waitcnt lgkmcnt(0)")
jitter()
cm("arrival (all four waves' sentinels are acknowledged): count in bits 48.., one 6-bit field per XCC id")
lna = lab("noarr")
a(f"""s_getreg_b32 s{sT0}, hwreg(HW_REG_XCC_ID)
s_and_b32 s{sT0}, s{sT0}, 7
s_mul_i32 s{sFAST}, s{sT0}, 6
s_cmp_eq_u32 s{sWV}, 0
s_cbranch_scc0 {lna}
s_and_b32 s{sT0}, s2, 7
s_lshl_b32 s{sT0}, s{sT0}, 5
s_lshl_b64 s[{sE}:{sE+1}], 1, s{sFAST}
s_add_u32 s{sE+1}, s{sE+1}, 0x10000
s_atomic_add_x2 s[{sE}:{sE+1}], s[{DBG_}:{DBG_+1}], s{sT0}
{lna}:""")
DE = 60
for j in range(4): a(mf(v4(vCSQ), a4(aWQ+4*j), a4(aONE), 0 if j == 0 else v4(vCSQ)))
for j in range(4): a(mf(v4(DE), a4(aWQ+4*j), v4(XF+4*j), 0 if j == 0 else v4(DE)))
for r in range(4): a(f"v_mul_f32 v{DE+4+r}, v{S}, v{vCSQ+r}")
for r in range(4): a(f"v_fmac_f32 v{DE+4+r}, v{Qr}, v{DE+r}")
a(f"""v_cvt_pk_bf16_f32 v{DE}, v{DE+4}, v{DE+5}
v_cvt_pk_bf16_f32 v{DE+1}, v{DE+6}, v{DE+7}
v_cvt_pk_bf16_f32 v{vCSQ}, v{vCSQ}, v{vCSQ+1}
v_cvt_pk_bf16_f32 v{vCSQ+1}, v{vCSQ+2}, v{vCSQ+3}""")
ts(2)
CT = 80
voff(t0, [(0,3,32)])
cl = f"buffer_load_dwordx2 {v2(CT)}, v{t0}, {srd(DBG_)}, 0 offen sc1"
em(K1[4:])
K3, V0 = kload(3), vload(0)
if opt["chalf"]:
    kfix(0, 8, kload(2)); kfix(1, 8, K3[:4], (0,)); a(cl); kfix(1, None, K3[4:], (1,)); kfix(2, 9, V0[:4], (0,))
else:
    kfix(0, 8, kload(2)); kfix(1, 8, K3); a(cl); kfix(2, 9, V0)
cm("every workgroup has arrived: hand-offs may start; plain stores inside a group only if it sits on one XCC")
lp, ld = lab("bar"), lab("barok")
a(f"""s_waitcnt vmcnt(8)
{lp}:
v_lshrrev_b32 v{t1}, 16, v{CT+1}
v_cmp_gt_u32 vcc, 32, v{t1}
s_cbranch_vccz {ld}
{cl}
s_waitcnt vmcnt(0)
s_sub_u32 s{sTO}, s{sTO}, 1
s_cbranch_scc0 {lp}
s_mov_b32 s{sTO}, 0
{ld}:
s_and_b32 s{sT1}, s2, 7
s_waitcnt lgkmcnt(0)
v_readlane_b32 s{sT0}, v{CT}, s{sT1}
v_readlane_b32 s{sT1}, v{CT+1}, s{sT1}
s_lshl_b64 s[{sE}:{sE+1}], 32, s{sFAST}
s_add_u32 s{sE+1}, s{sE+1}, 0x200000
s_xor_b32 s{sT0}, s{sT0}, s{sE}
s_xor_b32 s{sT1}, s{sT1}, s{sE+1}
s_or_b32 s{sT0}, s{sT0}, s{sT1}
s_cmp_eq_u32 s{sT0}, 0
s_cselect_b32 s{sFAST}, 1, 0""")
ts_put([(sTO, 46)], vM)
exec_set(0x00030003, 0x00030003)
pub(f"buffer_store_dwordx2 {v2(DE)}, v{vQs}, {srd(WS_)}, s{sQst} offen")
exec_all()
def cq_pub():
    cm("column sums of this Wq tile, laid out like a query")
    a(f"s_add_u32 s{sT2}, s{sQst}, {CQ_OFF - Q_OFF:#x}")
    exec_set(0x10001, 0x10001)
    pub(f"buffer_store_dwordx2 {v2(vCSQ)}, v{vQs}, {srd(WS_)}, s{sT2} offen")
    exec_all()
if opt["cqp"] == 0: cq_pub()
WA = vCSQ + 2
sG, sD = X_+2, X_+3
def ffn_addr():
    cm("addresses for the window behind the first output projection")
    piece(WA+1, t1)
    a(f"v_mul_u32_u24 v{WA}, 3584, v{t1}\nv_add_u32 v{WA}, v{WA}, v{WA+1}\nv_lshl_add_u32 v{WA+1}, v{t1}, 10, v{WA+1}")
    soff(sG, 0, i=64*3584, wv=8*3584, slot=1024, grp=128)
    soff(sD, 0, slot=8*65536, grp=65536, wv=8192, i=128)
    soff(X_+1, 0, sl0=4096, ba=BLK)
    a(f"s_cmp_lt_u32 s{sFB}, 28\ns_cselect_b32 s{X_+1}, s{X_+1}, 0")
    soff(sT1, CS_OFF, True, wv=128)
    a(f"s_add_u32 s{X_+1}, s{X_+1}, s{sT1}\ns_add_u32 s{sT2}, s{sGB}, {CQ_OFF:#x}")
    rst_off(X_, LSTR)
ffn_addr()
if opt["cw"]:
    cm("ask for the code of the coming stages: one or two 64-byte lines per wave")
    soff(sT0, 0, idx=256, wv=64)
    a(f"s_getpc_b64 s[{X_+2}:{X_+3}]\nL_pc:\ns_add_u32 s{X_+2}, s{X_+2}, L_tblk-L_pc\ns_addc_u32 s{X_+3}, s{X_+3}, 0\ns_load_dword s{X_+1}, s[{X_+2}:{X_+3}], s{sT0}")
    if opt["cw"] > 1: a(f"s_add_u32 s{sT0}, s{sT0}, 8192\ns_min_u32 s{sT0}, s{sT0}, L_end-L_tblk\ns_load_dword s{X_}, s[{X_+2}:{X_+3}], s{sT0}")
if opt["chalf"]: kfix(2, None, V0[4:], (1,)); kfix(3, 10, vload(1))
else: kfix(3, None, vload(1))
qloads = [f"buffer_load_dwordx4 {v4(QF+4*j)}, v{vOl}, {srd(WS_)}, s{sQld} offen offset:{1024*j}" for j in range(4)]
poll(qloads, range(QF, QF+16), vM, between=lambda: em(vload(2)), wait1=8)
ts(7)
ts_put([(TSB+2*k, k) for k in range(1, 8)] + [(sTO, 47)], vM)
vMu, vA = vM + 2, vM + 3
cm("these queries are normalised already: sums that make the deferred scale 1")
a(f"v_mov_b32 v{vMu}, 0\nv_mov_b32 v{vA}, {f2u((QSCALE*QSCALE - 1e-5)*64):#x}")
Dt = lambda t: DT + 4*t
qk_on = lambda B: [mf(v4(Dt(tau)), a4(aK+16*tau+4*j), v4(B+4*j), 0 if j == 0 else v4(Dt(tau))) for tau in (0, 2, 1, 3, 4, 6, 5, 7) for j in range(4)]
qk = qk_on(QF)
em(qk[:4])
a("s_branch L_qk")
a("L_tblk:")
for _ in range(opt["pad"]): a("s_nop 0")
MARK = len(a.lines)

a("L_layer:")
until(1)
cm("---- attention over this workgroup's 512 keys; K, V in registers ----")
poll(qloads + [f"buffer_load_dwordx2 {v2(vMu)}, v{vP16}, {srd(WS_)}, s{sST2ld} offen"], list(range(QF, QF+16)) + [vMu, vA], vM, spec=qk[:4], ack=bool(opt['ackm'] & 1))
a("L_qk:")
tsn('qk_start')
ZB = ZA + 4
def fold(Z):
    xlo = lambda t, X: [dp("v_add_f32", X+r, Dt(t)+r, Dt(t)+r, "row_ror:8", 0x3) for r in range(4)]
    xhi = lambda t, X: [dp("v_add_f32", X+r, Dt(t)+r, Dt(t)+r, "row_ror:8", 0xc) for r in range(4)]
    zev = lambda z: [dp("v_add_f32", z+r, XT+r, XT+r, "row_ror:12", 0x5) for r in range(4)]
    zod = lambda z: [dp("v_add_f32", z+r, YT+r, YT+r, "row_ror:4", 0xa) for r in range(4)]
    return (xlo(0, XT) + xhi(2, XT) + zev(Z) + xlo(1, YT) + xhi(3, YT) + zod(Z),
            xlo(4, XT) + xhi(6, XT) + zev(Z+4) + xlo(5, YT) + xhi(7, YT) + zod(Z+4))
lnst = []
for c in ("quad_perm:[1,0,3,2]", "quad_perm:[2,3,0,1]", "row_ror:4"): lnst += [dp("v_add_f32", vMu, vMu, vMu, c), dp("v_add_f32", vA, vA, vA, c)]
lnst += fin(vMu, vA, QSCALE)
fa, fb = fold(ZA)
mix(qk[4:11], lnst[:12], 2, 1)
vLs, vU = vM + 1, vM + 2
if opt["tw"]:
    mix(qk[11:], fa + [lnst[12], "s_nop 0"] + fb[:16])
    cm("deferred layer norm: scores = rstd * (K.q_raw - mean * K.colsum)")
    only(1, lambda lb: em([f"v_fmac_f32 v{ZA+r}, v{vMu}, v{ZC+r}" for r in range(4)]))
    em(fb[16:20] + [f"v_max3_f32 v{vM}, v{ZA}, v{ZA+1}, v{ZA+2}"] + fb[20:])
    lz = lab("join")
    a(f"s_cbranch_scc1 {lz}")
    em([f"v_fmac_f32 v{ZB+r}, v{vMu}, v{ZC+4+r}" for r in range(4)])
    a(f"""{lz}:
    v_max3_f32 v{vM}, v{ZA+3}, v{ZB}, v{vM}
    v_max3_f32 v{vLs}, v{ZB+1}, v{ZB+2}, v{ZB+3}
    v_max_f32 v{vM}, v{vLs}, v{vM}""")
else:
    mix(qk[11:], fa + [lnst[12], "s_nop 0"] + fb)
    cm("deferred layer norm: scores = rstd * (K.q_raw - mean * K.colsum)")
    only(1, lambda lb: em([f"v_fmac_f32 v{ZA+r}, v{vMu}, v{ZC+r}" for r in range(8)]))
    a(f"""v_max3_f32 v{vM}, v{ZA}, v{ZA+1}, v{ZA+2}
    v_max3_f32 v{vLs}, v{ZB}, v{ZB+1}, v{ZB+2}
    v_max3_f32 v{vM}, v{ZA+3}, v{ZB+3}, v{vM}
    v_max_f32 v{vM}, v{vLs}, v{vM}""")
a(dp("v_max_f32", vM, vM, vM, "row_ror:4")); a(dp("v_max_f32", vM, vM, vM, "row_ror:8"))
em(rows("v_max_f32", vM, vU))
P = [XT, YT, QF, QF+4]
a(f"v_mul_f32 v{vM}, v{vM}, v{vA}")
for r in range(8): a(f"v_fma_f32 v{ZA+r}, v{ZA+r}, v{vA}, -v{vM}")
for r in range(8): a(f"v_exp_f32 v{ZA+r}, v{ZA+r}")
for r in range(4): a(f"v_cvt_pk_bf16_f32 v{P[0]+r}, v{ZA+2*r}, v{ZA+2*r+1}")
tsn('softmax_done')
def transpose(t, waits):
    cm(f"V group {t}: pair up keys for the MFMA")
    src, dst = VR + 32*(t+1), VR + 32*t
    for p in range(4):
        if waits[p] is not None: a(f"s_waitcnt vmcnt({waits[p]})")
        for q in range(4):
            a(f"v_perm_b32 v{dst+8*q+p}, v{src+8*p+4+q}, v{src+8*p+q}, s{sSEL0}")
            a(f"v_perm_b32 v{dst+8*q+4+p}, v{src+8*p+4+q}, v{src+8*p+q}, s{sSEL1}")
def wo_dma():
    piece(vU, vU+1)
    a(f"v_lshl_add_u32 v{vU}, v{vU+1}, 10, v{vU}")
    soff(sT0, 0, grp=512*1024, slot=128*1024, wv=8*1024, i=128)
    dma(WO_, vU, sT0, 32*1024, 4, WO_L)
def pv(t): return [mf(v4(DT+4*e), v4(VR+32*t+4*e), v4(P[t]), 0 if t == 0 else v4(DT+4*e)) for e in range(8)]
FW, vMM, vL, vR, vLSE = QF+8, QF+12, QF+13, QF+14, QF+15
ML = ZA
only(0, lambda lb: (em(vload(3)), transpose(0, [None]*4), transpose(1, [None]*4) if opt['m01'] else None), bool(opt['tin'] & 1))
rot = lambda tt: [dp("v_mov_b32", P[tt]+r, P[0]+r, None, f"row_ror:{16-4*tt}") for r in range(4)]
rs = rows("v_add_f32", vLs, vU)
r1, r2, r3 = rot(1), rot(2), rot(3)
s0 = [f"v_add_f32 v{ZA+2*r}, v{ZA+2*r}, v{ZA+2*r+1}" for r in range(4)] + \
     [f"v_add_f32 v{ZA}, v{ZA}, v{ZA+2}", f"v_add_f32 v{ZA+4}, v{ZA+4}, v{ZA+6}", f"v_add_f32 v{vLs}, v{ZA}, v{ZA+4}", r1[0],
      dp("v_add_f32", vLs, vLs, vLs, "row_ror:4"), r1[1], dp("v_add_f32", vLs, vLs, vLs, "row_ror:8")] + \
     ([r1[2], rs[0], r1[3], rs[1], rs[2]] if opt["tw"] else [rs[0], r1[2], rs[1], rs[2], r1[3]])
mix(pv(0), s0)
tsn('pv0')
if not opt['m01']: only(0, lambda lb: transpose(1, [None]*4), bool(opt['tin'] & 2))
p1 = pv(1)
em([p1[0], rs[3], r2[0], p1[1], rs[4], rs[5], p1[2], "s_mov_b64 exec, 15", f"ds_write_b64 v{vMLw}, {v2(vM)}", "s_mov_b64 exec, -1",
    p1[3], r2[1], r2[2], p1[4], r2[3], r3[0], p1[5], r3[1], r3[2], p1[6], "s_waitcnt lgkmcnt(0)", "s_barrier",
    f"ds_read_b128 {v4(ML)}, v{vMLr}", f"ds_read_b128 {v4(ML+4)}, v{vMLr} offset:16", p1[7], r3[3]])
tsn('pv1')
only(0, lambda lb: (wo_dma(), transpose(2, [12, None, None, None])), bool(opt['tin'] & 4))
fac = ["s_waitcnt lgkmcnt(0)", f"v_max3_f32 v{vMM}, v{ML}, v{ML+2}, v{ML+4}", f"v_max_f32 v{vMM}, v{ML+6}, v{vMM}"] + \
      [f"v_sub_f32 v{FW+w}, v{ML+2*w}, v{vMM}" for w in range(4)] + [f"v_exp_f32 v{FW+w}, v{FW+w}" for w in range(4)] + \
      [f"v_mul_f32 v{vL}, v{FW}, v{ML+1}"] + [f"v_fmac_f32 v{vL}, v{FW+w}, v{ML+2*w+1}" for w in range(1, 4)] + \
      [f"v_rcp_f32 v{vR}, v{vL}", f"v_log_f32 v{vLSE}, v{vL}"] + [f"v_mul_f32 v{FW+w}, v{FW+w}, v{vR}" for w in range(4)] + \
      [f"v_add_f32 v{vLSE}, v{vLSE}, v{vMM}"]
mix(pv(2), fac[:12], 2, 2)
tsn('pv2')
only(0, lambda lb: (transpose(3, [10, 8, 6, 4]), cq_pub() if opt['cqp'] == 2 else None), bool(opt['tin'] & 8))
gath = lambda u: [dp("v_mov_b32", DT+k, DT+8*u+k, None, f"row_ror:{4*u}", 1 << u) for k in range(8)]
mix(pv(3), fac[12:] + gath(1)[:6])
em(gath(1)[6:] + gath(2) + gath(3))
tsn('pv_done')
until(0)
jitter()
cm("combine the four waves, publish the normalised partial output and its log-sum-exp")
a(f"ds_write_b128 v{vOCw}, {v4(DT)}\nds_write_b128 v{vOCw}, {v4(DT+4)} offset:1024\ns_mov_b64 exec, 1")
pub(f"buffer_store_dword v{vLSE}, off, {srd(WS_)}, s{sLst}")
a("s_mov_b64 exec, -1\ns_waitcnt lgkmcnt(0)\ns_barrier")
OV = ZA
for w in range(4): a(f"ds_read2st64_b32 {v2(OV+2*w)}, v{vOCr} offset0:{8*w} offset1:{8*w+4}")
a(f"s_waitcnt lgkmcnt(3)\nv_mul_f32 v{OV}, v{FW}, v{OV}\nv_mul_f32 v{OV+1}, v{FW}, v{OV+1}")
for w in range(1, 4): a(f"s_waitcnt lgkmcnt({3-w})\nv_fmac_f32 v{OV}, v{FW+w}, v{OV+2*w}\nv_fmac_f32 v{OV+1}, v{FW+w}, v{OV+2*w+1}")
a(f"v_cvt_pk_bf16_f32 v{OV}, v{OV}, v{OV+1}")
pub(f"buffer_store_dword v{OV}, v{vOs}, {srd(WS_)}, s{sOst} offen")
tsn('O_pub')
def pretouch(vt, base, parts, sT0=sT0):
    cm("bring the next hand-off lines into this die's L2")
    lx = lab("pt")
    a(f"v_lshlrev_b32 v{vt}, 3, v{vL16}\ns_mov_b32 exec_hi, 0")
    for w, (off, n, terms) in enumerate(parts):
        if w:
            a(f"s_cmp_eq_u32 s{sWV}, {w-1}\ns_cbranch_scc1 {lx}")
        soff(sT0, base + off, True, **terms)
        a(f"s_mov_b32 exec_lo, {(1 << n) - 1:#x}")
    a(f"{lx}:\nbuffer_load_dword a{aDUM}, v{vt}, {srd(WS_)}, s{sT0} offen sc1\ns_mov_b64 exec, -1")
CF = R4 + 16
cq = [f"buffer_load_dwordx4 {v4(CF+4*j)}, v{vOl}, {srd(WS_)}, s{sT2} offen offset:{1024*j}" for j in range(4)]
cm("---- output projection: 16 key splits of one head as MFMA rows, weighted by their softmax share ----")
OF, LS, DB, EB = T, T+16, T+20, T+28
def wo_frags():
    a(f"s_and_b32 s{sT0}, s{sWV}, 1\ns_lshl_b32 s{sT0}, s{sT0}, 5\nv_xor_b32 v{EB}, s{sT0}, v{vTR}\nv_xor_b32 v{EB+1}, 32, v{EB}\ns_barrier")
    trread(aWO, EB, WO_L, 4); trread(aWO+16, EB+1, WO_L, 4)
    a("s_waitcnt lgkmcnt(0)")
poll([f"buffer_load_dwordx4 {v4(OF+4*j)}, v{vOl}, {srd(WS_)}, s{sOld} offen offset:{1024*j}" for j in range(4)] +
     [f"buffer_load_dwordx4 {v4(LS)}, v{vG16}, {srd(WS_)}, s{sLld} offen"], range(OF, OF+20), EB, l0=(lambda: ((cq_pub() if opt['cqp'] == 1 else None), None), lambda: ((em([l + ' sc1' for l in cq]) if opt['fw'] in (1, 3) else None), wo_frags())), ack=bool(opt['ackm'] & 2))
tsn('H2_got')
jitter()
def ffn_dma(lb):
    a(f"s_cmp_lt_u32 s{sFB}, 28\ns_cbranch_scc0 {lb}\ns_mov_b32 s{sT1}, s{sG}")
    dma(WG_, WA, sG, 32*3584, 2, WG_L); dma(WU_, WA, sT1, 32*3584, 2, WU_L)
    dma(WD_, WA+1, sD, 32*1024, 2, WD_L)
if opt["fw"] == 3: only(0, ffn_dma)
ch = [f"v_max3_f32 v{EB+4}, v{LS}, v{LS+1}, v{LS+2}", f"v_max_f32 v{EB+4}, v{LS+3}, v{EB+4}"] + rows("v_max_f32", EB+4, EB+5) + \
     [f"v_sub_f32 v{EB+r}, v{LS+r}, v{EB+4}" for r in range(4)] + [f"v_exp_f32 v{EB+r}, v{EB+r}" for r in range(4)]
bm = [mf(v4(DB+4*t), v4(OF+4*j), a4(aWO+16*t+4*j), 0 if j == 0 else v4(DB+4*t)) for j in range(4) for t in range(2)]
em([bm[0], ch[0], ch[1], ch[2], bm[1], bm[2], ch[3], ch[4], ch[5], bm[3], bm[4], ch[6], ch[7], ch[8], bm[5],
    ch[9], ch[10], bm[6], ch[11], ch[12], bm[7], ch[13], ch[14], ch[15]])
ra = rows("v_add_f32", EB+4, EB+5)
a(f"""v_add_f32 v{EB+4}, v{EB}, v{EB+1}
v_add_f32 v{EB+5}, v{EB+2}, v{EB+3}
v_add_f32 v{EB+4}, v{EB+4}, v{EB+5}
{ra[0]}
v_mul_f32 v{DB}, v{EB}, v{DB}
v_mul_f32 v{DB+4}, v{EB}, v{DB+4}
{ra[1]}
v_fmac_f32 v{DB}, v{EB+1}, v{DB+1}
{ra[2]}
v_fmac_f32 v{DB+4}, v{EB+1}, v{DB+5}
{ra[3]}
v_fmac_f32 v{DB}, v{EB+2}, v{DB+2}
v_fmac_f32 v{DB+4}, v{EB+2}, v{DB+6}
{ra[4]}
v_fmac_f32 v{DB}, v{EB+3}, v{DB+3}
v_fmac_f32 v{DB+4}, v{EB+3}, v{DB+7}
{ra[5]}
v_rcp_f32 v{EB+4}, v{EB+4}
v_permlane16_swap_b32 v{DB}, v{DB+4}
v_add_f32 v{DB}, v{DB}, v{DB+4}
v_mov_b32 v{DB+4}, v{DB}
v_permlane32_swap_b32 v{DB}, v{DB+4}
v_add_f32 v{DB}, v{DB}, v{DB+4}
s_mov_b32 exec_hi, 0
v_mul_f32 v{DB}, v{DB}, v{EB+4}
buffer_store_dword v{DB}, v{vL4}, {srd(WS_)}, s{sWOst} offen sc1
s_mov_b64 exec, -1""")
tsn('WO_pub')
jitter()

def first_window(lb):
    cm("first layer, while the projection partials travel: FFN tiles, second layer's sentinels, K . colsum(Wq)")
    def rst():
        jitter()
        cm("acknowledged before this wave publishes its gate / up partials, which every use of those slots depends on")
        for r in range(4): a(f"v_mov_b32 v{R4+r}, -1")
        a(f"buffer_store_dwordx4 {v4(R4)}, v{vL16}, {srd(WS_)}, s{X_} offen sc1{' nt' if opt['rnt'] & 2 else ''}")
    if opt["fw"] not in (1, 3): em([l + " sc1" for l in cq])
    ln, lj = lab("noffn"), lab("ffnj")
    a(f"s_cmp_lt_u32 s{sFB}, 28\ns_cbranch_scc0 {ln}\ns_mov_b32 s{sT1}, s{sG}")
    if not opt["fw"]: rst()
    if opt["fw"] != 3:
        dma(WG_, WA, sG, 32*3584, 2, WG_L); dma(WU_, WA, sT1, 32*3584, 2, WU_L)
        dma(WD_, WA+1, sD, 32*1024, 2, WD_L)
    if opt["fw"]: rst()
    pretouch(WA, 0, [(GU_OFF, 4, dict(idx=1024)), (GU_OFF + 512, 4, dict(idx=1024)), (CS_OFF, 4, dict(s=512, ba=BLK)), (ST1_OFF, 1, dict(idx=128))])
    a(f"{lj}:" if opt["fw"] == 3 else f"s_waitcnt vmcnt({8 if opt['fw'] else 7})\n{lj}:")
    deferred.append((ln, lambda: a(f"s_waitcnt vmcnt(0)\ns_branch {lj}")))
    poll(cq, range(CF, CF+16), vM, issued=True)
    za, zb = fold(ZC)
    zq, zf = qk_on(CF), za + ["s_nop 0", "s_nop 0"] + zb
    n0 = opt["zov"] - 1
    if opt["zov"]:
        k = max(0, n0 - 11) * 2
        mix(zq[:n0], zf[:k], 2, 11)
        a("s_barrier")
        em([l + " sc1" for l in lines(sM1)])
        mix(zq[n0:], zf[k:], 2, max(0, 11 - n0))
    else: mix(zq, zf, 2, 11)
    a("s_branch L_m1wait" if opt["zov"] else "s_branch L_acked")
M = T
def lines(soffr, base=0): return [f"buffer_load_dwordx4 {v4(M+base+4*u)}, v{vL16}, {srd(WS_)}, s{soffr} offen offset:{1024*u}" for u in range(4)]
def reduce32(jobs):
    for b, x0, x1 in jobs:
        for d, x in ((0, 4), (2, 6), (8, 12), (10, 14), (0, 8), (2, 10)): a(f"v_pk_add_f32 {v2(M+b+d)}, {v2(M+b+d)}, {v2(M+b+x)}")
    steps = [lambda m, x0, x1: [f"v_permlane32_swap_b32 v{m}, v{m+2}", f"v_permlane32_swap_b32 v{m+1}, v{m+3}"],
             lambda m, x0, x1: [f"v_add_f32 v{m}, v{m}, v{m+2}", f"v_add_f32 v{m+1}, v{m+1}, v{m+3}"],
             lambda m, x0, x1: [dp("v_add_f32", m, m, m, "row_ror:8"), dp("v_add_f32", m+1, m+1, m+1, "row_ror:8")],
             lambda m, x0, x1: [f"v_mov_b32 v{m+2}, v{m}", f"v_mov_b32 v{m+3}, v{m+1}"],
             lambda m, x0, x1: [f"v_permlane16_swap_b32 v{m}, v{m+2}", f"v_permlane16_swap_b32 v{m+1}, v{m+3}"],
             lambda m, x0, x1: [f"v_add_f32 v{x0}, v{x0}, v{m}", f"v_add_f32 v{x1}, v{x1}, v{m+1}"],
             lambda m, x0, x1: [f"v_add_f32 v{x0}, v{x0}, v{m+2}", f"v_add_f32 v{x1}, v{x1}, v{m+3}"],
             lambda m, x0, x1: [f"v_cvt_pk_bf16_f32 v{m}, v{x0}, v{x1}"]]
    for st_ in steps:
        for b, x0, x1 in jobs: em(st_(M+b, x0, x1))
def sums(s, q):
    return [f"v_permlane32_swap_b32 v{s}, v{q}", f"v_add_f32 v{s}, v{s}, v{q}", dp("v_add_f32", s, s, s, "quad_perm:[1,0,3,2]"),
            dp("v_add_f32", s, s, s, "quad_perm:[2,3,0,1]"), dp("v_add_f32", s, s, s, "row_ror:4")]
cm("---- residual update over all 32 projection partials; gate / up partial products of 64 input columns ----")
only(0, first_window)
XR = T + 20
a(f"s_add_u32 s{sT0}, s{sXj}, s{sGB}\ns_add_u32 s{sT0}, s{sT0}, {X_OFF:#x}")
poll([f"buffer_load_dword v{XR}, v{vXs}, {srd(WS_)}, s{sT0} offen"], [XR], XR+1)
a(f"v_lshlrev_b32 v{vX0}, 16, v{XR}\nv_and_b32 v{vX1}, 0xffff0000, v{XR}")
jitter()
cm("first poll only after this workgroup's own write-through stores have landed: early reads slow the writers down")
a("L_acked:\ns_barrier")
poll(lines(sM1), range(M, M+16), M+16, first="L_m1wait")
reduce32([(0, vX0, vX1)])
tsn('M1_done')
jitter()
XC, DG, DU = T+4, T+12, T+16
a(f"""ds_write_b32 v{vXLw}, v{M}
v_lshlrev_b32 v{vX0}, 16, v{M}
v_and_b32 v{vX1}, 0xffff0000, v{M}
v_add_f32 v{M+1}, v{vX0}, v{vX1}
v_mul_f32 v{M+2}, v{vX0}, v{vX0}
v_fmac_f32 v{M+2}, v{vX1}, v{vX1}
s_waitcnt lgkmcnt(0)
s_barrier
s_cmp_lt_u32 s{sFB}, 28
s_cbranch_scc0 L_stageD
ds_read_b128 {v4(XC)}, v{vXLr} offset:256
ds_read_b128 {v4(XC+4)}, v{vXLr} offset:{256+64}""")
only(0, lambda lb: (trread(aWG, vTR, WG_L, 2), trread(aWU, vTR, WU_L, 2)))
st = sums(M+1, M+2)
em(st[:3])
a("s_waitcnt lgkmcnt(0)")
mix([mf(v4(DG), v4(XC), a4(aWG), 0), mf(v4(DU), v4(XC), a4(aWU), 0), mf(v4(DG), v4(XC+4), a4(aWG+4), v4(DG)), mf(v4(DU), v4(XC+4), a4(aWU+4), v4(DU))], st[3:], 1)
a("s_mov_b32 exec_lo, 1\ns_mov_b32 exec_hi, 1")
pub(f"buffer_store_dword v{M+1}, v{vXs}, {srd(WS_)}, s{sST1st} offen")
a(f"s_mov_b64 exec, 0xffff\nv_mov_b32 v{DU+3}, v{DG+2}\nv_mov_b32 v{DG+2}, v{DU}\nv_mov_b32 v{DG+3}, v{DU+1}")
pub(f"buffer_store_dwordx4 {v4(DG)}, v{vC16}, {srd(WS_)}, s{sGUst} offen")
exec_all()
def cs_pub(lb):
    cm("rows 2 and 3 of the products were fed with ones: (up, gate) column sums; block 0 also publishes the residual")
    a(f"v_lshrrev_b32 v{T+32}, 1, v{vC16}\ns_mov_b64 exec, 0xffff")
    pub(f"buffer_store_dwordx2 {v2(DU+2)}, v{T+32}, {srd(WS_)}, s{sCS} offen")
    exec_all()
    trread(aWD, vTR, WD_L, 2)
    a(f"s_cmp_lt_u32 s{sFB}, 8\ns_cbranch_scc0 {lb}\ns_add_u32 s{sT0}, s{sXj}, s{sGB}\ns_add_u32 s{sT0}, s{sT0}, {X_OFF:#x}")
    exec_set(0xff, 0xff)
    pub(f"buffer_store_dword v{M}, v{vXs}, {srd(WS_)}, s{sT0} offen")
    exec_all()
only(0, cs_pub)
tsn('GU_pub')
jitter()
cm("---- layer norm on the summed products, gate, down projection of 64 hidden columns ----")
a("L_stageD:")
G, SD, DD = T, T+8, T+12
dloads = [f"buffer_load_dwordx4 {v4(G+4*u)}, v{vGUl}, {srd(WS_)}, s{sGUld} offen offset:{1024*u}" for u in range(2)] + \
         [f"buffer_load_dwordx2 {v2(SD)}, v{vSTd}, {srd(WS_)}, s{sST1ld} offen"]
def colsums(lb):
    C = T + 16
    cl_ = [f"buffer_load_dwordx2 {v2(C+2*u)}, v{C+4}, {srd(WS_)}, s{X_+1} offen offset:{512*u}" for u in range(2)]
    a(f"v_lshrrev_b32 v{C+4}, 1, v{vGUl}")
    if opt["csm"]: poll(dloads + cl_, list(range(G, G+10)) + list(range(C, C+4)), DD, ack=bool(opt['ackm'] & 8))
    else: poll(cl_, range(C, C+4), C+5)
    a(f"""v_add_f32 v{C}, v{C}, v{C+2}
    v_add_f32 v{C+1}, v{C+1}, v{C+3}
    v_permlane16_swap_b32 v{C+1}, v{C}
    v_add_f32 v{vCS}, v{C}, v{C+1}
    v_mov_b32 v{C}, v{vCS}
    v_permlane32_swap_b32 v{vCS}, v{C}
    v_add_f32 v{vCS}, v{vCS}, v{C}""")
    if opt["csm"]: a("s_branch L_dgot")
if opt["csm"]:
    only(0, colsums)
    poll(dloads, range(G, G+10), DD, got="L_dgot", ack=bool(opt["ackm"] & 4))
else: poll(dloads, range(G, G+10), DD, between=lambda: only(0, colsums))
tsn('H4_got')
jitter()
HF = T + 16
sd = []
for n in (1, 2, 4, 8): sd += [dp("v_add_f32", SD, SD, SD, f"row_ror:{n}"), dp("v_add_f32", SD+1, SD+1, SD+1, f"row_ror:{n}")]
sd += fin(SD, SD+1)
gd = [f"v_add_f32 v{G+r}, v{G+r}, v{G+4+r}" for r in range(4)] + \
     [f"v_permlane32_swap_b32 v{G}, v{G+1}", f"v_permlane32_swap_b32 v{G+2}, v{G+3}", f"v_add_f32 v{G}, v{G}, v{G+1}",
      f"v_add_f32 v{G+2}, v{G+2}, v{G+3}", f"v_permlane16_swap_b32 v{G}, v{G+2}", f"v_add_f32 v{G}, v{G}, v{G+2}"]
em([sd[0], sd[1], gd[0], sd[2], sd[3], gd[1], sd[4], sd[5], gd[2], sd[6], sd[7], gd[3], sd[8], sd[9], gd[4], sd[10], gd[5], sd[11], gd[6],
    gd[7], sd[12], sd[13], gd[8], gd[9]])
a(f"""v_fmac_f32 v{G}, v{SD}, v{vCS}
v_mul_f32 v{G}, v{G}, v{SD+1}
v_mov_b32 v{G+1}, v{G}
v_permlane16_swap_b32 v{G}, v{G+1}
v_max_f32 v{G}, 0, v{G}
v_mul_f32 v{G}, v{G}, v{G+1}
v_cvt_pk_bf16_f32 v{G}, v{G}, v{G}
ds_write_b16 v{vHw}, v{G}
s_waitcnt lgkmcnt(0)
s_barrier
ds_read_b128 {v4(HF)}, v{vHr}
ds_read_b128 {v4(HF+4)}, v{vHr} offset:64
s_waitcnt lgkmcnt(1)
{mf(v4(DD), a4(aWD), v4(HF), 0)}
s_waitcnt lgkmcnt(0)
{mf(v4(DD), a4(aWD+4), v4(HF+4), v4(DD))}
s_bfe_u32 s{sT0}, s2, 0x20006
s_and_b32 s{sT1}, s2, 7""")
exec_set(0x00030003, 0x00030003)
a(f"buffer_store_dwordx4 {v4(DD)}, v{vDNs}, {srd(WS_)}, s{sDNst} offen sc1")
exec_all()
tsn('DN_pub')
a(f"s_cmp_eq_u32 s{sLAYER}, 0\ns_cbranch_scc1 L_next")
jitter()
cm("---- last layer: group 0 finishes the output, one wave per 32 columns ----")
a(f"""s_cmp_eq_u32 s{sT1}, 0
s_cbranch_scc0 L_fin
s_waitcnt vmcnt(0)
s_barrier
s_cmp_eq_u32 s{sT0}, s{sWV}
s_cbranch_scc0 L_fin""")
poll(lines(sM2), range(M, M+16), M+16)
reduce32([(0, vX0, vX1)])
exec_set(0xff, 0xff)
a(f"buffer_store_dword v{M}, v{vXs}, {srd(OUT_)}, s{sXj} offen")
if TS or opt["until"] or opt["dbgto"]: a("s_mov_b64 exec, -1\n" + ("s_waitcnt vmcnt(0)\n" if opt["outw"] else "") + "s_branch L_fin")
else: a("s_endpgm")
cm("---- first layer: residual update of 128 columns, raw query partials for the next layer ----")
for _ in range(opt["pad2"]): a("s_nop 0")
a("L_next:")
jitter()
XA, vXw, vXr, DE = T+32, T+40, T+41, T+44
PT1 = [(O_OFF, 8, dict(idx=1024)), (GU_OFF, 8, dict(idx=1024)), (Q_OFF, 2, dict(s=256, ba=BLK)), (ST1_OFF, 1, dict(idx=128))]
if opt["pt2"] == 0: pretouch(vXw, LSTR, PT1)
soff(sT0, DN_OFF, w1=4*BLK, slot=BLK, w0=2*4096)
a(f"s_add_u32 s{sT1}, s{sT0}, 4096")
soff(sT2, X_OFF, True, w1=1024, slot=256, w0=128)
soff(sCS, X2_L, wv=128)
a(f"""v_add_u32 v{vXw}, s{sCS}, v{vXs}
v_and_b32 v{vXr}, 16, v{vL16}
v_lshl_add_u32 v{vXr}, v{vXr}, 4, v{vG16}
v_add_u32 v{vXr}, {X2_L}, v{vXr}""")
soff(sCS, ST2_OFF, True, slot=32, w0=16, w1=8)
poll([f"buffer_load_dword v{XA}, v{vXs}, {srd(WS_)}, s{sT2} offen", f"buffer_load_dword v{XA+1}, v{vXs}, {srd(WS_)}, s{sT2} offen offset:64"],
     range(XA, XA+2), XA+4)
a(f"""v_lshlrev_b32 v{XA+2}, 16, v{XA+1}
v_and_b32 v{XA+3}, 0xffff0000, v{XA+1}
v_and_b32 v{XA+1}, 0xffff0000, v{XA}
v_lshlrev_b32 v{XA}, 16, v{XA}
s_barrier""")
poll(lines(sT0) + lines(sT1, 16), range(M, M+32), XA+4, **(dict(between=lambda: pretouch(XA+6, LSTR, PT1, X_), wait1=1) if opt["pt2"] == 1 else {}))
reduce32([(0, XA, XA+1), (16, XA+2, XA+3)])
tsn('M2_done')
jitter()
a(f"""ds_write2_b32 v{vXw}, v{M}, v{M+16} offset0:0 offset1:16
v_lshlrev_b32 v{XA}, 16, v{M}
v_and_b32 v{XA+1}, 0xffff0000, v{M}
v_lshlrev_b32 v{XA+2}, 16, v{M+16}
v_and_b32 v{XA+3}, 0xffff0000, v{M+16}
s_add_u32 s{WS_}, s{WS_}, {LSTR:#x}
s_addc_u32 s{WS_+1}, s{WS_+1}, 0
s_waitcnt lgkmcnt(0)
s_barrier""")
XE = T + 48
for j in range(4): a(f"ds_read_b128 {v4(XE+4*j)}, v{vXr} offset:{64*j}")
a(f"""v_add_f32 v{M+1}, v{XA}, v{XA+1}
v_mul_f32 v{M+2}, v{XA}, v{XA}
v_add_f32 v{M+3}, v{XA+2}, v{XA+3}
v_fmac_f32 v{M+2}, v{XA+1}, v{XA+1}
v_add_f32 v{M+1}, v{M+1}, v{M+3}
v_fmac_f32 v{M+2}, v{XA+2}, v{XA+2}
v_fmac_f32 v{M+2}, v{XA+3}, v{XA+3}""")
st = sums(M+1, M+2)
for j in range(4):
    a(f"s_waitcnt lgkmcnt({3-j})")
    a(mf(v4(DE), a4(aWQ+4*j), v4(XE+4*j), 0 if j == 0 else v4(DE)))
    a(st[j])
a(st[4])
lst = lab("nost")
a(f"s_bfe_u32 s{sT0}, s2, 0x30003\ns_cmp_eq_u32 s{sT0}, 0\ns_cbranch_scc0 {lst}\ns_mov_b32 exec_lo, 1\ns_mov_b32 exec_hi, 1")
pub(f"buffer_store_dword v{M+1}, v{vXs}, {srd(WS_)}, s{sCS} offen")
a(f"{lst}:")
exec_set(0x00030003, 0x00030003)
a(f"v_cvt_pk_bf16_f32 v{DE}, v{DE}, v{DE+1}\nv_cvt_pk_bf16_f32 v{DE+1}, v{DE+2}, v{DE+3}")
pub(f"buffer_store_dwordx2 {v2(DE)}, v{vQs}, {srd(WS_)}, s{sQst} offen")
lnx = lab("nox")
a(f"s_mov_b32 s{sLAYER}, 1\ns_cmp_eq_u32 s{sT0}, 1\ns_cbranch_scc0 {lnx}")
exec_set(0xff, 0xff)
pub(f"buffer_store_dword v{M}, v{vXs}, {srd(WS_)}, s{sT2} offen", f"buffer_store_dword v{M+16}, v{vXs}, {srd(WS_)}, s{sT2} offen offset:64")
a(f"{lnx}:")
exec_all()
tsn('Q_pub')
ts_put([(TSB+2*k, 8+k) for k in range(12)], T+40)
a("s_branch L_layer")
tail = a.lines[MARK:]; del a.lines[MARK:]
for l, fn in early: a(f"{l}:"); fn()
a.lines += tail
n = 0
while n < len(deferred):
    l, fn = deferred[n]; a(f"{l}:"); fn(); n += 1
a("L_fin:")
if opt["dbgto"]:
    a(f"s_sub_u32 s{sT0}, {1 << opt['tobits']:#x}, s{sTO}\nv_mov_b32 v{T+40}, s{sT0}\ns_mov_b64 exec, 1\nbuffer_atomic_umax v{T+40}, off, {srd(DBG_)}, 0 offset:240 sc1\ns_mov_b64 exec, -1")
until(2)
if TS:
    ts(11)
    a(f"s_memrealtime s[{sE}:{sE+1}]")
    ts_put([(TSB+2*k, 24+k) for k in range(12)] + [(sE, 43), (sFAST, 40), (sTO, 41)], T+40)
    soff(sT0, TS_OFF - LSTR, wg=1024, wv=256)
    a(f"buffer_store_dword v{T+40}, v{vL4}, {srd(WS_)}, s{sT0} offen")
a("L_end:\ns_endpgm")

import asmlib
asmlib.BRANCH_MARGIN = 0 if opt['nobr'] else 1
body = a.finalize()
kn = NAME + "_kernel"
ref = open("cdna_kernels/" + NAME + ".s.ref").read().split("\n")
head = [l for l in ref if l.startswith(";") and "@launch" not in l and "Override launch" not in l and "grid=ceil" not in l][:13]
diag = ("; tsset " + opt["tsset"] + "\n; opts " + " ".join([sys.argv[0]] + [x for x in sys.argv[2:] if not x.startswith(("ts", "tobits", "outw"))]) + "\n") if TS else ""
doc = """; One persistent launch, one workgroup of four 512-register waves per CU.
;  - hand-offs between workgroups go through d_ws slots that this launch first fills with an all-ones sentinel; a counter in
;    d_debug (first layer's slots) or the data flow itself (second layer's) orders those writes before any use. Readers spin,
"""
src = "\n".join(head) + f"""
{diag}{doc}; @launch grid=(256,1,1) block=(256,1,1) lds={LDS_BYTES}
.amdgcn_target "amdgcn-amd-amdhsa--gfx950"
.text
.globl {kn}
.p2align 8
.type {kn},@function
{kn}:
{body}
.section .rodata,"a"
.p2align 6
.amdhsa_kernel {kn}
  .amdhsa_next_free_vgpr 512
  .amdhsa_next_free_sgpr 102
  .amdhsa_accum_offset 256
  .amdhsa_group_segment_fixed_size 0
  .amdhsa_kernarg_size 96
  .amdhsa_user_sgpr_count 2
  .amdhsa_user_sgpr_kernarg_segment_ptr 1
  .amdhsa_system_sgpr_workgroup_id_x 1
.end_amdhsa_kernel
"""
open(out_path, "w").write(src)
print("nops inserted:", a.nops, "lines:", len(body.split("\n")), file=sys.stderr)
```
